```python
import torch

def _softmax(x, axis=-1):
    return torch.softmax(x, dim=axis)
def _gelu(x):
    return torch.nn.functional.gelu(x, approximate="tanh")
def _silu(x):
    return torch.nn.functional.silu(x)
def _sigmoid(x):
    return torch.sigmoid(x)
def _layernorm(x, axis=-1, eps=1e-5):
    m = x.mean(dim=axis, keepdim=True)
    v = x.var(dim=axis, keepdim=True, unbiased=False)
    return (x - m) / torch.sqrt(v + eps)
def _scatter_add(tgt, idx, src, axis=0):
    return tgt.clone().index_add_(axis, idx, src)
def _segment_sum(src, seg, n):
    out = torch.zeros((n,) + src.shape[1:], dtype=src.dtype)
    return out.index_add_(0, seg, src)
def _pad(x, pw):
    flat = tuple(v for pair in reversed(pw) for v in pair)
    return torch.nn.functional.pad(x, flat)

kernel_name = 'interleave_layers__ssm_conv_h3__dense_activation_mish__prompt'

def setup_inputs():

    _w = (lambda a: (lambda t: t.to(torch.bfloat16) if t.is_floating_point() else t)(torch.as_tensor(a)))
    def _A_setup():
        B, S, D = 1, 2048, 640
        ks = 4
        return {
            "q": _w((lambda *s: torch.randn(*s, dtype=torch.bfloat16) * 0.05)(B, S, D)),
            "k": _w((lambda *s: torch.randn(*s, dtype=torch.bfloat16) * 0.2)(B, S, D)),
            "v": _w((lambda *s: torch.randn(*s, dtype=torch.bfloat16) * 0.2)(B, S, D)),
            "shift_k": _w((lambda *s: torch.randn(*s, dtype=torch.bfloat16) * 0.2)(D, ks) * 0.5),
            "ssm_k": _w((lambda *s: torch.randn(*s, dtype=torch.bfloat16) * 0.4)(D, S) * (1.0 / S ** 0.5)),
            "ssm_D": _w((lambda *s: torch.randn(*s, dtype=torch.bfloat16) * 0.2)(D)),
        }
    _A_in = _A_setup()

    def _B_setup():
        B, S, D, F = 1, 2048, 640, 1728
        return {
            "x": _w((lambda *s: torch.randn(*s, dtype=torch.bfloat16) * 0.05)(B, S, D)),
            "w1": _w((lambda *s: torch.randn(*s, dtype=torch.bfloat16) * 0.8)(D, F) * (D ** -0.5)),
            "b1": _w((lambda *s: torch.randn(*s, dtype=torch.bfloat16) * 0.2)(F)),
            "w2": _w((lambda *s: torch.randn(*s, dtype=torch.bfloat16) * 0.1)(F, D) * (F ** -0.5)),
        }
    _B_in = _B_setup()

    return {
        "A_q": _A_in["q"],
        "A_k": _A_in["k"],
        "A_v": _A_in["v"],
        "A_shift_k": _A_in["shift_k"],
        "A_ssm_k": _A_in["ssm_k"],
        "A_ssm_D": _A_in["ssm_D"],
        "B_x": _B_in["x"],
        "B_w1": _B_in["w1"],
        "B_b1": _B_in["b1"],
        "B_w2": _B_in["w2"],
    }

def reference(A_q, A_k, A_v, A_shift_k, A_ssm_k, A_ssm_D, B_x, B_w1, B_b1, B_w2):
    def _A_ref(q, k, v, shift_k, ssm_k, ssm_D):
        B, S, D = q.shape
        ks = shift_k.shape[-1]
        k_pad = _pad(k, ((0, 0), (ks - 1, 0), (0, 0)))
        k_shift = torch.zeros_like(k)
        for t in range(ks):
            k_shift = k_shift + k_pad[:, t:t + S, :] * shift_k[:, ks - 1 - t][None, None, :]
        kv = k_shift * v
        L = 2 * S
        kv_pad = _pad(kv, ((0, 0), (0, S), (0, 0)))
        kf_pad = _pad(ssm_k, ((0, 0), (0, S)))
        kv_f = (lambda x, axes=(-2,-1): torch.fft.rfft2(x.float(), dim=axes))(kv_pad[:, None, :, :], axes=(1, 2))
        kf_f = (lambda x, axes=(-2,-1): torch.fft.rfft2(x.float(), dim=axes))(kf_pad[:, None, :], axes=(1, 2))
        kf_f = (lambda x, *d: x.permute(*d))(kf_f, 1, 2, 0)
        y_f = kv_f * kf_f[None, :, :, :]
        y = (lambda x, s, axes=(-2,-1): torch.fft.irfft2(x, s=s, dim=axes).to(torch.bfloat16))(y_f, (1, L), axes=(1, 2))[:, 0, :S, :]
        y = y + kv * ssm_D[None, None, :]
        return q * y

    def _B_ref(x, w1, b1, w2):
        h = torch.einsum("bsd,df->bsf", x, w1) + b1
        sp = torch.log1p(torch.exp(-torch.abs(h))) + torch.where(h > 0, h, torch.zeros_like(h))
        act = h * torch.tanh(sp)
        return torch.einsum("bsf,fd->bsd", act, w2)

    x = A_q
    x = x + _A_ref(_layernorm(x, axis=-1), A_k, A_v, A_shift_k, A_ssm_k, A_ssm_D)
    x = x + _B_ref(_layernorm(x, axis=-1), B_w1, B_b1, B_w2)
    x = x + _A_ref(_layernorm(x, axis=-1), A_k, A_v, A_shift_k, A_ssm_k, A_ssm_D)
    x = x + _B_ref(_layernorm(x, axis=-1), B_w1, B_b1, B_w2)
    return x
```

```python
import re

REG_RE = re.compile(r'^(-|\|)?(abs\()?([vas])(\d+|\[(\d+):(\d+)\])\)?\|?$')

def regs_of(tok):
    t = tok.strip()
    if t in ('vcc', 'vcc_lo', 'vcc_hi'):
        return [('x', 'vcc')]
    if t in ('exec', 'exec_lo', 'exec_hi'):
        return [('x', 'exec')]
    if t == 'm0':
        return [('x', 'm0')]
    m = REG_RE.match(t)
    if not m:
        return []
    k = m.group(3)
    if m.group(5) is not None:
        return [(k, i) for i in range(int(m.group(5)), int(m.group(6)) + 1)]
    return [(k, int(m.group(4)))]

TRANS = ('v_exp_f32', 'v_log_f32', 'v_rcp_f32', 'v_rsq_f32', 'v_sqrt_f32', 'v_sin_f32', 'v_cos_f32', 'v_rcp_iflag_f32')

class Ins:
    __slots__ = ('text', 'op', 'kind', 'wr', 'rd', 'mf_pass', 'mf_c', 'mf_ab', 'mf_d', 'target', 'tokens_rd', 'token_wr',
                 'wide_store', 'dma', 'nopn', 'waits', 'is_label', 'cond', 'raw', 'sdwa')
    def __init__(self, text):
        self.text = text
        self.is_label = False
        self.raw = False
        self.tokens_rd = []
        self.token_wr = None
        self.parse()

    def parse(self):
        t = self.text.split(';')[0].strip()
        parts = t.split(None, 1)
        op = parts[0]
        self.op = op
        rest = parts[1] if len(parts) > 1 else ''
        ops = []
        depth = 0
        cur = ''
        for ch in rest:
            if ch in '[(':
                depth += 1
            if ch in '])':
                depth -= 1
            if ch == ',' and depth == 0:
                ops.append(cur.strip()); cur = ''
            else:
                cur += ch
        if cur.strip():
            ops.append(cur.strip())
        mods = []
        if ops:
            lastparts = ops[-1].split()
            ops[-1] = lastparts[0]
            mods = lastparts[1:]
        self.wr = set(); self.rd = set()
        self.mf_pass = 0; self.mf_c = set(); self.mf_ab = set(); self.mf_d = ()
        self.target = None; self.wide_store = set(); self.dma = False; self.nopn = 0; self.waits = None; self.cond = False
        self.sdwa = False
        R = lambda i: regs_of(ops[i]) if i < len(ops) else []
        base = op.replace('_e32', '').replace('_e64', '')
        if op.startswith('v_mfma'):
            self.kind = 'mfma'
            self.mf_pass = 8 if '32x32' in op else 4
            self.mf_d = tuple(R(0)); self.wr = set(R(0))
            self.mf_ab = set(R(1)) | set(R(2)); self.mf_c = set(R(3))
            self.rd = self.mf_ab | self.mf_c
        elif op.startswith('v_'):
            self.kind = 'valu'
            if base in TRANS: self.kind = 'trans'
            if 'permlane' in op and 'swap' in op:
                self.wr = set(R(0)) | set(R(1)); self.rd = set(self.wr); self.kind = 'perm'
            elif op.startswith('v_cmp'):
                self.wr = set(R(0)); self.rd = set(R(1)) | set(R(2))
                if op.startswith('v_cmpx'): self.wr.add(('x', 'exec'))
            elif op.startswith('v_readfirstlane') or op.startswith('v_readlane'):
                self.kind = 'readlane'
                self.wr = set(R(0)); self.rd = set(sum([R(i) for i in range(1, len(ops))], []))
            elif base in ('v_add_co_u32', 'v_sub_co_u32', 'v_subrev_co_u32', 'v_addc_co_u32', 'v_subb_co_u32', 'v_mad_u64_u32', 'v_div_scale_f32'):
                self.wr = set(R(0)) | set(R(1)); self.rd = set(sum([R(i) for i in range(2, len(ops))], []))
            elif base == 'v_nop':
                pass
            else:
                self.wr = set(R(0)); self.rd = set(sum([R(i) for i in range(1, len(ops))], []))
                if base in ('v_fmac_f32', 'v_pk_fmac_f16', 'v_dot2c_f32_bf16', 'v_writelane_b32') or 'd16' in op:
                    self.rd |= set(R(0))
                if base == 'v_cndmask_b32' and len(ops) == 3:
                    self.rd.add(('x', 'vcc'))
            ms = ' '.join(mods)
            if 'row_' in ms or 'quad_perm' in ms or 'wave_' in ms or '_dpp' in op:
                self.kind = 'dpp'
                self.rd |= set(R(0))
            if 'dst_sel' in ms or '_sdwa' in op:
                self.sdwa = True
                self.rd |= set(R(0))
        elif op.startswith('ds_'):
            self.kind = 'ds'
            if op.startswith('ds_read') or op.startswith('ds_bpermute') or op.startswith('ds_swizzle') or op.startswith('ds_permute'):
                self.wr = set(R(0)); self.rd = set(sum([R(i) for i in range(1, len(ops))], []))
                if 'd16' in op: self.rd |= set(R(0))
            else:
                self.rd = set(sum([R(i) for i in range(len(ops))], []))
        elif op.startswith('buffer_') or op.startswith('global_'):
            self.kind = 'vmem'
            allr = lambda lo: set(sum([R(i) for i in range(lo, len(ops))], []))
            if op in ('buffer_wbl2', 'buffer_inv'):
                pass
            elif 'lds' in mods or '_lds_' in op:
                self.dma = True
                self.rd = allr(0) | {('x', 'm0')}
            elif '_load' in op:
                self.wr = set(R(0)); self.rd = allr(1)
                if 'd16' in op: self.rd |= set(R(0))
            elif '_store' in op:
                self.rd = allr(0)
                if 'x3' in op or 'x4' in op:
                    self.wide_store = set(R(0)) if op.startswith('buffer_') else set(R(1))
            elif '_atomic' in op:
                self.rd = allr(0)
                if 'sc0' in mods:
                    self.wr = set(R(0))
            else:
                raise ValueError('unknown vmem ' + t)
        elif op.startswith('s_'):
            self.kind = 'salu'
            if op == 's_nop':
                self.kind = 'nop'; self.nopn = int(ops[0], 0) + 1
            elif op == 's_waitcnt':
                self.kind = 'wait'
                w = {}
                for mm in re.finditer(r'(vmcnt|lgkmcnt|expcnt)\((\d+)\)', t):
                    w[mm.group(1)] = int(mm.group(2))
                self.waits = w
            elif op.startswith('s_load') or op.startswith('s_buffer_load') or op in ('s_memtime', 's_memrealtime'):
                self.kind = 'smem'
                self.wr = set(R(0)); self.rd = set(sum([R(i) for i in range(1, len(ops))], []))
            elif op == 's_branch':
                self.kind = 'branch'; self.target = ops[0]
            elif op.startswith('s_cbranch'):
                self.kind = 'branch'; self.target = ops[0]; self.cond = True
                if 'vcc' in op: self.rd = {('x', 'vcc')}
            elif op == 's_endpgm':
                self.kind = 'end'
            elif op in ('s_barrier', 's_sleep', 's_setprio', 's_sethalt'):
                pass
            elif op.startswith('s_cmp') or op.startswith('s_bitcmp'):
                self.rd = set(sum([R(i) for i in range(len(ops))], []))
            else:
                self.wr = set(R(0)); self.rd = set(sum([R(i) for i in range(1, len(ops))], []))
                if 'saveexec' in op:
                    self.wr.add(('x', 'exec')); self.rd.add(('x', 'exec'))
                if op in ('s_addk_i32', 's_mulk_i32', 's_cmov_b32', 's_cmov_b64', 's_bitset1_b32', 's_bitset0_b32'):
                    self.rd |= set(R(0))
        else:
            raise ValueError('unknown op ' + t)

VALU_KINDS = ('valu', 'trans', 'perm', 'dpp', 'readlane')

def isv(r): return r[0] in ('v', 'a')
def iss(r): return r[0] == 's' or r == ('x', 'vcc')

def need_states(p, c):
    n = 0
    pv = p.kind in VALU_KINDS
    cv = c.kind in VALU_KINDS
    if pv:
        wv = {r for r in p.wr if isv(r)}
        ws = {r for r in p.wr if iss(r)}
        if wv & c.rd:
            if c.kind == 'readlane': n = max(n, 1)
            if c.kind in ('perm', 'dpp'): n = max(n, 2)
            if c.kind == 'mfma': n = max(n, 2)
            if p.kind == 'trans': n = max(n, 1)
            if p.sdwa: n = max(n, 1)
        if p.sdwa and (wv & c.wr): n = max(n, 1)
        if ws & c.rd:
            if cv: n = max(n, 4 if c.kind == 'readlane' else 2)
            if c.kind == 'vmem': n = max(n, 5)
        if ('x', 'exec') in p.wr:
            if c.kind in ('dpp',): n = max(n, 5)
            if c.kind in ('readlane', 'perm', 'mfma'): n = max(n, 4)
    if p.kind == 'mfma':
        P = p.mf_pass
        d = set(p.mf_d)
        if c.kind == 'mfma':
            if d & c.mf_ab: n = max(n, P + 4)
            if d & c.mf_c:
                if not (tuple(sorted(c.mf_c)) == tuple(sorted(d)) and c.mf_pass == P): n = max(n, P + 2)
            if (d & c.wr) and not (d & c.mf_c): n = max(n, P + 2)
        elif cv or c.kind in ('vmem', 'ds'):
            if d & (c.rd | c.wr): n = max(n, P + 4)
        if cv and (p.mf_c & c.wr): n = max(n, P - 1)
        if c.kind in ('vmem', 'ds') and (p.mf_c & c.wr): n = max(n, P - 1)
    if p.kind == 'salu' and ('x', 'm0') in p.wr and c.dma:
        n = max(n, 1)
    if p.wide_store and (p.wide_store & c.wr):
        n = max(n, 2)
    return n

MAXH = 13

class State:
    __slots__ = ('vm', 'lg', 'smem', 'hist')
    def __init__(self):
        self.vm = {}
        self.lg = {}
        self.smem = set()
        self.hist = []
    def copy(self):
        s = State(); s.vm = dict(self.vm); s.lg = dict(self.lg); s.smem = set(self.smem); s.hist = list(self.hist); return s
    def merge(self, o):
        ch = False
        for a, b in ((self.vm, o.vm), (self.lg, o.lg)):
            for k, v in b.items():
                if k not in a or v < a[k]:
                    a[k] = v; ch = True
        if not o.smem <= self.smem:
            self.smem |= o.smem; ch = True
        h = {id(i): (i, d) for i, d in self.hist}
        for i, d in o.hist:
            if id(i) not in h or d < h[id(i)][1]:
                h[id(i)] = (i, d); ch = True
        self.hist = list(h.values())
        return ch

class Prog:
    def __init__(self):
        self.items = []
        self.uid = 0
        self.junk = set()
    def __call__(self, s, tok_wr=None, tok_rd=None):
        last = None
        for l in s.strip('\n').split('\n'):
            l = l.strip()
            if not l or l.startswith(';'):
                continue
            if l.endswith(':'):
                self.label(l[:-1]); continue
            last = Ins(l)
            self.items.append(last)
        if tok_wr is not None: last.token_wr = tok_wr
        return last
    def label(self, n):
        i = Ins.__new__(Ins); i.text = n; i.is_label = True; i.raw = False; i.kind = 'label'
        self.items.append(i)
    def raw(self, s):
        i = Ins.__new__(Ins); i.text = s; i.is_label = False; i.raw = True; i.kind = 'raw'
        self.items.append(i)
    def L(self, p='L'):
        self.uid += 1
        return f'{p}_{self.uid}'
    def tok(self):
        self.uid += 1
        return ('t', self.uid)
    def need(self, *toks):
        i = Ins.__new__(Ins); i.text = ''; i.is_label = False; i.raw = False; i.kind = 'need'; i.tokens_rd = list(toks)
        self.items.append(i)

    def step(self, st, ins, out):
        if ins.kind in ('raw', 'label'):
            if out is not None: out.append(ins.text + (':' if ins.is_label else ''))
            return
        touch = set(ins.tokens_rd) if ins.kind == 'need' else (ins.rd | ins.wr)
        wv = min([st.vm[r] for r in touch if r in st.vm], default=None)
        wl = min([st.lg[r] for r in touch if r in st.lg], default=None)
        if touch & st.smem: wl = 0
        if wl is not None and st.smem: wl = 0
        if wv is not None and wv > 63: wv = None
        if wl is not None and wl > 15: wl = 15
        if wv is not None or wl is not None:
            txt = 's_waitcnt' + (f' vmcnt({wv})' if wv is not None else '') + (f' lgkmcnt({wl})' if wl is not None else '')
            self.apply_wait(st, wv, wl)
            self.advance(st, None, 1)
            if out is not None: out.append('    ' + txt)
        if ins.kind == 'need':
            return
        n = 0
        for p, d in st.hist:
            r = need_states(p, ins)
            if r > d: n = max(n, r - d)
        while n > 0:
            k = min(n, 16)
            if out is not None: out.append(f'    s_nop {k-1}')
            self.advance(st, None, k)
            n -= k
        if out is not None: out.append('    ' + ins.text)
        if ins.kind == 'wait':
            self.apply_wait(st, ins.waits.get('vmcnt'), ins.waits.get('lgkmcnt'))
        if ins.kind == 'vmem':
            for k in st.vm: st.vm[k] += 1
            for r in ins.wr:
                if r not in self.junk: st.vm[r] = 0
            if ins.token_wr is not None: st.vm[ins.token_wr] = 0
        if ins.kind == 'ds':
            for k in st.lg: st.lg[k] += 1
            for r in ins.wr: st.lg[r] = 0
        if ins.kind == 'smem':
            st.smem |= ins.wr
        self.advance(st, ins, ins.nopn if ins.kind == 'nop' else 1)

    def apply_wait(self, st, wv, wl):
        if wv is not None:
            st.vm = {k: v for k, v in st.vm.items() if v < wv}
        if wl is not None:
            if st.smem and wl > 0:
                return
            st.lg = {k: v for k, v in st.lg.items() if v < wl}
            if wl == 0: st.smem = set()

    def advance(self, st, ins, n):
        h = [(p, d + n) for p, d in st.hist if d + n < MAXH]
        if ins is not None and (ins.kind in VALU_KINDS or ins.kind == 'mfma' or ins.wide_store or (ins.kind == 'salu' and ('x', 'm0') in ins.wr)):
            h.append((ins, 0))
        st.hist = h

    def finalize(self):
        items = self.items
        leaders = {0}
        labelpos = {}
        for i, it in enumerate(items):
            if it.kind == 'label':
                leaders.add(i); labelpos[it.text] = i
            if it.kind in ('branch', 'end'):
                leaders.add(i + 1)
        leaders = sorted(x for x in leaders if x < len(items))
        blocks = [(s, (leaders[k + 1] if k + 1 < len(leaders) else len(items))) for k, s in enumerate(leaders)]
        bidx = {s: k for k, (s, e) in enumerate(blocks)}
        def succ(k):
            s, e = blocks[k]
            last = items[e - 1]
            r = []
            if last.kind == 'end': return r
            if last.kind == 'branch':
                r.append(bidx[labelpos[last.target]])
                if not last.cond: return r
            if k + 1 < len(blocks): r.append(k + 1)
            return r
        ins_state = {0: State()}
        entry_extra = [k for k, (s, e) in enumerate(blocks) if items[s].kind == 'label' and items[s].text.endswith('_kernel')]
        for k in entry_extra: ins_state.setdefault(k, State())
        work = list(ins_state.keys())
        while work:
            k = work.pop(0)
            st = ins_state[k].copy()
            s, e = blocks[k]
            for i in range(s, e): self.step(st, items[i], None)
            for n in succ(k):
                if n not in ins_state:
                    ins_state[n] = st.copy(); work.append(n)
                elif ins_state[n].merge(st):
                    if n not in work: work.append(n)
        out = []
        for k, (s, e) in enumerate(blocks):
            st = ins_state.get(k, State()).copy()
            for i in range(s, e): self.step(st, items[i], out)
        return '\n'.join(out) + '\n'
```

```python
import sys
from gasm import Prog

NAME = "interleave_layers__ssm_conv_h3__dense_activation_mish__prompt"
STAMPS = "--stamps" in sys.argv
FORCE_SLOW = "--slow" in sys.argv
SPIN = 400000

WS_EPOCH = 0
WS_XC = 0x800
WS_FT = 0x1000
WS_FW1 = 0x2000
WS_FW2 = 0x2800
WS_FX = 0x3000
WS_FH = 0x5000
WS_ST = 0x100000
WS_UR = 0x200000
WS_YG = 0x500000
WS_XF = 0xA00000
WS_HF = 0x1000000
WS_W1F = 0x1E00000
WS_W2F = 0x2100000
WS_STAMP = 0x3000000
XF_LAYER = 16 * 8 * 20 * 1024
HF_LAYER = 16 * 8 * 54 * 1024
ST_K = 32 * 4 * 8 * 16 * 16

CONV_PITCH = 21312
HC_PITCH = 4160
LU_OFF = 4 * HC_PITCH
T_BASE = 86016
RED_BASE = 143360
LDS_BYTES = 163840

sQ, sK, sV, sSK, sH, sD, sBX, sW1, sB1, sW2, sOUT, sDBG, sWS = [4 + 2 * i for i in range(13)]
R_WS, R_K, R_V, R_H, R_W = 32, 36, 40, 44, 48
sJ, sSIG, sW, sA, sB, sM, sN, sTAG, sFAST, sLAYER, sT0 = 52, 53, 54, 55, 56, 57, 58, 59, 60, 61, 62
sE = 63
t0, t1, t2, t3, t4, t5, t6, t7 = 64, 65, 66, 67, 68, 69, 70, 71
sSPIN = 72
sXFB, sHFB, sFXB, sFHB, sSTB = 73, 74, 75, 76, 77
sDVAL = 78
sXV = 79
sSTAMP = 80
srd = lambda r: f"s[{r}:{r+3}]"
pair = lambda r: f"s[{r}:{r+1}]"

vL16, vN, vG, vL8, vSTAMP = 1, 2, 3, 4, 5
XP, YP = 6, 16
CS, BB = 36, 64
vr = lambda b, n: f"v[{b}:{b+n-1}]" if n > 1 else f"v{b}"

def w2reg(q):
    return f"a[{4*q}:{4*q+3}]" if q < 64 else f"v[{232+4*(q-64)}:{232+4*(q-64)+3}]"

p = Prog()
J = 27
p.junk = {('v', J)}
nstamp = [0]
stamp_names = []
INLOOP = [False]
def stamp(name):
    if not STAMPS: return
    i = nstamp[0]; nstamp[0] += 1
    stamp_names.append(name)
    p(f"""s_memrealtime {pair(sSTAMP)}
    s_waitcnt lgkmcnt(0)""")
    if INLOOP[0]:
        A, B = p.L("SA"), p.L("SB")
        p(f"""s_cmp_lg_u32 s{sLAYER}, 0
        s_cbranch_scc1 {A}
        v_writelane_b32 v{vSTAMP}, s{sSTAMP}, {i}
        s_branch {B}""")
        p.label(A)
        p(f"v_writelane_b32 v{vSTAMP}, s{sSTAMP}, {i+32}")
        p.label(B)
    else:
        p(f"v_writelane_b32 v{vSTAMP}, s{sSTAMP}, {i}")

def spin_begin():
    p(f"s_mov_b32 s{sSPIN}, 0")
def spin_check(exit_label):
    p(f"""s_add_u32 s{sSPIN}, s{sSPIN}, 1
    s_cmp_gt_u32 s{sSPIN}, {SPIN}
    s_cbranch_scc1 {exit_label}""")

def poll_flags(voff, soff, vtmp, wide=False, local=True):
    L, X = p.L("POLL"), p.L("POLLX")
    spin_begin()
    p.label(L)
    spin_check(X)
    if wide:
        p(f"""buffer_load_dwordx2 {vr(vtmp,2)}, v{voff}, {srd(R_WS)}, s{soff} offen sc1
        s_waitcnt vmcnt(0)
        v_cmp_ne_u32 vcc, s{sTAG}, v{vtmp}
        s_cbranch_vccnz {L}
        v_cmp_ne_u32 vcc, s{sTAG}, v{vtmp+1}
        s_cbranch_vccnz {L}""")
    else:
        p(f"""buffer_load_dword v{vtmp}, v{voff}, {srd(R_WS)}, s{soff} offen sc1
        s_waitcnt vmcnt(0)
        v_cmp_ne_u32 vcc, s{sTAG}, v{vtmp}
        s_cbranch_vccnz {L}""")
    p.label(X)
    if local:
        S = p.L("NOINV")
        p(f"""s_cmp_lg_u32 s{sFAST}, 0
        s_cbranch_scc1 {S}
        buffer_inv sc1
        s_waitcnt vmcnt(0)""")
        p.label(S)

def publish_local(soff, vtmp):
    S, E = p.L("PUBS"), p.L("PUBE")
    p(f"""v_mov_b32 v{vtmp}, s{sTAG}
    v_mov_b32 v{vtmp+1}, 0
    s_waitcnt vmcnt(0)
    s_mov_b64 exec, 1
    s_cmp_eq_u32 s{sFAST}, 0
    s_cbranch_scc1 {S}
    buffer_store_dword v{vtmp}, v{vtmp+1}, {srd(R_WS)}, s{soff} offen
    s_branch {E}""")
    p.label(S)
    p(f"""buffer_wbl2 sc1
    s_waitcnt vmcnt(0)
    buffer_store_dword v{vtmp}, v{vtmp+1}, {srd(R_WS)}, s{soff} offen sc1""")
    p.label(E)
    p("s_mov_b64 exec, -1")

def xg_reduce(regs, tmp):
    for sw in ("v_permlane16_swap_b32", "v_permlane32_swap_b32"):
        for i, r in enumerate(regs):
            p(f"v_mov_b32 v{tmp+i}, v{r}")
        for i, r in enumerate(regs):
            p(f"{sw} v{r}, v{tmp+i}")
        for i, r in enumerate(regs):
            p(f"v_add_f32 v{r}, v{r}, v{tmp+i}")

def unpack(dst, src, n):
    for i in range(n):
        p(f"v_lshlrev_b32 v{dst+2*i}, 16, v{src+i}")
        p(f"v_and_b32 v{dst+2*i+1}, 0xffff0000, v{src+i}")

def pack(dst, src, n):
    for i in range(n):
        p(f"v_cvt_pk_bf16_f32 v{dst+i}, v{src+2*i}, v{src+2*i+1}")

def stats_publish(x, g, soff):
    p(f"v_pk_mul_f32 {vr(g+2,2)}, {vr(x,2)}, {vr(x,2)}")
    p(f"v_pk_add_f32 {vr(g,2)}, {vr(x,2)}, {vr(x+2,2)}")
    p(f"v_pk_fma_f32 {vr(g+2,2)}, {vr(x+2,2)}, {vr(x+2,2)}, {vr(g+2,2)}")
    for i in range(2, 10):
        p(f"v_pk_add_f32 {vr(g,2)}, {vr(g,2)}, {vr(x+2*i,2)}")
        p(f"v_pk_fma_f32 {vr(g+2,2)}, {vr(x+2*i,2)}, {vr(x+2*i,2)}, {vr(g+2,2)}")
    p(f"v_add_f32 v{g}, v{g}, v{g+1}")
    p(f"v_add_f32 v{g+1}, v{g+2}, v{g+3}")
    xg_reduce([g, g + 1], g + 4)
    S, E = p.L("STS"), p.L("STE")
    p(f"""v_mov_b32 v{g+2}, s{sTAG}
    v_mov_b32 v{g+3}, 0
    s_mov_b64 exec, 0xffff
    s_cmp_eq_u32 s{sFAST}, 0
    s_cbranch_scc1 {S}
    buffer_store_dwordx4 {vr(g,4)}, v{vL16}, {srd(R_WS)}, s{soff} offen
    s_branch {E}""")
    p.label(S)
    p(f"buffer_store_dwordx4 {vr(g,4)}, v{vL16}, {srd(R_WS)}, s{soff} offen sc1")
    p.label(E)
    p("s_mov_b64 exec, -1")

def bf16r(r):
    p(f"v_cvt_pk_bf16_f32 v{r}, v{r}, v{r}")
    p(f"v_lshlrev_b32 v{r}, 16, v{r}")

def ln_scalars(s, q, tmp):
    p(f"v_mul_f32 v{s}, 0x3acccccd, v{s}")
    p(f"v_mul_f32 v{q}, 0x3acccccd, v{q}")
    p(f"v_fma_f32 v{q}, -v{s}, v{s}, v{q}")
    p(f"v_max_f32 v{q}, 0, v{q}")
    bf16r(s); bf16r(q)
    p(f"v_add_f32 v{q}, 0x3727c5ac, v{q}")
    bf16r(q)
    p(f"v_sqrt_f32 v{q}, v{q}")
    bf16r(q)
    p(f"v_rcp_f32 v{q}, v{q}")

KN = NAME + "_kernel"
p.raw(f"; @launch grid=(256,1,1) block=(256,1,1) lds={LDS_BYTES}")
p.raw('.amdgcn_target "amdgcn-amd-amdhsa--gfx950"')
p.raw(".text")
p.raw(f".globl {KN}")
p.raw(".p2align 8")
p.raw(f".type {KN},@function")
p.label(KN)
p(f"""s_cmp_ge_u32 s2, 256
s_cbranch_scc1 END
s_load_dwordx16 s[4:19], s[0:1], 0
s_load_dwordx8 s[20:27], s[0:1], 64
s_load_dwordx2 s[28:29], s[0:1], 96""")
if STAMPS:
    p(f"v_mov_b32 v{vSTAMP}, 0")
stamp("start")
p(f"""v_lshrrev_b32 v30, 6, v0
v_and_b32 v0, 63, v0
v_readfirstlane_b32 s{sW}, v30
v_lshlrev_b32 v{vL16}, 4, v0
v_lshlrev_b32 v{vL8}, 3, v0
v_and_b32 v{vN}, 15, v0
v_lshrrev_b32 v{vG}, 4, v0
s_and_b32 s{sJ}, s2, 7
s_lshr_b32 s{sSIG}, s2, 3
s_lshr_b32 s{t0}, s{sSIG}, 3
s_lshl_b32 s{sA}, s{sJ}, 2
s_add_u32 s{sA}, s{sA}, s{t0}
s_and_b32 s{sB}, s{sSIG}, 7
s_lshr_b32 s{sM}, s{sA}, 1
s_and_b32 s{sN}, s{sSIG}, 15
; lane -> (row = lane/10, chunk = lane%10) : v31 = row*1280 + chunk*16
v_mul_u32_u24 v30, 205, v0
v_lshrrev_b32 v30, 11, v30
v_mul_u32_u24 v31, 10, v30
v_sub_u32 v31, v0, v31
v_lshlrev_b32 v31, 4, v31
v_mov_b32 v33, 1280
v_mad_u32_u24 v31, v30, v33, v31
; s = (64 sig + 16 w)*1280 + 160 j
s_lshl_b32 s{t0}, s{sSIG}, 2
s_add_u32 s{t0}, s{t0}, s{sW}
s_mul_i32 s{t1}, s{t0}, 20480
s_mul_i32 s{t2}, s{sJ}, 160
s_add_u32 s{t1}, s{t1}, s{t2}
v_add_u32 v31, s{t1}, v31
v_subrev_u32 v32, 5120, v31
s_mul_i32 s{t3}, s{sW}, 6400
s_add_u32 s{t3}, s{t3}, {T_BASE}
s_mov_b32 s{R_K+2}, 2621440
s_mov_b32 s{R_K+3}, 0x20000
s_mov_b32 s{R_V+2}, 2621440
s_mov_b32 s{R_V+3}, 0x20000
s_mov_b32 s{R_H+2}, 2621440
s_mov_b32 s{R_H+3}, 0x20000
s_mov_b32 s{R_WS+2}, 0x10000000
s_mov_b32 s{R_WS+3}, 0x20000
s_mov_b32 s{R_W+3}, 0x20000
s_waitcnt lgkmcnt(0)
s_load_dword s{sE}, {pair(sWS)}, {WS_EPOCH}
s_mov_b32 s{R_K}, s{sK}
s_mov_b32 s{R_K+1}, s{sK+1}
s_mov_b32 s{R_V}, s{sV}
s_mov_b32 s{R_V+1}, s{sV+1}
s_mov_b32 s{R_H}, s{sH}
s_mov_b32 s{R_H+1}, s{sH+1}
s_mov_b32 s{R_WS}, s{sWS}
s_mov_b32 s{R_WS+1}, s{sWS+1}
s_mov_b32 exec_hi, 0x3ffff
s_mov_b32 m0, s{t3}""")
tokT = p.tok()
for q in range(4):
    p(f"buffer_load_dwordx4 v32, {srd(R_K)}, 0 offen nt lds")
    p(f"s_add_u32 m0, m0, 800")
    if q < 3: p(f"v_add_u32 v32, 6400, v32")
for q in range(4):
    p(f"buffer_load_dwordx4 v31, {srd(R_V)}, 0 offen nt lds", tok_wr=(tokT if q == 3 else None))
    if q < 3:
        p(f"s_add_u32 m0, m0, 800")
        p(f"v_add_u32 v31, 6400, v31")
p("s_mov_b64 exec, -1")
stamp("kv_issued")
SKP = 50
p(f"""s_mul_i32 s{t0}, s{sJ}, 640
v_lshl_add_u32 v30, v{vN}, 3, s{t0}""")
for dt in range(5):
    p(f"global_load_dwordx2 {vr(SKP+2*dt,2)}, v30, {pair(sSK)} offset:{128*dt}")
p(f"""s_mul_i32 s{t0}, s{sJ}, 80
s_mul_i32 s{t1}, s{sW}, 20
s_add_u32 s{t0}, s{t0}, s{t1}
s_lshl_b32 s{t0}, s{t0}, 12
s_lshl_b32 s{t1}, s{sSIG}, 7
s_sub_u32 s{t0}, s{t0}, s{t1}
s_add_u32 s{t0}, s{t0}, {WS_UR + 4096 - 128}
v_lshlrev_b32 v30, 12, v0
s_mov_b64 exec, 0xfffff
buffer_load_dword v{J}, v30, {srd(R_WS)}, s{t0} offen sc1
s_mov_b64 exec, -1""")
stamp("prewarm_issued")
p(f"""s_getpc_b64 {pair(t6)}
s_lshl_b32 s{t0}, s{sSIG}, 2
s_add_u32 s{t0}, s{t0}, s{sW}
s_lshl_b32 s{t0}, s{t0}, 8
v_lshl_add_u32 v30, v0, 2, s{t0}
global_load_dword v{J}, v30, {pair(t6)}""")
p(f"""s_lshl_b32 s{t0}, s{sA}, 2
s_add_u32 s{t0}, s{t0}, s{sW}
s_mul_i32 s{t0}, s{t0}, 20480
s_mul_i32 s{t1}, s{sB}, 160
s_add_u32 s{t0}, s{t0}, s{t1}
v_mov_b32 v33, 1280
v_mov_b32 v31, s{t0}
v_mad_u32_u24 v31, v{vN}, v33, v31
v_lshl_add_u32 v28, v{vG}, 3, v31""")
for dt in range(5):
    p(f"global_load_dwordx2 {vr(XP+2*dt,2)}, v28, {pair(sQ)} offset:{32*dt}")
stamp("x0_issued")
p(f"""s_mul_i32 s{sT0}, s{sN}, 7
s_mul_i32 s{t0}, s{sN}, 6
s_add_u32 s{t0}, s{t0}, 12
s_cmp_ge_u32 s{sN}, 12
s_cselect_b32 s{sT0}, s{t0}, s{sT0}""")

p(f"""s_cmp_ge_u32 s{sSIG}, 20
s_cbranch_scc1 EARLY_W""")
tokH = p.tok()
p(f"""s_mul_i32 s{t0}, s{sJ}, 80
s_lshl_b32 s{t1}, s{sSIG}, 2
s_add_u32 s{t0}, s{t0}, s{t1}
s_add_u32 s{t0}, s{t0}, s{sW}
s_lshl_b32 s{t1}, s{t0}, 1
s_and_b32 s{t2}, s{t1}, 0xfffc
s_load_dword s{sDVAL}, {pair(sD)}, s{t2}
s_lshl_b32 s{t0}, s{t0}, 12
v_add_u32 v31, v{vN}, v{vG}
v_subrev_u32 v31, 16, v31
v_max_i32 v31, 0, v31
v_lshl_add_u32 v31, v31, 1, s{t0}
global_load_ushort v35, v31, {pair(sH)}
s_sub_u32 s{t0}, s{t0}, 32
v_add_u32 v30, s{t0}, v{vL16}
s_mul_i32 s{t3}, s{sW}, {CONV_PITCH}""")
for e in range(4):
    p(f"s_add_u32 m0, s{t3}, {e*HC_PITCH}")
    p(f"v_add_u32 v31, {2*e}, v30" if e else "v_mov_b32 v31, v30")
    for q in range(5):
        if q == 4: p("s_mov_b64 exec, 15")
        p(f"buffer_load_dwordx4 v31, {srd(R_H)}, 0 offen nt lds", tok_wr=(tokH if (e == 3 and q == 4) else None))
        if q < 4:
            p("s_add_u32 m0, m0, 1024")
            p("v_add_u32 v31, 1024, v31")
    p("s_mov_b64 exec, -1")
p("s_branch EARLY_DONE")

p.label("EARLY_W")
def w_unit_params(rep):
    A, Bq, E = p.L("WU1"), p.L("WU2"), p.L("WUE")
    p(f"""s_sub_u32 s{t0}, s{sSIG}, 20
    s_lshl_b32 s{t0}, s{t0}, 3
    s_add_u32 s{t0}, s{t0}, s{sJ}
    s_lshl_b32 s{t0}, s{t0}, 2
    s_add_u32 s{t0}, s{t0}, s{sW}
    s_add_u32 s{t0}, s{t0}, {384*rep}
    s_min_u32 s{t0}, s{t0}, 751
    s_cmp_ge_u32 s{t0}, 320
    s_cbranch_scc1 {Bq}
    ; ---- w1 unit: n = u/20, ks = u%20
    s_mul_i32 s{t7}, s{t0}, 3277
    s_lshr_b32 s{t7}, s{t7}, 16
    s_mul_i32 s{t1}, s{t7}, 20
    s_sub_u32 s{t6}, s{t0}, s{t1}
    s_mul_i32 s{t5}, s{t0}, 7168
    s_add_u32 s{t5}, s{t5}, {WS_W1F}
    ; rows
    s_lshr_b32 s{t1}, s{t6}, 1
    s_mul_i32 s{t1}, s{t1}, 80
    s_and_b32 s{t2}, s{t6}, 1
    s_lshl_b32 s{t2}, s{t2}, 5
    s_add_u32 s{t1}, s{t1}, s{t2}
    s_add_u32 s{t2}, s{t1}, 16
    s_sub_u32 s{t3}, s{t6}, 16
    s_mul_i32 s{t3}, s{t3}, 160
    s_add_u32 s{t4}, s{t3}, 64
    s_add_u32 s{t3}, s{t3}, 144
    s_cmp_ge_u32 s{t6}, 16
    s_cselect_b32 s{t1}, s{t4}, s{t1}
    s_cselect_b32 s{t2}, s{t3}, s{t2}
    s_mul_i32 s{t1}, s{t1}, 3456
    s_mul_i32 s{t2}, s{t2}, 3456
    ; flag
    s_lshl_b32 s{t3}, s{t7}, 5
    s_add_u32 s{t6}, s{t6}, s{t3}
    s_lshl_b32 s{t6}, s{t6}, 2
    s_add_u32 s{t6}, s{t6}, {WS_FW1}
    s_mul_i32 s{t3}, s{t7}, 7
    s_mul_i32 s{t4}, s{t7}, 6
    s_add_u32 s{t4}, s{t4}, 12
    s_cmp_ge_u32 s{t7}, 12
    s_cselect_b32 s{t3}, s{t4}, s{t3}
    s_lshl_b32 s{t3}, s{t3}, 5
    s_add_u32 s{t1}, s{t1}, s{t3}
    s_add_u32 s{t2}, s{t2}, s{t3}
    s_mov_b32 s{t3}, 3456
    s_mov_b32 s{t4}, 14
    s_mov_b32 s{R_W}, s{sW1}
    s_mov_b32 s{R_W+1}, s{sW1+1}
    s_branch {E}""")
    p.label(Bq)
    p(f"""; ---- w2 unit: b = (u-320)/54, kappa = (u-320)%54
    s_sub_u32 s{t0}, s{t0}, 320
    s_mul_i32 s{t7}, s{t0}, 1214
    s_lshr_b32 s{t7}, s{t7}, 16
    s_mul_i32 s{t1}, s{t7}, 54
    s_sub_u32 s{t6}, s{t0}, s{t1}
    s_mul_i32 s{t5}, s{t0}, 5120
    s_add_u32 s{t5}, s{t5}, {WS_W2F}
    ; kappa<48: n = kappa/3, pr = kappa%3, tile = T0(n) + 2 pr ; rows 16*tile, 16*tile+16
    s_mul_i32 s{t1}, s{t6}, 21846
    s_lshr_b32 s{t1}, s{t1}, 16
    s_mul_i32 s{t2}, s{t1}, 3
    s_sub_u32 s{t2}, s{t6}, s{t2}
    s_mul_i32 s{t3}, s{t1}, 7
    s_mul_i32 s{t4}, s{t1}, 6
    s_add_u32 s{t4}, s{t4}, 12
    s_cmp_ge_u32 s{t1}, 12
    s_cselect_b32 s{t1}, s{t4}, s{t3}
    s_lshl_b32 s{t2}, s{t2}, 1
    s_add_u32 s{t1}, s{t1}, s{t2}
    s_add_u32 s{t2}, s{t1}, 1
    s_sub_u32 s{t3}, s{t6}, 48
    s_mul_i32 s{t3}, s{t3}, 14
    s_add_u32 s{t4}, s{t3}, 6
    s_add_u32 s{t3}, s{t3}, 13
    s_cmp_ge_u32 s{t6}, 48
    s_cselect_b32 s{t1}, s{t4}, s{t1}
    s_cselect_b32 s{t2}, s{t3}, s{t2}
    s_mul_i32 s{t1}, s{t1}, 20480
    s_mul_i32 s{t2}, s{t2}, 20480
    s_lshl_b32 s{t3}, s{t7}, 6
    s_add_u32 s{t6}, s{t6}, s{t3}
    s_lshl_b32 s{t6}, s{t6}, 2
    s_add_u32 s{t6}, s{t6}, {WS_FW2}
    s_mul_i32 s{t3}, s{t7}, 160
    s_add_u32 s{t1}, s{t1}, s{t3}
    s_add_u32 s{t2}, s{t2}, s{t3}
    s_mov_b32 s{t3}, 1280
    s_mov_b32 s{t4}, 10
    s_mov_b32 s{R_W}, s{sW2}
    s_mov_b32 s{R_W+1}, s{sW2+1}""")
    p.label(E)
    p(f"s_mov_b32 s{R_W+2}, 2211840")

tokW = [p.tok(), p.tok()]
WU_SAVE = [82, 86]
for rep in range(2):
    w_unit_params(rep)
    sv = WU_SAVE[rep]
    p(f"""s_mov_b32 s{sv}, s{t5}
    s_mov_b32 s{sv+1}, s{t6}
    s_lshl_b32 s{sv+2}, s{t4}, 4
    s_lshr_b32 s{sv+3}, s{t4}, 1
    v_cvt_f32_u32 v30, v0
    v_cvt_f32_u32 v31, s{t4}
    v_add_f32 v30, 0.5, v30
    v_rcp_f32 v31, v31
    v_mul_f32 v30, v30, v31
    v_cvt_u32_f32 v30, v30
    v_mul_lo_u32 v31, v30, s{t4}
    v_sub_u32 v31, v0, v31
    v_lshlrev_b32 v31, 4, v31
    v_mul_lo_u32 v32, v30, s{t3}
    v_add_u32 v31, v31, v32
    v_cmp_gt_u32 vcc, 4, v30
    s_mov_b64 exec, vcc
    s_mul_i32 s{t0}, s{sW}, 14336
    s_add_u32 m0, s{t0}, {7168*rep}
    s_lshl_b32 s{t3}, s{t3}, 2
    s_lshl_b32 s{t4}, s{t4}, 6""")
    for q in range(8):
        so = t1 if q < 4 else t2
        p(f"buffer_load_dwordx4 v31, {srd(R_W)}, s{so} offen nt lds", tok_wr=(tokW[rep] if q == 7 else None))
        p(f"s_add_u32 m0, m0, s{t4}")
        p(f"s_add_u32 s{so}, s{so}, s{t3}")
    p("s_mov_b64 exec, -1")
p.label("EARLY_DONE")
stamp("role_issued")

p(f"""s_mul_i32 s{sTAG}, s{sE}, 0x9E3779B1
s_add_u32 s{sTAG}, s{sTAG}, 0x7F4A7C15
s_getreg_b32 s{sXV}, hwreg(HW_REG_XCC_ID)
s_lshl_b32 s{sXV}, s{sXV}, 28
s_xor_b32 s{sXV}, s{sXV}, s{sTAG}
s_cmp_lg_u32 s{sW}, 0
s_cbranch_scc1 NO_XPUB
s_lshl_b32 s{t0}, s{sJ}, 7
s_lshl_b32 s{t1}, s{sSIG}, 2
s_add_u32 s{t0}, s{t0}, s{t1}
s_add_u32 s{t0}, s{t0}, {WS_XC}
v_mov_b32 v30, 0
v_mov_b32 v31, s{sXV}
s_mov_b64 exec, 1
buffer_store_dword v31, v30, {srd(R_WS)}, s{t0} offen sc1
s_mov_b64 exec, -1""")
p.label("NO_XPUB")
B1P = 36
p(f"""s_lshl_b32 s{t0}, s{sT0}, 5
v_lshl_add_u32 v30, v{vG}, 3, s{t0}""")
for ft in range(7):
    if ft == 6:
        p(f"v_add_u32 v30, 192, v30\nv_min_u32 v30, 3448, v30")
        p(f"global_load_dwordx2 {vr(B1P+2*ft,2)}, v30, {pair(sB1)}")
    else:
        p(f"global_load_dwordx2 {vr(B1P+2*ft,2)}, v30, {pair(sB1)} offset:{32*ft}")
stamp("issued")

SKF = 92
unpack(SKF, SKP, 10)
stamp("sk_in")
p(f"""v_lshrrev_b32 v30, 2, v0
v_mul_u32_u24 v30, 160, v30
v_and_b32 v31, 3, v0
v_lshl_add_u32 v30, v31, 3, v30
s_mul_i32 s{t3}, s{sW}, 6400
s_add_u32 s{t3}, s{t3}, {T_BASE}
v_add_u32 v30, s{t3}, v30
s_mul_i32 s{t0}, s{sJ}, {80*4096}
s_lshl_b32 s{t1}, s{sSIG}, 2
s_add_u32 s{t1}, s{t1}, s{sW}
s_lshl_b32 s{t1}, s{t1}, 5
s_sub_u32 s{t0}, s{t0}, s{t1}
s_add_u32 s{t0}, s{t0}, {WS_UR + 4088 - 24}
v_lshlrev_b32 v31, 12, v{vN}
v_sub_u32 v32, 3, v{vG}
v_lshl_add_u32 v31, v32, 3, v31""")
p.need(tokT)
stamp("kv_in")
KR = 112
for dt in range(5):
    b = KR + 6 * dt
    p(f"ds_read_b64_tr_b16 {vr(b,2)}, v30 offset:{32*dt}")
    p(f"ds_read_b64_tr_b16 {vr(b+2,2)}, v30 offset:{32*dt+640}")
    p(f"ds_read_b64_tr_b16 {vr(b+4,2)}, v30 offset:{32*dt+3200}")
for dt in range(5):
    b = KR + 6 * dt
    k = 142
    c = SKF + 4 * dt
    p(f"""v_and_b32 v{k}, 0xffff0000, v{b}
    v_lshlrev_b32 v{k+1}, 16, v{b+1}
    v_and_b32 v{k+2}, 0xffff0000, v{b+1}
    v_lshlrev_b32 v{k+3}, 16, v{b+2}
    v_and_b32 v{k+4}, 0xffff0000, v{b+2}
    v_lshlrev_b32 v{k+5}, 16, v{b+3}
    v_and_b32 v{k+6}, 0xffff0000, v{b+3}""")
    o = 150
    for r in range(4): p(f"v_mul_f32 v{o+r}, v{c+3}, v{k+r}")
    for tau in (2, 1, 0):
        for r in range(4): p(f"v_fmac_f32 v{o+r}, v{c+tau}, v{k+r+3-tau}")
    vv = 154
    unpack(vv, b + 4, 2)
    for r in range(4): p(f"v_mul_f32 v{o+r}, v{o+r}, v{vv+r}")
    st = 158 + 2 * dt
    p(f"v_cvt_pk_bf16_f32 v{st}, v{o+3}, v{o+2}")
    p(f"v_cvt_pk_bf16_f32 v{st+1}, v{o+1}, v{o}")
    p(f"buffer_store_dwordx2 {vr(st,2)}, v31, {srd(R_WS)}, s{t0} offen")
    if dt < 4: p(f"s_add_u32 s{t0}, s{t0}, 65536")
stamp("u_st")
LV, LVX = p.L("VER"), p.L("VERX")
p(f"""v_and_b32 v30, 31, v0
v_lshlrev_b32 v30, 2, v30
s_lshl_b32 s{t0}, s{sJ}, 7
s_add_u32 s{t0}, s{t0}, {WS_XC}
s_mov_b32 s{sFAST}, 0""")
spin_begin()
p.label(LV)
spin_check(LVX)
p(f"""buffer_load_dword v31, v30, {srd(R_WS)}, s{t0} offen sc1
s_waitcnt vmcnt(0)
v_cmp_ne_u32 vcc, s{sXV}, v31
s_cbranch_vccz VER_FAST
v_xor_b32 v32, s{sTAG}, v31
v_and_b32 v32, 0x0fffffff, v32
v_cmp_ne_u32 vcc, 0, v32
s_cbranch_vccnz {LV}
s_branch {LVX}""")
p.label("VER_FAST")
p(f"s_mov_b32 s{sFAST}, {0 if FORCE_SLOW else 1}")
p.label(LVX)
stamp("verified")
p(f"""s_lshl_b32 s{t0}, s{sJ}, 5
s_add_u32 s{t0}, s{t0}, s{sSIG}
s_lshl_b32 s{t0}, s{t0}, 2
s_add_u32 s{t0}, s{t0}, s{sW}
s_lshl_b32 s{t0}, s{t0}, 2
s_add_u32 s{t0}, s{t0}, {WS_FT}""")
publish_local(t0, 30)
stamp("T_pub")
p(f"""s_lshl_b32 s{t0}, s{sA}, 2
s_add_u32 s{t0}, s{t0}, s{sW}
s_lshl_b32 s{sSTB}, s{t0}, 11
s_add_u32 s{sSTB}, s{sSTB}, {WS_ST}
s_lshl_b32 s{t1}, s{sB}, 8
s_add_u32 s{t1}, s{t1}, s{sSTB}""")
unpack(100, XP, 10)
stats_publish(100, 120, t1)
unpack(BB, B1P, 14)
for i in range(28):
    p(f"v_mul_f32 v{BB+i}, 0x3fb8aa3b, v{BB+i}")

p(f"""s_cmp_ge_u32 s{sSIG}, 20
s_cbranch_scc1 W_PHASE""")
CA, CB, CACC, CAD = 92, 156, 220, 252
vA, vB = 28, 29
p(f"""s_mul_i32 s{t3}, s{sW}, {CONV_PITCH}
v_mov_b32 v30, 0
v_mov_b32 v31, 0
v_add_u32 v32, s{t3}, v{vL8}
ds_write_b64 v32, v[30:31] offset:{LU_OFF+4096}
v_add_u32 v32, 1, v{vN}
v_and_b32 v33, 3, v32
v_sub_u32 v32, v32, v33
v_lshlrev_b32 v32, 1, v32
v_mul_u32_u24 v33, {HC_PITCH}, v33
v_add3_u32 v{vA}, v32, v33, s{t3}
v_lshl_add_u32 v{vA}, v{vG}, 4, v{vA}
v_lshlrev_b32 v32, 5, v{vN}
v_sub_u32 v32, {LU_OFF + 4064 - 3584}, v32
v_lshl_add_u32 v32, v{vG}, 4, v32
v_add_u32 v{vB}, s{t3}, v32
; D fragment
s_lshl_b32 s{t1}, s{sDVAL}, 16
s_bitcmp1_b32 s{sW}, 0
s_cselect_b32 s{t1}, s{sDVAL}, s{t1}
s_and_b32 s{t1}, s{t1}, 0xffff0000
s_lshr_b32 s{t2}, s{t1}, 16
v_lshlrev_b32 v32, 3, v{vG}
v_add_u32 v32, v32, v{vN}
v_sub_u32 v32, 15, v32
v_mov_b32 v33, s{t1}
v_mov_b32 v34, s{t2}""")
for r in range(4):
    p(f"""v_cmp_eq_u32 vcc, {2*r}, v32
    v_cndmask_b32 v{CAD+r}, 0, v34, vcc
    v_cmp_eq_u32 vcc, {2*r+1}, v32
    v_cndmask_b32 v{CAD+r}, v{CAD+r}, v33, vcc""")
p.need(tokH)
p(f"""v_mul_u32_u24 v32, {HC_PITCH}, v{vG}
v_lshl_add_u32 v32, v{vN}, 1, v32
v_add_u32 v32, s{t3}, v32
v_add_u32 v33, v{vG}, v{vN}
v_cmp_gt_u32 vcc, 16, v33
v_cndmask_b32 v35, v35, v30, vcc
ds_write_b16 v32, v35
s_lshl_b32 s{t0}, s{sJ}, 9
s_add_u32 s{t0}, s{t0}, {WS_FT}""")
poll_flags(vL8, t0, 30, wide=True)
stamp("T_seen")
tokU = p.tok()
p(f"""s_mul_i32 s{t0}, s{sJ}, 80
s_lshl_b32 s{t1}, s{sSIG}, 2
s_add_u32 s{t0}, s{t0}, s{t1}
s_add_u32 s{t0}, s{t0}, s{sW}
s_lshl_b32 s{t0}, s{t0}, 12
s_add_u32 s{t0}, s{t0}, {WS_UR}
s_add_u32 m0, s{t3}, {LU_OFF}""")
for q in range(4):
    p(f"buffer_load_dwordx4 v{vL16}, {srd(R_WS)}, s{t0} offen offset:{1024*q} sc1 lds", tok_wr=(tokU if q == 3 else None))
def conv_readA(buf, p0):
    for t in range(8):
        b = CA + 32 * buf + 4 * t
        p(f"ds_read_b64 {vr(b,2)}, v{vA} offset:{64*p0+512*t}")
        p(f"ds_read_b64 {vr(b+2,2)}, v{vA} offset:{64*p0+512*t+8}")
def conv_readB(buf, p0):
    for m in range(8):
        b = CB + 32 * buf + 4 * m
        p(f"ds_read_b128 {vr(b,4)}, v{vB} offset:{3584-512*m+64*p0}")
conv_readA(0, 0)
p.need(tokU)
stamp("u_in")
conv_readB(0, 0)
for JJ in range(8):
    p(f"v_mfma_f32_16x16x32_bf16 {vr(CACC+4*JJ,4)}, {vr(CAD,4)}, {vr(CB+4*JJ,4)}, 0")
for p0 in range(8):
    buf = p0 & 1
    reads = []
    if p0 < 7:
        for t in range(8):
            bb = CB + 32 * (1 - buf) + 4 * t
            ba = CA + 32 * (1 - buf) + 4 * t
            reads.append(f"ds_read_b128 {vr(bb,4)}, v{vB} offset:{3584-512*t+64*(p0+1)}")
            reads.append(f"ds_read_b64 {vr(ba,2)}, v{vA} offset:{64*(p0+1)+512*t}")
            reads.append(f"ds_read_b64 {vr(ba+2,2)}, v{vA} offset:{64*(p0+1)+512*t+8}")
    prs = sorted([(t, m) for t in range(8) for m in range(8) if t + m <= 7], key=lambda x: (max(x), x[0] + x[1]))
    for i, (t, m) in enumerate(prs):
        JJ = t + m
        p(f"v_mfma_f32_16x16x32_bf16 {vr(CACC+4*JJ,4)}, {vr(CA+32*buf+4*t,4)}, {vr(CB+32*buf+4*m,4)}, {vr(CACC+4*JJ,4)}")
        if i >= 8 and reads:
            p(reads.pop(0))
    assert not reads
stamp("conv_done")
p(f"""v_lshlrev_b32 v32, 5, v{vN}
v_lshl_add_u32 v32, v{vG}, 3, v32
v_add_u32 v32, s{t3}, v32""")
for JJ in range(8):
    p(f"v_cvt_pk_bf16_f32 v{92+2*JJ}, v{CACC+4*JJ}, v{CACC+4*JJ+1}")
    p(f"v_cvt_pk_bf16_f32 v{93+2*JJ}, v{CACC+4*JJ+2}, v{CACC+4*JJ+3}")
    p(f"ds_write_b64 v32, {vr(92+2*JJ,2)} offset:{512*JJ}")
YS = 108
for q in range(8):
    p(f"v_mov_b32 v{YS+4*q+2}, s{sTAG}")
    p(f"v_mov_b32 v{YS+4*q+3}, 0")
p(f"""; tr read address: r*PITCH + (32w + gamma)*32 + c*8
v_bfe_u32 v32, v0, 2, 2
v_mul_u32_u24 v32, {CONV_PITCH}, v32
v_and_b32 v33, 3, v0
v_lshl_add_u32 v32, v33, 3, v32
v_lshl_add_u32 v32, v{vG}, 5, v32
s_lshl_b32 s{t0}, s{sW}, 10
v_add_u32 v32, s{t0}, v32
; store offset: gamma*40960 + n*16 ; base = YG + ((32w*8 + j)*5 + sig/4)*1024 + (sig%4)*256
v_mul_u32_u24 v33, 40960, v{vG}
v_lshl_add_u32 v33, v{vN}, 4, v33
s_lshl_b32 s{t0}, s{sW}, 8
s_add_u32 s{t0}, s{t0}, s{sJ}
s_mul_i32 s{t0}, s{t0}, 5120
s_lshl_b32 s{t1}, s{sSIG}, 8
s_add_u32 s{t0}, s{t0}, s{t1}
s_add_u32 s{t0}, s{t0}, {WS_YG}
s_waitcnt lgkmcnt(0)
s_barrier""")
for q in range(8):
    p(f"ds_read_b64_tr_b16 {vr(YS+4*q,2)}, v32 offset:{128*q}")
for q in range(8):
    p(f"buffer_store_dwordx4 {vr(YS+4*q,4)}, v33, {srd(R_WS)}, s{t0} offen sc1")
    if q < 7: p(f"s_add_u32 s{t0}, s{t0}, 163840")
stamp("y_st")
p("s_barrier")
p("s_branch JOIN")

p.label("W_PHASE")
for rep in range(2):
    sv = WU_SAVE[rep]
    SK = p.L("WSKIP")
    p(f"""v_lshrrev_b32 v32, 2, v0
    v_mul_lo_u32 v32, v32, s{sv+2}
    v_and_b32 v33, 3, v0
    v_lshl_add_u32 v32, v33, 3, v32
    s_mul_i32 s{t0}, s{sW}, 14336
    s_add_u32 s{t0}, s{t0}, {7168*rep}
    v_add_u32 v32, s{t0}, v32
    s_lshl_b32 s{t1}, s{sv+2}, 4
    v_add_u32 v33, s{t1}, v32""")
    p.need(tokW[rep])
    for ft in range(7):
        p(f"ds_read_b64_tr_b16 {vr(100+4*ft,2)}, v32 offset:{32*ft}")
        p(f"ds_read_b64_tr_b16 {vr(102+4*ft,2)}, v33 offset:{32*ft}")
    for ft in range(7):
        if ft == 5:
            p(f"s_cmp_lt_u32 s{sv+3}, 7\ns_cbranch_scc1 {SK}")
        if ft == 4:
            p(f"s_add_u32 s{sv}, s{sv}, 4096")
        p(f"buffer_store_dwordx4 {vr(100+4*ft,4)}, v{vL16}, {srd(R_WS)}, s{sv} offen offset:{1024*(ft%4)} sc1")
    p.label(SK)
p(f"""v_mov_b32 v30, s{sTAG}
v_mov_b32 v31, 0
s_waitcnt vmcnt(0)
s_mov_b64 exec, 1
buffer_store_dword v30, v31, {srd(R_WS)}, s{WU_SAVE[0]+1} offen sc1
buffer_store_dword v30, v31, {srd(R_WS)}, s{WU_SAVE[1]+1} offen sc1
s_mov_b64 exec, -1
s_barrier""")
stamp("W_done")

p.label("JOIN")
p(f"""s_mul_i32 s{t0}, s{sW}, 5
s_lshl_b32 s{t1}, s{sN}, 5
s_add_u32 s{t0}, s{t0}, s{t1}
s_lshl_b32 s{t0}, s{t0}, 2
v_min_u32 v30, 4, v0
v_lshl_add_u32 v30, v30, 2, s{t0}
v_subrev_u32 v31, 16, v0
s_mul_i32 s{t1}, s{sW}, 12
v_add_u32 v32, s{t1}, v31
s_lshl_b32 s{t2}, s{sW}, 1
s_add_u32 s{t2}, s{t2}, 36
v_add_u32 v33, s{t2}, v31
v_min_u32 v33, 53, v33
v_cmp_gt_u32 vcc, 12, v31
v_cndmask_b32 v32, v33, v32, vcc
s_lshl_b32 s{t1}, s{sB}, 8
s_add_u32 s{t1}, s{t1}, {WS_FW2 - WS_FW1}
v_lshl_add_u32 v32, v32, 2, s{t1}
v_cmp_gt_u32 vcc, 14, v31
v_cndmask_b32 v30, v30, v32, vcc
s_mov_b32 s{t0}, {WS_FW1}""")
poll_flags(30, t0, 31, local=False)
stamp("W_seen")
tokW1 = p.tok()
p(f"""s_mul_i32 s{t0}, s{sN}, 143360
s_mul_i32 s{t1}, s{sW}, 35840
s_add_u32 s{t0}, s{t0}, s{t1}
s_add_u32 s{t0}, s{t0}, {WS_W1F}
s_mov_b32 m0, s{t1}""")
for q in range(35):
    p(f"buffer_load_dwordx4 v{vL16}, {srd(R_WS)}, s{t0} offen offset:{1024*(q%4)} sc1 lds", tok_wr=(tokW1 if q == 34 else None))
    if q % 4 == 3:
        p(f"s_add_u32 s{t0}, s{t0}, 4096\ns_add_u32 m0, m0, 4096")
p(f"""s_and_b32 s{t0}, s{sA}, 1
s_lshl_b32 s{t0}, s{t0}, 2
s_add_u32 s{t0}, s{t0}, s{sW}
s_lshl_b32 s{t1}, s{sM}, 3
s_add_u32 s{t0}, s{t0}, s{t1}
s_mul_i32 s{sXFB}, s{t0}, 20480
s_add_u32 s{sXFB}, s{sXFB}, {WS_XF}
s_lshl_b32 s{t1}, s{t0}, 5
s_lshl_b32 s{t2}, s{sB}, 2
s_add_u32 s{sFXB}, s{t1}, s{t2}
s_add_u32 s{sFXB}, s{sFXB}, {WS_FX}
s_lshl_b32 s{t1}, s{sB}, 11
s_lshl_b32 s{t2}, s{sB}, 9
s_add_u32 s{t2}, s{t2}, {16384 - 2048}
v_lshlrev_b32 v30, 7, v0
v_add_u32 v31, s{t1}, v30
v_add_u32 v32, s{t2}, v30
v_cmp_gt_u32 vcc, 16, v0
v_cndmask_b32 v31, v32, v31, vcc
s_mov_b64 exec, 0xfffff
buffer_load_dword v{J}, v31, {srd(R_WS)}, s{sXFB} offen sc1
s_add_u32 s{t0}, s{sXFB}, {XF_LAYER}
buffer_load_dword v{J}, v31, {srd(R_WS)}, s{t0} offen sc1
s_mov_b64 exec, -1
s_lshr_b32 s{t0}, s{sW}, 1
s_lshl_b32 s{t0}, s{t0}, 2
s_and_b32 s{t1}, s{sW}, 1
s_add_u32 s{t0}, s{t0}, s{t1}
s_lshl_b32 s{t1}, s{sM}, 3
s_add_u32 s{t0}, s{t0}, s{t1}
s_mul_i32 s{sHFB}, s{t0}, 55296
s_add_u32 s{sHFB}, s{sHFB}, {WS_HF}
s_mul_i32 s{t1}, s{sN}, 3072
s_lshl_b32 s{t2}, s{sN}, 9
s_add_u32 s{t2}, s{t2}, {49152 - 3072}
s_sub_u32 s{t3}, s{t1}, 3072
s_cmp_ge_u32 s{sN}, 12
s_cselect_b32 s{t2}, s{t3}, s{t2}
v_and_b32 v33, 31, v0
v_lshlrev_b32 v30, 7, v33
v_add_u32 v31, s{t1}, v30
v_add_u32 v32, s{t2}, v30
v_cmp_gt_u32 vcc, 24, v33
v_cndmask_b32 v31, v32, v31, vcc
v_lshrrev_b32 v32, 5, v0
v_mul_u32_u24 v32, 110592, v32
v_add_u32 v31, v31, v32
s_mov_b32 exec_lo, 0x0fffffff
s_mov_b32 exec_hi, 0x0fffffff
buffer_load_dword v{J}, v31, {srd(R_WS)}, s{sHFB} offen sc1
s_add_u32 s{t0}, s{sHFB}, {HF_LAYER}
buffer_load_dword v{J}, v31, {srd(R_WS)}, s{t0} offen sc1
s_mov_b64 exec, -1
s_lshl_b32 s{t0}, s{sM}, 4
s_add_u32 s{t0}, s{t0}, s{sN}
s_lshl_b32 s{t0}, s{t0}, 2
s_add_u32 s{t0}, s{t0}, s{sW}
s_lshl_b32 s{sFHB}, s{t0}, 2
s_add_u32 s{sFHB}, s{sFHB}, {WS_FH}
s_mov_b32 s{sLAYER}, 0""")

p.label("LAYER")
INLOOP[0] = True
XF32, XN, G4 = 92, 112, 132
unpack(XF32, XP, 10)
LS, LSX = p.L("STP"), p.L("STPX")
spin_begin()
p.label(LS)
spin_check(LSX)
p(f"""buffer_load_dwordx4 {vr(G4,4)}, v{vL16}, {srd(R_WS)}, s{sSTB} offen sc1
buffer_load_dwordx4 {vr(G4+4,4)}, v{vL16}, {srd(R_WS)}, s{sSTB} offen offset:1024 sc1
s_waitcnt vmcnt(0)
v_cmp_ne_u32 vcc, s{sTAG}, v{G4+2}
s_cbranch_vccnz {LS}
v_cmp_ne_u32 vcc, s{sTAG}, v{G4+6}
s_cbranch_vccnz {LS}""")
p.label(LSX)
stamp("st_seen")
p(f"v_pk_add_f32 {vr(G4,2)}, {vr(G4,2)}, {vr(G4+4,2)}")
xg_reduce([G4, G4 + 1], G4 + 2)
ln_scalars(G4, G4 + 1, G4 + 2)
p(f"v_mul_f32 v{G4+2}, -v{G4}, v{G4+1}")
for i in range(10):
    p(f"v_pk_fma_f32 {vr(XN+2*i,2)}, {vr(XF32+2*i,2)}, {vr(G4,2)}, {vr(G4+2,2)} op_sel:[0,1,0] op_sel_hi:[1,1,0]")
p(f"""s_cmp_lg_u32 s{sLAYER}, 0
s_cbranch_scc1 HAVE_Y
s_lshl_b32 s{t0}, s{sA}, 2
s_add_u32 s{t0}, s{t0}, s{sW}
s_lshl_b32 s{t0}, s{t0}, 3
s_add_u32 s{t0}, s{t0}, s{sB}
s_mul_i32 s{t0}, s{t0}, 5120
s_add_u32 s{t0}, s{t0}, {WS_YG}
s_add_u32 s{t1}, s{t0}, 4096""")
LY, LYX = p.L("YP"), p.L("YPX")
YG4 = 140
spin_begin()
p.label(LY)
spin_check(LYX)
for t in range(5):
    p(f"buffer_load_dwordx4 {vr(YG4+4*t,4)}, v{vL16}, {srd(R_WS)}, s{t0 if t < 4 else t1} offen offset:{1024*(t%4)} sc1")
p(f"s_waitcnt vmcnt(0)")
for t in range(5):
    p(f"v_cmp_ne_u32 vcc, s{sTAG}, v{YG4+4*t+2}\ns_cbranch_vccnz {LY}")
p.label(LYX)
for t in range(5):
    p(f"v_mov_b32 v{YP+2*t}, v{YG4+4*t}\nv_mov_b32 v{YP+2*t+1}, v{YG4+4*t+1}")
stamp("y_seen")
p.label("HAVE_Y")
YF = 140
unpack(YF, YP, 10)
for i in range(10):
    p(f"v_pk_fma_f32 {vr(XF32+2*i,2)}, {vr(XN+2*i,2)}, {vr(YF+2*i,2)}, {vr(XF32+2*i,2)}")
pack(XP, XF32, 10)
p(f"""s_lshl_b32 s{t0}, s{sB}, 11
s_add_u32 s{t0}, s{t0}, s{sXFB}
s_lshl_b32 s{t1}, s{sB}, 9
s_add_u32 s{t1}, s{t1}, s{sXFB}
s_add_u32 s{t1}, s{t1}, 16384
buffer_store_dwordx4 {vr(XP,4)}, v{vL16}, {srd(R_WS)}, s{t0} offen
buffer_store_dwordx4 {vr(XP+4,4)}, v{vL16}, {srd(R_WS)}, s{t0} offen offset:1024
buffer_store_dwordx2 {vr(XP+8,2)}, v{vL8}, {srd(R_WS)}, s{t1} offen
s_lshl_b32 s{t1}, s{sB}, 8
s_add_u32 s{t1}, s{t1}, s{sSTB}
s_add_u32 s{t1}, s{t1}, {ST_K}""")
unpack(XF32, XP, 10)
stats_publish(XF32, G4, t1)
publish_local(sFXB, 30)
stamp("x_pub")

p(f"""s_cmp_lg_u32 s{sLAYER}, 0
s_cbranch_scc1 HAVE_CS""")
p.need(tokW1)
p(f"""s_barrier
v_mov_b32 v32, 0x3f803f80
v_mov_b32 v33, 0x3f803f80
v_mov_b32 v34, 0x3f803f80
v_mov_b32 v35, 0x3f803f80
s_mul_i32 s{t1}, s{sW}, 35840
v_add_u32 v30, s{t1}, v{vL16}""")
for q in range(35):
    p(f"ds_read_b128 {vr(92+4*q,4)}, v30 offset:{1024*q}")
for q in range(35):
    ft = q % 7
    p(f"v_mfma_f32_16x16x32_bf16 {vr(CS+4*ft,4)}, {vr(92+4*q,4)}, v[32:35], {'0' if q < 7 else vr(CS+4*ft,4)}")
p(f"""s_mul_i32 s{t1}, s{sW}, 448
s_add_u32 s{t1}, s{t1}, {RED_BASE}
v_lshl_add_u32 v30, v{vG}, 4, s{t1}
v_lshlrev_b32 v31, 4, v{vG}
v_add_u32 v31, {RED_BASE}, v31""")
for ft in range(7):
    p(f"ds_write_b128 v30, {vr(CS+4*ft,4)} offset:{64*ft}")
p("s_waitcnt lgkmcnt(0)\ns_barrier")
for w in range(4):
    for ft in range(7):
        p(f"ds_read_b128 {vr(92+28*w+4*ft,4)}, v31 offset:{448*w+64*ft}")
for i in range(14):
    p(f"v_pk_add_f32 {vr(CS+2*i,2)}, {vr(92+2*i,2)}, {vr(120+2*i,2)}")
    p(f"v_pk_add_f32 {vr(148+2*i,2)}, {vr(148+2*i,2)}, {vr(176+2*i,2)}")
    p(f"v_pk_add_f32 {vr(CS+2*i,2)}, {vr(CS+2*i,2)}, {vr(148+2*i,2)}")
p("s_barrier")
stamp("cs_done")
p.label("HAVE_CS")

ACC1, AR, BR = 92, 148, 180
NA, NBK = 8, 6
vA1 = [vL16, 28, 29]
p(f"""s_lshr_b32 s{t0}, s{sW}, 1
s_lshl_b32 s{t0}, s{t0}, 2
s_and_b32 s{t1}, s{sW}, 1
s_add_u32 s{t0}, s{t0}, s{t1}
s_lshl_b32 s{t1}, s{sM}, 3
s_add_u32 s{t0}, s{t0}, s{t1}
s_lshl_b32 s{t2}, s{sLAYER}, 12
s_lshl_b32 s{t1}, s{t0}, 5
s_add_u32 s{t1}, s{t1}, s{t2}
s_add_u32 s{t1}, s{t1}, {WS_FX}
v_and_b32 v30, 7, v0
v_lshlrev_b32 v30, 2, v30
v_and_b32 v31, 8, v0
v_lshl_add_u32 v30, v31, 3, v30
s_mul_i32 s{t2}, s{t0}, 20480
s_mul_i32 s{t3}, s{sLAYER}, {XF_LAYER}
s_add_u32 s{t2}, s{t2}, s{t3}
s_add_u32 s{t2}, s{t2}, {WS_XF}
s_add_u32 s{t3}, s{t2}, 40960
s_lshl_b32 s{t4}, s{t0}, 11
s_lshl_b32 s{t5}, s{sLAYER}, 19
s_add_u32 s{t4}, s{t4}, s{t5}
s_add_u32 s{t4}, s{t4}, {WS_ST + ST_K}
s_add_u32 s{t5}, s{t4}, 4096
v_add_u32 v{vA1[1]}, 57344, v{vL16}
v_add_u32 v{vA1[2]}, 114688, v{vL16}""")
def a1_read(fi):
    return f"ds_read_b128 {vr(AR+4*(fi%NA),4)}, v{vA1[fi//56]} offset:{1024*(fi%56)}"
for fi in range(NA): p(a1_read(fi))
poll_flags(30, t1, 31)
stamp("x_seen")
SX = 222
ST1 = 30
p(f"""buffer_load_dwordx2 v[30:31], v{vL16}, {srd(R_WS)}, s{t4} offen sc1
buffer_load_dwordx2 v[228:229], v{vL16}, {srd(R_WS)}, s{t4} offen offset:1024 sc1
buffer_load_dwordx2 v[32:33], v{vL16}, {srd(R_WS)}, s{t5} offen sc1
buffer_load_dwordx2 v[230:231], v{vL16}, {srd(R_WS)}, s{t5} offen offset:1024 sc1""")
cur_off = {t2: 0, t3: 0}
def b1_load(ks):
    for ti, sb in enumerate((t2, t3)):
        b = BR + 4 * (2 * (ks % NBK) + ti)
        want = (ks * 1024) // 4096 * 4096
        if cur_off[sb] != want:
            p(f"s_add_u32 s{sb}, s{sb}, {want - cur_off[sb]}")
            cur_off[sb] = want
        o = ks * 1024 - want
        if ks < 16:
            p(f"buffer_load_dwordx4 {vr(b,4)}, v{vL16}, {srd(R_WS)}, s{sb} offen offset:{o} sc1")
        else:
            p(f"buffer_load_dwordx2 {vr(b,2)}, v{vL8}, {srd(R_WS)}, s{sb} offen offset:{o} sc1")
            p(f"buffer_load_dwordx2 {vr(b+2,2)}, v{vL8}, {srd(R_WS)}, s{sb} offen offset:{o+512} sc1")
for ks in range(NBK): b1_load(ks)
p(f"""s_or_b32 s{t0}, s2, s{sW}
s_or_b32 s{t0}, s{t0}, s{sLAYER}
s_cmp_lg_u32 s{t0}, 0
s_cbranch_scc1 NO_EPOCH
v_mov_b32 v35, s{sTAG}
v_mov_b32 v34, 0
s_mov_b64 exec, 1
buffer_store_dword v35, v34, {srd(R_WS)}, 0 offen sc1
s_mov_b64 exec, -1""")
p.label("NO_EPOCH")
for ks in range(20):
    for ft in range(7):
        fi = ks * 7 + ft
        for ti in range(2):
            acc = ACC1 + 28 * ti + 4 * ft
            p(f"v_mfma_f32_16x16x32_bf16 {vr(acc,4)}, {vr(AR+4*(fi%NA),4)}, {vr(BR+4*(2*(ks%NBK)+ti),4)}, {'0' if ks == 0 else vr(acc,4)}")
        if fi + NA < 140: p(a1_read(fi + NA))
    if ks + NBK < 20: b1_load(ks + NBK)
    if ks == 1:
        p(f"v_add_f32 v30, v30, v228\nv_add_f32 v31, v31, v229\nv_add_f32 v32, v32, v230\nv_add_f32 v33, v33, v231")
        xg_reduce([30, 31, 32, 33], 228)
        for s in (30, 32):
            ln_scalars(s, s + 1, 228)
            p(f"v_mul_f32 v{s+1}, 0x3fb8aa3b, v{s+1}")
            p(f"v_mul_f32 v{s}, -v{s}, v{s+1}")
    if ks == 13:
        p(f"""s_cmp_lg_u32 s{sLAYER}, 0
        s_cbranch_scc1 NO_W2
        s_mul_i32 s{t0}, s{sB}, 54
        s_mul_i32 s{t1}, s{sW}, 12
        s_add_u32 s{t1}, s{t1}, s{t0}
        s_mul_i32 s{t1}, s{t1}, 5120
        s_add_u32 s{t1}, s{t1}, {WS_W2F}
        s_lshl_b32 s{t4}, s{sW}, 1
        s_min_u32 s{t4}, s{t4}, 4
        s_add_u32 s{t4}, s{t4}, s{t0}
        s_add_u32 s{t4}, s{t4}, 48
        s_mul_i32 s{t4}, s{t4}, 5120
        s_add_u32 s{t4}, s{t4}, {WS_W2F}""")
        for q in range(70):
            sb, qq = (t1, q) if q < 60 else (t4, q - 60)
            p(f"buffer_load_dwordx4 {w2reg(q)}, v{vL16}, {srd(R_WS)}, s{sb} offen offset:{1024*(qq%4)} sc1")
            if qq % 4 == 3: p(f"s_add_u32 s{sb}, s{sb}, 4096")
        p.label("NO_W2")
stamp("g1_mma")
LN2, M2LN2 = 34, 36
LN2, M2LN2 = 148, 150
p(f"""v_mov_b32 v{LN2}, 0x3f317218
v_mov_b32 v{M2LN2}, 0xbfb17218
s_mul_i32 s{t0}, s{sN}, 3072
s_add_u32 s{t0}, s{t0}, s{sHFB}
s_lshl_b32 s{t1}, s{sN}, 9
s_add_u32 s{t1}, s{t1}, s{sHFB}
s_add_u32 s{t1}, s{t1}, 49152""")
def mish(acc, cs, bb, sc, n, T):
    for i in range(n):
        p(f"v_pk_fma_f32 {vr(T+2*i,2)}, {vr(cs+2*i,2)}, {vr(sc,2)}, {vr(bb+2*i,2)} op_sel_hi:[1,0,1]")
    for i in range(n):
        p(f"v_pk_fma_f32 {vr(acc+2*i,2)}, {vr(acc+2*i,2)}, {vr(sc,2)}, {vr(T+2*i,2)} op_sel:[0,1,0] op_sel_hi:[1,1,1]")
    for i in range(2 * n):
        p(f"v_exp_f32 v{T+i}, v{acc+i}")
    for i in range(n):
        p(f"v_pk_add_f32 {vr(T+2*i,2)}, {vr(T+2*i,2)}, 1.0 op_sel_hi:[1,0]")
    for i in range(n):
        p(f"v_pk_fma_f32 {vr(T+2*i,2)}, {vr(T+2*i,2)}, {vr(T+2*i,2)}, 1.0 op_sel_hi:[1,1,0]")
    for i in range(2 * n):
        p(f"v_rcp_f32 v{T+i}, v{T+i}")
    for i in range(n):
        p(f"v_pk_fma_f32 {vr(T+2*i,2)}, {vr(T+2*i,2)}, {vr(M2LN2,2)}, {vr(LN2,2)} op_sel_hi:[1,0,0]")
    for i in range(n):
        p(f"v_pk_mul_f32 {vr(acc+2*i,2)}, {vr(acc+2*i,2)}, {vr(T+2*i,2)}")
for ti in range(2):
    sc = 30 + 2 * ti
    for pr in range(4):
        n = 4 if pr < 3 else 2
        acc = ACC1 + 28 * ti + 8 * pr
        T = 152 + 8 * ((ti * 4 + pr) % 2)
        O = 168 + 4 * (ti * 4 + pr)
        mish(acc, CS + 8 * pr, BB + 8 * pr, sc, n, T)
        pack(O, acc, n)
        if pr < 3:
            p(f"buffer_store_dwordx4 {vr(O,4)}, v{vL16}, {srd(R_WS)}, s{t0} offen offset:{1024*pr}")
        else:
            SK = p.L("NOODD")
            p(f"""s_cmp_ge_u32 s{sN}, 12
            s_cbranch_scc1 {SK}
            buffer_store_dwordx2 {vr(O,2)}, v{vL8}, {srd(R_WS)}, s{t1} offen""")
            p.label(SK)
    if ti == 0:
        p(f"s_add_u32 s{t0}, s{t0}, 110592\ns_add_u32 s{t1}, s{t1}, 110592")
stamp("h_st")
publish_local(sFHB, 34)
stamp("h_pub")

ACC2, HR, NH = 92, 172, 15
p(f"""s_lshl_b32 s{t0}, s{sM}, 8
s_lshl_b32 s{t1}, s{sW}, 6
s_add_u32 s{t0}, s{t0}, s{t1}
s_and_b32 s{t1}, s{sA}, 1
s_lshl_b32 s{t1}, s{t1}, 3
s_add_u32 s{t0}, s{t0}, s{t1}
s_lshl_b32 s{t1}, s{sLAYER}, 12
s_add_u32 s{t0}, s{t0}, s{t1}
s_add_u32 s{t0}, s{t0}, {WS_FH}
v_bfe_u32 v30, v0, 1, 2
v_lshlrev_b32 v30, 4, v30
v_and_b32 v31, 1, v0
v_lshl_add_u32 v30, v31, 2, v30""")
HB = [t2, t3, t4, t5]
for rho in range(4):
    p(f"""s_add_u32 s{t1}, s{sW}, {rho}
    s_and_b32 s{t1}, s{t1}, 3
    s_lshl_b32 s{t6}, s{sA}, 2
    s_add_u32 s{t1}, s{t1}, s{t6}
    s_mul_i32 s{HB[rho]}, s{t1}, 55296""")
p(f"""s_mul_i32 s{t1}, s{sLAYER}, {HF_LAYER}
s_add_u32 s{t1}, s{t1}, {WS_HF}
s_mul_i32 s{t6}, s{sW}, 12288
s_add_u32 s{t1}, s{t1}, s{t6}""")
for rho in range(4):
    p(f"s_add_u32 s{HB[rho]}, s{HB[rho]}, s{t1}")
p(f"""s_mul_i32 s{t7}, s{sW}, 10240
s_sub_u32 s{t7}, {49152 - 8192}, s{t7}""")
poll_flags(30, t0, 31)
stamp("h_seen")
curh = [0, 0, 0, 0]
def h_load(idx):
    kl, rho = idx // 4, idx % 4
    b = HR + 4 * (idx % NH)
    sb = HB[rho]
    if kl < 12:
        want = kl // 4 * 4096
        if curh[rho] != want:
            p(f"s_add_u32 s{sb}, s{sb}, 4096"); curh[rho] = want
        p(f"buffer_load_dwordx4 {vr(b,4)}, v{vL16}, {srd(R_WS)}, s{sb} offen offset:{kl*1024-want} sc1")
    else:
        if kl == 12:
            p(f"s_add_u32 s{sb}, s{sb}, s{t7}")
        o = (kl - 12) * 1024
        p(f"buffer_load_dwordx2 {vr(b,2)}, v{vL8}, {srd(R_WS)}, s{sb} offen offset:{o} sc1")
        p(f"buffer_load_dwordx2 {vr(b+2,2)}, v{vL8}, {srd(R_WS)}, s{sb} offen offset:{o+512} sc1")
for idx in range(NH): h_load(idx)
for kl in range(14):
    if kl == 12:
        p(f"s_cmp_eq_u32 s{sW}, 3\ns_cbranch_scc1 G2_DONE")
    for rho in range(4):
        idx = kl * 4 + rho
        for dt in range(5):
            acc = ACC2 + 20 * rho + 4 * dt
            p(f"v_mfma_f32_16x16x32_bf16 {vr(acc,4)}, {w2reg(kl*5+dt)}, {vr(HR+4*(idx%NH),4)}, {'0' if kl == 0 else vr(acc,4)}")
        if idx + NH < 56: h_load(idx + NH)
p.label("G2_DONE")
stamp("g2_mma")
p(f"""s_mul_i32 s{t1}, s{sW}, 5120
s_add_u32 s{t1}, s{t1}, {RED_BASE}
v_add_u32 v31, s{t1}, v{vL16}""")
for rho in range(1, 4):
    p(f"""s_add_u32 s{t0}, s{sW}, {rho}
    s_and_b32 s{t0}, s{t0}, 3
    s_mul_i32 s{t0}, s{t0}, 5120
    s_add_u32 s{t0}, s{t0}, {RED_BASE}
    v_add_u32 v30, s{t0}, v{vL16}""")
    for dt in range(5):
        p(f"ds_write_b128 v30, {vr(ACC2+20*rho+4*dt,4)} offset:{1024*dt}")
    p("s_waitcnt lgkmcnt(0)\ns_barrier")
    for dt in range(5):
        p(f"ds_read_b128 {vr(172+4*dt,4)}, v31 offset:{1024*dt}")
    for i in range(10):
        p(f"v_pk_add_f32 {vr(ACC2+2*i,2)}, {vr(ACC2+2*i,2)}, {vr(172+2*i,2)}")
    p("s_barrier")
stamp("red_done")
unpack(112, XP, 10)
for i in range(10):
    p(f"v_pk_add_f32 {vr(ACC2+2*i,2)}, {vr(ACC2+2*i,2)}, {vr(112+2*i,2)}")
pack(XP, ACC2, 10)
p(f"""s_cmp_lg_u32 s{sLAYER}, 0
s_cbranch_scc1 FINAL
s_add_u32 s{sSTB}, s{sSTB}, {2*ST_K}
s_lshl_b32 s{t1}, s{sB}, 8
s_add_u32 s{t1}, s{t1}, s{sSTB}""")
unpack(92, XP, 10)
stats_publish(92, 132, t1)
p(f"""s_add_u32 s{sXFB}, s{sXFB}, {XF_LAYER}
s_add_u32 s{sHFB}, s{sHFB}, {HF_LAYER}
s_add_u32 s{sFXB}, s{sFXB}, 4096
s_add_u32 s{sFHB}, s{sFHB}, 4096
s_mov_b32 s{sLAYER}, 1
s_branch LAYER""")
p.label("FINAL")
INLOOP[0] = False
p(f"""s_lshl_b32 s{t0}, s{sA}, 2
s_add_u32 s{t0}, s{t0}, s{sW}
s_mul_i32 s{t0}, s{t0}, 20480
s_mul_i32 s{t1}, s{sB}, 160
s_add_u32 s{t0}, s{t0}, s{t1}
v_mov_b32 v33, 1280
v_mov_b32 v31, s{t0}
v_mad_u32_u24 v31, v{vN}, v33, v31
v_lshl_add_u32 v28, v{vG}, 3, v31""")
for dt in range(5):
    p(f"global_store_dwordx2 v28, {vr(XP+2*dt,2)}, {pair(sOUT)} offset:{32*dt}")
if STAMPS:
    stamp("end")
    p(f"""s_lshl_b32 s{t0}, s2, 2
    s_add_u32 s{t0}, s{t0}, s{sW}
    s_lshl_b32 s{t0}, s{t0}, 8
    s_add_u32 s{t0}, s{t0}, {WS_STAMP}
    v_lshlrev_b32 v30, 2, v0
    buffer_store_dword v{vSTAMP}, v30, {srd(R_WS)}, s{t0} offen""")
p.label("END")
p("s_endpgm")
p.raw(".fill 8192, 4, 0xbf800000")
p.raw('.section .rodata,"a"')
p.raw(".p2align 6")
p.raw(f".amdhsa_kernel {KN}")
for l in ["next_free_vgpr 512", "next_free_sgpr 96", "accum_offset 256", "group_segment_fixed_size 0", "kernarg_size 104",
          "user_sgpr_count 2", "user_sgpr_kernarg_segment_ptr 1", "system_sgpr_workgroup_id_x 1", "float_denorm_mode_32 3"]:
    p.raw("  .amdhsa_" + l)
p.raw(".end_amdhsa_kernel")
out = [a for a in sys.argv[1:] if not a.startswith("--")][0]
open(out, "w").write(p.finalize())
if STAMPS:
    open(out + ".stamps", "w").write("\n".join(stamp_names))
```

```python
import re

REG_RE = re.compile(r'^(-|\|)?(abs\()?([vas])(\d+|\[(\d+):(\d+)\])\)?\|?$')

def regs_of(tok):
    t = tok.strip()
    if t in ('vcc', 'vcc_lo', 'vcc_hi'):
        return [('x', 'vcc')]
    if t in ('exec', 'exec_lo', 'exec_hi'):
        return [('x', 'exec')]
    if t == 'm0':
        return [('x', 'm0')]
    m = REG_RE.match(t)
    if not m:
        return []
    k = m.group(3)
    if m.group(5) is not None:
        return [(k, i) for i in range(int(m.group(5)), int(m.group(6)) + 1)]
    return [(k, int(m.group(4)))]

TRANS = ('v_exp_f32', 'v_log_f32', 'v_rcp_f32', 'v_rsq_f32', 'v_sqrt_f32', 'v_sin_f32', 'v_cos_f32', 'v_rcp_iflag_f32')

class Ins:
    __slots__ = ('text', 'op', 'kind', 'wr', 'rd', 'mf_pass', 'mf_c', 'mf_ab', 'mf_d', 'target', 'tokens_rd', 'token_wr',
                 'wide_store', 'dma', 'nopn', 'waits', 'is_label', 'cond', 'raw', 'sdwa')
    def __init__(self, text):
        self.text = text
        self.is_label = False
        self.raw = False
        self.tokens_rd = []
        self.token_wr = None
        self.parse()

    def parse(self):
        t = self.text.split(';')[0].strip()
        parts = t.split(None, 1)
        op = parts[0]
        self.op = op
        rest = parts[1] if len(parts) > 1 else ''
        ops = []
        depth = 0
        cur = ''
        for ch in rest:
            if ch in '[(':
                depth += 1
            if ch in '])':
                depth -= 1
            if ch == ',' and depth == 0:
                ops.append(cur.strip()); cur = ''
            else:
                cur += ch
        if cur.strip():
            ops.append(cur.strip())
        mods = []
        if ops:
            lastparts = ops[-1].split()
            ops[-1] = lastparts[0]
            mods = lastparts[1:]
        self.wr = set(); self.rd = set()
        self.mf_pass = 0; self.mf_c = set(); self.mf_ab = set(); self.mf_d = ()
        self.target = None; self.wide_store = set(); self.dma = False; self.nopn = 0; self.waits = None; self.cond = False
        self.sdwa = False
        for mm in mods:
            if mm.startswith('offset:'):
                o = int(mm.split(':')[1], 0)
                if op.startswith('buffer_'): assert 0 <= o <= 4095, t
                elif op.startswith('global_'): assert -4096 <= o <= 4095, t
                elif op.startswith('ds_'): assert 0 <= o <= 65535, t
        R = lambda i: regs_of(ops[i]) if i < len(ops) else []
        base = op.replace('_e32', '').replace('_e64', '')
        if op.startswith('v_mfma'):
            self.kind = 'mfma'
            self.mf_pass = 8 if '32x32' in op else 4
            self.mf_d = tuple(R(0)); self.wr = set(R(0))
            self.mf_ab = set(R(1)) | set(R(2)); self.mf_c = set(R(3))
            self.rd = self.mf_ab | self.mf_c
        elif op.startswith('v_'):
            self.kind = 'valu'
            if base in TRANS: self.kind = 'trans'
            if 'permlane' in op and 'swap' in op:
                self.wr = set(R(0)) | set(R(1)); self.rd = set(self.wr); self.kind = 'perm'
            elif op.startswith('v_cmp'):
                self.wr = set(R(0)); self.rd = set(R(1)) | set(R(2))
                if op.startswith('v_cmpx'): self.wr.add(('x', 'exec'))
            elif op.startswith('v_readfirstlane') or op.startswith('v_readlane'):
                self.kind = 'readlane'
                self.wr = set(R(0)); self.rd = set(sum([R(i) for i in range(1, len(ops))], []))
            elif base in ('v_add_co_u32', 'v_sub_co_u32', 'v_subrev_co_u32', 'v_addc_co_u32', 'v_subb_co_u32', 'v_mad_u64_u32', 'v_div_scale_f32'):
                self.wr = set(R(0)) | set(R(1)); self.rd = set(sum([R(i) for i in range(2, len(ops))], []))
            elif base == 'v_nop':
                pass
            else:
                self.wr = set(R(0)); self.rd = set(sum([R(i) for i in range(1, len(ops))], []))
                if base in ('v_fmac_f32', 'v_pk_fmac_f16', 'v_dot2c_f32_bf16', 'v_writelane_b32') or 'd16' in op:
                    self.rd |= set(R(0))
                if base == 'v_cndmask_b32' and len(ops) == 3:
                    self.rd.add(('x', 'vcc'))
            ms = ' '.join(mods)
            if 'row_' in ms or 'quad_perm' in ms or 'wave_' in ms or '_dpp' in op:
                self.kind = 'dpp'
                self.rd |= set(R(0))
            if 'dst_sel' in ms or '_sdwa' in op:
                self.sdwa = True
                self.rd |= set(R(0))
        elif op.startswith('ds_'):
            self.kind = 'ds'
            if op.startswith('ds_read') or op.startswith('ds_bpermute') or op.startswith('ds_swizzle') or op.startswith('ds_permute'):
                self.wr = set(R(0)); self.rd = set(sum([R(i) for i in range(1, len(ops))], []))
                if 'd16' in op: self.rd |= set(R(0))
            else:
                self.rd = set(sum([R(i) for i in range(len(ops))], []))
        elif op.startswith('buffer_') or op.startswith('global_'):
            self.kind = 'vmem'
            allr = lambda lo: set(sum([R(i) for i in range(lo, len(ops))], []))
            if op in ('buffer_wbl2', 'buffer_inv'):
                pass
            elif 'lds' in mods or '_lds_' in op:
                self.dma = True
                self.rd = allr(0) | {('x', 'm0')}
            elif '_load' in op:
                self.wr = set(R(0)); self.rd = allr(1)
                if 'd16' in op: self.rd |= set(R(0))
            elif '_store' in op:
                self.rd = allr(0)
                if 'x3' in op or 'x4' in op:
                    self.wide_store = set(R(0)) if op.startswith('buffer_') else set(R(1))
            elif '_atomic' in op:
                self.rd = allr(0)
                if 'sc0' in mods:
                    self.wr = set(R(0))
            else:
                raise ValueError('unknown vmem ' + t)
        elif op.startswith('s_'):
            self.kind = 'salu'
            if op == 's_nop':
                self.kind = 'nop'; self.nopn = int(ops[0], 0) + 1
            elif op == 's_waitcnt':
                self.kind = 'wait'
                w = {}
                for mm in re.finditer(r'(vmcnt|lgkmcnt|expcnt)\((\d+)\)', t):
                    w[mm.group(1)] = int(mm.group(2))
                self.waits = w
            elif op.startswith('s_load') or op.startswith('s_buffer_load') or op in ('s_memtime', 's_memrealtime'):
                self.kind = 'smem'
                self.wr = set(R(0)); self.rd = set(sum([R(i) for i in range(1, len(ops))], []))
            elif op == 's_branch':
                self.kind = 'branch'; self.target = ops[0]
            elif op.startswith('s_cbranch'):
                self.kind = 'branch'; self.target = ops[0]; self.cond = True
                if 'vcc' in op: self.rd = {('x', 'vcc')}
            elif op == 's_endpgm':
                self.kind = 'end'
            elif op in ('s_barrier', 's_sleep', 's_setprio', 's_sethalt'):
                pass
            elif op.startswith('s_cmp') or op.startswith('s_bitcmp'):
                self.rd = set(sum([R(i) for i in range(len(ops))], []))
            else:
                self.wr = set(R(0)); self.rd = set(sum([R(i) for i in range(1, len(ops))], []))
                if 'saveexec' in op:
                    self.wr.add(('x', 'exec')); self.rd.add(('x', 'exec'))
                if op in ('s_addk_i32', 's_mulk_i32', 's_cmov_b32', 's_cmov_b64', 's_bitset1_b32', 's_bitset0_b32'):
                    self.rd |= set(R(0))
        else:
            raise ValueError('unknown op ' + t)

VALU_KINDS = ('valu', 'trans', 'perm', 'dpp', 'readlane')

def isv(r): return r[0] in ('v', 'a')
def iss(r): return r[0] == 's' or r == ('x', 'vcc')

def need_states(p, c):
    n = 0
    pv = p.kind in VALU_KINDS
    cv = c.kind in VALU_KINDS
    if pv:
        wv = {r for r in p.wr if isv(r)}
        ws = {r for r in p.wr if iss(r)}
        if wv & c.rd:
            if c.kind == 'readlane': n = max(n, 1)
            if c.kind in ('perm', 'dpp'): n = max(n, 2)
            if c.kind == 'mfma': n = max(n, 2)
            if p.kind == 'trans': n = max(n, 1)
            if p.sdwa: n = max(n, 1)
        if p.sdwa and (wv & c.wr): n = max(n, 1)
        if ws & c.rd:
            if cv: n = max(n, 4 if c.kind == 'readlane' else 2)
            if c.kind == 'vmem': n = max(n, 5)
        if ('x', 'exec') in p.wr:
            if c.kind in ('dpp',): n = max(n, 5)
            if c.kind in ('readlane', 'perm', 'mfma'): n = max(n, 4)
    if p.kind == 'mfma':
        P = p.mf_pass
        d = set(p.mf_d)
        if c.kind == 'mfma':
            if d & c.mf_ab: n = max(n, P + 4)
            if d & c.mf_c:
                if not (tuple(sorted(c.mf_c)) == tuple(sorted(d)) and c.mf_pass == P): n = max(n, P + 2)
            if (d & c.wr) and not (d & c.mf_c): n = max(n, P + 2)
        elif cv or c.kind in ('vmem', 'ds'):
            if d & (c.rd | c.wr): n = max(n, P + 4)
        if cv and (p.mf_c & c.wr): n = max(n, P - 1)
        if c.kind in ('vmem', 'ds') and (p.mf_c & c.wr): n = max(n, P - 1)
    if p.kind == 'salu' and ('x', 'm0') in p.wr and c.dma:
        n = max(n, 1)
    if p.wide_store and (p.wide_store & c.wr):
        n = max(n, 2)
    return n

MAXH = 13

class State:
    __slots__ = ('vm', 'lg', 'smem', 'hist')
    def __init__(self):
        self.vm = {}
        self.lg = {}
        self.smem = set()
        self.hist = []
    def copy(self):
        s = State(); s.vm = dict(self.vm); s.lg = dict(self.lg); s.smem = set(self.smem); s.hist = list(self.hist); return s
    def merge(self, o):
        ch = False
        for a, b in ((self.vm, o.vm), (self.lg, o.lg)):
            for k, v in b.items():
                if k not in a or v < a[k]:
                    a[k] = v; ch = True
        if not o.smem <= self.smem:
            self.smem |= o.smem; ch = True
        h = {id(i): (i, d) for i, d in self.hist}
        for i, d in o.hist:
            if id(i) not in h or d < h[id(i)][1]:
                h[id(i)] = (i, d); ch = True
        self.hist = list(h.values())
        return ch

class Prog:
    def __init__(self):
        self.items = []
        self.uid = 0
        self.junk = set()
    def __call__(self, s, tok_wr=None, tok_rd=None):
        last = None
        for l in s.strip('\n').split('\n'):
            l = l.strip()
            if not l or l.startswith(';'):
                continue
            if l.endswith(':'):
                self.label(l[:-1]); continue
            last = Ins(l)
            self.items.append(last)
        if tok_wr is not None: last.token_wr = tok_wr
        return last
    def label(self, n):
        i = Ins.__new__(Ins); i.text = n; i.is_label = True; i.raw = False; i.kind = 'label'
        self.items.append(i)
    def raw(self, s):
        i = Ins.__new__(Ins); i.text = s; i.is_label = False; i.raw = True; i.kind = 'raw'
        self.items.append(i)
    def L(self, p='L'):
        self.uid += 1
        return f'{p}_{self.uid}'
    def tok(self):
        self.uid += 1
        return ('t', self.uid)
    def need(self, *toks):
        i = Ins.__new__(Ins); i.text = ''; i.is_label = False; i.raw = False; i.kind = 'need'; i.tokens_rd = list(toks)
        self.items.append(i)

    def step(self, st, ins, out):
        if ins.kind in ('raw', 'label'):
            if out is not None: out.append(ins.text + (':' if ins.is_label else ''))
            return
        touch = set(ins.tokens_rd) if ins.kind == 'need' else (ins.rd | ins.wr)
        wv = min([st.vm[r] for r in touch if r in st.vm], default=None)
        wl = min([st.lg[r] for r in touch if r in st.lg], default=None)
        if touch & st.smem: wl = 0
        if wl is not None and st.smem: wl = 0
        if wv is not None and wv > 63: wv = None
        if wl is not None and wl > 15: wl = 15
        if wv is not None or wl is not None:
            txt = 's_waitcnt' + (f' vmcnt({wv})' if wv is not None else '') + (f' lgkmcnt({wl})' if wl is not None else '')
            self.apply_wait(st, wv, wl)
            self.advance(st, None, 1)
            if out is not None: out.append('    ' + txt)
        if ins.kind == 'need':
            return
        n = 0
        for p, d in st.hist:
            r = need_states(p, ins)
            if r > d: n = max(n, r - d)
        while n > 0:
            k = min(n, 16)
            if out is not None: out.append(f'    s_nop {k-1}')
            self.advance(st, None, k)
            n -= k
        if out is not None: out.append('    ' + ins.text)
        if ins.kind == 'wait':
            self.apply_wait(st, ins.waits.get('vmcnt'), ins.waits.get('lgkmcnt'))
        if ins.kind == 'vmem':
            for k in st.vm: st.vm[k] += 1
            for r in ins.wr:
                if r not in self.junk: st.vm[r] = 0
            if ins.token_wr is not None: st.vm[ins.token_wr] = 0
        if ins.kind == 'ds':
            for k in st.lg: st.lg[k] += 1
            for r in ins.wr: st.lg[r] = 0
            if ins.token_wr is not None: st.lg[ins.token_wr] = 0
        if ins.kind == 'smem':
            st.smem |= ins.wr
        self.advance(st, ins, ins.nopn if ins.kind == 'nop' else 1)

    def apply_wait(self, st, wv, wl):
        if wv is not None:
            st.vm = {k: v for k, v in st.vm.items() if v < wv}
        if wl is not None:
            if st.smem and wl > 0:
                return
            st.lg = {k: v for k, v in st.lg.items() if v < wl}
            if wl == 0: st.smem = set()

    def advance(self, st, ins, n):
        h = [(p, d + n) for p, d in st.hist if d + n < MAXH]
        if ins is not None and (ins.kind in VALU_KINDS or ins.kind == 'mfma' or ins.wide_store or (ins.kind == 'salu' and ('x', 'm0') in ins.wr)):
            h.append((ins, 0))
        st.hist = h

    def finalize(self):
        items = self.items
        leaders = {0}
        labelpos = {}
        for i, it in enumerate(items):
            if it.kind == 'label':
                leaders.add(i); labelpos[it.text] = i
            if it.kind in ('branch', 'end'):
                leaders.add(i + 1)
        leaders = sorted(x for x in leaders if x < len(items))
        blocks = [(s, (leaders[k + 1] if k + 1 < len(leaders) else len(items))) for k, s in enumerate(leaders)]
        bidx = {s: k for k, (s, e) in enumerate(blocks)}
        def succ(k):
            s, e = blocks[k]
            last = items[e - 1]
            r = []
            if last.kind == 'end': return r
            if last.kind == 'branch':
                r.append(bidx[labelpos[last.target]])
                if not last.cond: return r
            if k + 1 < len(blocks): r.append(k + 1)
            return r
        ins_state = {0: State()}
        entry_extra = [k for k, (s, e) in enumerate(blocks) if items[s].kind == 'label' and items[s].text.endswith('_kernel')]
        for k in entry_extra: ins_state.setdefault(k, State())
        work = list(ins_state.keys())
        while work:
            k = work.pop(0)
            st = ins_state[k].copy()
            s, e = blocks[k]
            for i in range(s, e): self.step(st, items[i], None)
            for n in succ(k):
                if n not in ins_state:
                    ins_state[n] = st.copy(); work.append(n)
                elif ins_state[n].merge(st):
                    if n not in work: work.append(n)
        out = []
        for k, (s, e) in enumerate(blocks):
            st = ins_state.get(k, State()).copy()
            for i in range(s, e): self.step(st, items[i], out)
        return '\n'.join(out) + '\n'
```

```python
import sys
from gasm import Prog, Ins

NAME = "interleave_layers__ssm_conv_h3__dense_activation_mish__prompt"
ARGS = sys.argv[1:]
STAMPS = "--stamps" in ARGS or "--cstamps" in ARGS
STAMP_INS = "s_memtime" if "--cstamps" in ARGS else "s_memrealtime"
FORCE_SLOW = "--slow" in ARGS
def opt(name, default):
    for a in ARGS:
        if a.startswith(f"--{name}="): return type(default)(a.split("=", 1)[1])
    return default
SPIN = 400000
NT = lambda n, d: ' nt' if opt('nt_' + n, d) else ''

WS_EPOCH, WS_XC, WS_FT, WS_FW1, WS_FW2, WS_FC = 0, 0x800, 0x1000, 0x2000, 0x2800, 0x3000
WS_FTR = 0x11000
WS_FY, WS_FX, WS_FH, WS_CB, WS_PS = 0x10000, 0x4000, 0x8000, 0xC000, 0x12000
WS_ST, WS_UR, WS_YG, WS_XF, WS_HF, WS_W1F, WS_W2F, WS_STAMP = 0x100000, 0x300000, 0x600000, 0xB00000, 0x1000000, 0x1E00000, 0x2100000, 0x3000000
XF_LAYER, HF_LAYER, ST_K = 128 * 20 * 1024, 128 * 54 * 1024, 128 * 4096

LDS_BYTES = 163840
CONV_PITCH, HC_PITCH = 21312, 4160
LU_OFF = 4 * HC_PITCH
CONV_BASE = LDS_BYTES - 4 * CONV_PITCH
T_BASE = 0
UT_BASE = 25600
WST_BASE = CONV_BASE
RED_BASE = 143360
NW1A = 76

sQ, sK, sV, sSK, sH, sD, sBX, sW1, sB1, sW2, sOUT, sDBG, sWS = [4 + 2 * i for i in range(13)]
R_WS, R_K, R_V, R_H, R_W = 32, 36, 40, 44, 48
sJ, sSIG, sW, sA, sB, sM, sN, sTAG, sE, sDVAL, sXV, sSPIN = range(52, 64)
t0, t1, t2, t3, t4, t5, t6, t7 = range(64, 72)
sSTAMP = 72
WU = [36, 36]
sXR, sXW, sXS, sHW, sHS, sHR, sFXR, sFXW, sFHR, sFHW, sSTW, sSTO, sSTR, sP8, sW2B, sW2S, sGOTA = range(76, 93)
sB0, sB1_, sH0, sH1 = 93, 94, 95, 96
sTAG2 = 97
srd = lambda r: f"s[{r}:{r+3}]"
pair = lambda r: f"s[{r}:{r+1}]"
WSR = srd(R_WS)

vL16, vN, vG, vL8, vSTAMP = 1, 2, 3, 4, 5
XP = [6, 12]
YP = [17, 22]
JUNK = 27
vA1 = [vL16, 28, 29]
CS, BB = 36, 64
vr = lambda b, n: f"v[{b}:{b+n-1}]" if n > 1 else f"v{b}"
def w2reg(q):
    return f"a[{4*q}:{4*q+3}]" if q < 64 else f"v[{232+4*(q-64)}:{232+4*(q-64)+3}]"
MF = "v_mfma_f32_16x16x32_bf16"

p = Prog()
p.junk = {('v', JUNK)}
stamp_names = []
tail_code = []

class Fill:
    def __init__(self): self.items = []
    def __call__(self, s, tok_wr=None):
        ls = [l.strip() for l in s.strip("\n").split("\n") if l.strip() and not l.strip().startswith(";")]
        for i, l in enumerate(ls):
            c = 8 if l.split()[0] in ("v_exp_f32", "v_rcp_f32", "v_sqrt_f32", "v_rsq_f32") else 4
            self.items.append((c, (lambda l=l, t=(tok_wr if i == len(ls) - 1 else None): p(l, tok_wr=t))))
    def group(self, fn, cost): self.items.append((cost, fn))
    def skip(self, n): self.items.append(("skip", n))
    def need(self, *t): self.items.append((4, lambda: p.need(*t)))
    def L(self, x): return p.L(x)

class Direct:
    def __call__(self, s, tok_wr=None): p(s, tok_wr=tok_wr)
    def group(self, fn, cost): fn()
    def skip(self, n): pass
    def need(self, *t): p.need(*t)
D = Direct()

def merge(beats, fill=None, rate=8):
    items = list(fill.items) if fill else []
    credit = 0
    hold = 0
    for b in beats:
        for x in b:
            if callable(x): x()
            else: p(x)
        credit = min(credit, 0) + rate - 4 * (len(b) - 1)
        if hold > 0:
            hold -= 1; continue
        while items and credit > 0:
            c, fn = items[0]
            if c == "skip":
                items.pop(0); hold = fn; break
            if c > credit and credit < 4: break
            items.pop(0); fn(); credit -= c
    for c, fn in items:
        if c != "skip": fn()

def stamp(name, e=None):
    if not STAMPS: return
    if name not in stamp_names: stamp_names.append(name)
    i = stamp_names.index(name)
    assert i < 64
    fn = lambda: p(f"{STAMP_INS} {pair(sSTAMP)}\ns_waitcnt lgkmcnt(0)\nv_writelane_b32 v{vSTAMP}, s{sSTAMP}, {i}")
    (e or D).group(fn, 12)

def spin_wait(load_lines, checks, slow_inv, tag=None, nap=None):
    L, L2, X = p.L("POLL"), p.L("POLLB"), p.L("POLLX")
    nap = opt("nap", 2) if nap is None else nap
    p(f"s_mov_b32 s{sSPIN}, 0\ns_branch {L2}")
    p.label(L)
    if nap: p(f"s_sleep {nap}")
    p(f"s_add_u32 s{sSPIN}, s{sSPIN}, 1\ns_cmp_gt_u32 s{sSPIN}, {SPIN}\ns_cbranch_scc1 {X}")
    p.label(L2)
    p(load_lines)
    p("s_waitcnt vmcnt(0)")
    for r in checks:
        p(f"v_cmp_ne_u32 vcc, s{tag or sTAG}, v{r}\ns_cbranch_vccnz {L}")
    p.label(X)
    if slow_inv: p("buffer_inv sc1\ns_waitcnt vmcnt(0)")

def late_check(e, load_lines, checks, tmp, slow_inv, tag=None):
    TG = tag or sTAG
    def fn():
        S, B = p.L("SPIN"), p.L("BACK")
        if len(checks) == 1:
            p(f"v_cmp_ne_u32 vcc, s{TG}, v{checks[0]}")
        else:
            p(f"v_xor_b32 v{tmp}, s{TG}, v{checks[0]}")
            for r in checks[1:-1]:
                p(f"v_xor_b32 v{r}, s{TG}, v{r}\nv_or_b32 v{tmp}, v{tmp}, v{r}")
            p(f"v_cmp_ne_u32 vcc, s{TG}, v{checks[-1]}\nv_cmp_ne_u32 s[{t6}:{t7}], 0, v{tmp}\ns_or_b64 vcc, vcc, s[{t6}:{t7}]")
        p(f"s_cbranch_vccnz {S}")
        p.label(B)
        if slow_inv: p("buffer_inv sc1\ns_waitcnt vmcnt(0)")
        def tail():
            p.label(S)
            spin_wait(load_lines, checks, False, TG)
            p(f"s_branch {B}")
        tail_code.append(tail)
    e.group(fn, 8 + 8 * len(checks))

def unpack(e, dst, src, n):
    for i in range(n):
        e(f"v_lshlrev_b32 v{dst+2*i}, 16, v{src+i}\nv_and_b32 v{dst+2*i+1}, 0xffff0000, v{src+i}")
def pack(e, dst, src, n):
    for i in range(n):
        e(f"v_cvt_pk_bf16_f32 v{dst+i}, v{src+2*i}, v{src+2*i+1}")
def bf16r(e, r):
    e(f"v_cvt_pk_bf16_f32 v{r}, v{r}, v{r}\nv_lshlrev_b32 v{r}, 16, v{r}")

def stats_publish(e, x, g, soff, imm, slow, tag=None):
    e(f"v_add_f32 v{g}, v{x}, v{x+1}\nv_mul_f32 v{g+2}, v{x}, v{x}\nv_mul_f32 v{g+3}, v{x+1}, v{x+1}\nv_add_f32 v{g+1}, v{x+2}, v{x+3}")
    for i in range(2, 10, 2):
        e(f"v_fmac_f32 v{g+2}, v{x+i}, v{x+i}\nv_fmac_f32 v{g+3}, v{x+i+1}, v{x+i+1}")
        if i >= 4: e(f"v_add_f32 v{g}, v{g}, v{x+i}\nv_add_f32 v{g+1}, v{g+1}, v{x+i+1}")
    e(f"v_add_f32 v{g}, v{g}, v{g+1}\nv_add_f32 v{g+2}, v{g+2}, v{g+3}")
    e(f"v_permlane16_swap_b32 v{g}, v{g+2}\nv_add_f32 v{g}, v{g}, v{g+2}\nv_mov_b32 v{g+2}, v{g}")
    e(f"v_and_b32 v{g+3}, 1, v{vG}\nv_permlane32_swap_b32 v{g}, v{g+2}\nv_lshlrev_b32 v{g+3}, 3, v{g+3}")
    e(f"v_add_f32 v{g}, v{g}, v{g+2}\nv_mov_b32 v{g+1}, s{tag or sTAG}\nv_lshl_add_u32 v{g+3}, v{vN}, 4, v{g+3}")
    e(f"buffer_store_dwordx2 {vr(g,2)}, v{g+3}, {WSR}, s{soff} offen offset:{imm}{' sc1' if slow else ''}")

def stats_loads(G, soff):
    return "\n".join(f"buffer_load_dwordx4 {vr(G+4*i,4)}, v{vL16}, {WSR}, s{soff} offen offset:{1024*i} sc1" for i in range(4))

def stats_finish(e, G, o):
    e(f"v_add_f32 v{G}, v{G}, v{G+4}\nv_add_f32 v{G+2}, v{G+2}, v{G+6}\nv_add_f32 v{G+8}, v{G+8}, v{G+12}\nv_add_f32 v{G+10}, v{G+10}, v{G+14}")
    e(f"v_add_f32 v{G}, v{G}, v{G+8}\nv_add_f32 v{G+2}, v{G+2}, v{G+10}")
    e(f"v_permlane16_swap_b32 v{G}, v{G+2}\nv_add_f32 v{G}, v{G}, v{G+2}\nv_mov_b32 v{G+2}, v{G}")
    e(f"v_permlane32_swap_b32 v{G}, v{G+2}\nv_add_f32 v{o}, v{G}, v{G+2}\nv_add_f32 v{o+1}, v{G}, v{G+2}")
    e(f"v_permlane16_swap_b32 v{o}, v{o+1}")
    s, q = o, o + 1
    e(f"v_mul_f32 v{s}, 0x3acccccd, v{s}\nv_mul_f32 v{q}, 0x3acccccd, v{q}\nv_fma_f32 v{q}, -v{s}, v{s}, v{q}\nv_max_f32 v{q}, 0, v{q}")
    e(f"v_cvt_pk_bf16_f32 v{q}, v{q}, v{s}\nv_and_b32 v{s}, 0xffff0000, v{q}\nv_lshlrev_b32 v{q}, 16, v{q}")
    e(f"v_add_f32 v{q}, 0x3727c5ac, v{q}")
    bf16r(e, q)
    e(f"v_sqrt_f32 v{q}, v{q}")
    bf16r(e, q)
    e(f"v_rcp_f32 v{q}, v{q}")

def publish(e, tok, soff, imm, tmp, slow, tag=None, wb=True):
    e(f"v_mov_b32 v{tmp}, s{tag or sTAG}\nv_mov_b32 v{tmp+1}, 0")
    e.need(tok)
    if slow and wb:
        e.group(lambda: p(f"s_waitcnt vmcnt(0)\nbuffer_wbl2 sc1\ns_waitcnt vmcnt(0)"), 8)
    e(f"buffer_store_dword v{tmp}, v{tmp+1}, {WSR}, s{soff} offen offset:{imm}{' sc1' if slow else ''}")

vHOFF = 35
HD = 170
def h_loads():
    for q in range(5):
        if q == 4: p("s_mov_b64 exec, 15")
        p(f"buffer_load_dwordx4 {vr(HD+6*q,4)}, v{vHOFF}, {srd(R_H)}, 0 offen nt")
        if q < 4: p(f"v_add_u32 v{vHOFF}, 1024, v{vHOFF}")
    p("s_mov_b64 exec, -1")
def h_build():
    p(f"v_cmp_lt_u32 vcc, 1, v0")
    for i in range(4): p(f"v_cndmask_b32 v{HD+i}, 0, v{HD+i}, vcc")
    for q in range(5):
        d = HD + 6 * q
        for i in range(2):
            p(f"v_mov_b32_dpp v{d+4+i}, v{d+i} wave_shl:1 row_mask:0xf bank_mask:0xf")
        if q < 4:
            for i in range(2): p(f"v_readfirstlane_b32 s{t0+i}, v{d+6+i}")
            for i in range(2): p(f"v_writelane_b32 v{d+4+i}, s{t0+i}, 63")
    for q in range(5):
        d, S = HD + 6 * q, 200 + 12 * (q % 2)
        if q == 4: p("s_mov_b64 exec, 7")
        p(f"ds_write_b128 v33, {vr(d,4)} offset:{1024*q}")
        for i in range(4): p(f"v_alignbit_b32 v{S+i}, v{d+i+1}, v{d+i}, 16")
        p(f"ds_write_b128 v33, {vr(S,4)} offset:{1024*q + HC_PITCH}")
        for i in range(4): p(f"v_mov_b32 v{S+4+i}, v{d+i+1}")
        p(f"ds_write_b128 v33, {vr(S+4,4)} offset:{1024*q + 2*HC_PITCH}")
        for i in range(4): p(f"v_alignbit_b32 v{S+8+i}, v{d+i+2}, v{d+i+1}, 16")
        p(f"ds_write_b128 v33, {vr(S+8,4)} offset:{1024*q + 3*HC_PITCH}")
    p("s_mov_b64 exec, -1")

def w_unit_params(rep):
    Bq, E = p.L("WU2"), p.L("WUE")
    sv = WU[rep]
    p(f"""s_sub_u32 s{t0}, s{sSIG}, {20 if rep == 0 else -12}
    s_lshl_b32 s{t0}, s{t0}, 2
    s_add_u32 s{t0}, s{t0}, s{sW}
    s_min_u32 s{t0}, s{t0}, 94
    s_mov_b32 s{R_W+2}, 2211840
    v_mov_b32 v32, 0
    s_cmp_ge_u32 s{t0}, 40
    s_cbranch_scc1 {Bq}
    s_mul_i32 s{t1}, s{sJ}, 40
    s_add_u32 s{t0}, s{t0}, s{t1}
    s_and_b32 s{t7}, s{t0}, 15
    s_lshr_b32 s{t6}, s{t0}, 4
    s_mul_i32 s{t0}, s{t7}, 20
    s_add_u32 s{t0}, s{t0}, s{t6}
    s_mul_i32 s{sv}, s{t0}, 7168
    s_add_u32 s{sv}, s{sv}, {WS_W1F}
    s_mul_i32 s{sv+3}, s{t0}, 448
    s_add_u32 s{sv+3}, s{sv+3}, {WS_PS}
    s_lshr_b32 s{t1}, s{t6}, 1
    s_mul_i32 s{t1}, s{t1}, 80
    s_and_b32 s{t2}, s{t6}, 1
    s_lshl_b32 s{t2}, s{t2}, 1
    s_add_u32 s{t1}, s{t1}, s{t2}
    s_add_u32 s{t2}, s{t1}, 32
    s_sub_u32 s{t3}, s{t6}, 16
    s_mul_i32 s{t3}, s{t3}, 160
    s_add_u32 s{t4}, s{t3}, 64
    s_add_u32 s{t3}, s{t3}, 144
    s_cmp_ge_u32 s{t6}, 16
    s_cselect_b32 s{t1}, s{t4}, s{t1}
    s_cselect_b32 s{t2}, s{t3}, s{t2}
    s_cselect_b32 s{t3}, 0, 14
    v_mov_b32 v32, s{t3}
    s_mul_i32 s{t1}, s{t1}, 3456
    s_mul_i32 s{t2}, s{t2}, 3456
    s_lshl_b32 s{t3}, s{t7}, 5
    s_add_u32 s{t6}, s{t6}, s{t3}
    s_lshl_b32 s{t6}, s{t6}, 2
    s_add_u32 s{sv+1}, s{t6}, {WS_FW1}
    s_mul_i32 s{t3}, s{t7}, 7
    s_mul_i32 s{t4}, s{t7}, 6
    s_add_u32 s{t4}, s{t4}, 12
    s_cmp_ge_u32 s{t7}, 12
    s_cselect_b32 s{t3}, s{t4}, s{t3}
    s_lshl_b32 s{t3}, s{t3}, 5
    s_add_u32 s{t1}, s{t1}, s{t3}
    s_add_u32 s{t2}, s{t2}, s{t3}
    s_mov_b32 s{t3}, 3456
    s_mov_b32 s{t4}, 14
    s_mov_b32 s{R_W}, s{sW1}
    s_mov_b32 s{R_W+1}, s{sW1+1}
    s_branch {E}""")
    p.label(Bq)
    p(f"""s_sub_u32 s{t0}, s{t0}, 40
    s_mov_b32 s{sv+3}, s{t0}
    s_min_u32 s{t0}, s{t0}, 53
    s_mul_i32 s{t1}, s{sJ}, 54
    s_add_u32 s{t0}, s{t0}, s{t1}
    s_and_b32 s{t7}, s{t0}, 7
    s_lshr_b32 s{t6}, s{t0}, 3
    s_mul_i32 s{t0}, s{t7}, 54
    s_add_u32 s{t0}, s{t0}, s{t6}
    s_mul_i32 s{sv}, s{t0}, 5120
    s_add_u32 s{sv}, s{sv}, {WS_W2F}
    s_mul_i32 s{t1}, s{t6}, 21846
    s_lshr_b32 s{t1}, s{t1}, 16
    s_mul_i32 s{t2}, s{t1}, 3
    s_sub_u32 s{t2}, s{t6}, s{t2}
    s_mul_i32 s{t3}, s{t1}, 7
    s_mul_i32 s{t4}, s{t1}, 6
    s_add_u32 s{t4}, s{t4}, 12
    s_cmp_ge_u32 s{t1}, 12
    s_cselect_b32 s{t1}, s{t4}, s{t3}
    s_lshl_b32 s{t2}, s{t2}, 1
    s_add_u32 s{t1}, s{t1}, s{t2}
    s_add_u32 s{t2}, s{t1}, 1
    s_sub_u32 s{t3}, s{t6}, 48
    s_mul_i32 s{t3}, s{t3}, 14
    s_add_u32 s{t4}, s{t3}, 6
    s_add_u32 s{t3}, s{t3}, 13
    s_cmp_ge_u32 s{t6}, 48
    s_cselect_b32 s{t1}, s{t4}, s{t1}
    s_cselect_b32 s{t2}, s{t3}, s{t2}
    s_mul_i32 s{t1}, s{t1}, 20480
    s_mul_i32 s{t2}, s{t2}, 20480
    s_lshl_b32 s{t3}, s{t7}, 6
    s_add_u32 s{t6}, s{t6}, s{t3}
    s_lshl_b32 s{t6}, s{t6}, 2
    s_add_u32 s{sv+1}, s{t6}, {WS_FW2}
    s_mul_i32 s{t3}, s{t7}, 160
    s_add_u32 s{t1}, s{t1}, s{t3}
    s_add_u32 s{t2}, s{t2}, s{t3}
    s_mov_b32 s{t3}, 1280
    s_mov_b32 s{t4}, 10
    s_mov_b32 s{R_W}, s{sW2}
    s_mov_b32 s{R_W+1}, s{sW2+1}
    s_cmp_eq_u32 s{sv+3}, 54
    s_cselect_b32 s{t1}, 0x70000000, s{t1}
    s_cselect_b32 s{t2}, 0x70000000, s{t2}
    s_cselect_b32 s{sv}, 0x70000000, s{sv}
    s_cselect_b32 s{sv+1}, 0x70000000, s{sv+1}""")
    p.label(E)
    x = WX[rep]
    p(f"""s_lshl_b32 s{sv+2}, s{t4}, 4
    v_cvt_f32_u32 v30, v0
    v_cvt_f32_u32 v31, s{t4}
    v_add_f32 v30, 0.5, v30
    v_rcp_f32 v31, v31
    v_mul_f32 v30, v30, v31
    v_cvt_u32_f32 v30, v30
    v_mul_lo_u32 v31, v30, s{t4}
    v_sub_u32 v31, v0, v31
    v_lshlrev_b32 v31, 4, v31
    v_cmp_gt_u32 vcc, 4, v30
    v_lshrrev_b32 v33, 1, v30
    v_mad_u32_u24 v30, v33, v32, v30
    v_mul_lo_u32 v30, v30, s{t3}
    v_add_u32 v{WV[rep]}, v31, v30
    s_mov_b32 s{x[0]}, s{t1}
    s_mov_b32 s{x[1]}, s{t2}
    s_lshl_b32 s{x[2]}, s{t3}, 2
    s_mov_b32 s{x[3]}, vcc_hi
    v_lshrrev_b32 v32, 2, v0
    v_mul_lo_u32 v32, v32, s{sv+2}
    v_and_b32 v33, 3, v0
    v_lshl_add_u32 v32, v33, 3, v32
    s_mul_i32 s{t0}, s{sW}, {WSTG[rep][1]}
    s_add_u32 s{t0}, s{t0}, {WSTG[rep][0]}
    v_add_u32 v{WV[rep]+1}, s{t0}, v32
    s_lshl_b32 s{t1}, s{sv+2}, 4
    v_add_u32 v{WV[rep]+2}, s{t1}, v{WV[rep]+1}""")
WX = [(30, 31, 74, 75), (30, 31, 74, 75)]
PRIV = NW1A // 4 * 1024
WSTG = [(WST_BASE, 7168), (6400, PRIV)]
WV = [84, 84]
def w_unit_dma(rep, tok):
    sv, x = WU[rep], WX[rep]
    p(f"""s_mul_i32 s3, s{sW}, {WSTG[rep][1]}
    s_add_u32 m0, s3, {WSTG[rep][0]}
    s_lshl_b32 s3, s{sv+2}, 2
    s_mov_b32 exec_hi, s{x[3]}""")
    for q in range(8):
        so = x[0] if q < 4 else x[1]
        p(f"buffer_load_dwordx4 v{WV[rep]}, {srd(R_W)}, s{so} offen nt lds", tok_wr=(tok if q == 7 else None))
        if q < 7: p(f"s_add_u32 m0, m0, s3\ns_add_u32 s{so}, s{so}, s{x[2]}")
    p("s_mov_b64 exec, -1")

def row_pattern(dst, tmp):
    p(f"""v_mul_u32_u24 v{tmp}, 205, v0
    v_lshrrev_b32 v{tmp}, 11, v{tmp}
    v_mul_u32_u24 v{dst}, 1120, v{tmp}
    v_lshl_add_u32 v{dst}, v0, 4, v{dst}""")

KN = NAME + "_kernel"
p.raw(f"; @launch grid=(256,1,1) block=(256,1,1) lds={LDS_BYTES}")
p.raw('.amdgcn_target "amdgcn-amd-amdhsa--gfx950"')
p.raw(f".text\n.globl {KN}\n.p2align 8\n.type {KN},@function")
p.label(KN)
p(f"""s_cmp_ge_u32 s2, 256
s_cbranch_scc1 END
s_load_dwordx16 s[4:19], s[0:1], 0
s_load_dwordx8 s[20:27], s[0:1], 64
s_load_dwordx2 s[28:29], s[0:1], 96
s_getpc_b64 {pair(t6)}
s_lshr_b32 s{sSIG}, s2, 3
s_lshl_b32 s{t0}, s{sSIG}, 11
v_lshl_add_u32 v30, v0, 3, s{t0}
global_load_dword v{JUNK}, v30, {pair(t6)}""")
if STAMPS: p(f"v_mov_b32 v{vSTAMP}, 0")
stamp("start")
p(f"""v_lshrrev_b32 v30, 6, v0
v_and_b32 v0, 63, v0
v_readfirstlane_b32 s{sW}, v30
s_and_b32 s{sJ}, s2, 7
v_lshlrev_b32 v{vL8}, 3, v0
v_and_b32 v{vN}, 15, v0""")
row_pattern(31, 30)
p(f"""s_lshl_b32 s{t0}, s{sSIG}, 2
s_add_u32 s{t0}, s{t0}, s{sW}
s_mul_i32 s{t1}, s{t0}, 20480
s_mul_i32 s{t2}, s{sJ}, 160
s_add_u32 s{t1}, s{t1}, s{t2}
v_add_u32 v31, s{t1}, v31
v_subrev_u32 v32, 5120, v31
s_mul_i32 m0, s{sW}, 6400
s_mov_b32 s{R_K+2}, 2621440
s_mov_b32 s{R_K+3}, 0x20000
s_mov_b32 s{R_V+2}, 2621440
s_mov_b32 s{R_V+3}, 0x20000
s_mul_i32 s{t2}, s{sJ}, 640
v_lshl_add_u32 v30, v{vN}, 3, s{t2}
s_mul_i32 s{t3}, s{sJ}, 80
s_min_u32 s{t1}, s{sSIG}, 19
s_lshl_b32 s{t1}, s{t1}, 2
s_add_u32 s{t3}, s{t3}, s{t1}
s_add_u32 s{t3}, s{t3}, s{sW}
s_lshl_b32 s{t1}, s{t3}, 1
s_and_b32 s{t2}, s{t1}, 0xfffc
v_min_u32 v33, 39, v0
v_lshlrev_b32 v33, 7, v33
v_min_u32 v34, 0x480, v33
s_lshl_b32 s{t4}, s{sJ}, 9
s_add_u32 s{t4}, s{t4}, {WS_FT}
v_add_u32 v35, s{t4}, v{vL8}
s_lshl_b32 s{t4}, s{sJ}, 7
s_add_u32 s{t5}, s{t4}, {WS_XC}
v_writelane_b32 v35, s{t5}, 1
s_lshl_b32 s{t5}, s2, 2
s_add_u32 s{t5}, s{t5}, s{sW}
s_lshl_b32 s{t5}, s{t5}, 8
v_writelane_b32 v35, s{t5}, 2
s_add_u32 s{t5}, s{t5}, 128
v_writelane_b32 v35, s{t5}, 3
s_waitcnt lgkmcnt(0)
s_load_dword s{sE}, {pair(sWS)}, {WS_EPOCH}
s_load_dword s{sDVAL}, {pair(sD)}, s{t2}
global_load_dword v{JUNK}, v33, {pair(sSK)}
global_load_dword v{JUNK}, v34, {pair(sD)}
global_load_dword v{JUNK}, v35, {pair(sWS)} sc1""")
SKP = 50
for dt in range(5):
    p(f"global_load_dwordx2 {vr(SKP+2*dt,2)}, v30, {pair(sSK)} offset:{128*dt}")
p(f"""s_mov_b32 s{R_K}, s{sK}
s_mov_b32 s{R_K+1}, s{sK+1}
s_mov_b32 s{R_V}, s{sV}
s_mov_b32 s{R_V+1}, s{sV+1}
s_mov_b32 exec_hi, 0x3ffff""")
tokT = p.tok()
for q in range(4):
    p(f"buffer_load_dwordx4 v32, {srd(R_K)}, 0 offen nt lds")
    p(f"s_add_u32 m0, m0, 800")
    if q < 3: p(f"v_add_u32 v32, 6400, v32")
for q in range(4):
    p(f"buffer_load_dwordx4 v31, {srd(R_V)}, 0 offen nt lds", tok_wr=(tokT if q == 3 else None))
    if q < 3: p(f"s_add_u32 m0, m0, 800\nv_add_u32 v31, 6400, v31")
p(f"""s_mov_b64 exec, -1
v_lshlrev_b32 v{vL16}, 4, v0
v_lshrrev_b32 v{vG}, 4, v0
s_mov_b32 s{R_WS}, s{sWS}
s_mov_b32 s{R_WS+1}, s{sWS+1}
s_mov_b32 s{R_WS+2}, 0x10000000
s_mov_b32 s{R_WS+3}, 0x20000
s_mov_b32 s{R_H}, s{sH}
s_mov_b32 s{R_H+1}, s{sH+1}
s_mov_b32 s{R_H+2}, 2621440
s_mov_b32 s{R_H+3}, 0x20000
s_mov_b32 s{R_W+3}, 0x20000
s_lshr_b32 s{t0}, s{sSIG}, 3
s_lshl_b32 s{sA}, s{sJ}, 2
s_add_u32 s{sA}, s{sA}, s{t0}
s_and_b32 s{sB}, s{sSIG}, 7
s_lshr_b32 s{sM}, s{sA}, 1
s_and_b32 s{sN}, s{sSIG}, 15
s_lshl_b32 s{t3}, s{t3}, 12
s_sub_u32 s{t3}, s{t3}, 32
v_add_u32 v{vHOFF}, s{t3}, v{vL16}
s_getreg_b32 s{sXV}, hwreg(HW_REG_XCC_ID)
s_lshl_b32 s{sXV}, s{sXV}, 28
s_lshl_b32 s{t1}, s{sSIG}, 2
s_add_u32 s{t0}, s{t4}, s{t1}
v_mov_b32 v30, 0
s_mul_i32 s{sTAG}, s{sE}, 0x9E3779B1
s_add_u32 s{sTAG}, s{sTAG}, 0x7F4A7C15
s_xor_b32 s{sTAG2}, s{sTAG}, 0x5bd1e995
s_xor_b32 s{sXV}, s{sXV}, s{sTAG}
v_mov_b32 v31, s{sXV}
s_cmp_eq_u32 s{sW}, 0
s_cselect_b32 s{t0}, s{t0}, 0x7ffff000
buffer_store_dword v31, v30, {WSR}, s{t0} offen offset:{WS_XC} sc1""")
stamp("xpub")
def bases():
    p(f"""s_and_b32 s{t0}, s{sW}, 1
    s_lshr_b32 s{t1}, s{sW}, 1
    s_lshl_b32 s{sP8}, s{t1}, 3
    s_lshl_b32 s{t2}, s{sA}, 2
    s_add_u32 s{t2}, s{t2}, s{t0}
    s_lshl_b32 s{t3}, s{sM}, 3
    s_add_u32 s{t3}, s{t3}, s{t0}
    s_lshl_b32 s{t4}, s{t1}, 2
    s_add_u32 s{t3}, s{t3}, s{t4}
    s_lshl_b32 s{t4}, s{sB}, 1
    s_add_u32 s{t4}, s{t4}, s{t1}
    s_mul_i32 s{sXR}, s{t3}, 20480
    s_add_u32 s{sXR}, s{sXR}, {WS_XF}
    s_mul_i32 s{t5}, s{t2}, 20480
    s_add_u32 s{t5}, s{t5}, {WS_XF}
    s_lshl_b32 s{sXW}, s{t4}, 10
    s_add_u32 s{sXW}, s{sXW}, s{t5}
    s_lshr_b32 s{sXS}, s{t4}, 2
    s_lshl_b32 s{sXS}, s{sXS}, 10
    s_and_b32 s{t6}, s{t4}, 3
    s_lshl_b32 s{t6}, s{t6}, 2
    s_add_u32 s{sXS}, s{sXS}, s{t6}
    s_add_u32 s{sXS}, s{sXS}, s{t5}
    s_add_u32 s{sXS}, s{sXS}, 16384
    s_mul_i32 s{t5}, s{t3}, 55296
    s_add_u32 s{t5}, s{t5}, {WS_HF}
    s_mul_i32 s{sHW}, s{sN}, 3072
    s_add_u32 s{sHW}, s{sHW}, s{t5}
    s_lshl_b32 s{sHS}, s{sN}, 9
    s_add_u32 s{sHS}, s{sHS}, s{t5}
    s_add_u32 s{sHS}, s{sHS}, 49152
    s_mul_i32 s{sHR}, s{t2}, 55296
    s_mul_i32 s{t5}, s{sW}, 12288
    s_add_u32 s{sHR}, s{sHR}, s{t5}
    s_add_u32 s{sHR}, s{sHR}, {WS_HF}
    s_lshl_b32 s{sFXR}, s{t3}, 6
    s_add_u32 s{sFXR}, s{sFXR}, {WS_FX}
    s_lshl_b32 s{sFXW}, s{t2}, 4
    s_add_u32 s{sFXW}, s{sFXW}, s{t4}
    s_lshl_b32 s{sFXW}, s{sFXW}, 2
    s_add_u32 s{sFXW}, s{sFXW}, {WS_FX}
    s_lshl_b32 s{sFHR}, s{sM}, 8
    s_lshl_b32 s{t5}, s{sW}, 6
    s_add_u32 s{sFHR}, s{sFHR}, s{t5}
    s_and_b32 s{t5}, s{sA}, 1
    s_lshl_b32 s{t5}, s{t5}, 3
    s_add_u32 s{sFHR}, s{sFHR}, s{t5}
    s_add_u32 s{sFHR}, s{sFHR}, {WS_FH}
    s_lshl_b32 s{sFHW}, s{sM}, 4
    s_add_u32 s{sFHW}, s{sFHW}, s{sN}
    s_lshl_b32 s{sFHW}, s{sFHW}, 2
    s_add_u32 s{sFHW}, s{sFHW}, s{sW}
    s_lshl_b32 s{sFHW}, s{sFHW}, 2
    s_add_u32 s{sFHW}, s{sFHW}, {WS_FH}
    s_lshl_b32 s{sSTO}, s{t2}, 12
    s_add_u32 s{sSTO}, s{sSTO}, {WS_ST}
    s_lshl_b32 s{sSTW}, s{t4}, 8
    s_add_u32 s{sSTW}, s{sSTW}, s{sSTO}
    s_lshl_b32 s{sSTR}, s{t3}, 12
    s_add_u32 s{sSTR}, s{sSTR}, {WS_ST}
    s_mul_i32 s{t0}, s{sB}, 54
    s_mul_i32 s{t5}, s{sW}, 12
    s_add_u32 s{t5}, s{t5}, s{t0}
    s_mul_i32 s{sW2B}, s{t5}, 5120
    s_add_u32 s{sW2B}, s{sW2B}, {WS_W2F}
    s_lshl_b32 s{t5}, s{sW}, 1
    s_min_u32 s{t5}, s{t5}, 4
    s_add_u32 s{t5}, s{t5}, s{t0}
    s_add_u32 s{t5}, s{t5}, 48
    s_mul_i32 s{sW2S}, s{t5}, 5120
    s_add_u32 s{sW2S}, s{sW2S}, {WS_W2F}
    v_add_u32 v{vA1[1]}, 57344, v{vL16}
    v_add_u32 v{vA1[2]}, 114688, v{vL16}""")
CA, CB_, CACC, CAD = 92, 156, 220, 252
vA, vB = 36, 37
def conv_prep():
    p(f"""s_mul_i32 s{t3}, s{sW}, {CONV_PITCH}
    s_add_u32 s{t3}, s{t3}, {CONV_BASE}
    v_mov_b32 v30, 0
    v_mov_b32 v31, 0
    v_add_u32 v32, s{t3}, v{vL8}
    ds_write_b64 v32, v[30:31] offset:{LU_OFF+4096}
    v_add_u32 v32, 1, v{vN}
    v_and_b32 v33, 3, v32
    v_sub_u32 v32, v32, v33
    v_lshlrev_b32 v32, 1, v32
    v_mul_u32_u24 v33, {HC_PITCH}, v33
    v_add3_u32 v{vA}, v32, v33, s{t3}
    v_lshl_add_u32 v{vA}, v{vG}, 4, v{vA}
    v_lshlrev_b32 v32, 5, v{vN}
    v_sub_u32 v32, {LU_OFF + 4064 - 3584}, v32
    v_lshl_add_u32 v32, v{vG}, 4, v32
    v_add_u32 v{vB}, s{t3}, v32
    s_lshl_b32 s{t1}, s{sDVAL}, 16
    s_bitcmp1_b32 s{sW}, 0
    s_cselect_b32 s{t1}, s{sDVAL}, s{t1}
    s_and_b32 s{t1}, s{t1}, 0xffff0000
    s_lshr_b32 s{t2}, s{t1}, 16
    v_lshlrev_b32 v32, 3, v{vG}
    v_add_u32 v32, v32, v{vN}
    v_sub_u32 v32, 15, v32
    v_mov_b32 v33, s{t1}
    v_mov_b32 v34, s{t2}""")
    for r in range(4):
        p(f"""v_cmp_eq_u32 vcc, {2*r}, v32
        v_cndmask_b32 v{CAD+r}, 0, v34, vcc
        v_cmp_eq_u32 vcc, {2*r+1}, v32
        v_cndmask_b32 v{CAD+r}, v{CAD+r}, v33, vcc""")
bases()
p(f"s_cmp_ge_u32 s{sSIG}, 20\ns_cbranch_scc1 PREP_W")
conv_prep()
w_unit_params(1)
p.label("PREP_DONE")
tokW = [p.tok(), p.tok()]
W0_EARLY = opt('w0early', 0)
def prep_w():
    p.label("PREP_W")
    w_unit_params(0)
    p("s_branch PREP_DONE")
tail_code.append(prep_w)
stamp("issued")

SKF, KR = 92, 112
unpack(D, SKF, SKP, 10)
p(f"""v_lshrrev_b32 v30, 2, v0
v_mul_u32_u24 v30, 160, v30
v_and_b32 v31, 3, v0
v_lshl_add_u32 v30, v31, 3, v30
s_mul_i32 s{t3}, s{sW}, 6400
v_add_u32 v30, s{t3}, v30
s_lshl_b32 s{t1}, s{sSIG}, 2
s_add_u32 s{t1}, s{t1}, s{sW}
s_lshl_b32 s{t2}, s{sW}, 5
s_sub_u32 s{t2}, {UT_BASE + 120}, s{t2}
v_mul_u32_u24 v31, 144, v{vN}
v_lshlrev_b32 v32, 3, v{vG}
v_sub_u32 v31, v31, v32
v_add_u32 v31, s{t2}, v31
s_mul_i32 s{t0}, s{sJ}, {80*4096}
s_lshl_b32 s{t2}, s{sSIG}, 7
s_sub_u32 s{t0}, s{t0}, s{t2}
s_lshl_b32 s{t2}, s{sW}, 15
s_add_u32 s{t0}, s{t0}, s{t2}
s_add_u32 s{t0}, s{t0}, {WS_UR + 3968}
v_lshrrev_b32 v60, 3, v0
v_and_b32 v61, 7, v0
v_lshlrev_b32 v61, 4, v61
v_lshl_add_u32 v62, v60, 12, v61
v_mul_u32_u24 v60, 144, v60
s_mul_i32 s{t2}, s{sW}, 1152
s_add_u32 s{t2}, s{t2}, {UT_BASE}
v_add3_u32 v60, v60, v61, s{t2}
s_lshl_b32 s{t4}, s{sJ}, 7
s_add_u32 s{t5}, s{t4}, s{t1}
s_lshl_b32 s{t5}, s{t5}, 2
s_add_u32 s{t5}, s{t5}, {WS_FT}
s_add_u32 s{t1}, s{t0}, {4*32768}
s_add_u32 s{t2}, s{t0}, {8*32768}
s_cmp_lt_u32 s{sW}, 2
s_cselect_b32 s{t2}, s{t2}, 0x7ffff000
v_and_b32 v32, 31, v0
v_lshlrev_b32 v32, 2, v32""")
p.need(tokT)
stamp("kv_in")
for dt in range(5):
    b = KR + 6 * dt
    p(f"ds_read_b64_tr_b16 {vr(b,2)}, v30 offset:{32*dt}\nds_read_b64_tr_b16 {vr(b+2,2)}, v30 offset:{32*dt+640}\nds_read_b64_tr_b16 {vr(b+4,2)}, v30 offset:{32*dt+3200}")
p(f"s_cmp_ge_u32 s{sSIG}, 20\ns_cbranch_scc1 EARLY_DONE")
h_loads()
p.label("EARLY_DONE")
tokU = p.tok()
for dt in range(5):
    b, k, c, o, vv, st = KR + 6 * dt, 142, SKF + 4 * dt, 150, 154, 158 + 2 * dt
    p(f"""v_and_b32 v{k}, 0xffff0000, v{b}
    v_lshlrev_b32 v{k+1}, 16, v{b+1}
    v_and_b32 v{k+2}, 0xffff0000, v{b+1}
    v_lshlrev_b32 v{k+3}, 16, v{b+2}
    v_and_b32 v{k+4}, 0xffff0000, v{b+2}
    v_lshlrev_b32 v{k+5}, 16, v{b+3}
    v_and_b32 v{k+6}, 0xffff0000, v{b+3}""")
    for r in range(4): p(f"v_mul_f32 v{o+r}, v{c+3}, v{k+r}")
    for tau in (2, 1, 0):
        for r in range(4): p(f"v_fmac_f32 v{o+r}, v{c+tau}, v{k+r+3-tau}")
    unpack(D, vv, b + 4, 2)
    for r in range(0, 4, 2): p(f"v_pk_mul_f32 {vr(o+r,2)}, {vr(o+r,2)}, {vr(vv+r,2)}")
    p(f"v_cvt_pk_bf16_f32 v{st}, v{o+3}, v{o+2}\nv_cvt_pk_bf16_f32 v{st+1}, v{o+1}, v{o}")
    p(f"ds_write_b64 v31, {vr(st,2)} offset:{2304*dt}")
stamp("T_calc")
p("s_waitcnt lgkmcnt(0)\ns_barrier")
for q in range(3):
    p(f"ds_read_b128 {vr(92+4*q,4)}, v60 offset:{4608*q}")
for q in range(3):
    p(f"buffer_store_dwordx4 {vr(92+4*q,4)}, v62, {WSR}, s{(t0, t1, t2)[q]} offen sc1", tok_wr=tokU)
stamp("u_st")
p(f"""buffer_load_dword v63, v32, {WSR}, s{t4} offen offset:{WS_XC} sc1
v_mov_b32 v30, s{sTAG}
v_mov_b32 v31, 0
s_add_u32 s{t0}, s{t5}, {WS_FTR - WS_FT}
s_waitcnt vmcnt(1)
buffer_store_dword v30, v31, {WSR}, s{t5} offen
buffer_store_dword v30, v31, {WSR}, s{t0} offen sc1""")
stamp("T_pub")
p(f"s_cmp_ge_u32 s{sSIG}, 20\ns_cbranch_scc1 MID_W")
p(f"""s_mul_i32 s{t3}, s{sW}, {CONV_PITCH}
s_add_u32 s{t3}, s{t3}, {CONV_BASE}
v_add_u32 v33, s{t3}, v{vL16}""")
h_build()
p.label("MID_DONE")
def mid_w():
    p.label("MID_W")
    w_unit_dma(0, tokW[0])
    p("s_branch MID_DONE")
tail_code.append(mid_w)
p(f"""v_cmp_ne_u32 vcc, s{sXV}, v63
s_cbranch_vccz {'SLOW' if FORCE_SLOW else 'FAST'}
s_mov_b32 s{sSPIN}, 0""")
p.label("VER")
p(f"""s_add_u32 s{sSPIN}, s{sSPIN}, 1
s_cmp_gt_u32 s{sSPIN}, {SPIN}
s_cbranch_scc1 SLOW
buffer_load_dword v33, v32, {WSR}, s{t4} offen offset:{WS_XC} sc1
s_waitcnt vmcnt(0)
v_cmp_ne_u32 vcc, s{sXV}, v33
s_cbranch_vccz {'SLOW' if FORCE_SLOW else 'FAST'}
v_xor_b32 v33, s{sTAG}, v33
v_and_b32 v33, 0x0fffffff, v33
v_cmp_ne_u32 vcc, 0, v33
s_cbranch_vccnz VER
s_branch SLOW""")

def body(slow):
    PF = "S" if slow else "F"
    sc = " sc1" if slow else ""
    lab = lambda n: f"{PF}_{n}"
    st = (lambda n, e=None: None) if slow else stamp
    LX = lambda stride, layer: stride * layer if slow else 0
    TG = lambda layer: sTAG2 if layer else sTAG
    WT = lambda layer: " sc1" if (slow or layer == 0) else ""
    p.label("SLOW" if slow else "FAST")
    st("verified")
    def xy_offset(dst):
        p(f"""s_and_b32 s{t1}, s{sW}, 1
        s_lshl_b32 s{t0}, s{sA}, 2
        s_add_u32 s{t0}, s{t0}, s{t1}
        s_mul_i32 s{t0}, s{t0}, 20480
        s_mul_i32 s{t1}, s{sB}, 160
        s_add_u32 s{t0}, s{t0}, s{t1}
        s_lshr_b32 s{t1}, s{sW}, 1
        s_lshl_b32 s{t1}, s{t1}, 2
        s_add_u32 s{t0}, s{t0}, s{t1}
        v_mul_u32_u24 v{dst}, 1280, v{vN}
        v_lshl_add_u32 v{dst}, v{vG}, 3, v{dst}
        v_add_u32 v{dst}, s{t0}, v{dst}
        v_add_u32 v{dst+1}, 40960, v{dst}""")
    def x0_dma(base, pitch):
        row_pattern(31, 30)
        p(f"""s_lshl_b32 s{t0}, s{sA}, 2
        s_and_b32 s{t1}, s{sW}, 1
        s_add_u32 s{t0}, s{t0}, s{t1}
        s_mul_i32 s{t0}, s{t0}, 20480
        s_mul_i32 s{t1}, s{sB}, 160
        s_add_u32 s{t0}, s{t0}, s{t1}
        v_add_u32 v31, s{t0}, v31
        s_mov_b32 s{R_H}, s{sQ}
        s_mov_b32 s{R_H+1}, s{sQ+1}
        s_mul_i32 s{t1}, s{sW}, {pitch}
        s_add_u32 m0, s{t1}, {base}
        s_mov_b32 exec_hi, 0x3ffff""")
        tk = p.tok()
        for q in range(8):
            if q % 4 == 3: p("s_mov_b32 exec_hi, 0\ns_mov_b32 exec_lo, 0x3ff")
            p(f"buffer_load_dwordx4 v31, {srd(R_H)}, 0 offen nt lds", tok_wr=tk)
            if q == 3: p("s_mov_b32 exec_hi, 0x3ffff\ns_mov_b32 exec_lo, -1")
            if q < 7: p(f"s_add_u32 m0, m0, 800\nv_add_u32 v31, {6400 if q != 3 else 40960 - 3*6400}, v31")
        p("s_mov_b64 exec, -1")
        return tk
    def x0_read(e, tk, base, pitch):
        e(f"""s_mul_i32 s{t0}, s{sW}, {pitch}
        s_lshr_b32 s{t1}, s{sP8}, 1
        s_add_u32 s{t0}, s{t0}, s{t1}
        s_add_u32 s{t0}, s{t0}, {base}
        v_mul_u32_u24 v30, 160, v{vN}
        v_lshl_add_u32 v30, v{vG}, 3, v30
        v_add_u32 v30, s{t0}, v30""")
        e.need(tk)
        for s in range(2):
            for dt in range(5): e(f"ds_read_b32 v{XP[s]+dt}, v30 offset:{3200*s + 32*dt}")
        e.skip(6)
    def flag_prewarm():
        if not slow:
            p(f"""v_and_b32 v30, 1, v0
            v_lshlrev_b32 v31, 7, v30
            v_add_u32 v31, s{sFXW}, v31
            v_lshlrev_b32 v30, 12, v30
            v_add_u32 v30, s{sFHW}, v30
            v_cmp_gt_u32 vcc, 2, v0
            v_cndmask_b32 v30, v30, v31, vcc
            v_and_b32 v31, 7, v0
            v_lshlrev_b32 v31, 7, v31
            v_bfe_u32 v32, v0, 3, 1
            v_mul_u32_u24 v32, 40960, v32
            v_add3_u32 v31, v31, v32, s{sXS}
            v_cmp_gt_u32 vcc, 32, v0
            v_cndmask_b32 v30, v31, v30, vcc
            buffer_load_dword v{JUNK}, v30, {WSR}, 0 offen sc1""")
    X32, G0 = [38, 48], [58, 220 - 220 + 58]
    G0 = [58, 74]
    def x0_stats(e):
        for s in range(2):
            unpack(e, X32[s], XP[s], 5)
            e(f"s_add_u32 s{t0}, s{sSTW}, {8192*s}")
            stats_publish(e, X32[s], G0[0], t0, 0, True)
    def x0_norm(e):
        for s in range(2):
            late_check(e, stats_loads(G0[s], (t5, t4)[s]), list(range(G0[s] + 1, G0[s] + 16, 2)), 32, False)
            stats_finish(e, G0[s], 30)
            e(f"v_mul_f32 v32, -v30, v31")
            for i in range(10): e(f"v_fma_f32 v{G0[s]+i}, v{X32[s]+i}, v31, v32")
    XN0 = G0
    def w_flag_addr(e, dst):
        e(f"v_min_u32 v{dst}, 19, v0\ns_lshl_b32 s{t1}, s{sN}, 7\ns_add_u32 s{t1}, s{t1}, {WS_FW1}\nv_lshl_add_u32 v{dst}, v{dst}, 2, s{t1}")
    def w2_flag_addr(e, dst):
        e.group(lambda: p(f"""s_mul_i32 s{t1}, s{sW}, 12
        v_add_u32 v{dst}, s{t1}, v0
        s_lshl_b32 s{t2}, s{sW}, 1
        s_add_u32 s{t2}, s{t2}, 36
        v_add_u32 v{dst+1}, s{t2}, v0
        v_cmp_gt_u32 vcc, 12, v0
        v_cndmask_b32 v{dst}, v{dst+1}, v{dst}, vcc
        s_add_u32 s{t2}, s{t2}, 13
        s_min_u32 s{t2}, s{t2}, 53
        v_min_u32 v{dst}, s{t2}, v{dst}
        s_lshl_b32 s{t1}, s{sB}, 8
        s_add_u32 s{t1}, s{t1}, {WS_FW2}
        v_lshl_add_u32 v{dst}, v{dst}, 2, s{t1}
        s_lshl_b32 s{t3}, s{sN}, 2
        s_add_u32 s{t3}, s{t3}, {WS_FC}
        v_writelane_b32 v{dst}, s{t3}, 63
        s_mov_b32 s{t3}, 0
        s_lshr_b32 s{t1}, s{sP8}, 2
        v_xor_b32 v{vW2}, s{t1}, v0
        v_lshlrev_b32 v{vW2}, 4, v{vW2}"""), 80)
    vW2 = 35
    NW2E = 0
    def w1_dma(first, count):
        p(f"""s_mul_i32 s{t0}, s{sN}, 143360
        s_mul_i32 s{t1}, s{sW}, {count*1024}
        s_add_u32 s{t1}, s{t1}, {first*1024}
        s_add_u32 s{t0}, s{t0}, s{t1}
        s_add_u32 s{t0}, s{t0}, {WS_W1F}
        s_mov_b32 m0, s{t1}""")
        last = None
        for q in range(count):
            last = p(f"buffer_load_dwordx4 v{vL16}, {WSR}, s{t0} offen offset:{1024*(q%4)} sc1 lds")
            if q % 4 == 3 and q < count - 1: p(f"s_add_u32 s{t0}, s{t0}, 4096\ns_add_u32 m0, m0, 4096")
        return last
    def w2_loads(e, q0, q1, vaddr):
        for q in range(q0, q1):
            sb, qq = (sW2B, q) if q < 60 else (sW2S, q - 60)
            if qq % 4 == 0 and qq > 0: e(f"s_add_u32 s{sb}, s{sb}, 4096")
            e(f"buffer_load_dwordx4 {w2reg(q)}, v{vaddr}, {WSR}, s{sb} offen offset:{1024*(qq%4)} sc1")
    p(f"s_cmp_ge_u32 s{sSIG}, 20\ns_cbranch_scc1 {lab('W_PHASE')}")
    p(f"""s_lshl_b32 s{t0}, s{sJ}, 9
    s_add_u32 s{t0}, s{t0}, {WS_FTR if slow else WS_FT}""")
    for t in range(8):
        p(f"ds_read_b64 {vr(CA+4*t,2)}, v{vA} offset:{512*t}\nds_read_b64 {vr(CA+4*t+2,2)}, v{vA} offset:{512*t+8}")
    spin_wait(f"buffer_load_dwordx2 v[30:31], v{vL8}, {WSR}, s{t0} offen sc1", [30, 31], False)
    st("T_seen")
    tokUin = p.tok()
    p(f"""s_mul_i32 s{t0}, s{sJ}, 80
    s_lshl_b32 s{t1}, s{sSIG}, 2
    s_add_u32 s{t0}, s{t0}, s{t1}
    s_add_u32 s{t0}, s{t0}, s{sW}
    s_lshl_b32 s{t0}, s{t0}, 12
    s_add_u32 s{t0}, s{t0}, {WS_UR}
    s_add_u32 m0, s{t3}, {LU_OFF}""")
    for q in range(4):
        p(f"buffer_load_dwordx4 v{vL16}, {WSR}, s{t0} offen offset:{1024*q} sc1 lds", tok_wr=(tokUin if q == 3 else None))
    w_unit_dma(1, tokW[1])
    tkx = x0_dma(0, PRIV)
    flag_prewarm()
    p.need(tokUin)
    st("u_in")
    for m in range(8):
        p(f"ds_read_b128 {vr(CB_+4*m,4)}, v{vB} offset:{3584-512*m}")
    beats = [[f"{MF} {vr(CACC+4*j,4)}, {vr(CAD,4)}, {vr(CB_+4*j,4)}, 0"] for j in range(8)]
    for p0 in range(8):
        buf = p0 & 1
        reads = []
        if p0 < 7:
            for t in range(8):
                bb, ba = CB_ + 32 * (1 - buf) + 4 * t, CA + 32 * (1 - buf) + 4 * t
                reads += [f"ds_read_b128 {vr(bb,4)}, v{vB} offset:{3584-512*t+64*(p0+1)}",
                          f"ds_read_b64 {vr(ba,2)}, v{vA} offset:{64*(p0+1)+512*t}",
                          f"ds_read_b64 {vr(ba+2,2)}, v{vA} offset:{64*(p0+1)+512*t+8}"]
        prs = sorted([(t, m) for t in range(8) for m in range(8) if t + m <= 7], key=lambda x: (max(x), x[0] + x[1]))
        for i, (t, m) in enumerate(prs):
            b = [f"{MF} {vr(CACC+4*(t+m),4)}, {vr(CA+32*buf+4*t,4)}, {vr(CB_+32*buf+4*m,4)}, {vr(CACC+4*(t+m),4)}"]
            if i >= 8 and reads: b.append(reads.pop(0))
            beats.append(b)
    F = Fill()
    w_flag_addr(F, 90)
    F.skip(opt("wu_at", 70))
    F.need(tokW[1])
    st("conv_wu", F)
    WR = 38
    for ft in range(5):
        F(f"ds_read_b64_tr_b16 {vr(WR+4*ft,2)}, v{WV[1]+1} offset:{32*ft}\nds_read_b64_tr_b16 {vr(WR+2+4*ft,2)}, v{WV[1]+2} offset:{32*ft}")
    F.skip(6)
    tkw = p.tok()
    for ft in range(5):
        if ft == 4: F(f"s_add_u32 s{WU[1]}, s{WU[1]}, 4096")
        F(f"buffer_store_dwordx4 {vr(WR+4*ft,4)}, v{vL16}, {WSR}, s{WU[1]} offen offset:{1024*(ft%4)} sc1", tok_wr=tkw)
    x0_read(F, tkx, 0, PRIV)
    x0_stats(F)
    publish(F, tkw, WU[1] + 1, 0, 30, True, wb=False)
    F2 = Fill()
    F2(f"buffer_load_dword v91, v90, {WSR}, 0 offen sc1")
    F2.skip(30)
    def w1a_check():
        p(f"""v_cmp_ne_u32 vcc, s{sTAG}, v91
        s_cmp_eq_u64 vcc, 0
        s_cselect_b32 s{sGOTA}, {opt('use_w1a', 1)}, 0
        s_mul_i32 s{t0}, s{sN}, 143360
        s_mul_i32 s{t1}, s{sW}, {NW1A//4*1024}
        s_add_u32 s{t0}, s{t0}, s{t1}
        s_add_u32 s{t0}, s{t0}, {WS_W1F}
        s_mov_b32 m0, s{t1}""")
    F2.group(w1a_check, 40)
    for q in range(NW1A // 4):
        def one(q=q):
            SKP_ = p.L("NOW1A")
            p(f"s_cmp_eq_u32 s{sGOTA}, 0\ns_cbranch_scc1 {SKP_}")
            p(f"buffer_load_dwordx4 v{vL16}, {WSR}, s{t0} offen offset:{1024*(q%4)} sc1 lds")
            if q % 4 == 3: p(f"s_add_u32 s{t0}, s{t0}, 4096\ns_add_u32 m0, m0, 4096")
            p.label(SKP_)
        F2.group(one, 12)
        F2.skip(opt("w1gap", 2))
    YS, YT = 156, 108
    F3 = Fill()
    F3(f"""s_mul_i32 s{t3}, s{sW}, {CONV_PITCH}
    s_add_u32 s{t3}, s{t3}, {CONV_BASE}
    v_lshlrev_b32 v80, 5, v{vN}
    v_lshl_add_u32 v80, v{vG}, 3, v80
    v_add_u32 v80, s{t3}, v80
    v_bfe_u32 v81, v0, 2, 2
    v_mul_u32_u24 v81, {CONV_PITCH}, v81
    v_and_b32 v82, 3, v0
    v_lshl_add_u32 v81, v82, 3, v81
    v_lshl_add_u32 v81, v{vG}, 5, v81
    s_lshl_b32 s{t0}, s{sW}, 10
    s_add_u32 s{t0}, s{t0}, {CONV_BASE}
    v_add_u32 v81, s{t0}, v81
    v_mul_u32_u24 v82, 40960, v{vG}
    v_lshl_add_u32 v82, v{vN}, 4, v82
    s_lshl_b32 s{t4}, s{sW}, 8
    s_add_u32 s{t4}, s{t4}, s{sJ}
    s_mul_i32 s{t4}, s{t4}, 5120
    s_lshl_b32 s{t1}, s{sSIG}, 8
    s_add_u32 s{t4}, s{t4}, s{t1}
    s_add_u32 s{t4}, s{t4}, {WS_YG}
    s_lshl_b32 s{t0}, s{sJ}, 9
    s_lshl_b32 s{t1}, s{sSIG}, 4
    s_add_u32 s{t0}, s{t0}, s{t1}
    s_lshl_b32 s{t1}, s{sW}, 2
    s_add_u32 s{t0}, s{t0}, s{t1}
    s_add_u32 s{t0}, s{t0}, {WS_FY}
    v_mov_b32 v83, s{t0}""")
    for q in range(8):
        F3(f"v_mov_b32 v{YS+4*q+1}, s{sTAG}\nv_mov_b32 v{YS+4*q+3}, s{sTAG}")
    cut = opt("w1a_at", 170)
    merge(beats[:cut], F)
    st("conv_cut")
    merge(beats[cut:262], F2)
    merge(beats[262:], F3)
    st("conv_done")
    for j in range(8):
        p(f"v_cvt_pk_bf16_f32 v{92+2*j}, v{CACC+4*j}, v{CACC+4*j+1}\nv_cvt_pk_bf16_f32 v{93+2*j}, v{CACC+4*j+2}, v{CACC+4*j+3}")
        p(f"ds_write_b64 v80, {vr(92+2*j,2)} offset:{512*j}")
    p("s_waitcnt lgkmcnt(0)\ns_barrier")
    for q in range(8):
        p(f"ds_read_b64_tr_b16 {vr(YT+2*q,2)}, v81 offset:{128*q}")
    for q in range(8):
        p(f"v_mov_b32 v{YS+4*q}, v{YT+2*q}\nv_mov_b32 v{YS+4*q+2}, v{YT+2*q+1}")
        p(f"buffer_store_dwordx4 {vr(YS+4*q,4)}, v82, {WSR}, s{t4} offen sc1")
        if q < 7: p(f"s_add_u32 s{t4}, s{t4}, 163840")
    p(f"buffer_store_dword v{YS+1}, v83, {WSR}, 0 offen sc1")
    st("y_st")
    p(f"s_barrier\ns_cmp_lg_u32 s{sGOTA}, 0\ns_cbranch_scc1 {lab('W1B')}\ns_branch {lab('W1A')}")

    p.label(lab("W_PHASE"))
    tkx = x0_dma(WST_BASE + 4 * 7168, 6400)
    p("v_mov_b32 v96, 0x3f803f80\nv_mov_b32 v97, 0x3f803f80\nv_mov_b32 v98, 0x3f803f80\nv_mov_b32 v99, 0x3f803f80")
    sv = WU[0]
    SK = p.L("WSKIP")
    p.need(tokW[0])
    st(f"W_in")
    for ft in range(7):
        p(f"ds_read_b64_tr_b16 {vr(100+4*ft,2)}, v{WV[0]+1} offset:{32*ft}\nds_read_b64_tr_b16 {vr(102+4*ft,2)}, v{WV[0]+2} offset:{32*ft}")
    for ft in range(7):
        if ft == 5: p(f"s_cmp_lt_u32 s{sv+2}, 224\ns_cbranch_scc1 {SK}")
        if ft == 4: p(f"s_add_u32 s{sv}, s{sv}, 4096")
        p(f"buffer_store_dwordx4 {vr(100+4*ft,4)}, v{vL16}, {WSR}, s{sv} offen offset:{1024*(ft%4)} sc1")
    for ft in range(7):
        p(f"{MF} {vr(128+4*ft,4)}, {vr(100+4*ft,4)}, v[96:99], 0")
    p(f"v_lshlrev_b32 v30, 4, v{vG}")
    for ft in range(7):
        p(f"buffer_store_dwordx4 {vr(128+4*ft,4)}, v30, {WSR}, s{sv+3} offen offset:{64*ft} sc1")
    p.label(SK)
    p(f"v_mov_b32 v30, s{sTAG}\nv_mov_b32 v31, 0\ns_waitcnt vmcnt(0)")
    p(f"buffer_store_dword v30, v31, {WSR}, s{sv+1} offen sc1")
    st(f"W_done")
    flag_prewarm()
    x0_read(D, tkx, WST_BASE + 4 * 7168, 6400)
    x0_stats(D)
    w_flag_addr(D, 90)
    p(f"""s_cmp_lg_u32 s{sSIG}, 31
    s_cbranch_scc1 {lab('NOCB')}
    s_cmp_gt_u32 s{sW}, 1
    s_cbranch_scc1 {lab('NOCB')}
    s_lshl_b32 s{t5}, s{sJ}, 1
    s_add_u32 s{t5}, s{t5}, s{sW}
    v_min_u32 v30, 19, v0
    s_lshl_b32 s{t1}, s{t5}, 7
    v_lshl_add_u32 v30, v30, 2, s{t1}
    s_mov_b32 s{t0}, {WS_FW1}
    s_mul_i32 s{t2}, s{t5}, 7
    s_mul_i32 s{t3}, s{t5}, 6
    s_add_u32 s{t3}, s{t3}, 12
    s_cmp_ge_u32 s{t5}, 12
    s_cselect_b32 s{t2}, s{t3}, s{t2}
    s_lshl_b32 s{t2}, s{t2}, 5
    v_min_u32 v32, 27, v0
    v_lshl_add_u32 v33, v32, 3, s{t2}
    v_min_u32 v33, 3448, v33
    global_load_dwordx2 v[92:93], v33, {pair(sB1)}
    v_lshlrev_b32 v32, 4, v32""")
    spin_wait(f"buffer_load_dword v31, v30, {WSR}, s{t0} offen sc1", [31], False)
    p(f"s_mul_i32 s{t0}, s{t5}, 8960\ns_add_u32 s{t0}, s{t0}, {WS_PS}")
    for ks in range(20):
        if ks % 9 == 0 and ks: p(f"s_add_u32 s{t0}, s{t0}, {448*9}")
        p(f"buffer_load_dwordx4 {vr(100+4*ks,4)}, v32, {WSR}, s{t0} offen offset:{448*(ks%9)} sc1")
    unpack(D, 96, 92, 2)
    for i in range(4): p(f"v_mul_f32 v{96+i}, 0x3fb8aa3b, v{96+i}")
    for ks in range(1, 20):
        p(f"v_pk_add_f32 v[100:101], v[100:101], {vr(100+4*ks,2)}\nv_pk_add_f32 v[102:103], v[102:103], {vr(102+4*ks,2)}")
    p(f"""s_mul_i32 s{t0}, s{t5}, 896
    s_add_u32 s{t0}, s{t0}, {WS_CB}
    buffer_store_dwordx4 v[100:103], v32, {WSR}, s{t0} offen sc1
    buffer_store_dwordx4 v[96:99], v32, {WSR}, s{t0} offen offset:448 sc1
    s_lshl_b32 s{t0}, s{t5}, 2
    s_add_u32 s{t0}, s{t0}, {WS_FC}
    v_mov_b32 v30, s{sTAG}
    v_mov_b32 v31, 0
    s_waitcnt vmcnt(0)
    buffer_store_dword v30, v31, {WSR}, s{t0} offen sc1""")
    p.label(lab("NOCB"))
    p("s_barrier")

    p.label(lab("W1A"))
    spin_wait(f"buffer_load_dword v91, v90, {WSR}, 0 offen sc1", [91], False)
    st("w_flags")
    w1_dma(0, NW1A // 4)
    p.label(lab("W1B"))
    tokW1 = p.tok()
    w1_dma(NW1A, (140 - NW1A) // 4).token_wr = tokW1
    st("w1_issued")
    if not slow:
        pass
    p(f"s_mov_b32 s{t5}, s{sSTO}\ns_add_u32 s{t4}, s{sSTO}, 8192")
    p(stats_loads(G0[0], t5)); p(stats_loads(G0[1], t4))
    x0_norm(D)
    st("xn")

    def gate(e, s, layer, X2, G, YF, XN=None, defer=False):
        if XN is None:
            stats_finish(e, G, 30)
            e(f"v_mul_f32 v32, -v30, v31")
        unpack(e, YF, YP[s], 5)
        if XN is None:
            XN = G
            for i in range(10): e(f"v_fma_f32 v{G+i}, v{X2+i}, v31, v32")
        for i in range(10): e(f"v_fmac_f32 v{X2+i}, v{XN+i}, v{YF+i}")
        pack(e, XP[s], X2, 5)
        off = 40960 * s + LX(XF_LAYER, layer)
        wt = WT(layer)
        e(f"s_add_u32 s{t0}, s{sXW}, {off}\ns_add_u32 s{t1}, s{sXS}, {off}")
        e(f"buffer_store_dwordx4 {vr(XP[s],4)}, v{vL16}, {WSR}, s{t0} offen{wt}\nbuffer_store_dword v{XP[s]+4}, v{vL16}, {WSR}, s{t1} offen{sc}")
        e(f"s_add_u32 s{t0}, s{sSTW}, {ST_K + LX(2*ST_K, layer) + 8192*s}")
        stats_publish(e, X2, G, t0, 0, wt != "")
        tok = p.tok()
        if isinstance(e, Fill):
            c, fn = e.items[-1]
            e.items[-1] = (c, lambda fn=fn: setattr(fn(), "token_wr", tok))
        else:
            p.items[-1].token_wr = tok
        if defer: return tok
        e(f"s_add_u32 s{t0}, s{sFXW}, {LX(8192, layer) + 128*s}")
        publish(e, tok, t0, 0, 32, slow, TG(layer), wb=False)

    AR, BR, NA, NB, AG = 160, 208, 12, 6, 4
    def a1_read(fi):
        fi0 = fi % 140
        return f"ds_read_b128 {vr(AR+4*(fi%NA),4)}, v{vA1[fi0//56]} offset:{1024*(fi0%56)}"
    def a_wait(fi):
        last = AR + 4 * ((fi + AG - 1) % NA)
        p.need(("v", last))
    def b_load(ks):
        l = []
        if ks % 4 == 0 and ks: l.append(f"s_add_u32 s{sB0}, s{sB0}, 4096")
        l.append(f"buffer_load_dwordx4 {vr(BR+4*(ks%NB),4)}, v{vL16}, {WSR}, s{sB0} offen offset:{1024*(ks%4)} sc1")
        return l
    def fx_load(s, layer, dst):
        return f"buffer_load_dword v{dst}, v{dst+1}, {WSR}, s{t2} offen sc1"
    def fx_prep(e, s, layer, dst):
        e(f"v_lshlrev_b32 v{dst+1}, 2, v{vN}\ns_add_u32 s{t2}, s{sFXR}, {LX(8192, layer) + 128*s}")
    def b_start(s, layer):
        p(f"s_add_u32 s{sB0}, s{sXR}, {40960*s + LX(XF_LAYER, layer)}")
        for ks in range(NB):
            for l in b_load(ks): p(l)
    def g1_beats(s, ACC):
        beats = []
        for ks in range(20):
            for ft in range(7):
                fi = 140 * s + ks * 7 + ft
                b = [f"{MF} {vr(ACC+4*ft,4)}, {vr(AR+4*(fi%NA),4)}, {vr(BR+4*(ks%NB),4)}, {'0' if ks == 0 else vr(ACC+4*ft,4)}"]
                if fi + NA < 280: b.append(a1_read(fi + NA))
                if fi % AG == AG - 1 and fi + 1 < 280: b.append(lambda fi=fi: a_wait(fi + 1))
                if ft == 6 and ks + NB < 20: b += b_load(ks + NB)
                beats.append(b)
        return beats
    def row_scalars(e, s, layer, G, o=30):
        e(f"s_add_u32 s{t0}, s{sSTR}, {ST_K + LX(2*ST_K, layer) + 8192*s}")
        e(stats_loads(G, t0))
        e.skip(30)
        stats_finish(e, G, o)
        e(f"v_mul_f32 v{o+1}, 0x3fb8aa3b, v{o+1}\nv_mul_f32 v{o}, -v{o}, v{o+1}")
    def act(s, layer, ACC, T, O, mid=None, sc_=30, extra=None, extra_from=0, every=5):
        LN2, M2 = 32, 34
        off = 110592 * s + LX(HF_LAYER, layer)
        p(f"v_mov_b32 v{LN2}, 0x3f317218\nv_mov_b32 v{M2}, 0xbfb17218\ns_add_u32 s{t0}, s{sHW}, {off}\ns_add_u32 s{t1}, s{sHS}, {off}")
        tok = p.tok()
        extra = list(extra or [])
        cnt = [0]
        def q(l, on):
            p(l)
            cnt[0] += 1
            if on and extra and cnt[0] % every == 0:
                for x in extra.pop(0): p(x)
        for pr in range(4):
            n = 4 if pr < 3 else 2
            on = pr >= extra_from
            acc, cs, bb, o = ACC + 8 * pr, CS + 8 * pr, BB + 8 * pr, O + 4 * (pr % 2)
            for i in range(n): q(f"v_pk_fma_f32 {vr(T+2*i,2)}, {vr(cs+2*i,2)}, {vr(sc_,2)}, {vr(bb+2*i,2)} op_sel_hi:[1,0,1]", on)
            for i in range(n): q(f"v_pk_fma_f32 {vr(acc+2*i,2)}, {vr(acc+2*i,2)}, {vr(sc_,2)}, {vr(T+2*i,2)} op_sel:[0,1,0] op_sel_hi:[1,1,1]", on)
            for i in range(2*n): q(f"v_exp_f32 v{T+i}, v{acc+i}", on)
            for i in range(n): q(f"v_pk_add_f32 {vr(T+2*i,2)}, {vr(T+2*i,2)}, 1.0 op_sel_hi:[1,0]", on)
            for i in range(n): q(f"v_pk_fma_f32 {vr(T+2*i,2)}, {vr(T+2*i,2)}, {vr(T+2*i,2)}, 1.0 op_sel_hi:[1,1,0]", on)
            for i in range(2*n): q(f"v_rcp_f32 v{T+i}, v{T+i}", on)
            for i in range(n): q(f"v_pk_fma_f32 {vr(T+2*i,2)}, {vr(T+2*i,2)}, {vr(M2,2)}, {vr(LN2,2)} op_sel_hi:[1,0,0]", on)
            for i in range(n): q(f"v_pk_mul_f32 {vr(acc+2*i,2)}, {vr(acc+2*i,2)}, {vr(T+2*i,2)}", on)
            pack(D, o, acc, n)
            if pr < 3:
                p(f"buffer_store_dwordx4 {vr(o,4)}, v{vL16}, {WSR}, s{t0} offen offset:{1024*pr}{WT(layer)}", tok_wr=tok)
            else:
                if s == 0 and layer == 0:
                    p(f"s_cmp_ge_u32 s{sN}, 12\ns_cselect_b32 s{sHS}, 0x70000000, s{sHS}\ns_cselect_b32 s{t1}, 0x70000000, s{t1}")
                p(f"buffer_store_dwordx2 {vr(o,2)}, v{vL8}, {WSR}, s{t1} offen{WT(layer)}", tok_wr=tok)
            if mid and pr in mid: mid[pr]()
        for g in extra:
            for x in g: p(x)
        return tok
    def w2_groups(q0, q1):
        out = []
        for qq_ in range(q0, q1):
            sb, qq = (sW2B, qq_) if qq_ < 60 else (sW2S, qq_ - 60)
            g = []
            if qq % 4 == 0 and qq > 0: g.append(f"s_add_u32 s{sb}, s{sb}, 4096")
            g.append(f"buffer_load_dwordx4 {w2reg(qq_)}, v{vW2}, {WSR}, s{sb} offen offset:{1024*(qq%4)} sc1")
            out.append(g)
        return out
    HR, NH = 132, 15
    def fh_prep(e, s, layer, dst):
        e(f"v_bfe_u32 v{dst+1}, v0, 1, 2\nv_lshlrev_b32 v{dst+1}, 4, v{dst+1}\nv_and_b32 v{dst}, 1, v0\nv_lshl_add_u32 v{dst+1}, v{dst}, 2, v{dst+1}")
        e(f"s_add_u32 s{t3}, s{sFHR}, {LX(8192, layer) + 4096*s}")
    def fh_load(dst): return f"buffer_load_dword v{dst}, v{dst+1}, {WSR}, s{t3} offen sc1"
    def h_load(idx, layer):
        s, r = divmod(idx, 28)
        second, kl = divmod(r, 14)
        b = HR + 4 * (idx % NH)
        l = []
        if kl == 0:
            off = 110592 * s + LX(HF_LAYER, layer)
            if second: l.append(f"s_add_u32 s{sH0}, s{sHR}, {off}")
            else: l += [f"s_add_u32 s{sH0}, s{sH1}, {off}"]
        elif kl < 12 and kl % 4 == 0: l.append(f"s_add_u32 s{sH0}, s{sH0}, 4096")
        if kl < 12:
            l.append(f"buffer_load_dwordx4 {vr(b,4)}, v{vL16}, {WSR}, s{sH0} offen offset:{1024*(kl%4)} sc1")
        else:
            if kl == 12: l.append(f"s_add_u32 s{sH0}, s{sH0}, s{sB1_}")
            o = (kl - 12) * 1024
            l += [f"buffer_load_dwordx2 {vr(b,2)}, v{vL8}, {WSR}, s{sH0} offen offset:{o} sc1",
                  f"buffer_load_dwordx2 {vr(b+2,2)}, v{vL8}, {WSR}, s{sH0} offen offset:{o+512} sc1"]
        return l
    def g2_beats(s, layer, A, OWN, lim):
        beats = []
        for second in range(2):
            acc = OWN if second else A
            for kl in range(14):
                idx = 28 * s + 14 * second + kl
                for dt in range(5):
                    b = [f"{MF} {vr(acc+4*dt,4)}, {w2reg(kl*5+dt)}, {vr(HR+4*(idx%NH),4)}, {'0' if kl == 0 else vr(acc+4*dt,4)}"]
                    if dt == 4 and idx + NH < lim: b += h_load(idx + NH, layer)
                    beats.append(b)
        return beats
    def emit_tail(F, rest):
        items = F.items
        nb = sum(1 for c, _ in items if c == "skip")
        paced = [b_[1:] for b_ in rest]
        head = [[b_[0]] for b_ in rest]
        merge(head[:nb * 2], F)
        late = [x for pc in paced[:nb * 2] for x in pc]
        for l in late: p(l)
        merge([h_ + pc for h_, pc in zip(head[nb * 2:], paced[nb * 2:])])
    def red_addr(e, dst, x, extra=0, sh=4):
        e(f"s_xor_b32 s{t4}, s{sW}, {x}\ns_mul_i32 s{t4}, s{t4}, 5120\ns_add_u32 s{t4}, s{t4}, {RED_BASE + extra}\nv_add_u32 v{dst}, s{t4}, v{vL16 if sh == 4 else vL8}")
    def bar(e): e.group(lambda: p("s_waitcnt lgkmcnt(0)\ns_barrier"), 8)
    def roundA(e, s, A):
        red_addr(e, 33, 0)
        for dt in range(5): e(f"ds_write_b128 v33, {vr(A+4*dt,4)} offset:{1024*dt}")
        red_addr(e, 33, 1); red_addr(e, 34, 3, 8)
        bar(e)
        for dt in range(5): e(f"ds_read_b64 {vr(A+2*dt,2)}, v33 offset:{1024*dt}")
        for dt in range(5): e(f"ds_read_b64 {vr(A+10+2*dt,2)}, v34 offset:{1024*dt}")
        e.skip(6)
        for i in range(10): e(f"v_add_f32 v{A+i}, v{A+i}, v{A+10+i}")
        bar(e)
        unpack(e, A + 10, XP[s], 5)
        for i in range(10): e(f"v_add_f32 v{A+i}, v{A+i}, v{A+10+i}")
    def roundB(e, s, A, OWN, mid=None):
        red_addr(e, 33, 0, sh=3)
        for dt in range(5): e(f"ds_write_b64 v33, {vr(OWN+4*dt+2,2)} offset:{512*dt}")
        red_addr(e, 33, 2, sh=3)
        for dt in range(5): e(f"v_add_f32 v{A+2*dt}, v{A+2*dt}, v{OWN+4*dt}\nv_add_f32 v{A+2*dt+1}, v{A+2*dt+1}, v{OWN+4*dt+1}")
        bar(e)
        for dt in range(5): e(f"ds_read_b64 {vr(A+10+2*dt,2)}, v33 offset:{512*dt}")
        if mid: mid()
        e.skip(4)
        for i in range(10): e(f"v_add_f32 v{A+i}, v{A+i}, v{A+10+i}")
        bar(e)
    def epi_stats(e, s, A, OWN):
        e(f"s_add_u32 s{t0}, s{sSTW}, {LX(2*ST_K, 1) + 8192*s}")
        stats_publish(e, A, OWN, t0, 0, slow, sTAG2)
    def epi_gate(e, s, A, OWN, w1=20, w2=20):
        e.skip(w1)
        e(f"s_add_u32 s{t5}, s{sSTO}, {LX(2*ST_K, 1) + 8192*s}")
        e(stats_loads(OWN, t5))
        e.skip(w2)
        late_check(e, stats_loads(OWN, t5), [OWN + 1, OWN + 3, OWN + 5, OWN + 7, OWN + 9, OWN + 11, OWN + 13, OWN + 15], 32, False, sTAG2)
        gate(e, s, 1, A, OWN, A + 10)
    def out_store(e, s, A):
        pack(e, A + 10, A, 5)
        for dt in range(5): e(f"global_store_dword v{30+s}, v{A+10+dt}, {pair(sOUT)} offset:{32*dt}")

    p(f"""s_xor_b32 s{t0}, s{sW}, 1
    s_and_b32 s{t0}, s{t0}, 1
    s_sub_u32 s{sH1}, s{sHR}, 55296
    s_add_u32 s{t1}, s{sHR}, 55296
    s_cmp_eq_u32 s{t0}, 1
    s_cselect_b32 s{sH1}, s{t1}, s{sH1}
    s_mul_i32 s{sB1_}, s{sW}, 10240
    s_sub_u32 s{sB1_}, {49152 - 8192}, s{sB1_}
    s_cmp_eq_u32 s{sW}, 3
    s_cselect_b32 s{sB1_}, -8192, s{sB1_}
    s_lshl_b32 s{t0}, s{sA}, 2
    s_and_b32 s{t1}, s{sW}, 1
    s_add_u32 s{t0}, s{t0}, s{t1}
    s_lshl_b32 s{t0}, s{t0}, 3
    s_add_u32 s{t0}, s{t0}, s{sB}
    s_mul_i32 s{t4}, s{t0}, 5120
    s_add_u32 s{t4}, s{t4}, s{sP8}
    s_add_u32 s{t4}, s{t4}, {WS_YG}
    s_add_u32 s{t5}, s{t4}, 4096
    s_add_u32 s{t6}, s{t4}, 81920
    s_add_u32 s{t7}, s{t4}, {81920 + 4096}
    s_add_u32 s{t3}, s{sSTO}, 8192""")
    p(f"""v_min_u32 v31, 19, v0
    v_lshlrev_b32 v31, 4, v31
    s_lshl_b32 s{t0}, s{sB}, 9
    s_lshr_b32 s{t1}, s{sA}, 3
    s_lshl_b32 s{t1}, s{t1}, 2
    s_add_u32 s{t0}, s{t0}, s{t1}
    s_add_u32 s{t0}, s{t0}, {WS_FY}""")
    spin_wait(f"buffer_load_dword v30, v31, {WSR}, s{t0} offen sc1", [30], False)
    st("y_hint")
    yl = []
    for s in range(2):
        for t in range(5):
            yl.append(f"buffer_load_dwordx2 {vr(172+10*s+2*t,2)}, v{vL16}, {WSR}, s{(t4, t5, t6, t7)[2*s + (t == 4)]} offen offset:{1024*(t%4)} sc1")
    spin_wait("\n".join(yl), list(range(173, 192, 2)), False)
    st("y_seen")
    for s in range(2):
        for t in range(5): p(f"v_mov_b32 v{YP[s]+t}, v{172+10*s+2*t}")
    tka = gate(D, 0, 0, X32[0], 112, 102, XN0[0], defer=True)
    tkb = gate(D, 1, 0, X32[1], 152, 142, XN0[1], defer=True)
    publish(D, tka, sFXW, 0, 32, slow, wb=False)
    publish(D, tkb, sFXW, 128, 32, slow, wb=False)
    st('x_pub1')
    p.need(tokW1)
    p("s_barrier")
    EX, EY = (192, 212), (92, 112)
    for layer in range(2):
        L = f"L{layer}_"
        for fi in range(NA): p(a1_read(fi))
        def a2_mid():
            late_check(D, fh_load(120), [120], 124, False, TG(layer))
            for idx in range(NH):
                for l in h_load(idx, layer): p(l)
        if layer == 0:
            p(f"v_and_b32 v31, 16, v0\nv_lshlrev_b32 v31, 3, v31\nv_lshl_add_u32 v31, v{vN}, 2, v31\ns_mov_b32 s{t2}, s{sFXR}")
            spin_wait(fx_load(0, layer, 30), [30], False)
            st(L + "x_seen")
            p(f"s_mov_b32 s{sB0}, s{sXR}\ns_add_u32 s{sH0}, s{sXR}, 40960")
            def b2_load(ks):
                l = []
                if ks % 4 == 0 and ks: l += [f"s_add_u32 s{sB0}, s{sB0}, 4096", f"s_add_u32 s{sH0}, s{sH0}, 4096"]
                for s_ in range(2):
                    l.append(f"buffer_load_dwordx4 {vr(BR+4*((2*ks+s_)%NB),4)}, v{vL16}, {WSR}, s{(sB0, sH0)[s_]} offen offset:{1024*(ks%4)} sc1")
                return l
            for ks in range(NB // 2):
                for l in b2_load(ks): p(l)
            p(f"""s_or_b32 s{t0}, s2, s{sW}
            s_cmp_lg_u32 s{t0}, 0
            s_cbranch_scc1 {lab('NO_EPOCH')}
            v_mov_b32 v33, s{sTAG}
            v_mov_b32 v34, 0
            buffer_store_dword v33, v34, {WSR}, 0 offen sc1""")
            p.label(lab("NO_EPOCH"))
            beats = []
            for ks in range(20):
                for ft in range(7):
                    fi = ks * 7 + ft
                    for s_ in range(2):
                        acc = (132, 92)[s_] + 4 * ft
                        b = [f"{MF} {vr(acc,4)}, {vr(AR+4*(fi%NA),4)}, {vr(BR+4*((2*ks+s_)%NB),4)}, {'0' if ks == 0 else vr(acc,4)}"]
                        if s_ == 1 and fi + NA < 140: b.append(a1_read(fi + NA))
                        if s_ == 1 and fi % AG == AG - 1 and fi + 1 < 140: b.append(lambda fi=fi: a_wait(fi + 1))
                        if s_ == 1 and ft == 6 and ks + NB // 2 < 20: b += b2_load(ks + NB // 2)
                        beats.append(b)
            F = Fill()
            w2_flag_addr(F, 121)
            F(fh_load(120))
            row_scalars(F, 0, layer, 36)
            late_check(F, fh_load(120), [120], 124, False)
            row_scalars(F, 1, layer, 36, 122)
            F(f"s_mul_i32 s{t0}, s{sN}, 896\ns_add_u32 s{t0}, s{t0}, {WS_CB}\nv_lshlrev_b32 v124, 4, v{vG}")
            for i in range(14):
                F(f"buffer_load_dwordx4 {vr(CS+4*i,4)}, v124, {WSR}, s{t0} offen offset:{64*i} sc1")
            N12 = opt("n12", 34)
            for q in range(0, N12):
                w2_loads(F, q, q + 1, vW2)
                F.skip(opt("w2gap", 5))
            merge(beats, F)
            st(L + "S12")
            NA1 = opt("na1", 18)
            tokh = act(0, layer, 132, 192, 200, extra=w2_groups(N12, N12 + NA1))
            p(f"s_mov_b32 s{t4}, s{sFHW}")
            st(L + "A1")
            fh_prep(D, 0, layer, 120)
            def a2_mid0():
                publish(D, tokh, t4, 0, 124, slow, TG(layer), wb=False)
            def a2_mid1():
                p(fh_load(120))
            tokh2 = act(1, layer, 92, 192, 200, mid={0: a2_mid0, 2: a2_mid1, 3: a2_mid}, sc_=122, extra=w2_groups(N12 + NA1, 70), extra_from=1, every=4)
            tokh = tokh2
        else:
            fx_prep(D, 0, layer, 30)
            p(fx_load(0, layer, 30))
            def s1_mid():
                late_check(D, fx_load(0, layer, 30), [30], 32, False, TG(layer))
                st(L + "xX_seen")
                b_start(0, layer)
            roundB(D, 1, *EY, mid=s1_mid)
            epi_stats(D, 1, *EY)
            F = Fill()
            epi_gate(F, 1, *EY, w1=0, w2=15)
            st(L + "yY_pub", F)
            row_scalars(F, 0, layer, 92)
            merge(g1_beats(0, 132), F, rate=opt("r1", 12))
            st(L + "S1")
            fx_prep(D, 1, layer, 120)
            p(fx_load(1, layer, 120))
            def a1_mid():
                late_check(D, fx_load(1, layer, 120), [120], 122, False, TG(layer))
                p(f"s_add_u32 s{sB0}, s{sXR}, {40960 + LX(XF_LAYER, layer)}")
            tokh = act(0, layer, 132, 92, 100, mid={1: a1_mid}, extra=[b_load(ks) for ks in range(NB)], extra_from=2, every=6)
            st(L + "A1")
            F = Fill()
            F.skip(8)
            F(f"s_add_u32 s{t4}, s{sFHW}, {LX(8192, layer)}")
            publish(F, tokh, t4, 0, 32, slow, TG(layer), wb=False)
            row_scalars(F, 1, layer, 120)
            merge(g1_beats(1, 92), F)
            st(L + "S2")
            fh_prep(D, 0, layer, 120)
            p(fh_load(120))
            tokh = act(1, layer, 92, 192, 200, mid={0: lambda: late_check(D, fh_load(120), [120], 124, False, TG(layer))},
                       extra=[h_load(idx, layer) for idx in range(NH)], extra_from=1, every=5)
        if layer == 0:
            Z = p.L("NOZ")
            p(f"s_cmp_lg_u32 s{sW}, 3\ns_cbranch_scc1 {Z}")
            for q in range(60, 70):
                for j in range(4):
                    p(f"v_accvgpr_write_b32 a{4*q+j}, 0" if q < 64 else f"v_mov_b32 v{232+4*(q-64)+j}, 0")
            p.label(Z)
        st(L + "A2")
        F = Fill()
        F.skip(8)
        F(f"s_add_u32 s{t4}, s{sFHW}, {LX(8192, layer) + 4096}")
        publish(F, tokh, t4, 0, 32, slow, TG(layer), wb=False)
        fh_prep(F, 1, layer, 120)
        bts = g2_beats(0, layer, *EX, 28)
        merge(bts[:72], F)
        F = Fill()
        F(fh_load(120))
        roundA(F, 0, EX[0])
        c3 = opt("c3", 105)
        merge(bts[72:c3], F)
        late_check(D, fh_load(120), [120], 122, False, TG(layer))
        F = Fill()
        free_now = c3 // 5 - (28 - NH)
        nxt = 28
        for k in range(free_now):
            for l in h_load(nxt, layer): F(l)
            nxt += 1
            F.skip(1)
        rest = bts[c3:]
        for i, b_ in enumerate(rest):
            if (c3 + i) % 5 == 4:
                b_ += h_load(28 + free_now + (c3 + i) // 5 - c3 // 5, layer)
        S3_TAIL = (F, rest)
        emit_tail(F, rest)
        st(L + "S3")
        roundB(D, 0, *EX)
        st(L + "rB")
        F = Fill()
        if layer == 0:
            epi_stats(F, 0, *EX)
            epi_gate(F, 0, *EX, w1=10, w2=15)
            st(L + "xX_pub", F)
        else:
            F.group(lambda: xy_offset(30), 40)
            out_store(F, 0, EX[0])
        bts = g2_beats(1, layer, *EY, 56)
        merge(bts[:72], F, rate=opt("r4", 16))
        F = Fill()
        roundA(F, 1, EY[0])
        merge(bts[72:], F)
        st(L + "S4")
    roundB(D, 1, *EY)
    out_store(D, 1, EY[0])
    if STAMPS and not slow:
        stamp("end")
        p(f"""s_lshl_b32 s{t0}, s2, 2
        s_add_u32 s{t0}, s{t0}, s{sW}
        s_lshl_b32 s{t0}, s{t0}, 8
        s_add_u32 s{t0}, s{t0}, {WS_STAMP}
        v_lshlrev_b32 v30, 2, v0
        buffer_store_dword v{vSTAMP}, v30, {WSR}, s{t0} offen""")
    p("s_endpgm")
    while tail_code: tail_code.pop(0)()

body(False)
body(True)
p.label("END")
p("s_endpgm")
p.raw('.section .rodata,"a"\n.p2align 6')
p.raw(f".amdhsa_kernel {KN}")
for l in ["next_free_vgpr 512", "next_free_sgpr 102", "accum_offset 256", "group_segment_fixed_size 0", "kernarg_size 104",
          "user_sgpr_count 2", "user_sgpr_kernarg_segment_ptr 1", "system_sgpr_workgroup_id_x 1", "float_denorm_mode_32 3"]:
    p.raw("  .amdhsa_" + l)
p.raw(".end_amdhsa_kernel")
out = [a for a in ARGS if not a.startswith("--")][0]
open(out, "w").write(p.finalize())
if STAMPS: open(out + ".stamps", "w").write("\n".join(stamp_names))
```

```python
import sys
from gasm import Prog, Ins

NAME = "interleave_layers__ssm_conv_h3__dense_activation_mish__prompt"
ARGS = sys.argv[1:]
STAMPS = "--stamps" in ARGS or "--cstamps" in ARGS
STAMP_INS = "s_memtime" if "--cstamps" in ARGS else "s_memrealtime"
FORCE_SLOW = "--slow" in ARGS
def opt(name, default):
    for a in ARGS:
        if a.startswith(f"--{name}="): return type(default)(a.split("=", 1)[1])
    return default
SPIN = 400000
NT = lambda n, d: ' nt' if opt('nt_' + n, d) else ''

WS_EPOCH, WS_FT, WS_FC = 0, 0x1000, 0x2000
WS_FW1, WS_FW2 = 0x60000, 0x6A000
WS_FTR = 0x11000
WS_XC = 0x36000
WS_FL = 0x10000
WS_FY, WS_FX, WS_FH, WS_CB, WS_PS = 0x40000, 0x4000, 0x8000, 0xC000, 0x12000
WS_ST, WS_UR, WS_YG, WS_XF, WS_HF, WS_W1F, WS_W2F, WS_STAMP = 0x100000, 0x300000, 0x600000, 0xB00000, 0x1000000, 0x1E00000, 0x2100000, 0x3000000
XF_LAYER, HF_LAYER, ST_K = 128 * 20 * 1024, 128 * 54 * 1024, 128 * 4096

LDS_BYTES = 163840
CONV_PITCH, HC_PITCH = 21312, 4160
LU_OFF = 4 * HC_PITCH
CONV_BASE = LDS_BYTES - 4 * CONV_PITCH
T_BASE = 0
TW_PITCH = 6400
UT_BASE = 4 * TW_PITCH
WST_BASE = CONV_BASE
RED_BASE = 143360
NW1A = 76

sQ, sK, sV, sSK, sH, sD, sBX, sW1, sB1, sW2, sOUT, sDBG, sWS = [4 + 2 * i for i in range(13)]
R_WS, R_K, R_V, R_H, R_W = 32, 36, 40, 44, 48
sJ, sSIG, sW, sA, sB, sM, sN, sTAG, sE, sDVAL, sXV, sSPIN = range(52, 64)
t0, t1, t2, t3, t4, t5, t6, t7 = range(64, 72)
sSTAMP = 72
WU = [98, 98]
sXR, sXW, sXS, sHW, sHS, sHR, sFXR, sFXW, sFHR, sFHW, sSTW, sSTO, sSTR, sP8, sW2B, sW2S, sGOTA = range(76, 93)
sB0, sB1_, sH0, sH1 = 93, 94, 95, 96
sTAG2 = 97
sXY = 98
sG = 3
srd = lambda r: f"s[{r}:{r+3}]"
pair = lambda r: f"s[{r}:{r+1}]"
WSR = srd(R_WS)

vL16, vN, vG, vL8, vSTAMP = 1, 2, 3, 4, 5
XP = [6, 12]
YP = [17, 22]
JUNK = 27
vA1 = [vL16, 28, 29]
CS, BB = 36, 64
vr = lambda b, n: f"v[{b}:{b+n-1}]" if n > 1 else f"v{b}"
def w2reg(q):
    return f"a[{4*q}:{4*q+3}]" if q < 64 else f"v[{232+4*(q-64)}:{232+4*(q-64)+3}]"
MF = "v_mfma_f32_16x16x32_bf16"

p = Prog()
p.junk = {('v', JUNK)}
stamp_names = []
tail_code = []

class Fill:
    def __init__(self): self.items = []
    def __call__(self, s, tok_wr=None):
        ls = [l.strip() for l in s.strip("\n").split("\n") if l.strip() and not l.strip().startswith(";")]
        for i, l in enumerate(ls):
            c = 8 if l.split()[0] in ("v_exp_f32", "v_rcp_f32", "v_sqrt_f32", "v_rsq_f32") else 4
            self.items.append((c, (lambda l=l, t=(tok_wr if i == len(ls) - 1 else None): p(l, tok_wr=t))))
    def group(self, fn, cost): self.items.append((cost, fn))
    def skip(self, n): self.items.append(("skip", n))
    def need(self, *t): self.items.append((4, lambda: p.need(*t)))
    def L(self, x): return p.L(x)

class Direct:
    def __call__(self, s, tok_wr=None): p(s, tok_wr=tok_wr)
    def group(self, fn, cost): fn()
    def skip(self, n): pass
    def need(self, *t): p.need(*t)
D = Direct()

def merge(beats, fill=None, rate=8, flush=True):
    items = list(fill.items) if fill else []
    credit = 0
    hold = 0
    for b in beats:
        for x in b:
            if callable(x): x()
            else: p(x)
        credit = min(credit, 0) + rate - 4 * (len(b) - 1)
        if hold > 0:
            hold -= 1; continue
        while items and credit > 0:
            c, fn = items[0]
            if c == "skip":
                items.pop(0); hold = fn; break
            if c > credit and credit < 4: break
            items.pop(0); fn(); credit -= c
    if not flush: return items
    for c, fn in items:
        if c != "skip": fn()

def merge2(beats, F, F2, at, rate):
    n = len(F.items)
    items = list(F.items)
    class R: pass
    r = R(); r.items = items
    left = merge(beats[:at], r, rate, flush=False)
    r2 = R(); r2.items = left + list(F2.items)
    merge(beats[at:], r2, rate if left else 8)

def stamp(name, e=None):
    if not STAMPS: return
    if name not in stamp_names: stamp_names.append(name)
    i = stamp_names.index(name)
    assert i < 64
    fn = lambda: p(f"{STAMP_INS} {pair(sSTAMP)}\ns_waitcnt lgkmcnt(0)\nv_writelane_b32 v{vSTAMP}, s{sSTAMP}, {i}")
    (e or D).group(fn, 12)

def spin_wait(load_lines, checks, slow_inv, tag=None, nap=None):
    L, L2, X = p.L("POLL"), p.L("POLLB"), p.L("POLLX")
    nap = opt("nap", 2) if nap is None else nap
    p(f"s_mov_b32 s{sSPIN}, 0\ns_branch {L2}")
    p.label(L)
    if nap: p(f"s_sleep {nap}")
    p(f"s_add_u32 s{sSPIN}, s{sSPIN}, 1\ns_cmp_gt_u32 s{sSPIN}, {SPIN}\ns_cbranch_scc1 {X}")
    p.label(L2)
    p(load_lines)
    p("s_waitcnt vmcnt(0)")
    for r in checks:
        p(f"v_cmp_ne_u32 vcc, s{tag or sTAG}, v{r}\ns_cbranch_vccnz {L}")
    p.label(X)
    if slow_inv: p("buffer_inv sc1\ns_waitcnt vmcnt(0)")

def late_check(e, load_lines, checks, tmp, slow_inv, tag=None):
    TG = tag or sTAG
    def fn():
        S, B = p.L("SPIN"), p.L("BACK")
        if len(checks) == 1:
            p(f"v_cmp_ne_u32 vcc, s{TG}, v{checks[0]}")
        else:
            assert len(checks) == 4
            a_, b_, c_, d_ = checks
            p(f"""v_xor_b32 v{a_}, v{a_}, v{b_}
            v_xor_b32 v{c_}, v{c_}, v{d_}
            v_xor_b32 v{b_}, v{b_}, v{d_}
            v_xor_b32 v{d_}, s{TG}, v{d_}
            v_or3_b32 v{a_}, v{a_}, v{b_}, v{c_}
            v_or_b32 v{a_}, v{a_}, v{d_}
            v_cmp_ne_u32 vcc, 0, v{a_}""")
        p(f"s_cbranch_vccnz {S}")
        p.label(B)
        if slow_inv: p("buffer_inv sc1\ns_waitcnt vmcnt(0)")
        def tail():
            p.label(S)
            spin_wait(load_lines, checks, False, TG)
            p(f"s_branch {B}")
        tail_code.append(tail)
    e.group(fn, 8 if len(checks) == 1 else 32)

def unpack(e, dst, src, n):
    for i in range(n):
        e(f"v_lshlrev_b32 v{dst+2*i}, 16, v{src+i}\nv_and_b32 v{dst+2*i+1}, 0xffff0000, v{src+i}")
def pack(e, dst, src, n):
    for i in range(n):
        e(f"v_cvt_pk_bf16_f32 v{dst+i}, v{src+2*i}, v{src+2*i+1}")
def bf16r(e, r):
    e(f"v_cvt_pk_bf16_f32 v{r}, v{r}, v{r}\nv_lshlrev_b32 v{r}, 16, v{r}")

def stats_publish(e, x, g, soff, imm, slow, tag=None):
    e(f"v_add_f32 v{g}, v{x}, v{x+1}\nv_mul_f32 v{g+1}, v{x}, v{x}\nv_mul_f32 v{g+3}, v{x+1}, v{x+1}\nv_add_f32 v{g+2}, v{x+2}, v{x+3}")
    for i in range(2, 10, 2):
        e(f"v_fmac_f32 v{g+1}, v{x+i}, v{x+i}\nv_fmac_f32 v{g+3}, v{x+i+1}, v{x+i+1}")
        if i >= 4: e(f"v_add_f32 v{g}, v{g}, v{x+i}\nv_add_f32 v{g+2}, v{g+2}, v{x+i+1}")
    e(f"v_add_f32 v{g}, v{g}, v{g+2}\nv_add_f32 v{g+1}, v{g+1}, v{g+3}\nv_lshlrev_b32 v{g+3}, 4, v{vN}\nv_mov_b32 v{g+2}, s{tag or sTAG}")
    e(f"v_permlane16_swap_b32 v{g}, v{g+1}\nv_add_f32 v{g}, v{g}, v{g+1}\nv_mov_b32 v{g+1}, v{g}")
    e(f"v_permlane32_swap_b32 v{g}, v{g+1}\nv_add_f32 v{g}, v{g}, v{g+1}\nv_mov_b32 v{g+1}, v{g}")
    e(f"v_permlane16_swap_b32 v{g}, v{g+1}")
    e(f"buffer_store_dwordx3 {vr(g,3)}, v{g+3}, {WSR}, s{soff} offen offset:{imm}{' sc1' if slow else ''}")

def stats_loads(G, soff):
    return "\n".join(f"buffer_load_dwordx3 {vr(G+4*i,3)}, v{vL16}, {WSR}, s{soff} offen offset:{1024*i} sc1" for i in range(4))
def stats_tags(G): return [G + 2, G + 6, G + 10, G + 14]

def stats_finish(e, G, o, three=False):
    e(f"v_add_f32 v{G}, v{G}, v{G+4}\nv_add_f32 v{G+1}, v{G+1}, v{G+5}")
    if not three: e(f"v_add_f32 v{G+8}, v{G+8}, v{G+12}\nv_add_f32 v{G+9}, v{G+9}, v{G+13}")
    e(f"v_add_f32 v{G}, v{G}, v{G+8}\nv_add_f32 v{G+1}, v{G+1}, v{G+9}")
    e(f"v_permlane16_swap_b32 v{G}, v{G+1}\nv_add_f32 v{G}, v{G}, v{G+1}\nv_mov_b32 v{G+1}, v{G}")
    e(f"v_permlane32_swap_b32 v{G}, v{G+1}\nv_add_f32 v{G}, v{G}, v{G+1}\nv_mul_f32 v{o}, 0x3acccccd, v{G}\nv_mul_f32 v{o+1}, 0x3acccccd, v{G}")
    e(f"v_permlane16_swap_b32 v{o}, v{o+1}")
    s, q = o, o + 1
    e(f"v_fma_f32 v{q}, -v{s}, v{s}, v{q}\nv_max_f32 v{q}, 0, v{q}")
    e(f"v_cvt_pk_bf16_f32 v{q}, v{q}, v{s}\nv_and_b32 v{s}, 0xffff0000, v{q}\nv_lshlrev_b32 v{q}, 16, v{q}")
    e(f"v_add_f32 v{q}, 0x3727c5ac, v{q}")
    bf16r(e, q)
    e(f"v_sqrt_f32 v{q}, v{q}")
    bf16r(e, q)
    e(f"v_rcp_f32 v{q}, v{q}")

def publish(e, tok, soff, imm, tmp, slow, tag=None, wb=True):
    e(f"v_mov_b32 v{tmp}, s{tag or sTAG}\nv_mov_b32 v{tmp+1}, 0")
    e.need(tok)
    if slow and wb:
        e.group(lambda: p(f"s_waitcnt vmcnt(0)\nbuffer_wbl2 sc1\ns_waitcnt vmcnt(0)"), 8)
    e(f"buffer_store_dword v{tmp}, v{tmp+1}, {WSR}, s{soff} offen offset:{imm}{' sc1' if slow else ''}")

vHOFF = 35
HD = 170
def h_loads():
    for q in range(5):
        if q == 4: p("s_mov_b64 exec, 15")
        p(f"buffer_load_dwordx4 {vr(HD+6*q,4)}, v{vHOFF}, {srd(R_H)}, 0 offen nt")
        if q < 4: p(f"v_add_u32 v{vHOFF}, 1024, v{vHOFF}")
    p("s_mov_b64 exec, -1")
def h_build(first):
    if first is None: return h_rows(range(HB_DONE[0], 5))
    HB_DONE[0] = first
    p(f"v_cmp_lt_u32 vcc, 1, v0")
    for i in range(4): p(f"v_cndmask_b32 v{HD+i}, 0, v{HD+i}, vcc")
    for q in range(5):
        d = HD + 6 * q
        for i in range(2):
            p(f"v_mov_b32_dpp v{d+4+i}, v{d+i} wave_shl:1 row_mask:0xf bank_mask:0xf")
        if q < 4:
            for i in range(2): p(f"v_readfirstlane_b32 s{t6+i}, v{d+6+i}")
            for i in range(2): p(f"v_writelane_b32 v{d+4+i}, s{t6+i}, 63")
    h_rows(range(first))
HB_DONE = [0]
def h_rows(rows):
    for q in rows:
        d, S = HD + 6 * q, 200 + 12 * (q % 2)
        if q == 4: p("s_mov_b64 exec, 7")
        p(f"ds_write_b128 v33, {vr(d,4)} offset:{1024*q}")
        for i in range(4): p(f"v_alignbit_b32 v{S+i}, v{d+i+1}, v{d+i}, 16")
        p(f"ds_write_b128 v33, {vr(S,4)} offset:{1024*q + HC_PITCH}")
        for i in range(4): p(f"v_mov_b32 v{S+4+i}, v{d+i+1}")
        p(f"ds_write_b128 v33, {vr(S+4,4)} offset:{1024*q + 2*HC_PITCH}")
        for i in range(4): p(f"v_alignbit_b32 v{S+8+i}, v{d+i+2}, v{d+i+1}, 16")
        p(f"ds_write_b128 v33, {vr(S+8,4)} offset:{1024*q + 3*HC_PITCH}")
    p("s_mov_b64 exec, -1")

def w_unit_params(rep):
    Bq, E = p.L("WU2"), p.L("WUE")
    sv = WU[rep]
    p(f"""s_sub_u32 s{t0}, s{sSIG}, {20 if rep == 0 else -12}
    s_lshl_b32 s{t0}, s{t0}, 2
    s_add_u32 s{t0}, s{t0}, s{sW}
    s_mov_b32 s{R_W+2}, 2211840
    v_mov_b32 v32, 0
    s_cmp_ge_u32 s{t0}, 40
    s_cbranch_scc1 {Bq}
    s_mul_i32 s{t1}, s{sJ}, 40
    s_add_u32 s{t0}, s{t0}, s{t1}
    s_and_b32 s{t7}, s{t0}, 15
    s_lshr_b32 s{t6}, s{t0}, 4
    s_mul_i32 s{t0}, s{t7}, 20
    s_add_u32 s{t0}, s{t0}, s{t6}
    s_mul_i32 s{sv}, s{t0}, 7168
    s_add_u32 s{sv}, s{sv}, {WS_W1F}
    s_mul_i32 s{sv+3}, s{t0}, 448
    s_add_u32 s{sv+3}, s{sv+3}, {WS_PS}
    s_lshr_b32 s{t1}, s{t6}, 1
    s_mul_i32 s{t1}, s{t1}, 80
    s_and_b32 s{t2}, s{t6}, 1
    s_lshl_b32 s{t2}, s{t2}, 1
    s_add_u32 s{t1}, s{t1}, s{t2}
    s_add_u32 s{t2}, s{t1}, 32
    s_sub_u32 s{t3}, s{t6}, 16
    s_mul_i32 s{t3}, s{t3}, 160
    s_add_u32 s{t4}, s{t3}, 64
    s_add_u32 s{t3}, s{t3}, 144
    s_cmp_ge_u32 s{t6}, 16
    s_cselect_b32 s{t1}, s{t4}, s{t1}
    s_cselect_b32 s{t2}, s{t3}, s{t2}
    s_cselect_b32 s{t3}, 0, 14
    v_mov_b32 v32, s{t3}
    s_mul_i32 s{t1}, s{t1}, 3456
    s_mul_i32 s{t2}, s{t2}, 3456
    s_lshl_b32 s{t6}, s{t0}, 7
    s_add_u32 s{sv+1}, s{t6}, {WS_FW1}
    s_mul_i32 s{t3}, s{t7}, 7
    s_mul_i32 s{t4}, s{t7}, 6
    s_add_u32 s{t4}, s{t4}, 12
    s_cmp_ge_u32 s{t7}, 12
    s_cselect_b32 s{t3}, s{t4}, s{t3}
    s_lshl_b32 s{t3}, s{t3}, 5
    s_add_u32 s{t1}, s{t1}, s{t3}
    s_add_u32 s{t2}, s{t2}, s{t3}
    s_mov_b32 s{t3}, 3456
    s_mov_b32 s{t4}, 14
    s_branch {E}""")
    p.label(Bq)
    p(f"""s_sub_u32 s{t0}, s{t0}, 40
    s_mov_b32 s{sv+3}, s{t0}
    s_min_u32 s{t0}, s{t0}, 53
    s_mul_i32 s{t1}, s{sJ}, 54
    s_add_u32 s{t0}, s{t0}, s{t1}
    s_and_b32 s{t7}, s{t0}, 7
    s_lshr_b32 s{t6}, s{t0}, 3
    s_mul_i32 s{t0}, s{t7}, 54
    s_add_u32 s{t0}, s{t0}, s{t6}
    s_mul_i32 s{sv}, s{t0}, 5120
    s_add_u32 s{sv}, s{sv}, {WS_W2F}
    s_mul_i32 s{t1}, s{t6}, 21846
    s_lshr_b32 s{t1}, s{t1}, 16
    s_mul_i32 s{t2}, s{t1}, 3
    s_sub_u32 s{t2}, s{t6}, s{t2}
    s_mul_i32 s{t3}, s{t1}, 7
    s_mul_i32 s{t4}, s{t1}, 6
    s_add_u32 s{t4}, s{t4}, 12
    s_cmp_ge_u32 s{t1}, 12
    s_cselect_b32 s{t1}, s{t4}, s{t3}
    s_lshl_b32 s{t2}, s{t2}, 1
    s_add_u32 s{t1}, s{t1}, s{t2}
    s_add_u32 s{t2}, s{t1}, 1
    s_sub_u32 s{t3}, s{t6}, 48
    s_mul_i32 s{t3}, s{t3}, 14
    s_add_u32 s{t4}, s{t3}, 6
    s_add_u32 s{t3}, s{t3}, 13
    s_cmp_ge_u32 s{t6}, 48
    s_cselect_b32 s{t1}, s{t4}, s{t1}
    s_cselect_b32 s{t2}, s{t3}, s{t2}
    s_mul_i32 s{t1}, s{t1}, 20480
    s_mul_i32 s{t2}, s{t2}, 20480
    s_lshl_b32 s{t6}, s{t0}, 7
    s_add_u32 s{sv+1}, s{t6}, {WS_FW2}
    s_mul_i32 s{t3}, s{t7}, 160
    s_add_u32 s{t1}, s{t1}, s{t3}
    s_add_u32 s{t2}, s{t2}, s{t3}
    s_mov_b32 s{t3}, 1280
    s_mov_b32 s{t4}, 10
    s_cmp_ge_u32 s{sv+3}, 54
    s_cselect_b32 s{t1}, 0x70000000, s{t1}
    s_cselect_b32 s{t2}, 0x70000000, s{t2}
    s_cselect_b32 s{sv}, 0x70000000, s{sv}
    s_cselect_b32 s{sv+1}, 0x70000000, s{sv+1}""")
    p.label(E)
    x = WX[rep]
    p(f"""s_lshl_b32 s{sv+2}, s{t4}, 4
    v_cvt_f32_u32 v30, v0
    v_cvt_f32_u32 v31, s{t4}
    v_add_f32 v30, 0.5, v30
    v_rcp_f32 v31, v31
    v_mul_f32 v30, v30, v31
    v_cvt_u32_f32 v30, v30
    v_mul_lo_u32 v31, v30, s{t4}
    v_sub_u32 v31, v0, v31
    v_lshlrev_b32 v31, 4, v31
    v_cmp_gt_u32 vcc, 4, v30
    v_lshrrev_b32 v33, 1, v30
    v_mad_u32_u24 v30, v33, v32, v30
    v_mul_lo_u32 v30, v30, s{t3}
    v_add_u32 v{WV[rep]}, v31, v30
    s_mov_b32 s{x[0]}, s{t1}
    s_mov_b32 s{x[1]}, s{t2}
    s_lshl_b32 s{x[2]}, s{t3}, 2
    s_mov_b32 s{x[3]}, vcc_hi
    v_lshrrev_b32 v32, 2, v0
    v_mul_lo_u32 v32, v32, s{sv+2}
    v_and_b32 v33, 3, v0
    v_lshl_add_u32 v32, v33, 3, v32
    s_mul_i32 s{t0}, s{sW}, {WSTG[rep][1]}
    s_add_u32 s{t0}, s{t0}, {WSTG[rep][0]}
    v_add_u32 v{WV[rep]+1}, s{t0}, v32
    s_lshl_b32 s{t1}, s{sv+2}, 4
    v_add_u32 v{WV[rep]+2}, s{t1}, v{WV[rep]+1}""")
WX = [(30, 31, 74, 75), (30, 31, 74, 75)]
PRIV = NW1A // 4 * 1024
WSTG = [(CONV_BASE, 7168), (PRIV - 10240, PRIV)]
WV = [84, 84]
def w_unit_dma(rep, tok):
    sv, x = WU[rep], WX[rep]
    p(f"""s_cmp_eq_u32 s{sv+2}, 224
    s_cselect_b32 s{R_W}, s{sW1}, s{sW2}
    s_cselect_b32 s{R_W+1}, s{sW1+1}, s{sW2+1}
    s_mul_i32 s{t7}, s{sW}, {WSTG[rep][1]}
    s_add_u32 m0, s{t7}, {WSTG[rep][0]}
    s_lshl_b32 s{t7}, s{sv+2}, 2
    s_mov_b32 exec_hi, s{x[3]}""")
    for q in range(8):
        so = x[0] if q < 4 else x[1]
        p(f"buffer_load_dwordx4 v{WV[rep]}, {srd(R_W)}, s{so} offen nt lds", tok_wr=(tok if q == 7 else None))
        if q < 7: p(f"s_add_u32 m0, m0, s{t7}\ns_add_u32 s{so}, s{so}, s{x[2]}")
    p("s_mov_b64 exec, -1")

def row_pattern(dst, tmp):
    p(f"""v_mul_u32_u24 v{tmp}, 205, v0
    v_lshrrev_b32 v{tmp}, 11, v{tmp}
    v_mul_u32_u24 v{dst}, 1120, v{tmp}
    v_lshl_add_u32 v{dst}, v0, 4, v{dst}""")

def dma(e, vaddr, rs, soff, add, m0base, m0add, ehi, elo=None, flags="", tok=None):
    def fn():
        p(f"s_add_u32 m0, s{m0base}, {m0add}\ns_add_u32 s{t2}, s{soff}, {add}\ns_mov_b32 exec_hi, {ehi}")
        if elo is not None: p(f"s_mov_b32 exec_lo, {elo}")
        p(f"buffer_load_dwordx4 v{vaddr}, {srd(rs)}, s{t2} offen{flags} lds", tok_wr=tok)
        p("s_mov_b64 exec, -1")
    e.group(fn, 20)
def bases():
    p(f"""s_and_b32 s{t0}, s{sW}, 1
    s_lshr_b32 s{t1}, s{sW}, 1
    s_lshl_b32 s{sP8}, s{t1}, 3
    s_lshl_b32 s{t2}, s{sA}, 2
    s_add_u32 s{t2}, s{t2}, s{t0}
    s_lshl_b32 s{t3}, s{sM}, 3
    s_add_u32 s{t3}, s{t3}, s{t0}
    s_lshl_b32 s{t4}, s{t1}, 2
    s_add_u32 s{t3}, s{t3}, s{t4}
    s_lshl_b32 s{t4}, s{sB}, 1
    s_add_u32 s{t4}, s{t4}, s{t1}
    s_mul_i32 s{sXR}, s{t3}, 20480
    s_add_u32 s{sXR}, s{sXR}, {WS_XF}
    s_mul_i32 s{t5}, s{t2}, 20480
    s_add_u32 s{t5}, s{t5}, {WS_XF}
    s_lshl_b32 s{sXW}, s{t4}, 10
    s_add_u32 s{sXW}, s{sXW}, s{t5}
    s_lshr_b32 s{sXS}, s{t4}, 2
    s_lshl_b32 s{sXS}, s{sXS}, 10
    s_and_b32 s{t6}, s{t4}, 3
    s_lshl_b32 s{t6}, s{t6}, 2
    s_add_u32 s{sXS}, s{sXS}, s{t6}
    s_add_u32 s{sXS}, s{sXS}, s{t5}
    s_add_u32 s{sXS}, s{sXS}, 16384
    s_mul_i32 s{t5}, s{t3}, 55296
    s_add_u32 s{t5}, s{t5}, {WS_HF}
    s_mul_i32 s{sHW}, s{sN}, 3072
    s_add_u32 s{sHW}, s{sHW}, s{t5}
    s_lshl_b32 s{sHS}, s{sN}, 9
    s_add_u32 s{sHS}, s{sHS}, s{t5}
    s_add_u32 s{sHS}, s{sHS}, 49152
    s_mul_i32 s{sHR}, s{t2}, 55296
    s_mul_i32 s{t5}, s{sW}, 12288
    s_add_u32 s{sHR}, s{sHR}, s{t5}
    s_add_u32 s{sHR}, s{sHR}, {WS_HF}
    s_lshl_b32 s{sFXR}, s{t3}, 6
    s_add_u32 s{sFXR}, s{sFXR}, {WS_FX}
    s_lshl_b32 s{sFXW}, s{t2}, 4
    s_add_u32 s{sFXW}, s{sFXW}, s{t4}
    s_lshl_b32 s{sFXW}, s{sFXW}, 2
    s_add_u32 s{sFXW}, s{sFXW}, {WS_FX}
    s_lshl_b32 s{sFHR}, s{sM}, 8
    s_lshl_b32 s{t5}, s{sW}, 6
    s_add_u32 s{sFHR}, s{sFHR}, s{t5}
    s_and_b32 s{t5}, s{sA}, 1
    s_lshl_b32 s{t5}, s{t5}, 3
    s_add_u32 s{sFHR}, s{sFHR}, s{t5}
    s_add_u32 s{sFHR}, s{sFHR}, {WS_FH}
    s_lshl_b32 s{sFHW}, s{sM}, 4
    s_add_u32 s{sFHW}, s{sFHW}, s{sN}
    s_lshl_b32 s{sFHW}, s{sFHW}, 2
    s_add_u32 s{sFHW}, s{sFHW}, s{sW}
    s_lshl_b32 s{sFHW}, s{sFHW}, 2
    s_add_u32 s{sFHW}, s{sFHW}, {WS_FH}
    s_lshl_b32 s{sSTO}, s{t2}, 12
    s_add_u32 s{sSTO}, s{sSTO}, {WS_ST}
    s_lshl_b32 s{sSTW}, s{t4}, 8
    s_add_u32 s{sSTW}, s{sSTW}, s{sSTO}
    s_lshl_b32 s{sSTR}, s{t3}, 12
    s_add_u32 s{sSTR}, s{sSTR}, {WS_ST}
    s_mul_i32 s{t0}, s{sB}, 54
    s_mul_i32 s{t5}, s{sW}, 12
    s_add_u32 s{t5}, s{t5}, s{t0}
    s_mul_i32 s{sW2B}, s{t5}, 5120
    s_add_u32 s{sW2B}, s{sW2B}, {WS_W2F}
    s_lshl_b32 s{t5}, s{sW}, 1
    s_min_u32 s{t5}, s{t5}, 4
    s_add_u32 s{t5}, s{t5}, s{t0}
    s_add_u32 s{t5}, s{t5}, 48
    s_mul_i32 s{sW2S}, s{t5}, 5120
    s_add_u32 s{sW2S}, s{sW2S}, {WS_W2F}
    s_cmp_eq_u32 s{sW}, 3
    s_cselect_b32 s{sW2S}, 0x70000000, s{sW2S}
    v_add_u32 v{vA1[1]}, 57344, v{vL16}
    v_add_u32 v{vA1[2]}, 114688, v{vL16}""")
CA, CB_, CACC, CAD = 92, 156, 220, 252
vA, vB = 36, 37
def conv_prep():
    p(f"""s_mul_i32 s{t3}, s{sW}, {CONV_PITCH}
    s_add_u32 s{t3}, s{t3}, {CONV_BASE}
    v_mov_b32 v30, 0
    v_mov_b32 v31, 0
    v_add_u32 v32, s{t3}, v{vL8}
    ds_write_b64 v32, v[30:31] offset:{LU_OFF+4096}
    v_add_u32 v32, 1, v{vN}
    v_and_b32 v33, 3, v32
    v_sub_u32 v32, v32, v33
    v_lshlrev_b32 v32, 1, v32
    v_mul_u32_u24 v33, {HC_PITCH}, v33
    v_add3_u32 v{vA}, v32, v33, s{t3}
    v_lshl_add_u32 v{vA}, v{vG}, 4, v{vA}
    v_lshlrev_b32 v32, 5, v{vN}
    v_sub_u32 v32, {LU_OFF + 4064 - 3584}, v32
    v_lshl_add_u32 v32, v{vG}, 4, v32
    v_add_u32 v{vB}, s{t3}, v32
    s_lshl_b32 s{t1}, s{sDVAL}, 16
    s_bitcmp1_b32 s{sW}, 0
    s_cselect_b32 s{t1}, s{sDVAL}, s{t1}
    s_and_b32 s{t1}, s{t1}, 0xffff0000
    s_lshr_b32 s{t2}, s{t1}, 16
    v_lshlrev_b32 v32, 3, v{vG}
    v_add_u32 v32, v32, v{vN}
    v_sub_u32 v32, 15, v32
    v_mov_b32 v33, s{t1}
    v_mov_b32 v34, s{t2}""")
    for r in range(4):
        p(f"""v_cmp_eq_u32 vcc, {2*r}, v32
        v_cndmask_b32 v{CAD+r}, 0, v34, vcc
        v_cmp_eq_u32 vcc, {2*r+1}, v32
        v_cndmask_b32 v{CAD+r}, v{CAD+r}, v33, vcc""")

KN = NAME + "_kernel"
p.raw(f"; @launch grid=(256,1,1) block=(256,1,1) lds={LDS_BYTES}")
p.raw('.amdgcn_target "amdgcn-amd-amdhsa--gfx950"')
p.raw(f".text\n.globl {KN}\n.p2align 8\n.type {KN},@function")
p.label(KN)
p(f"""s_cmp_ge_u32 s2, 256
s_cbranch_scc1 END
s_load_dwordx16 s[4:19], s[0:1], 0
s_load_dwordx8 s[20:27], s[0:1], 64
s_load_dwordx2 s[28:29], s[0:1], 96
s_getpc_b64 {pair(t6)}
s_lshr_b32 s{sSIG}, s2, 3
s_lshl_b32 s{t0}, s{sSIG}, 11
v_lshl_add_u32 v30, v0, 3, s{t0}
global_load_dword v{JUNK}, v30, {pair(t6)}""")
if STAMPS: p(f"v_mov_b32 v{vSTAMP}, 0")
stamp("start")
p(f"""v_lshrrev_b32 v30, 6, v0
v_and_b32 v0, 63, v0
v_readfirstlane_b32 s{sW}, v30
s_and_b32 s{sJ}, s2, 7
v_lshlrev_b32 v{vL8}, 3, v0
v_and_b32 v{vN}, 15, v0
v_lshrrev_b32 v{vG}, 4, v0
v_lshlrev_b32 v{vL16}, 4, v0
s_mov_b32 s{R_W+3}, 0x20000""")
row_pattern(38, 30)
p(f"""s_lshl_b32 s{t4}, s{sJ}, 9
s_add_u32 s{t4}, s{t4}, {WS_FT}
v_add_u32 v35, s{t4}, v{vL8}
s_lshl_b32 s{t5}, s2, 2
s_add_u32 s{t5}, s{t5}, s{sW}
s_lshl_b32 s{t6}, s{t5}, 7
s_add_u32 s{t6}, s{t6}, {WS_FY}
v_writelane_b32 v35, s{t6}, 4
s_add_u32 s{t6}, s{t6}, {WS_FW1 - WS_FY}
v_writelane_b32 v35, s{t6}, 8
s_lshl_b32 s{t5}, s{t5}, 8
v_writelane_b32 v35, s{t5}, 2
s_add_u32 s{t5}, s{t5}, 128
v_writelane_b32 v35, s{t5}, 3
s_add_u32 s{t6}, s{t4}, {WS_FL - WS_FT}
v_writelane_b32 v35, s{t6}, 5
s_add_u32 s{t6}, s{t6}, 128
v_writelane_b32 v35, s{t6}, 6
s_add_u32 s{t6}, s{t6}, 128
v_writelane_b32 v35, s{t6}, 7
s_lshl_b32 s{t0}, s{sSIG}, 2
s_add_u32 s{t0}, s{t0}, s{sW}
s_mul_i32 s{t1}, s{t0}, 20480
s_mul_i32 s{t2}, s{sJ}, 160
s_add_u32 s{t1}, s{t1}, s{t2}
v_add_u32 v38, s{t1}, v38
v_subrev_u32 v39, 5120, v38
s_mov_b32 s{R_K+2}, 2621440
s_mov_b32 s{R_K+3}, 0x20000
s_mov_b32 s{R_V+2}, 2621440
s_mov_b32 s{R_V+3}, 0x20000
s_mul_i32 s{t2}, s{sJ}, 640
v_lshl_add_u32 v30, v{vN}, 3, s{t2}
s_mul_i32 s{sG}, s{sJ}, 20
s_min_u32 s{t1}, s{sSIG}, 19
s_add_u32 s{sG}, s{sG}, s{t1}
s_lshl_b32 s{t3}, s{sG}, 2
s_add_u32 s{t3}, s{t3}, s{sW}
s_lshl_b32 s{t1}, s{t3}, 1
s_and_b32 s{t2}, s{t1}, 0xfffc
s_waitcnt lgkmcnt(0)
s_load_dword s{sE}, {pair(sWS)}, {WS_EPOCH}
s_load_dword s{sDVAL}, {pair(sD)}, s{t2}
global_load_dword v{JUNK}, v35, {pair(sWS)} sc1""")
SKP = 40
for dt in range(5):
    p(f"global_load_dwordx2 {vr(SKP+2*dt,2)}, v30, {pair(sSK)} offset:{128*dt}")
tokW = [p.tok()]
tokT = p.tok()
def kv_dma():
    p(f"""s_mov_b32 s{R_K}, s{sK}
    s_mov_b32 s{R_K+1}, s{sK+1}
    s_mov_b32 s{R_V}, s{sV}
    s_mov_b32 s{R_V+1}, s{sV+1}
    s_mul_i32 m0, s{sW}, {TW_PITCH}
    s_mov_b32 exec_hi, 0x3ffff""")
    for q in range(4):
        p(f"buffer_load_dwordx4 v39, {srd(R_K)}, 0 offen nt lds\ns_add_u32 m0, m0, 800")
        if q < 3: p(f"v_add_u32 v39, 6400, v39")
    for q in range(4):
        if q == 3: p("s_mov_b32 exec_hi, 0\ns_mov_b32 exec_lo, 0x3ff")
        p(f"buffer_load_dwordx4 v38, {srd(R_V)}, 0 offen nt lds", tok_wr=tokT)
        if q < 3: p(f"s_add_u32 m0, m0, 800\nv_add_u32 v38, 6400, v38")
    p("s_mov_b64 exec, -1")
kv_dma()
tokW = [p.tok(), p.tok()]
stamp('iss0')
p(f"""s_mov_b32 s{R_WS+2}, 0x10000000
s_mov_b32 s{R_WS+3}, 0x20000
s_mov_b32 s{R_H+2}, 2621440
s_mov_b32 s{R_H+3}, 0x20000
s_lshl_b32 s{t3}, s{t3}, 12
s_sub_u32 s{t3}, s{t3}, 32
s_cmp_lt_u32 s{sSIG}, 20
s_cselect_b32 s{t3}, s{t3}, 0x70000000
v_add_u32 v{vHOFF}, s{t3}, v{vL16}
s_mov_b32 s{R_H}, s{sH}
s_mov_b32 s{R_H+1}, s{sH+1}""")
def common_setup(tagl):
    p(f"""s_mov_b32 s{R_WS}, s{sWS}
    s_mov_b32 s{R_WS+1}, s{sWS+1}
    s_lshr_b32 s{t0}, s{sSIG}, 3
    s_lshl_b32 s{sA}, s{sJ}, 2
    s_add_u32 s{sA}, s{sA}, s{t0}
    s_and_b32 s{sB}, s{sSIG}, 7
    s_lshr_b32 s{sM}, s{sA}, 1
    s_and_b32 s{sN}, s{sSIG}, 15
    s_getreg_b32 s{sXV}, hwreg(HW_REG_XCC_ID)
    s_lshl_b32 s{sXV}, s{sXV}, 28
    s_lshl_b32 s{t0}, s{sJ}, 5
    s_add_u32 s{t0}, s{t0}, s{sSIG}
    s_lshl_b32 s{t0}, s{t0}, 5
    s_add_u32 s{t0}, s{t0}, {WS_XC}
    v_mov_b32 v30, 0
    s_mul_i32 s{sTAG}, s{sE}, 0x9E3779B1
    s_add_u32 s{sTAG}, s{sTAG}, 0x7F4A7C15
    s_xor_b32 s{sTAG2}, s{sTAG}, 0x5bd1e995
    s_xor_b32 s{sXV}, s{sXV}, s{sTAG}
    v_mov_b32 v31, s{sXV}
    s_cmp_eq_u32 s{sW}, 0
    s_cselect_b32 s{t0}, s{t0}, 0x70000000
    buffer_store_dword v31, v30, {WSR}, s{t0} offen sc1""")
    stamp("xpub")
    bases()
common_setup(0)
SKC = 92
for dt in range(5):
    a_, c = SKP + 2 * dt, SKC + 5 * dt
    p(f"""v_alignbit_b32 v{c}, v{a_}, v{a_}, 16
    v_alignbit_b32 v{c+1}, v{a_+1}, v{a_+1}, 16
    v_and_b32 v{c+2}, 0xffff, v{a_}
    v_and_b32 v{c+4}, 0xffff0000, v{a_+1}
    v_and_b32 v{c+3}, 0xffff0000, v{a_}
    v_and_b32 v{a_+1}, 0xffff, v{a_+1}
    v_or_b32 v{c+3}, v{c+3}, v{a_+1}""")
p(f"s_cmp_ge_u32 s{sSIG}, 20\ns_cbranch_scc1 PREP_W")
conv_prep()
w_unit_params(1)
p.label("PREP_DONE")
def prep_w():
    p.label("PREP_W")
    w_unit_params(0)
    if opt("w0e", 0) == 2: w_unit_dma(0, tokW[0])
    p("s_branch PREP_DONE")
tail_code.append(prep_w)
p(f"""v_lshrrev_b32 v30, 2, v0
v_mul_u32_u24 v30, 160, v30
v_and_b32 v31, 3, v0
v_lshl_add_u32 v30, v31, 3, v30
s_mul_i32 s{t3}, s{sW}, {TW_PITCH}
v_add_u32 v56, s{t3}, v30
s_lshl_b32 s{t2}, s{sW}, 5
s_sub_u32 s{t2}, {UT_BASE + 120}, s{t2}
v_mul_u32_u24 v57, 144, v{vN}
v_lshlrev_b32 v32, 3, v{vG}
v_sub_u32 v57, v57, v32
v_add_u32 v57, s{t2}, v57
s_mul_i32 s{t0}, s{sJ}, {80*4096}
s_lshl_b32 s{t2}, s{sSIG}, 7
s_sub_u32 s{t0}, s{t0}, s{t2}
s_lshl_b32 s{t2}, s{sW}, 15
s_add_u32 s{t0}, s{t0}, s{t2}
s_add_u32 s{t0}, s{t0}, {WS_UR + 3968}
v_lshrrev_b32 v60, 3, v0
v_and_b32 v61, 7, v0
v_lshlrev_b32 v61, 4, v61
v_lshl_add_u32 v62, v60, 12, v61
v_mul_u32_u24 v60, 144, v60
s_mul_i32 s{t2}, s{sW}, 1152
s_add_u32 s{t2}, s{t2}, {UT_BASE}
v_add3_u32 v60, v60, v61, s{t2}
s_lshl_b32 s{t5}, s{sJ}, 5
s_add_u32 s{t5}, s{t5}, s{sSIG}
s_lshl_b32 s{t5}, s{t5}, 2
s_add_u32 s{t5}, s{t5}, s{sW}
s_lshl_b32 s{t5}, s{t5}, 2
s_add_u32 s{t5}, s{t5}, {WS_FT}
s_add_u32 s{t1}, s{t0}, {4*32768}
s_add_u32 s{t2}, s{t0}, {8*32768}
s_cmp_lt_u32 s{sW}, 2
s_cselect_b32 s{t2}, s{t2}, 0x70000000
""")
stamp("issued")
def w_process(rep, st):
    sv = WU[rep]
    SK = p.L("WSKIP")
    tk = p.tok()
    p.need(tokW[rep])
    st(f"W_in{rep}")
    for ft in range(7):
        p(f"ds_read_b64_tr_b16 {vr(200+4*ft,2)}, v{WV[rep]+1} offset:{32*ft}\nds_read_b64_tr_b16 {vr(202+4*ft,2)}, v{WV[rep]+2} offset:{32*ft}")
    for ft in range(7):
        if ft == 5: p(f"s_cmp_lt_u32 s{sv+2}, 224\ns_cbranch_scc1 {SK}")
        if ft == 4: p(f"s_add_u32 s{sv}, s{sv}, 4096")
        p(f"buffer_store_dwordx4 {vr(200+4*ft,4)}, v{vL16}, {WSR}, s{sv} offen offset:{1024*(ft%4)} sc1", tok_wr=tk)
    if rep == 0:
        p(f"v_mov_b32 v64, 0x3f803f80\nv_mov_b32 v65, 0x3f803f80\nv_mov_b32 v66, 0x3f803f80\nv_mov_b32 v67, 0x3f803f80\nv_lshlrev_b32 v68, 4, v{vG}")
        for ft in range(7):
            p(f"{MF} {vr(120+4*ft,4)}, {vr(200+4*ft,4)}, v[64:67], 0")
        p("s_nop 7\ns_mov_b32 exec_lo, 0x00010001\ns_mov_b32 exec_hi, 0x00010001")
        for ft in range(7):
            p(f"buffer_store_dwordx4 {vr(120+4*ft,4)}, v68, {WSR}, s{sv+3} offen offset:{64*ft} sc1", tok_wr=tk)
        p("s_mov_b64 exec, -1")
    p.label(SK)
    return tk
if opt("w0e", 0) == 2:
    p(f"s_cmp_ge_u32 s{sSIG}, 20\ns_cbranch_scc1 KVW\ns_waitcnt vmcnt(1)\ns_branch KVD")
    p.label("KVW")
    p("s_waitcnt vmcnt(9)")
    p.label("KVD")
else:
    p.need(tokT)
stamp("kv_in")
KB = [148 - 28 + 6 * dt + 0 for dt in range(5)]
KB = [120 + 6 * dt for dt in range(5)]
for dt in range(5):
    b = KB[dt]
    p(f"ds_read_b64_tr_b16 {vr(b,2)}, v56 offset:{32*dt}\nds_read_b64_tr_b16 {vr(b+2,2)}, v56 offset:{32*dt+640}\nds_read_b64_tr_b16 {vr(b+4,2)}, v56 offset:{32*dt+3200}")
W0E = opt("w0e", 0)
p(f"s_cmp_ge_u32 s{sSIG}, 20\ns_cbranch_scc1 ROLE_W")
h_loads()
p.label("ROLE_DONE")
def role_w():
    p.label("ROLE_W")
    if W0E == 1: w_unit_dma(0, tokW[0])
    p("s_branch ROLE_DONE")
tail_code.append(role_w)
tokU = p.tok()
for dt in range(5):
    b, c, o, vv, st = KB[dt], SKC + 5 * dt, 150, 154, 158 + 2 * (dt & 1)
    p(f"""v_dot2_f32_bf16 v{o}, v{b}, v{c+4}, 0
    v_dot2_f32_bf16 v{o+1}, v{b+1}, v{c+1}, 0
    v_dot2_f32_bf16 v{o+2}, v{b+1}, v{c+4}, 0
    v_dot2_f32_bf16 v{o+3}, v{b+2}, v{c+1}, 0
    v_lshlrev_b32 v{vv}, 16, v{b+4}
    v_and_b32 v{vv+1}, 0xffff0000, v{b+4}
    v_dot2_f32_bf16 v{o}, v{b+1}, v{c+3}, v{o}
    v_dot2_f32_bf16 v{o+1}, v{b+2}, v{c}, v{o+1}
    v_dot2_f32_bf16 v{o+2}, v{b+2}, v{c+3}, v{o+2}
    v_dot2_f32_bf16 v{o+3}, v{b+3}, v{c}, v{o+3}
    v_dot2_f32_bf16 v{o}, v{b+2}, v{c+2}, v{o}
    v_dot2_f32_bf16 v{o+2}, v{b+3}, v{c+2}, v{o+2}
    v_lshlrev_b32 v{vv+2}, 16, v{b+5}
    v_and_b32 v{vv+3}, 0xffff0000, v{b+5}
    s_nop 0
    v_pk_mul_f32 {vr(o,2)}, {vr(o,2)}, {vr(vv,2)}
    v_pk_mul_f32 {vr(o+2,2)}, {vr(o+2,2)}, {vr(vv+2,2)}
    v_cvt_pk_bf16_f32 v{st+1}, v{o+1}, v{o}
    v_cvt_pk_bf16_f32 v{st}, v{o+3}, v{o+2}
    ds_write_b64 v57, {vr(st,2)} offset:{2304*dt}""")
stamp("T_calc")
p("s_waitcnt lgkmcnt(0)\ns_barrier")
for q in range(3):
    p(f"ds_read_b128 {vr(92+4*q,4)}, v60 offset:{4608*q}")
for q in range(3):
    p(f"buffer_store_dwordx4 {vr(92+4*q,4)}, v62, {WSR}, s{(t0, t1, t2)[q]} offen sc1", tok_wr=tokU)
stamp("u_st")
p(f"""s_mul_i32 s{t3}, s{sW}, {CONV_PITCH}
s_add_u32 s{t3}, s{t3}, {CONV_BASE}
v_add_u32 v33, s{t3}, v{vL16}""")
p(f"s_cmp_ge_u32 s{sSIG}, 20\ns_cbranch_scc1 HB1")
h_build(opt("hb1", 2))
p.label("HB1")
p(f"""v_mov_b32 v30, s{sTAG}
v_mov_b32 v31, 0
s_waitcnt vmcnt(0)
buffer_store_dword v30, v31, {WSR}, s{t5} offen""")
stamp("T_pub")
p(f"""s_lshl_b32 s{t4}, s{sJ}, 10
s_add_u32 s{t4}, s{t4}, {WS_XC}
v_and_b32 v63, 31, v0
v_lshlrev_b32 v63, 5, v63
buffer_load_dword v62, v63, {WSR}, s{t4} offen sc1""")
p(f"s_cmp_ge_u32 s{sSIG}, 20\ns_cbranch_scc1 MID_W")
h_build(None)
def mid_w():
    p.label("MID_W")
    if not W0E: w_unit_dma(0, tokW[0])
    tk = w_process(0, stamp)
    p(f"v_mov_b32 v30, s{sTAG}\nv_mov_b32 v31, 0")
    p.need(tk)
    p(f"buffer_store_dword v30, v31, {WSR}, s{WU[0]+1} offen sc1")
    stamp("W_done")
    p("s_branch CHECK")
tail_code.append(mid_w)
p.label("CHECK")
p(f"s_mov_b32 s{sSPIN}, 0\ns_branch VER2")
p.label("VER")
p(f"""s_sleep 1
s_add_u32 s{sSPIN}, s{sSPIN}, 1
s_cmp_gt_u32 s{sSPIN}, {SPIN}
s_cbranch_scc1 SLOW
buffer_load_dword v62, v63, {WSR}, s{t4} offen sc1""")
p.label("VER2")
p(f"""v_xor_b32 v62, s{sXV}, v62
v_cmp_ne_u32 vcc, 0, v62
s_cbranch_vccz {'SLOW' if FORCE_SLOW else 'FAST'}
v_and_b32 v62, 0x0fffffff, v62
v_cmp_ne_u32 vcc, 0, v62
s_cbranch_vccnz VER
s_branch SLOW""")

def body(slow):
    PF = "S" if slow else "F"
    sc = " sc1" if slow else ""
    lab = lambda n: f"{PF}_{n}"
    st = (lambda n, e=None: None) if slow else stamp
    LX = lambda stride, layer: stride * layer if slow else 0
    TG = lambda layer: sTAG2 if layer else sTAG
    HPW = opt("hpw", 1)
    WT = lambda layer: " sc1" if (slow or (layer == 0 and not HPW)) else ""
    p.label("SLOW" if slow else "FAST")
    st("verified")
    if slow:
        p(f"v_mov_b32 v30, s{sTAG}\nv_mov_b32 v31, 0\ns_add_u32 s{t0}, s{t5}, {WS_FTR - WS_FT}\nbuffer_store_dword v30, v31, {WSR}, s{t0} offen sc1")
    def xy_offset(dst):
        p(f"""s_and_b32 s{t1}, s{sW}, 1
        s_lshl_b32 s{t0}, s{sA}, 2
        s_add_u32 s{t0}, s{t0}, s{t1}
        s_mul_i32 s{t0}, s{t0}, 20480
        s_mul_i32 s{t1}, s{sB}, 160
        s_add_u32 s{t0}, s{t0}, s{t1}
        s_lshr_b32 s{t1}, s{sW}, 1
        s_lshl_b32 s{t1}, s{t1}, 2
        s_add_u32 s{t0}, s{t0}, s{t1}
        v_mul_u32_u24 v{dst}, 1280, v{vN}
        v_lshl_add_u32 v{dst}, v{vG}, 3, v{dst}
        v_add_u32 v{dst}, s{t0}, v{dst}
        v_add_u32 v{dst+1}, 40960, v{dst}""")
    def x0_dma(e, base, gap=0, pitch=PRIV):
        e.group(lambda: (row_pattern(83, 30), p(f"""s_lshl_b32 s{t0}, s{sA}, 2
        s_and_b32 s{t1}, s{sW}, 1
        s_add_u32 s{t0}, s{t0}, s{t1}
        s_mul_i32 s{t0}, s{t0}, 20480
        s_mul_i32 s{t1}, s{sB}, 160
        s_add_u32 s{t6}, s{t0}, s{t1}
        s_mov_b32 s{R_H}, s{sQ}
        s_mov_b32 s{R_H+1}, s{sQ+1}
        s_mul_i32 s{t7}, s{sW}, {pitch}""")), 60)
        tk = p.tok()
        for q in range(8):
            s_, r = q >> 2, q & 3
            dma(e, 83, R_H, t6, 40960 * s_ + 6400 * r, t7, base + 2560 * s_ + 800 * r, 0x3ffff if r < 3 else 0, None if r < 3 else 0x3ff, " nt", tk)
            if gap: e.skip(gap)
        return tk
    def x0_read(e, tk, base, pitch=PRIV):
        e(f"""s_mul_i32 s{t0}, s{sW}, {pitch}
        s_lshr_b32 s{t1}, s{sP8}, 1
        s_add_u32 s{t0}, s{t0}, s{t1}
        s_add_u32 s{t0}, s{t0}, {base}
        v_mul_u32_u24 v30, 160, v{vN}
        v_lshl_add_u32 v30, v{vG}, 3, v30
        v_add_u32 v30, s{t0}, v30""")
        e.need(tk)
        for s in range(2):
            for dt in range(5): e(f"ds_read_b32 v{XP[s]+dt}, v30 offset:{2560*s + 32*dt}")
        e.skip(6)
    def flag_prewarm(e):
        if not slow:
            e(f"""v_and_b32 v30, 1, v0
            v_lshlrev_b32 v31, 7, v30
            v_add_u32 v31, s{sFXW}, v31
            v_lshlrev_b32 v30, 12, v30
            v_add_u32 v30, s{sFHW}, v30
            v_cmp_gt_u32 vcc, 2, v0
            v_cndmask_b32 v30, v30, v31, vcc
            v_and_b32 v31, 7, v0
            v_lshlrev_b32 v31, 7, v31
            v_bfe_u32 v32, v0, 3, 1
            v_mul_u32_u24 v32, 40960, v32
            v_add3_u32 v31, v31, v32, s{sXS}
            v_cmp_gt_u32 vcc, 32, v0
            v_cndmask_b32 v30, v31, v30, vcc
            s_sub_u32 s{t0}, s{sXW}, s{sXS}
            v_add_u32 v31, s{t0}, v31
            v_cmp_gt_u32 vcc, 48, v0
            v_cndmask_b32 v30, v31, v30, vcc
            v_and_b32 v31, 1, v0
            v_lshlrev_b32 v31, 7, v31
            v_bfe_u32 v32, v0, 1, 1
            v_lshl_add_u32 v31, v32, 13, v31
            s_add_u32 s{t0}, s{sSTW}, {ST_K}
            v_add_u32 v31, s{t0}, v31
            v_bfe_u32 v32, v0, 2, 4
            v_cmp_eq_u32 vcc, 1, v32
            v_cndmask_b32 v30, v30, v31, vcc
            v_subrev_u32 v31, {ST_K}, v31
            v_cmp_eq_u32 vcc, 2, v32
            v_cndmask_b32 v30, v30, v31, vcc
            buffer_load_dword v{JUNK}, v30, {WSR}, 0 offen sc1""")
    X32, G0 = [38, 48], [58, 220 - 220 + 58]
    G0 = [58, 74]
    def x0_stats(e, unp=True):
        for s in range(2):
            if unp: unpack(e, X32[s], XP[s], 5)
            e(f"s_add_u32 s{t0}, s{sSTW}, {8192*s}")
            stats_publish(e, X32[s], G0[0], t0, 0, slow)
    def x0_norm(e):
        for s in range(2):
            late_check(e, stats_loads(G0[s], (t5, t4)[s]), stats_tags(G0[s]), 32, False)
            stats_finish(e, G0[s], 30)
            e(f"v_mul_f32 v32, -v30, v31")
            for i in range(10): e(f"v_fma_f32 v{G0[s]+i}, v{X32[s]+i}, v31, v32")
    XN0 = G0
    def w_flag_addr(e, dst):
        e.group(lambda: p(f"""v_and_b32 v33, 31, v0
        s_mul_i32 s{t1}, s{sW}, 12
        v_add_u32 v{dst}, s{t1}, v33
        s_lshl_b32 s{t2}, s{sW}, 1
        s_add_u32 s{t2}, s{t2}, 36
        v_add_u32 v{dst+1}, s{t2}, v33
        v_cmp_gt_u32 vcc, 12, v33
        v_cndmask_b32 v{dst}, v{dst+1}, v{dst}, vcc
        s_add_u32 s{t2}, s{t2}, 13
        s_min_u32 s{t2}, s{t2}, 53
        v_min_u32 v{dst}, s{t2}, v{dst}
        s_mul_i32 s{t1}, s{sB}, {54*128}
        s_add_u32 s{t1}, s{t1}, {WS_FW2}
        v_lshl_add_u32 v{dst}, v{dst}, 7, s{t1}
        v_min_u32 v{dst+1}, 19, v0
        s_mul_i32 s{t1}, s{sN}, {20*128}
        s_add_u32 s{t1}, s{t1}, {WS_FW1}
        v_lshl_add_u32 v{dst+1}, v{dst+1}, 7, s{t1}
        s_lshr_b32 s{t1}, s{sP8}, 2
        v_xor_b32 v{vW2}, s{t1}, v0
        v_lshlrev_b32 v{vW2}, 4, v{vW2}
        s_mul_i32 s{sGOTA}, s{sN}, 143360
        s_add_u32 s{sGOTA}, s{sGOTA}, {WS_W1F}"""), 100)
    def w1_one(e, base_reg, idx):
        if opt("now1", 0): return
        def fn():
            p(f"s_add_u32 m0, s{base_reg}, {1024*idx}\ns_add_u32 s{t2}, s{sGOTA}, m0")
            return p(f"buffer_load_dwordx4 v{vL16}, {WSR}, s{t2} offen{' sc1' if opt('w1sc', 1) else ''} lds")
        e.group(fn, 12)
    vW2 = 35
    NW2E = 0
    def w2_loads(e, q0, q1, vaddr):
        if opt("now2", 0): return
        for q in range(q0, q1):
            sb, qq = (sW2B, q) if q < 60 else (sW2S, q - 60)
            if qq % 4 == 0 and qq > 0: e(f"s_add_u32 s{sb}, s{sb}, 4096")
            e(f"buffer_load_dwordx4 {w2reg(q)}, v{vaddr}, {WSR}, s{sb} offen offset:{1024*(qq%4)}{' sc1' if opt('w2sc', 1) else ''}")
    p(f"s_cmp_ge_u32 s{sSIG}, 20\ns_cbranch_scc1 {lab('W_PHASE')}")
    p(f"""s_lshl_b32 s{t0}, s{sJ}, 9
    s_add_u32 s{t0}, s{t0}, {WS_FTR if slow else WS_FT}""")
    for t in range(8):
        p(f"ds_read_b64 {vr(CA+4*t,2)}, v{vA} offset:{512*t}\nds_read_b64 {vr(CA+4*t+2,2)}, v{vA} offset:{512*t+8}")
    w_flag_addr(D, 90)
    spin_wait(f"buffer_load_dwordx2 v[30:31], v{vL8}, {WSR}, s{t0} offen sc1", [30, 31], False, nap=(1 if not slow else 4))
    st("T_seen")
    tokUin = p.tok()
    p(f"""s_lshl_b32 s{t0}, s{sG}, 2
    s_add_u32 s{t0}, s{t0}, s{sW}
    s_lshl_b32 s{t0}, s{t0}, 12
    s_add_u32 s{t0}, s{t0}, {WS_UR}
    s_add_u32 m0, s{t3}, {LU_OFF}""")
    for q in range(4):
        p(f"buffer_load_dwordx4 v{vL16}, {WSR}, s{t0} offen offset:{1024*q} sc1 lds", tok_wr=(tokUin if q == 3 else None))
    p.need(tokUin)
    st("u_in")
    for m in range(8):
        p(f"ds_read_b128 {vr(CB_+4*m,4)}, v{vB} offset:{3584-512*m}")
    beats = [[f"{MF} {vr(CACC+4*j,4)}, {vr(CAD,4)}, {vr(CB_+4*j,4)}, 0"] for j in range(8)]
    for p0 in range(8):
        buf = p0 & 1
        reads = []
        if p0 < 7:
            for t in range(8):
                bb, ba = CB_ + 32 * (1 - buf) + 4 * t, CA + 32 * (1 - buf) + 4 * t
                reads += [f"ds_read_b128 {vr(bb,4)}, v{vB} offset:{3584-512*t+64*(p0+1)}",
                          f"ds_read_b64 {vr(ba,2)}, v{vA} offset:{64*(p0+1)+512*t}",
                          f"ds_read_b64 {vr(ba+2,2)}, v{vA} offset:{64*(p0+1)+512*t+8}"]
        prs = sorted([(t, m) for t in range(8) for m in range(8) if t + m <= 7], key=lambda x: (max(x), x[0] + x[1]))
        for i, (t, m) in enumerate(prs):
            b = [f"{MF} {vr(CACC+4*(t+m),4)}, {vr(CA+32*buf+4*t,4)}, {vr(CB_+32*buf+4*m,4)}, {vr(CACC+4*(t+m),4)}"]
            if i >= 8 and reads: b.append(reads.pop(0))
            beats.append(b)
    F = Fill()
    gap = opt("cgap", 1)
    wfl1 = f"buffer_load_dword v34, v91, {WSR}, 0 offen sc1"
    wfl2 = f"buffer_load_dword v34, v90, {WSR}, 0 offen sc1"
    na = NW1A // 4
    ar = lambda b, n: f"a[{b}:{b+n-1}]"
    tkw = p.tok()
    F(f"s_mov_b32 s{R_W}, s{sW2}\ns_mov_b32 s{R_W+1}, s{sW2+1}\ns_mul_i32 s{t5}, s{sW}, {PRIV}")
    for q in range(8):
        dma(F, WV[1], R_W, WX[1][q >> 2], 5120 * (q & 3), t5, PRIV - 10240 + 640 * q, 0xff, None, " nt", tkw)
        F.skip(1)
    tkx = x0_dma(F, PRIV - 5120, 1)
    flag_prewarm(F)
    F.skip(opt("wf_at", 150))
    F(wfl1)
    YT = 156
    F3 = Fill()
    F3(f"""s_mul_i32 s{t3}, s{sW}, {CONV_PITCH}
    s_add_u32 s{t3}, s{t3}, {CONV_BASE}
    v_lshlrev_b32 v80, 5, v{vN}
    v_lshl_add_u32 v80, v{vG}, 3, v80
    v_add_u32 v80, s{t3}, v80
    v_bfe_u32 v81, v0, 2, 2
    v_mul_u32_u24 v81, {CONV_PITCH}, v81
    v_and_b32 v82, 3, v0
    v_lshl_add_u32 v81, v82, 3, v81
    v_lshl_add_u32 v81, v{vG}, 5, v81
    s_lshl_b32 s{t0}, s{sW}, 10
    s_add_u32 s{t0}, s{t0}, {CONV_BASE}
    v_add_u32 v81, s{t0}, v81
    v_mul_u32_u24 v82, 20480, v{vG}
    v_lshl_add_u32 v82, v{vN}, 3, v82
    s_mul_i32 s{t4}, s{sW}, {32*20480}
    s_lshl_b32 s{t1}, s{sG}, 7
    s_add_u32 s{t4}, s{t4}, s{t1}
    s_add_u32 s{t4}, s{t4}, {WS_YG}
    s_lshl_b32 s{t0}, s{sG}, 9
    s_lshl_b32 s{t1}, s{sW}, 7
    s_add_u32 s{t0}, s{t0}, s{t1}
    s_add_u32 s{t0}, s{t0}, {WS_FY}
    v_mov_b32 v83, s{t0}
    s_lshl_b32 s{t0}, s{sJ}, 5
    s_add_u32 s{t0}, s{t0}, s{sSIG}
    s_lshl_b32 s{t0}, s{t0}, 4
    s_lshr_b32 s{t1}, s{t1}, 5
    s_add_u32 s{t0}, s{t0}, s{t1}
    s_add_u32 s{t0}, s{t0}, {WS_FL}
    v_mov_b32 v78, s{t0}
    v_mov_b32 v79, s{sTAG}""")
    merge(beats[:275], F)
    st("conv_cut")
    merge(beats[275:], F3)
    st("conv_done")
    for j in range(8):
        p(f"v_cvt_pk_bf16_f32 v{92+2*j}, v{CACC+4*j}, v{CACC+4*j+1}\nv_cvt_pk_bf16_f32 v{93+2*j}, v{CACC+4*j+2}, v{CACC+4*j+3}")
        p(f"ds_write_b64 v80, {vr(92+2*j,2)} offset:{512*j}")
    p("s_waitcnt lgkmcnt(0)\ns_barrier")
    for q in range(8):
        p(f"ds_read_b64_tr_b16 {vr(YT+2*q,2)}, v81 offset:{128*q}")
    for q in range(8):
        p(f"buffer_store_dwordx2 {vr(YT+2*q,2)}, v82, {WSR}, s{t4} offen sc1")
        if q < 7: p(f"s_add_u32 s{t4}, s{t4}, 81920")
    p(f"buffer_store_dword v79, v78, {WSR}, 0 offen{sc}")
    st("y_iss")
    for ft in range(5):
        p(f"ds_read_b64_tr_b16 {vr(108+4*ft,2)}, v{WV[1]+1} offset:{32*ft}\nds_read_b64_tr_b16 {vr(110+4*ft,2)}, v{WV[1]+2} offset:{32*ft}")
    x0_read(D, tkx, PRIV - 5120)
    for s_ in range(2): unpack(D, X32[s_], XP[s_], 5)
    p(f"s_waitcnt vmcnt(0)\nbuffer_store_dword v79, v83, {WSR}, 0 offen sc1")
    st("y_st")
    x0_stats(D, False)
    tkw2 = p.tok()
    for ft in range(5):
        if ft == 4: p(f"s_add_u32 s{WU[1]}, s{WU[1]}, 4096")
        p(f"buffer_store_dwordx4 {vr(108+4*ft,4)}, v{vL16}, {WSR}, s{WU[1]} offen offset:{1024*(ft%4)} sc1", tok_wr=tkw2)
    NAC, NAI = opt("nac", 0), opt("nai", 19)
    late_check(D, wfl1, [34], 32, False)
    st("w_late")
    p(f"s_mul_i32 s{t5}, s{sW}, {PRIV}")
    for q in range(NAC): w1_one(D, t5, q)
    publish(D, tkw2, WU[1] + 1, 0, 30, True, wb=False)
    p(f"s_branch {lab('W1DONE')}")

    p.label(lab("W_PHASE"))
    w_flag_addr(D, 90)
    tkx = x0_dma(D, RED_BASE, pitch=5120)
    flag_prewarm(D)
    p("s_barrier")
    spin_wait(wfl1, [34], False)
    st("w_flags")
    nb_ = (140 - NW1A) // 4
    def w1_range(q0, q1):
        if q0 < na: p(f"s_mul_i32 s{t5}, s{sW}, {PRIV}")
        for q in range(q0, q1):
            if q >= na and (q == na or q == q0): p(f"s_mul_i32 s{t5}, s{sW}, {nb_*1024}\ns_add_u32 s{t5}, s{t5}, {NW1A*1024}")
            w1_one(D, t5, q if q < na else q - na)
    w1_range(0, 8)
    x0_read(D, tkx, RED_BASE, pitch=5120)
    x0_stats(D)
    w1_range(8, NAI)
    p(f"""s_sub_u32 s{t0}, s{sSIG}, 20
    s_lshl_b32 s{t0}, s{t0}, 2
    s_add_u32 s{t0}, s{t0}, s{sW}
    s_mul_i32 s{t0}, s{t0}, {2*8192}
    s_add_u32 s{t0}, s{t0}, {WS_W1F}
    s_cmp_lt_u32 s{t0}, {WS_W1F + 4*143360}
    s_cselect_b32 s{t0}, s{t0}, 0x70000000
    s_add_u32 s{t1}, s{t0}, 8192
    v_lshlrev_b32 v30, 7, v0
    v_min_u32 v31, 79, v0
    v_lshlrev_b32 v31, 7, v31
    s_mov_b32 s{t2}, {WS_FW1}""")
    if not slow:
        p(f"v_add_u32 v33, 8192, v31\nv_min_u32 v33, {79*128}, v33")
        spin_wait(f"buffer_load_dword v32, v31, {WSR}, s{t2} offen sc1\nbuffer_load_dword v34, v33, {WSR}, s{t2} offen sc1", [32, 34], False, nap=4)
        p(f"buffer_load_dword v{JUNK}, v30, {WSR}, s{t0} offen sc1\nbuffer_load_dword v{JUNK}, v30, {WSR}, s{t1} offen sc1")
    p(f"""s_cmp_lg_u32 s{sSIG}, 31
    s_cbranch_scc1 {lab('NOCB')}
    s_cmp_gt_u32 s{sW}, 1
    s_cbranch_scc1 {lab('NOCB')}
    s_lshl_b32 s{t5}, s{sJ}, 1
    s_add_u32 s{t5}, s{t5}, s{sW}
    v_min_u32 v30, 19, v0
    s_mul_i32 s{t1}, s{t5}, {20*128}
    v_lshl_add_u32 v30, v30, 7, s{t1}
    s_mov_b32 s{t0}, {WS_FW1}
    s_mul_i32 s{t2}, s{t5}, 7
    s_mul_i32 s{t3}, s{t5}, 6
    s_add_u32 s{t3}, s{t3}, 12
    s_cmp_ge_u32 s{t5}, 12
    s_cselect_b32 s{t2}, s{t3}, s{t2}
    s_lshl_b32 s{t2}, s{t2}, 5
    v_min_u32 v32, 27, v0
    v_lshl_add_u32 v33, v32, 3, s{t2}
    v_min_u32 v33, 3448, v33
    global_load_dwordx2 v[92:93], v33, {pair(sB1)}
    v_lshlrev_b32 v32, 4, v32""")
    spin_wait(f"buffer_load_dword v31, v30, {WSR}, s{t0} offen sc1", [31], False)
    p(f"s_mul_i32 s{t0}, s{t5}, 8960\ns_add_u32 s{t0}, s{t0}, {WS_PS}")
    for ks in range(20):
        if ks % 9 == 0 and ks: p(f"s_add_u32 s{t0}, s{t0}, {448*9}")
        p(f"buffer_load_dwordx4 {vr(100+4*ks,4)}, v32, {WSR}, s{t0} offen offset:{448*(ks%9)} sc1")
    unpack(D, 96, 92, 2)
    for i in range(4): p(f"v_mul_f32 v{96+i}, 0x3fb8aa3b, v{96+i}")
    for ks in range(1, 20):
        p(f"v_pk_add_f32 v[100:101], v[100:101], {vr(100+4*ks,2)}\nv_pk_add_f32 v[102:103], v[102:103], {vr(102+4*ks,2)}")
    p(f"""s_mul_i32 s{t0}, s{t5}, 896
    s_add_u32 s{t0}, s{t0}, {WS_CB}
    buffer_store_dwordx4 v[100:103], v32, {WSR}, s{t0} offen sc1
    buffer_store_dwordx4 v[96:99], v32, {WSR}, s{t0} offen offset:448 sc1
    s_lshl_b32 s{t0}, s{t5}, 7
    s_add_u32 s{t0}, s{t0}, {WS_FC}
    v_mov_b32 v30, s{sTAG}
    v_mov_b32 v31, 0
    s_waitcnt vmcnt(0)
    buffer_store_dword v30, v31, {WSR}, s{t0} offen sc1""")
    p.label(lab("NOCB"))
    p(f"""s_lshl_b32 s{t0}, s{sJ}, 9
    s_add_u32 s{t0}, s{t0}, {WS_FL}
    v_lshlrev_b32 v31, 2, v0""")
    spin_wait(f"buffer_load_dword v30, v31, {WSR}, s{t0} offen sc1", [30], False, nap=4)
    st("hint")
    p.label(lab("W1DONE"))
    st("w1_issued")
    if not slow:
        pass
    p(f"s_mov_b32 s{t5}, s{sSTO}\ns_add_u32 s{t4}, s{sSTO}, 8192")
    p(stats_loads(G0[0], t5)); p(stats_loads(G0[1], t4))
    x0_norm(D)
    st("xn")

    def gate(e, s, layer, X2, G, YF, XN=None, defer=False, pk=False):
        if XN is None:
            stats_finish(e, G, 30)
            e(f"v_mul_f32 v32, -v30, v31")
        unpack(e, YF, YP[s], 5)
        if XN is None:
            XN = G
            if pk:
                for i in range(0, 10, 2): e(f"v_pk_fma_f32 {vr(G+i,2)}, {vr(X2+i,2)}, v[30:31], v[32:33] op_sel:[0,1,0] op_sel_hi:[1,1,0]")
            else:
                for i in range(10): e(f"v_fma_f32 v{G+i}, v{X2+i}, v31, v32")
        if pk:
            for i in range(0, 10, 2): e(f"v_pk_fma_f32 {vr(X2+i,2)}, {vr(XN+i,2)}, {vr(YF+i,2)}, {vr(X2+i,2)}")
        else:
            for i in range(10): e(f"v_fmac_f32 v{X2+i}, v{XN+i}, v{YF+i}")
        pack(e, XP[s], X2, 5)
        off = 40960 * s + LX(XF_LAYER, layer)
        wt = sc
        e(f"s_add_u32 s{t0}, s{sXW}, {off}\ns_add_u32 s{t1}, s{sXS}, {off}")
        e(f"buffer_store_dwordx4 {vr(XP[s],4)}, v{vL16}, {WSR}, s{t0} offen{wt}\nbuffer_store_dword v{XP[s]+4}, v{vL16}, {WSR}, s{t1} offen{sc}")
        tok = p.tok()
        if isinstance(e, Fill):
            c, fn = e.items[-1]
            e.items[-1] = (c, lambda fn=fn: setattr(fn(), "token_wr", tok))
        else:
            p.items[-1].token_wr = tok
        def stats():
            e(f"s_add_u32 s{t1}, s{sSTW}, {ST_K + LX(2*ST_K, layer) + 8192*s}")
            stats_publish(e, X2, G, t1, 0, slow, TG(layer))
        if defer: return tok, stats
        n0 = len(e.items) if isinstance(e, Fill) else None
        stats()
        last = e.items.pop()
        e(f"s_add_u32 s{t0}, s{sFXW}, {LX(8192, layer) + 128*s}")
        publish(e, tok, t0, 0, 32, slow, TG(layer), wb=False)
        e.items.append(last)

    AR, BR, NA, NB, AG = 160, 208, 12, 6, 4
    def a1_read(fi):
        fi0 = fi % 140
        return f"ds_read_b128 {vr(AR+4*(fi%NA),4)}, v{vA1[fi0//56]} offset:{1024*(fi0%56)}"
    def a_wait(fi):
        last = AR + 4 * ((fi + AG - 1) % NA)
        p.need(("v", last))
    def b_load(ks):
        l = []
        if ks % 4 == 0 and ks: l.append(f"s_add_u32 s{sB0}, s{sB0}, 4096")
        l.append(f"buffer_load_dwordx4 {vr(BR+4*(ks%NB),4)}, v{vL16}, {WSR}, s{sB0} offen offset:{1024*(ks%4)} sc1")
        return l
    def fx_load(s, layer, dst):
        return f"buffer_load_dword v{dst}, v{dst+1}, {WSR}, s{t2} offen sc1"
    def fx_prep(e, s, layer, dst):
        e(f"v_lshlrev_b32 v{dst+1}, 2, v{vN}\ns_add_u32 s{t2}, s{sFXR}, {LX(8192, layer) + 128*s}")
    def b_start(s, layer):
        p(f"s_add_u32 s{sB0}, s{sXR}, {40960*s + LX(XF_LAYER, layer)}")
        for ks in range(NB):
            for l in b_load(ks): p(l)
    def a_seq_read(seq, i):
        fi0 = seq[i]
        return f"ds_read_b128 {vr(AR+4*(i%NA),4)}, v{vA1[fi0//56]} offset:{1024*(fi0%56)}"
    def a_seq_wait(i):
        p.need(("v", AR + 4 * (i % NA)))
    def row_scalars(e, s, layer, G, o=30):
        e(f"s_add_u32 s{t5}, s{sSTR}, {ST_K + LX(2*ST_K, layer) + 8192*s}")
        e(stats_loads(G, t5))
        e.skip(30)
        late_check(e, stats_loads(G, t5), stats_tags(G), 32, False, TG(layer))
        stats_finish(e, G, o)
        e(f"v_mul_f32 v{o+1}, 0x3fb8aa3b, v{o+1}\nv_mul_f32 v{o}, -v{o}, v{o+1}")
    def act(s, layer, ACC, T, O, mid=None, sc_=30, extra=None, extra_from=0, every=5, K=(32, 34), extra0=None):
        LN2, M2 = K
        off = 110592 * s + LX(HF_LAYER, layer)
        p(f"v_mov_b32 v{LN2}, 0x3f317218\nv_mov_b32 v{M2}, 0xbfb17218\ns_add_u32 s{t0}, s{sHW}, {off}\ns_add_u32 s{t1}, s{sHS}, {off}")
        tok = p.tok()
        extra = list(extra or [])
        cnt = [0]
        def q(l, on):
            p(l)
            cnt[0] += 1
            if on and extra and cnt[0] % every == 0:
                for x in extra.pop(0): p(x)
            elif not on and extra0 and cnt[0] > 20 and cnt[0] % 5 == 0:
                for x in extra0.pop(0): p(x)
        for pr in range(4):
            n = 4 if pr < 3 else 2
            on = pr >= extra_from
            acc, cs, bb, o = ACC + 8 * pr, CS + 8 * pr, BB + 8 * pr, O + 4 * (pr % 2)
            for i in range(n): q(f"v_pk_fma_f32 {vr(T+2*i,2)}, {vr(cs+2*i,2)}, {vr(sc_,2)}, {vr(bb+2*i,2)} op_sel_hi:[1,0,1]", on)
            for i in range(n): q(f"v_pk_fma_f32 {vr(acc+2*i,2)}, {vr(acc+2*i,2)}, {vr(sc_,2)}, {vr(T+2*i,2)} op_sel:[0,1,0] op_sel_hi:[1,1,1]", on)
            for i in range(2*n): q(f"v_exp_f32 v{T+i}, v{acc+i}", on)
            if pr == 0 and mid and "start" in mid: mid["start"]()
            for i in range(n): q(f"v_pk_add_f32 {vr(T+2*i,2)}, {vr(T+2*i,2)}, 1.0 op_sel_hi:[1,0]", on)
            for i in range(n): q(f"v_pk_fma_f32 {vr(T+2*i,2)}, {vr(T+2*i,2)}, {vr(T+2*i,2)}, 1.0 op_sel_hi:[1,1,0]", on)
            for i in range(2*n): q(f"v_rcp_f32 v{T+i}, v{T+i}", on)
            for i in range(n): q(f"v_pk_fma_f32 {vr(T+2*i,2)}, {vr(T+2*i,2)}, {vr(M2,2)}, {vr(LN2,2)} op_sel_hi:[1,0,0]", on)
            for i in range(n): q(f"v_pk_mul_f32 {vr(acc+2*i,2)}, {vr(acc+2*i,2)}, {vr(T+2*i,2)}", on)
            pack(D, o, acc, n)
            if pr < 3:
                p(f"buffer_store_dwordx4 {vr(o,4)}, v{vL16}, {WSR}, s{t0} offen offset:{1024*pr}{WT(layer)}", tok_wr=tok)
            else:
                if s == 0 and layer == 0:
                    p(f"s_cmp_ge_u32 s{sN}, 12\ns_cselect_b32 s{sHS}, 0x70000000, s{sHS}\ns_cselect_b32 s{t1}, 0x70000000, s{t1}")
                p(f"buffer_store_dwordx2 {vr(o,2)}, v{vL8}, {WSR}, s{t1} offen{WT(layer)}", tok_wr=tok)
            if pr == extra_from - 1 and extra0:
                for g in extra0:
                    for x in g: p(x)
                extra0.clear()
            if mid and pr in mid: mid[pr]()
        for g in extra:
            for x in g: p(x)
        return tok
    def row_scalars2(e, s, layer, o):
        G = 120
        ld = "\n".join(f"buffer_load_dwordx3 {vr((G, G+4, G+8, 32)[i],3)}, v{vL16}, {WSR}, s{t5} offen offset:{1024*i} sc1" for i in range(4))
        e(f"s_add_u32 s{t5}, s{sSTR}, {ST_K + LX(2*ST_K, layer) + 8192*s}")
        e(ld)
        e.skip(30)
        late_check(e, ld, [G + 2, G + 6, G + 10, 34], 32, False, TG(layer))
        e(f"v_add_f32 v{G+8}, v{G+8}, v32\nv_add_f32 v{G+9}, v{G+9}, v33")
        stats_finish(e, G, o, three=True)
        e(f"v_mul_f32 v{o+1}, 0x3fb8aa3b, v{o+1}\nv_mul_f32 v{o}, -v{o}, v{o+1}")
    def act_fill(e, s, layer, ACC, T, O, sc_):
        off = 110592 * s + LX(HF_LAYER, layer)
        e(f"v_mov_b32 v34, 0x3f317218\ns_add_u32 s{t0}, s{sHW}, {off}\ns_add_u32 s{t1}, s{sHS}, {off}")
        tok = p.tok()
        for ft in range(7):
            acc, cs, bb, o = ACC + 4 * ft, CS + 4 * ft, BB + 4 * ft, O + 4 * ((ft // 2) % 2) + 2 * (ft % 2)
            for i in range(4): e(f"v_fma_f32 v{T+i}, v{cs+i}, v{sc_}, v{bb+i}")
            for i in range(4): e(f"v_fma_f32 v{acc+i}, v{acc+i}, v{sc_+1}, v{T+i}")
            for i in range(4): e(f"v_exp_f32 v{T+i}, v{acc+i}")
            for i in range(4): e(f"v_add_f32 v{T+i}, 1.0, v{T+i}")
            for i in range(4): e(f"v_fma_f32 v{T+i}, v{T+i}, v{T+i}, 1.0")
            for i in range(4): e(f"v_rcp_f32 v{T+i}, v{T+i}")
            for i in range(4): e(f"v_fmamk_f32 v{T+i}, v{T+i}, 0xbfb17218, v34")
            for i in range(4): e(f"v_mul_f32 v{acc+i}, v{acc+i}, v{T+i}")
            pack(e, o, acc, 2)
            if ft % 2 == 1: e(f"buffer_store_dwordx4 {vr(o-2,4)}, v{vL16}, {WSR}, s{t0} offen offset:{1024*(ft//2)}{WT(layer)}", tok_wr=tok)
            if ft == 6: e(f"buffer_store_dwordx2 {vr(o,2)}, v{vL8}, {WSR}, s{t1} offen{WT(layer)}", tok_wr=tok)
        return tok
    def w2_groups(q0, q1):
        out = []
        if opt("now2", 0): return out
        for qq_ in range(q0, q1):
            sb, qq = (sW2B, qq_) if qq_ < 60 else (sW2S, qq_ - 60)
            g = []
            if qq % 4 == 0 and qq > 0: g.append(f"s_add_u32 s{sb}, s{sb}, 4096")
            g.append(f"buffer_load_dwordx4 {w2reg(qq_)}, v{vW2}, {WSR}, s{sb} offen offset:{1024*(qq%4)}{' sc1' if opt('w2sc', 1) else ''}")
            out.append(g)
        return out
    HR, NH = 132, 15
    def fh_prep(e, s, layer, dst):
        e(f"v_bfe_u32 v{dst+1}, v0, 1, 2\nv_lshlrev_b32 v{dst+1}, 4, v{dst+1}\nv_and_b32 v{dst}, 1, v0\nv_lshl_add_u32 v{dst+1}, v{dst}, 2, v{dst+1}")
        e(f"s_add_u32 s{t3}, s{sFHR}, {LX(8192, layer) + 4096*s}")
    def fh_load(dst): return f"buffer_load_dword v{dst}, v{dst+1}, {WSR}, s{t3} offen sc1"
    def h_load(idx, layer):
        s, r = divmod(idx, 28)
        second, kl = divmod(r, 14)
        b = HR + 4 * (idx % NH)
        l = []
        if kl == 0:
            off = 110592 * s + LX(HF_LAYER, layer)
            if second: l.append(f"s_add_u32 s{sH0}, s{sHR}, {off}")
            else: l += [f"s_add_u32 s{sH0}, s{sH1}, {off}"]
        elif kl < 12 and kl % 4 == 0: l.append(f"s_add_u32 s{sH0}, s{sH0}, 4096")
        if kl < 12:
            l.append(f"buffer_load_dwordx4 {vr(b,4)}, v{vL16}, {WSR}, s{sH0} offen offset:{1024*(kl%4)} sc1")
        else:
            if kl == 12: l.append(f"s_add_u32 s{sH0}, s{sH0}, s{sB1_}")
            o = (kl - 12) * 1024
            l += [f"buffer_load_dwordx2 {vr(b,2)}, v{vL8}, {WSR}, s{sH0} offen offset:{o} sc1",
                  f"buffer_load_dwordx2 {vr(b+2,2)}, v{vL8}, {WSR}, s{sH0} offen offset:{o+512} sc1"]
        return l
    def g2_beats(s, layer, A, OWN, lim):
        beats = []
        for second in range(2):
            acc = OWN if second else A
            for kl in range(14):
                idx = 28 * s + 14 * second + kl
                for dt in range(5):
                    b = [f"{MF} {vr(acc+4*dt,4)}, {w2reg(kl*5+dt)}, {vr(HR+4*(idx%NH),4)}, {'0' if kl == 0 else vr(acc+4*dt,4)}"]
                    if dt == 4 and idx + NH < lim: b += h_load(idx + NH, layer)
                    beats.append(b)
        return beats
    def emit_tail(F, rest):
        items = F.items
        nb = sum(1 for c, _ in items if c == "skip")
        paced = [b_[1:] for b_ in rest]
        head = [[b_[0]] for b_ in rest]
        merge(head[:nb * 2], F)
        late = [x for pc in paced[:nb * 2] for x in pc]
        for l in late: p(l)
        merge([h_ + pc for h_, pc in zip(head[nb * 2:], paced[nb * 2:])])
    def red_addr(e, dst, x, extra=0, sh=4):
        e(f"s_xor_b32 s{t4}, s{sW}, {x}\ns_mul_i32 s{t4}, s{t4}, 5120\ns_add_u32 s{t4}, s{t4}, {RED_BASE + extra}\nv_add_u32 v{dst}, s{t4}, v{vL16 if sh == 4 else vL8}")
    def bar(e, tok=None):
        if tok is not None: e.need(tok)
        e.group(lambda: p("s_barrier"), 4)
    def roundA(e, s, A):
        red_addr(e, 33, 0)
        tk = p.tok()
        for dt in range(5): e(f"ds_write_b128 v33, {vr(A+4*dt,4)} offset:{1024*dt}", tok_wr=tk)
        red_addr(e, 33, 1); red_addr(e, 34, 3, 8)
        e.skip(opt("bs1", 6))
        bar(e, tk)
        for dt in range(5): e(f"ds_read_b64 {vr(A+2*dt,2)}, v33 offset:{1024*dt}")
        for dt in range(5): e(f"ds_read_b64 {vr(A+10+2*dt,2)}, v34 offset:{1024*dt}")
        e.skip(opt("bs2", 8))
        for i in range(10): e(f"v_add_f32 v{A+i}, v{A+i}, v{A+10+i}")
        bar(e)
        unpack(e, A + 10, XP[s], 5)
        for i in range(10): e(f"v_add_f32 v{A+i}, v{A+i}, v{A+10+i}")
    def roundB(e, s, A, OWN, last=False):
        tk = p.tok()
        for dt in range(5): e(f"ds_write_b64 v{vRB}, {vr(OWN+4*dt+2,2)} offset:{512*dt}", tok_wr=tk)
        for dt in range(5): e(f"v_add_f32 v{A+2*dt}, v{A+2*dt}, v{OWN+4*dt}\nv_add_f32 v{A+2*dt+1}, v{A+2*dt+1}, v{OWN+4*dt+1}")
        e.skip(opt("bs3", 2))
        bar(e, tk)
        for dt in range(5): e(f"ds_read_b64 {vr(A+10+2*dt,2)}, v{vRB+1} offset:{512*dt}")
        e.skip(opt("bs4", 5))
        for i in range(10): e(f"v_add_f32 v{A+i}, v{A+i}, v{A+10+i}")
    def roundB_addr(e):
        red_addr(e, vRB, 0, sh=3); red_addr(e, vRB + 1, 2, sh=3)
    vRB = 34
    def epi_stats(e, s, A, OWN):
        e(f"s_add_u32 s{t0}, s{sSTW}, {LX(2*ST_K, 1) + 8192*s}")
        stats_publish(e, A, OWN, t0, 0, slow, sTAG2)
    def epi_gate(e, s, A, OWN, w1=20, w2=20):
        e.skip(w1)
        e(f"s_add_u32 s{t5}, s{sSTO}, {LX(2*ST_K, 1) + 8192*s}")
        e(stats_loads(OWN, t5))
        e.skip(w2)
        st(f"eg{s}_chk", e)
        late_check(e, stats_loads(OWN, t5), stats_tags(OWN), 32, False, sTAG2)
        st(f"eg{s}_ok", e)
        gate(e, s, 1, A, OWN, A + 10)
    def out_store(e, s, A):
        pack(e, A + 10, A, 5)
        for dt in range(5): e(f"global_store_dword v{30+s}, v{A+10+dt}, {pair(sOUT)} offset:{32*dt}")

    p(f"""s_xor_b32 s{t0}, s{sW}, 1
    s_and_b32 s{t0}, s{t0}, 1
    s_sub_u32 s{sH1}, s{sHR}, 55296
    s_add_u32 s{t1}, s{sHR}, 55296
    s_cmp_eq_u32 s{t0}, 1
    s_cselect_b32 s{sH1}, s{t1}, s{sH1}
    s_mul_i32 s{sB1_}, s{sW}, 10240
    s_sub_u32 s{sB1_}, {49152 - 8192}, s{sB1_}
    s_cmp_eq_u32 s{sW}, 3
    s_cselect_b32 s{sB1_}, -8192, s{sB1_}
    s_lshl_b32 s{t0}, s{sA}, 2
    s_and_b32 s{t1}, s{sW}, 1
    s_add_u32 s{t0}, s{t0}, s{t1}
    s_lshl_b32 s{t0}, s{t0}, 3
    s_add_u32 s{t0}, s{t0}, s{sB}
    s_mul_i32 s{t4}, s{t0}, 2560
    s_lshr_b32 s{t1}, s{sP8}, 1
    s_add_u32 s{t4}, s{t4}, s{t1}
    s_add_u32 s{t4}, s{t4}, {WS_YG}
    s_add_u32 s{t5}, s{t4}, 40960
    v_min_u32 v31, 19, v0
    v_lshlrev_b32 v31, 9, v31
    s_mul_i32 s{t0}, s{sB}, 10240
    s_lshr_b32 s{t1}, s{sA}, 3
    s_lshl_b32 s{t1}, s{t1}, 7
    s_add_u32 s{t0}, s{t0}, s{t1}
    s_add_u32 s{t0}, s{t0}, {WS_FY}""")
    spin_wait(f"buffer_load_dword v30, v31, {WSR}, s{t0} offen sc1", [30], False)
    st("y_flag")
    for s in range(2):
        for t in range(5):
            p(f"buffer_load_dword v{YP[s]+t}, v{vL8}, {WSR}, s{(t4, t5)[s]} offen offset:{512*t} sc1")
    tka, sta = gate(D, 0, 0, X32[0], 112, 102, XN0[0], defer=True, pk=True)
    tkb, stb = gate(D, 1, 0, X32[1], 152, 142, XN0[1], defer=True, pk=True)
    sta()
    publish(D, tka, sFXW, 0, 32, slow, wb=False)
    publish(D, tkb, sFXW, 128, 32, slow, wb=False)
    stb()
    st('x_pub1')
    if not slow and HPW:
        p(f"""s_sub_u32 s{t2}, s{sHS}, 3072
        s_sub_u32 s{t3}, s{sHW}, 3072
        s_cmp_ge_u32 s{sN}, 12
        s_cselect_b32 s{t2}, s{t3}, s{t2}
        v_and_b32 v33, 31, v0
        v_min_u32 v33, 27, v33
        v_lshlrev_b32 v30, 7, v33
        v_add_u32 v31, s{sHW}, v30
        v_add_u32 v32, s{t2}, v30
        v_cmp_gt_u32 vcc, 24, v33
        v_cndmask_b32 v31, v32, v31, vcc
        v_lshrrev_b32 v32, 5, v0
        v_mul_u32_u24 v32, 110592, v32
        v_add_u32 v126, v31, v32""")
        if HPW == 1: p(f"buffer_load_dword v{JUNK}, v126, {WSR}, 0 offen sc1")
    p(f"s_cmp_ge_u32 s{sSIG}, 20\ns_cbranch_scc1 {lab('RESTI')}")
    w1_range(NAC, na)
    p("s_barrier")
    w1_range(na, 35)
    p(f"s_branch {lab('HAVEB')}")
    p.label(lab("RESTI"))
    w1_range(NAI, 35)
    p.label(lab("HAVEB"))
    p("s_waitcnt vmcnt(0)")
    st("w1_in")
    p("s_barrier")
    EX, EY = (192, 212), (92, 112)
    ACCX, ACCY = 132, 92
    class Ring:
        def __init__(self, slots): self.free, self.q, self.at = list(slots), [], {}
        def push(self, key, fn): self.q.append((key, fn))
        def issue(self, n=1):
            out = []
            while n and self.q and self.free:
                key, fn = self.q.pop(0)
                self.at[key] = self.free.pop(0)
                out += fn(self.at[key]); n -= 1
            return out
        def release(self, key): self.free.append(self.at[key])
    def x_load(s_, ks, base):
        sb = (sB0, sXY)[s_]
        def fn(r):
            l = []
            if ks == 0: l.append(f"s_add_u32 s{sb}, s{sXR}, {base + 40960*s_}")
            elif ks % 4 == 0: l.append(f"s_add_u32 s{sb}, s{sb}, 4096")
            return l + [f"buffer_load_dwordx4 {vr(r,4)}, v{vL16}, {WSR}, s{sb} offen offset:{1024*(ks%4)} sc1"]
        return fn
    def hq_load(idx, layer):
        def fn(r):
            old_ = f"v[{HR+4*(idx%NH)}:"
            out = []
            for l in h_load(idx, layer):
                b0 = HR + 4 * (idx % NH)
                l = l.replace(vr(b0, 4), vr(r, 4)).replace(vr(b0, 2) + ",", "@A,").replace(vr(b0 + 2, 2) + ",", "@B,")
                out.append(l.replace("@A", vr(r, 2)).replace("@B", vr(r + 2, 2)))
            return out
        return fn
    carry = None
    for layer in range(2):
        L = f"L{layer}_"
        if layer == 1 and opt("rerun", 0) and not slow:
            p(f"s_mov_b32 s{sE}, 0")
            p.label("RERUN")
            st("L1_head")
        seq = list(range(140)) * (1 + layer)
        for i in range(0 if layer == 0 else APRE, NA): p(a_seq_read(seq, i))
        def attach(b, i):
            if i + NA < len(seq): b.append(a_seq_read(seq, i + NA))
            if i % AG == AG - 1 and i + 1 < len(seq): b.append(lambda i=i: a_seq_wait(min(i + AG, len(seq) - 1)))
        xoff = LX(XF_LAYER, layer)
        H = Ring(range(HR, HR + 4 * NH, 4))
        for idx in range(28): H.push(idx, hq_load(idx, layer))
        if layer == 0:
            R = Ring(range(BR, BR + 4 * NB, 4))
            p(f"v_and_b32 v31, 16, v0\nv_lshlrev_b32 v31, 3, v31\nv_lshl_add_u32 v31, v{vN}, 2, v31\ns_mov_b32 s{t2}, s{sFXR}")
            spin_wait(fx_load(0, layer, 30), [30], False)
            st(L + "x_seen")
            for ks in range(20):
                for s_ in (1, 0): R.push((s_, ks), x_load(s_, ks, xoff))
            for l in R.issue(NB): p(l)
            p(f"""s_or_b32 s{t0}, s2, s{sW}
            s_cmp_eq_u32 s{t0}, 0
            s_cselect_b32 s{t0}, 0, 0x70000000
            v_mov_b32 v33, s{sTAG}
            v_mov_b32 v34, 0
            buffer_store_dword v33, v34, {WSR}, s{t0} offen sc1""")
            beats = []
            for ks in range(20):
                for ft in range(7):
                    i = ks * 7 + ft
                    for s_ in (1, 0):
                        acc = (ACCX, ACCY)[s_] + 4 * ft
                        b = [f"{MF} {vr(acc,4)}, {vr(AR+4*(i%NA),4)}, {vr(R.at[(s_, ks)],4)}, {'0' if ks == 0 else vr(acc,4)}"]
                        if s_ == 0: attach(b, i)
                        if ft == 6: R.release((s_, ks))
                        b += R.issue(1)
                        beats.append(b)
            F = Fill()
            F(f"s_lshl_b32 s{t3}, s{sN}, 7\ns_add_u32 s{t3}, s{t3}, {WS_FC}\nv_mov_b32 v121, v90\nv_writelane_b32 v121, s{t3}, 63\ns_mov_b32 s{t3}, 0")
            F(fh_load(120))
            st("s12_a", F)
            row_scalars(F, 0, layer, 36)
            st("s12_b", F)
            late_check(F, fh_load(120), [120], 124, False)
            st("s12_c", F)
            row_scalars(F, 1, layer, 36, 122)
            st("s12_d", F)
            F(f"s_mul_i32 s{t0}, s{sN}, 896\ns_add_u32 s{t0}, s{t0}, {WS_CB}\nv_lshlrev_b32 v124, 4, v{vG}")
            for i in range(14):
                F(f"buffer_load_dwordx4 {vr(CS+4*i,4)}, v124, {WSR}, s{t0} offen offset:{64*i} sc1")
            st("s12_e", F)
            if not slow and HPW == 2: F(f"buffer_load_dword v{JUNK}, v126, {WSR}, 0 offen sc1")
            N12 = opt("n12", 40)
            for q in range(NW2E, N12):
                w2_loads(F, q, q + 1, vW2)
                F.skip(opt("w2gap", 5))
            merge(beats, F)
            st(L + "S12")
            NA1 = max(N12, opt("na1", 70))
            NA2 = max(NA1, opt("na2", 70))
            tokx = act(0, layer, ACCX, 192, 200, extra=w2_groups(N12, NA1), every=opt("ev1", 3), K=(208, 210))
            p(f"s_add_u32 s{t4}, s{sFHW}, {LX(8192, layer)}")
            fh_prep(D, 0, layer, 120)
            st(L + "A1")
            tokh = act(1, layer, ACCY, 192, 200, sc_=122, K=(208, 210),
                       mid={"start": lambda: publish(D, tokx, t4, 0, 124, slow, TG(layer), wb=False), 1: lambda: p(fh_load(120)),
                            2: lambda: late_check(D, fh_load(120), [120], 124, False, TG(layer))},
                       extra=[H.issue(1) for _ in range(opt("hpre", 6))], extra_from=3, every=3, extra0=w2_groups(NA1, NA2))
        else:
            R = carry
            def g1_pass(s_, acc0):
                beats = []
                for ks in range(20):
                    for ft in range(7):
                        i = 140 * s_ + ks * 7 + ft
                        b = [f"{MF} {vr(acc0+4*ft,4)}, {vr(AR+4*(i%NA),4)}, {vr(R.at[(s_, ks)],4)}, {'0' if ks == 0 else vr(acc0+4*ft,4)}"]
                        attach(b, i)
                        if ft == 6:
                            R.release((s_, ks)); b += R.issue(1)
                        beats.append(b)
                return beats
            F = Fill()
            roundB(F, 1, *EY)
            epi_stats(F, 1, *EY)
            bar(F)
            st(L + "st_pub", F)
            epi_gate(F, 1, *EY, w1=opt("e1a", 6), w2=opt("e1b", 12))
            st(L + "yY_pub", F)
            row_scalars(F, 0, layer, 92)
            merge(g1_pass(0, ACCX), F, rate=opt("r1", 12))
            st(L + "S1")
            fx_prep(D, 1, layer, 120)
            p(fx_load(1, layer, 120))
            for ks in range(20): R.push((1, ks), x_load(1, ks, xoff))
            tokx = act(0, layer, ACCX, 92, 100, K=(108, 110), mid={opt("a1c", 1): lambda: late_check(D, fx_load(1, layer, 120), [120], 122, False, TG(layer))},
                       extra=[R.issue(1) for _ in range(NB)], extra_from=opt("a1c", 1) + 1, every=5)
            st(L + "A1")
            F = Fill()
            F.skip(8)
            F(f"s_add_u32 s{t4}, s{sFHW}, {LX(8192, layer)}")
            publish(F, tokx, t4, 0, 32, slow, TG(layer), wb=False)
            row_scalars(F, 1, layer, 120)
            fh_prep(F, 0, layer, 120)
            F(fh_load(120))
            merge(g1_pass(1, ACCY), F)
            st(L + "S2")
            late_check(D, fh_load(120), [120], 124, False, TG(layer))
            tokh = act(1, layer, ACCY, 192, 200, K=(208, 210), extra=[H.issue(1) for _ in range(NH)], every=8)
        st(L + "A2")
        c3 = opt("c3", 66)
        bts = []
        KOUT = layer == 0 and opt("kout", 0)
        late_w2 = w2_groups(NA2, 70) if layer == 0 else []
        for s_ in range(2):
            A_, OWN_ = (EX, EY)[s_]
            order = [(second, kl) for second in range(2) for kl in range(14)]
            if KOUT and s_ == 0: order = [(second, kl) for kl in range(14) for second in range(2)]
            for second, kl in order:
                acc = OWN_ if second else A_
                idx = 28 * s_ + 14 * second + kl
                for dt in range(5):
                    nb_i = len(bts)
                    b = [f"{MF} {vr(acc+4*dt,4)}, {w2reg(kl*5+dt)}, {vr(H.at[idx],4)}, {'0' if kl == 0 else vr(acc+4*dt,4)}"]
                    if nb_i == c3:
                        b.append(lambda: late_check(D, fh_load(120), [120], 122, False, TG(layer)))
                        for i2 in range(28, 56): H.push(i2, hq_load(i2, layer))
                    if dt == 4: H.release(idx)
                    if nb_i % 3 == 0 or dt == 4: b += H.issue(1)
                    if late_w2 and nb_i % 3 == 1: b += late_w2.pop(0)
                    bts.append(b)
        F = Fill()
        F.skip(opt("p3", 6))
        F(f"s_add_u32 s{t4}, s{sFHW}, {LX(8192, layer) + 4096}")
        publish(F, tokh, t4, 0, 32, slow, TG(layer), wb=False)
        fh_prep(F, 1, layer, 120)
        F.skip(c3 - opt("p3", 6) - 30)
        F(fh_load(120))
        merge(bts[:72], F)
        st(L + "S3a")
        F = Fill()
        roundA(F, 0, EX[0])
        roundB_addr(F)
        merge(bts[72:142], F)
        st(L + "S3")
        F = Fill()
        roundB(F, 0, *EX)
        F2 = Fill()
        if layer == 0:
            epi_stats(F, 0, *EX)
            bar(F)
            epi_gate(F, 0, *EX, w1=opt("e4a", 6), w2=opt("e4b", 12))
            st(L + "xX_pub", F)
            roundA(F2, 1, EY[0])
            roundB_addr(F2)
            carry = Ring(range(BR, BR + 4 * NB, 4))
            for ks in range(20): carry.push((0, ks), x_load(0, ks, LX(XF_LAYER, 1)))
            APRE = 0
            fx_prep(F2, 0, 1, 30)
            F2(fx_load(0, 1, 30))
            F2.skip(opt("e4c", 12))
            late_check(F2, fx_load(0, 1, 30), [30], 32, False, TG(1))
            st("L1_xX_seen", F2)
            for _ in range(NB):
                for l in carry.issue(1): F2(l)
        else:
            bar(F)
            F.group(lambda: xy_offset(30), 40)
            roundA(F2, 1, EY[0])
            roundB_addr(F2)
            out_store(F2, 0, EX[0])
        merge2(bts[142:], F, F2, 70, opt("r4", 12))
        st(L + "S4")
    if opt("rerun", 0) and not slow:
        p(f"s_cmp_lg_u32 s{sE}, 0\ns_cbranch_scc1 RERUN_DONE\ns_mov_b32 s{sE}, 1\nv_mov_b32 v{JUNK}, v{vSTAMP}\ns_branch RERUN")
        p.label("RERUN_DONE")
    roundB(D, 1, *EY)
    out_store(D, 1, EY[0])
    if STAMPS and not slow:
        stamp("end")
        p(f"""s_lshl_b32 s{t0}, s2, 2
        s_add_u32 s{t0}, s{t0}, s{sW}
        s_lshl_b32 s{t0}, s{t0}, 8
        s_add_u32 s{t0}, s{t0}, {WS_STAMP}
        v_lshlrev_b32 v30, 2, v0
        buffer_store_dword v{vSTAMP if opt("rerun", 0) != 2 else JUNK}, v30, {WSR}, s{t0} offen""")
    p("s_endpgm")
    while tail_code: tail_code.pop(0)()

body(False)
body(True)
p.label("END")
p("s_endpgm")
p.raw('.section .rodata,"a"\n.p2align 6')
p.raw(f".amdhsa_kernel {KN}")
for l in ["next_free_vgpr 512", "next_free_sgpr 102", "accum_offset 256", "group_segment_fixed_size 0", "kernarg_size 104",
          "user_sgpr_count 2", "user_sgpr_kernarg_segment_ptr 1", "system_sgpr_workgroup_id_x 1", "float_denorm_mode_32 3"]:
    p.raw("  .amdhsa_" + l)
p.raw(".end_amdhsa_kernel")
out = [a for a in ARGS if not a.startswith("--")][0]
open(out, "w").write(p.finalize())
if STAMPS: open(out + ".stamps", "w").write("\n".join(stamp_names))
```

```python
import sys
from gasm import Prog, Ins

NAME = "interleave_layers__ssm_conv_h3__dense_activation_mish__prompt"
ARGS = sys.argv[1:]
STAMPS = "--stamps" in ARGS or "--cstamps" in ARGS
STAMP_INS = "s_memtime" if "--cstamps" in ARGS else "s_memrealtime"
FORCE_SLOW = "--slow" in ARGS
def opt(name, default):
    for a in ARGS:
        if a.startswith(f"--{name}="): return type(default)(a.split("=", 1)[1])
    return default
SPIN = 400000
NT = lambda n, d: ' nt' if opt('nt_' + n, d) else ''

WS_EPOCH, WS_FT, WS_FC = 0, 0x1000, 0x2000
WS_FW1, WS_FW2 = 0x60000, 0x6A000
WS_FTR = 0x11000
WS_XC = 0x36000
WS_FL = 0x10000
WS_FY, WS_FX, WS_FH, WS_CB, WS_PS = 0x40000, 0x4000, 0x8000, 0xC000, 0x12000
WS_ST, WS_UR, WS_YG, WS_XF, WS_HF, WS_W1F, WS_W2F, WS_STAMP = 0x100000, 0x300000, 0x600000, 0xB00000, 0x1000000, 0x1E00000, 0x2100000, 0x3000000
XF_LAYER, HF_LAYER, ST_K = 128 * 20 * 1024, 128 * 54 * 1024, 128 * 4096

LDS_BYTES = 163840
CONV_PITCH, HC_PITCH = 21312, 4160
LU_OFF = 4 * HC_PITCH
CONV_BASE = LDS_BYTES - 4 * CONV_PITCH
T_BASE = 0
TW_PITCH = 6400
UT_BASE = 4 * TW_PITCH
WST_BASE = CONV_BASE
RED_BASE = 143360
NW1A = 76

sQ, sK, sV, sSK, sH, sD, sBX, sW1, sB1, sW2, sOUT, sDBG, sWS = [4 + 2 * i for i in range(13)]
R_WS, R_K, R_V, R_H, R_W = 32, 36, 40, 44, 48
sJ, sSIG, sW, sA, sB, sM, sN, sTAG, sE, sDVAL, sXV, sSPIN = range(52, 64)
t0, t1, t2, t3, t4, t5, t6, t7 = range(64, 72)
sSTAMP = 72
WU = [98, 98]
sXR, sXW, sXS, sHW, sHS, sHR, sFXR, sFXW, sFHR, sFHW, sSTW, sSTO, sSTR, sP8, sW2B, sW2S, sGOTA = range(76, 93)
sB0, sB1_, sH0, sH1 = 93, 94, 95, 96
sTAG2 = 97
sXY = 98
sG = 3
srd = lambda r: f"s[{r}:{r+3}]"
pair = lambda r: f"s[{r}:{r+1}]"
WSR = srd(R_WS)

vL16, vN, vG, vL8, vSTAMP = 1, 2, 3, 4, 5
XP = [6, 12]
YP = [17, 22]
JUNK = 27
vA1 = [vL16, 28, 29]
CS, BB = 36, 64
vr = lambda b, n: f"v[{b}:{b+n-1}]" if n > 1 else f"v{b}"
def w2reg(q):
    return f"a[{4*q}:{4*q+3}]" if q < 64 else f"v[{232+4*(q-64)}:{232+4*(q-64)+3}]"
MF = "v_mfma_f32_16x16x32_bf16"

p = Prog()
p.junk = {('v', JUNK)}
stamp_names = []
tail_code = []

class Fill:
    def __init__(self): self.items = []
    def __call__(self, s, tok_wr=None):
        ls = [l.strip() for l in s.strip("\n").split("\n") if l.strip() and not l.strip().startswith(";")]
        for i, l in enumerate(ls):
            c = 8 if l.split()[0] in ("v_exp_f32", "v_rcp_f32", "v_sqrt_f32", "v_rsq_f32") else 4
            self.items.append((c, (lambda l=l, t=(tok_wr if i == len(ls) - 1 else None): p(l, tok_wr=t))))
    def group(self, fn, cost): self.items.append((cost, fn))
    def skip(self, n): self.items.append(("skip", n))
    def need(self, *t): self.items.append((4, lambda: p.need(*t)))
    def L(self, x): return p.L(x)

class Direct:
    def __call__(self, s, tok_wr=None): p(s, tok_wr=tok_wr)
    def group(self, fn, cost): fn()
    def skip(self, n): pass
    def need(self, *t): p.need(*t)
D = Direct()

def merge(beats, fill=None, rate=8, flush=True):
    items = list(fill.items) if fill else []
    credit = 0
    hold = 0
    for b in beats:
        for x in b:
            if callable(x): x()
            else: p(x)
        credit = min(credit, 0) + rate - 4 * (len(b) - 1)
        if hold > 0:
            hold -= 1; continue
        while items and credit > 0:
            c, fn = items[0]
            if c == "skip":
                items.pop(0); hold = fn; break
            if c > credit and credit < 4: break
            items.pop(0); fn(); credit -= c
    if not flush: return items
    for c, fn in items:
        if c != "skip": fn()

def merge2(beats, F, F2, at, rate):
    n = len(F.items)
    items = list(F.items)
    class R: pass
    r = R(); r.items = items
    left = merge(beats[:at], r, rate, flush=False)
    r2 = R(); r2.items = left + list(F2.items)
    merge(beats[at:], r2, rate if left else 8)

DBG = opt("dbg", "").split(",") if opt("dbg", "") else None
def stamp(name, e=None):
    if not STAMPS: return
    if DBG is not None:
        if name not in DBG: return
        i = DBG.index(name)
        fn = lambda: p(f"{STAMP_INS} {pair(sSTAMP)}\ns_waitcnt lgkmcnt(0)\nv_writelane_b32 v{vSTAMP}, s{sSTAMP}, {i}")
        (e or D).group(fn, 12)
        return
    if name not in stamp_names: stamp_names.append(name)
    i = stamp_names.index(name)
    assert i < 64
    fn = lambda: p(f"{STAMP_INS} {pair(sSTAMP)}\ns_waitcnt lgkmcnt(0)\nv_writelane_b32 v{vSTAMP}, s{sSTAMP}, {i}")
    (e or D).group(fn, 12)

def spin_wait(load_lines, checks, slow_inv, tag=None, nap=None):
    L, L2, X = p.L("POLL"), p.L("POLLB"), p.L("POLLX")
    nap = opt("nap", 2) if nap is None else nap
    p(f"s_mov_b32 s{sSPIN}, 0\ns_branch {L2}")
    p.label(L)
    if nap: p(f"s_sleep {nap}")
    p(f"s_add_u32 s{sSPIN}, s{sSPIN}, 1\ns_cmp_gt_u32 s{sSPIN}, {SPIN}\ns_cbranch_scc1 {X}")
    p.label(L2)
    p(load_lines)
    p("s_waitcnt vmcnt(0)")
    for r in checks:
        p(f"v_cmp_ne_u32 vcc, s{tag or sTAG}, v{r}\ns_cbranch_vccnz {L}")
    p.label(X)
    if slow_inv: p("buffer_inv sc1\ns_waitcnt vmcnt(0)")

def late_check(e, load_lines, checks, tmp, slow_inv, tag=None):
    TG = tag or sTAG
    def fn():
        S, B = p.L("SPIN"), p.L("BACK")
        if len(checks) == 1:
            p(f"v_cmp_ne_u32 vcc, s{TG}, v{checks[0]}")
        else:
            assert len(checks) == 4
            a_, b_, c_, d_ = checks
            p(f"""v_xor_b32 v{a_}, v{a_}, v{b_}
            v_xor_b32 v{c_}, v{c_}, v{d_}
            v_xor_b32 v{b_}, v{b_}, v{d_}
            v_xor_b32 v{d_}, s{TG}, v{d_}
            v_or3_b32 v{a_}, v{a_}, v{b_}, v{c_}
            v_or_b32 v{a_}, v{a_}, v{d_}
            v_cmp_ne_u32 vcc, 0, v{a_}""")
        p(f"s_cbranch_vccnz {S}")
        p.label(B)
        if slow_inv: p("buffer_inv sc1\ns_waitcnt vmcnt(0)")
        def tail():
            p.label(S)
            spin_wait(load_lines, checks, False, TG)
            p(f"s_branch {B}")
        tail_code.append(tail)
    e.group(fn, 8 if len(checks) == 1 else 32)

def unpack(e, dst, src, n):
    for i in range(n):
        e(f"v_lshlrev_b32 v{dst+2*i}, 16, v{src+i}\nv_and_b32 v{dst+2*i+1}, 0xffff0000, v{src+i}")
def pack(e, dst, src, n):
    for i in range(n):
        e(f"v_cvt_pk_bf16_f32 v{dst+i}, v{src+2*i}, v{src+2*i+1}")
def bf16r(e, r):
    e(f"v_cvt_pk_bf16_f32 v{r}, v{r}, v{r}\nv_lshlrev_b32 v{r}, 16, v{r}")

def stats_publish(e, x, g, soff, imm, slow, tag=None):
    e(f"v_add_f32 v{g}, v{x}, v{x+1}\nv_mul_f32 v{g+1}, v{x}, v{x}\nv_mul_f32 v{g+3}, v{x+1}, v{x+1}\nv_add_f32 v{g+2}, v{x+2}, v{x+3}")
    for i in range(2, 10, 2):
        e(f"v_fmac_f32 v{g+1}, v{x+i}, v{x+i}\nv_fmac_f32 v{g+3}, v{x+i+1}, v{x+i+1}")
        if i >= 4: e(f"v_add_f32 v{g}, v{g}, v{x+i}\nv_add_f32 v{g+2}, v{g+2}, v{x+i+1}")
    e(f"v_add_f32 v{g}, v{g}, v{g+2}\nv_add_f32 v{g+1}, v{g+1}, v{g+3}\nv_lshlrev_b32 v{g+3}, 4, v{vN}\nv_mov_b32 v{g+2}, s{tag or sTAG}")
    e(f"v_permlane16_swap_b32 v{g}, v{g+1}\nv_add_f32 v{g}, v{g}, v{g+1}\nv_mov_b32 v{g+1}, v{g}")
    e(f"v_permlane32_swap_b32 v{g}, v{g+1}\nv_add_f32 v{g}, v{g}, v{g+1}\nv_mov_b32 v{g+1}, v{g}")
    e(f"v_permlane16_swap_b32 v{g}, v{g+1}")
    e(f"buffer_store_dwordx3 {vr(g,3)}, v{g+3}, {WSR}, s{soff} offen offset:{imm}{' sc1' if slow else ''}")

def stats_loads(G, soff):
    return "\n".join(f"buffer_load_dwordx3 {vr(G+4*i,3)}, v{vL16}, {WSR}, s{soff} offen offset:{1024*i} sc1" for i in range(4))
def stats_tags(G): return [G + 2, G + 6, G + 10, G + 14]

def stats_finish(e, G, o, three=False):
    e(f"v_add_f32 v{G}, v{G}, v{G+4}\nv_add_f32 v{G+1}, v{G+1}, v{G+5}")
    if not three: e(f"v_add_f32 v{G+8}, v{G+8}, v{G+12}\nv_add_f32 v{G+9}, v{G+9}, v{G+13}")
    e(f"v_add_f32 v{G}, v{G}, v{G+8}\nv_add_f32 v{G+1}, v{G+1}, v{G+9}")
    e(f"v_permlane16_swap_b32 v{G}, v{G+1}\nv_add_f32 v{G}, v{G}, v{G+1}\nv_mov_b32 v{G+1}, v{G}")
    e(f"v_permlane32_swap_b32 v{G}, v{G+1}\nv_add_f32 v{G}, v{G}, v{G+1}\nv_mul_f32 v{o}, 0x3acccccd, v{G}\nv_mul_f32 v{o+1}, 0x3acccccd, v{G}")
    e(f"v_permlane16_swap_b32 v{o}, v{o+1}")
    s, q = o, o + 1
    e(f"v_fma_f32 v{q}, -v{s}, v{s}, v{q}\nv_max_f32 v{q}, 0, v{q}")
    e(f"v_cvt_pk_bf16_f32 v{q}, v{q}, v{s}\nv_and_b32 v{s}, 0xffff0000, v{q}\nv_lshlrev_b32 v{q}, 16, v{q}")
    e(f"v_add_f32 v{q}, 0x3727c5ac, v{q}")
    bf16r(e, q)
    e(f"v_sqrt_f32 v{q}, v{q}")
    bf16r(e, q)
    e(f"v_rcp_f32 v{q}, v{q}")

def publish(e, tok, soff, imm, tmp, slow, tag=None, wb=True):
    e(f"v_mov_b32 v{tmp}, s{tag or sTAG}\nv_mov_b32 v{tmp+1}, 0")
    e.need(tok)
    if slow and wb:
        e.group(lambda: p(f"s_waitcnt vmcnt(0)\nbuffer_wbl2 sc1\ns_waitcnt vmcnt(0)"), 8)
    e(f"buffer_store_dword v{tmp}, v{tmp+1}, {WSR}, s{soff} offen offset:{imm}{' sc1' if slow else ''}")

vHOFF = 35
HD = 170
def h_loads():
    for q in range(5):
        if q == 4: p("s_mov_b64 exec, 15")
        p(f"buffer_load_dwordx4 {vr(HD+6*q,4)}, v{vHOFF}, {srd(R_H)}, 0 offen nt")
        if q < 4: p(f"v_add_u32 v{vHOFF}, 1024, v{vHOFF}")
    p("s_mov_b64 exec, -1")
def h_build(first):
    if first is None: return h_rows(range(HB_DONE[0], 5))
    HB_DONE[0] = first
    p(f"v_cmp_lt_u32 vcc, 1, v0")
    for i in range(4): p(f"v_cndmask_b32 v{HD+i}, 0, v{HD+i}, vcc")
    for q in range(5):
        d = HD + 6 * q
        for i in range(2):
            p(f"v_mov_b32_dpp v{d+4+i}, v{d+i} wave_shl:1 row_mask:0xf bank_mask:0xf")
        if q < 4:
            for i in range(2): p(f"v_readfirstlane_b32 s{t6+i}, v{d+6+i}")
            for i in range(2): p(f"v_writelane_b32 v{d+4+i}, s{t6+i}, 63")
    h_rows(range(first))
HB_DONE = [0]
def h_rows(rows):
    for q in rows:
        d, S = HD + 6 * q, 200 + 12 * (q % 2)
        if q == 4: p("s_mov_b64 exec, 7")
        p(f"ds_write_b128 v33, {vr(d,4)} offset:{1024*q}")
        for i in range(4): p(f"v_alignbit_b32 v{S+i}, v{d+i+1}, v{d+i}, 16")
        p(f"ds_write_b128 v33, {vr(S,4)} offset:{1024*q + HC_PITCH}")
        for i in range(4): p(f"v_mov_b32 v{S+4+i}, v{d+i+1}")
        p(f"ds_write_b128 v33, {vr(S+4,4)} offset:{1024*q + 2*HC_PITCH}")
        for i in range(4): p(f"v_alignbit_b32 v{S+8+i}, v{d+i+2}, v{d+i+1}, 16")
        p(f"ds_write_b128 v33, {vr(S+8,4)} offset:{1024*q + 3*HC_PITCH}")
    p("s_mov_b64 exec, -1")

def w_unit_params(rep):
    Bq, E = p.L("WU2"), p.L("WUE")
    sv = WU[rep]
    p(f"""s_sub_u32 s{t0}, s{sSIG}, {20 if rep == 0 else -12}
    s_lshl_b32 s{t0}, s{t0}, 2
    s_add_u32 s{t0}, s{t0}, s{sW}
    s_mov_b32 s{R_W+2}, 2211840
    v_mov_b32 v32, 0
    s_cmp_ge_u32 s{t0}, 40
    s_cbranch_scc1 {Bq}
    s_mul_i32 s{t1}, s{sJ}, 40
    s_add_u32 s{t0}, s{t0}, s{t1}
    s_and_b32 s{t7}, s{t0}, 15
    s_lshr_b32 s{t6}, s{t0}, 4
    s_mul_i32 s{t0}, s{t7}, 20
    s_add_u32 s{t0}, s{t0}, s{t6}
    s_mul_i32 s{sv}, s{t0}, 7168
    s_add_u32 s{sv}, s{sv}, {WS_W1F}
    s_mul_i32 s{sv+3}, s{t0}, 448
    s_add_u32 s{sv+3}, s{sv+3}, {WS_PS}
    s_lshr_b32 s{t1}, s{t6}, 1
    s_mul_i32 s{t1}, s{t1}, 80
    s_and_b32 s{t2}, s{t6}, 1
    s_lshl_b32 s{t2}, s{t2}, 1
    s_add_u32 s{t1}, s{t1}, s{t2}
    s_add_u32 s{t2}, s{t1}, 32
    s_sub_u32 s{t3}, s{t6}, 16
    s_mul_i32 s{t3}, s{t3}, 160
    s_add_u32 s{t4}, s{t3}, 64
    s_add_u32 s{t3}, s{t3}, 144
    s_cmp_ge_u32 s{t6}, 16
    s_cselect_b32 s{t1}, s{t4}, s{t1}
    s_cselect_b32 s{t2}, s{t3}, s{t2}
    s_cselect_b32 s{t3}, 0, 14
    v_mov_b32 v32, s{t3}
    s_mul_i32 s{t1}, s{t1}, 3456
    s_mul_i32 s{t2}, s{t2}, 3456
    s_lshl_b32 s{t6}, s{t0}, 7
    s_add_u32 s{sv+1}, s{t6}, {WS_FW1}
    s_mul_i32 s{t3}, s{t7}, 7
    s_mul_i32 s{t4}, s{t7}, 6
    s_add_u32 s{t4}, s{t4}, 12
    s_cmp_ge_u32 s{t7}, 12
    s_cselect_b32 s{t3}, s{t4}, s{t3}
    s_lshl_b32 s{t3}, s{t3}, 5
    s_add_u32 s{t1}, s{t1}, s{t3}
    s_add_u32 s{t2}, s{t2}, s{t3}
    s_mov_b32 s{t3}, 3456
    s_mov_b32 s{t4}, 14
    s_branch {E}""")
    p.label(Bq)
    p(f"""s_sub_u32 s{t0}, s{t0}, 40
    s_mov_b32 s{sv+3}, s{t0}
    s_min_u32 s{t0}, s{t0}, 53
    s_mul_i32 s{t1}, s{sJ}, 54
    s_add_u32 s{t0}, s{t0}, s{t1}
    s_and_b32 s{t7}, s{t0}, 7
    s_lshr_b32 s{t6}, s{t0}, 3
    s_mul_i32 s{t0}, s{t7}, 54
    s_add_u32 s{t0}, s{t0}, s{t6}
    s_mul_i32 s{sv}, s{t0}, 5120
    s_add_u32 s{sv}, s{sv}, {WS_W2F}
    s_mul_i32 s{t1}, s{t6}, 21846
    s_lshr_b32 s{t1}, s{t1}, 16
    s_mul_i32 s{t2}, s{t1}, 3
    s_sub_u32 s{t2}, s{t6}, s{t2}
    s_mul_i32 s{t3}, s{t1}, 7
    s_mul_i32 s{t4}, s{t1}, 6
    s_add_u32 s{t4}, s{t4}, 12
    s_cmp_ge_u32 s{t1}, 12
    s_cselect_b32 s{t1}, s{t4}, s{t3}
    s_lshl_b32 s{t2}, s{t2}, 1
    s_add_u32 s{t1}, s{t1}, s{t2}
    s_add_u32 s{t2}, s{t1}, 1
    s_sub_u32 s{t3}, s{t6}, 48
    s_mul_i32 s{t3}, s{t3}, 14
    s_add_u32 s{t4}, s{t3}, 6
    s_add_u32 s{t3}, s{t3}, 13
    s_cmp_ge_u32 s{t6}, 48
    s_cselect_b32 s{t1}, s{t4}, s{t1}
    s_cselect_b32 s{t2}, s{t3}, s{t2}
    s_mul_i32 s{t1}, s{t1}, 20480
    s_mul_i32 s{t2}, s{t2}, 20480
    s_lshl_b32 s{t6}, s{t0}, 7
    s_add_u32 s{sv+1}, s{t6}, {WS_FW2}
    s_mul_i32 s{t3}, s{t7}, 160
    s_add_u32 s{t1}, s{t1}, s{t3}
    s_add_u32 s{t2}, s{t2}, s{t3}
    s_mov_b32 s{t3}, 1280
    s_mov_b32 s{t4}, 10
    s_cmp_ge_u32 s{sv+3}, 54
    s_cselect_b32 s{t1}, 0x70000000, s{t1}
    s_cselect_b32 s{t2}, 0x70000000, s{t2}
    s_cselect_b32 s{sv}, 0x70000000, s{sv}
    s_cselect_b32 s{sv+1}, 0x70000000, s{sv+1}""")
    p.label(E)
    x = WX[rep]
    p(f"""s_lshl_b32 s{sv+2}, s{t4}, 4
    v_cvt_f32_u32 v30, v0
    v_cvt_f32_u32 v31, s{t4}
    v_add_f32 v30, 0.5, v30
    v_rcp_f32 v31, v31
    v_mul_f32 v30, v30, v31
    v_cvt_u32_f32 v30, v30
    v_mul_lo_u32 v31, v30, s{t4}
    v_sub_u32 v31, v0, v31
    v_lshlrev_b32 v31, 4, v31
    v_cmp_gt_u32 vcc, 4, v30
    v_lshrrev_b32 v33, 1, v30
    v_mad_u32_u24 v30, v33, v32, v30
    v_mul_lo_u32 v30, v30, s{t3}
    v_add_u32 v{WV[rep]}, v31, v30
    s_mov_b32 s{x[0]}, s{t1}
    s_mov_b32 s{x[1]}, s{t2}
    s_lshl_b32 s{x[2]}, s{t3}, 2
    s_mov_b32 s{x[3]}, vcc_hi
    v_lshrrev_b32 v32, 2, v0
    v_mul_lo_u32 v32, v32, s{sv+2}
    v_and_b32 v33, 3, v0
    v_lshl_add_u32 v32, v33, 3, v32
    s_mul_i32 s{t0}, s{sW}, {WSTG[rep][1]}
    s_add_u32 s{t0}, s{t0}, {WSTG[rep][0]}
    v_add_u32 v{WV[rep]+1}, s{t0}, v32
    s_lshl_b32 s{t1}, s{sv+2}, 4
    v_add_u32 v{WV[rep]+2}, s{t1}, v{WV[rep]+1}""")
WX = [(30, 31, 74, 75), (30, 31, 74, 75)]
PRIV = NW1A // 4 * 1024
WSTG = [(CONV_BASE, 7168), (PRIV - 10240, PRIV)]
WV = [84, 84]
def w_unit_dma(rep, tok):
    sv, x = WU[rep], WX[rep]
    p(f"""s_cmp_eq_u32 s{sv+2}, 224
    s_cselect_b32 s{R_W}, s{sW1}, s{sW2}
    s_cselect_b32 s{R_W+1}, s{sW1+1}, s{sW2+1}
    s_mul_i32 s{t7}, s{sW}, {WSTG[rep][1]}
    s_add_u32 m0, s{t7}, {WSTG[rep][0]}
    s_lshl_b32 s{t7}, s{sv+2}, 2
    s_mov_b32 exec_hi, s{x[3]}""")
    for q in range(8):
        so = x[0] if q < 4 else x[1]
        p(f"buffer_load_dwordx4 v{WV[rep]}, {srd(R_W)}, s{so} offen nt lds", tok_wr=(tok if q == 7 else None))
        if q < 7: p(f"s_add_u32 m0, m0, s{t7}\ns_add_u32 s{so}, s{so}, s{x[2]}")
    p("s_mov_b64 exec, -1")

def row_pattern(dst, tmp):
    p(f"""v_mul_u32_u24 v{tmp}, 205, v0
    v_lshrrev_b32 v{tmp}, 11, v{tmp}
    v_mul_u32_u24 v{dst}, 1120, v{tmp}
    v_lshl_add_u32 v{dst}, v0, 4, v{dst}""")

def dma(e, vaddr, rs, soff, add, m0base, m0add, ehi, elo=None, flags="", tok=None):
    def fn():
        p(f"s_add_u32 m0, s{m0base}, {m0add}\ns_add_u32 s{t2}, s{soff}, {add}\ns_mov_b32 exec_hi, {ehi}")
        if elo is not None: p(f"s_mov_b32 exec_lo, {elo}")
        p(f"buffer_load_dwordx4 v{vaddr}, {srd(rs)}, s{t2} offen{flags} lds", tok_wr=tok)
        p("s_mov_b64 exec, -1")
    e.group(fn, 20)
def bases():
    p(f"""s_and_b32 s{t0}, s{sW}, 1
    s_lshr_b32 s{t1}, s{sW}, 1
    s_lshl_b32 s{sP8}, s{t1}, 3
    s_lshl_b32 s{t2}, s{sA}, 2
    s_add_u32 s{t2}, s{t2}, s{t0}
    s_lshl_b32 s{t3}, s{sM}, 3
    s_add_u32 s{t3}, s{t3}, s{t0}
    s_lshl_b32 s{t4}, s{t1}, 2
    s_add_u32 s{t3}, s{t3}, s{t4}
    s_lshl_b32 s{t4}, s{sB}, 1
    s_add_u32 s{t4}, s{t4}, s{t1}
    s_mul_i32 s{sXR}, s{t3}, 20480
    s_add_u32 s{sXR}, s{sXR}, {WS_XF}
    s_mul_i32 s{t5}, s{t2}, 20480
    s_add_u32 s{t5}, s{t5}, {WS_XF}
    s_lshl_b32 s{sXW}, s{t4}, 10
    s_add_u32 s{sXW}, s{sXW}, s{t5}
    s_lshr_b32 s{sXS}, s{t4}, 2
    s_lshl_b32 s{sXS}, s{sXS}, 10
    s_and_b32 s{t6}, s{t4}, 3
    s_lshl_b32 s{t6}, s{t6}, 2
    s_add_u32 s{sXS}, s{sXS}, s{t6}
    s_add_u32 s{sXS}, s{sXS}, s{t5}
    s_add_u32 s{sXS}, s{sXS}, 16384
    s_mul_i32 s{t5}, s{t3}, 55296
    s_add_u32 s{t5}, s{t5}, {WS_HF}
    s_mul_i32 s{sHW}, s{sN}, 3072
    s_add_u32 s{sHW}, s{sHW}, s{t5}
    s_lshl_b32 s{sHS}, s{sN}, 9
    s_add_u32 s{sHS}, s{sHS}, s{t5}
    s_add_u32 s{sHS}, s{sHS}, 49152
    s_mul_i32 s{sHR}, s{t2}, 55296
    s_mul_i32 s{t5}, s{sW}, 12288
    s_add_u32 s{sHR}, s{sHR}, s{t5}
    s_add_u32 s{sHR}, s{sHR}, {WS_HF}
    s_lshl_b32 s{sFXR}, s{t3}, 6
    s_add_u32 s{sFXR}, s{sFXR}, {WS_FX}
    s_lshl_b32 s{sFXW}, s{t2}, 4
    s_add_u32 s{sFXW}, s{sFXW}, s{t4}
    s_lshl_b32 s{sFXW}, s{sFXW}, 2
    s_add_u32 s{sFXW}, s{sFXW}, {WS_FX}
    s_lshl_b32 s{sFHR}, s{sM}, 8
    s_lshl_b32 s{t5}, s{sW}, 6
    s_add_u32 s{sFHR}, s{sFHR}, s{t5}
    s_and_b32 s{t5}, s{sA}, 1
    s_lshl_b32 s{t5}, s{t5}, 3
    s_add_u32 s{sFHR}, s{sFHR}, s{t5}
    s_add_u32 s{sFHR}, s{sFHR}, {WS_FH}
    s_lshl_b32 s{sFHW}, s{sM}, 4
    s_add_u32 s{sFHW}, s{sFHW}, s{sN}
    s_lshl_b32 s{sFHW}, s{sFHW}, 2
    s_add_u32 s{sFHW}, s{sFHW}, s{sW}
    s_lshl_b32 s{sFHW}, s{sFHW}, 2
    s_add_u32 s{sFHW}, s{sFHW}, {WS_FH}
    s_lshl_b32 s{sSTO}, s{t2}, 12
    s_add_u32 s{sSTO}, s{sSTO}, {WS_ST}
    s_lshl_b32 s{sSTW}, s{t4}, 8
    s_add_u32 s{sSTW}, s{sSTW}, s{sSTO}
    s_lshl_b32 s{sSTR}, s{t3}, 12
    s_add_u32 s{sSTR}, s{sSTR}, {WS_ST}
    s_mul_i32 s{t0}, s{sB}, 54
    s_mul_i32 s{t5}, s{sW}, 12
    s_add_u32 s{t5}, s{t5}, s{t0}
    s_mul_i32 s{sW2B}, s{t5}, 5120
    s_add_u32 s{sW2B}, s{sW2B}, {WS_W2F}
    s_lshl_b32 s{t5}, s{sW}, 1
    s_min_u32 s{t5}, s{t5}, 4
    s_add_u32 s{t5}, s{t5}, s{t0}
    s_add_u32 s{t5}, s{t5}, 48
    s_mul_i32 s{sW2S}, s{t5}, 5120
    s_add_u32 s{sW2S}, s{sW2S}, {WS_W2F}
    s_cmp_eq_u32 s{sW}, 3
    s_cselect_b32 s{sW2S}, 0x70000000, s{sW2S}
    v_add_u32 v{vA1[1]}, 57344, v{vL16}
    v_add_u32 v{vA1[2]}, 114688, v{vL16}""")
CA, CB_, CACC, CAD = 92, 156, 220, 252
vA, vB = 36, 37
def conv_prep():
    p(f"""s_mul_i32 s{t3}, s{sW}, {CONV_PITCH}
    s_add_u32 s{t3}, s{t3}, {CONV_BASE}
    v_mov_b32 v30, 0
    v_mov_b32 v31, 0
    v_add_u32 v32, s{t3}, v{vL8}
    ds_write_b64 v32, v[30:31] offset:{LU_OFF+4096}
    v_add_u32 v32, 1, v{vN}
    v_and_b32 v33, 3, v32
    v_sub_u32 v32, v32, v33
    v_lshlrev_b32 v32, 1, v32
    v_mul_u32_u24 v33, {HC_PITCH}, v33
    v_add3_u32 v{vA}, v32, v33, s{t3}
    v_lshl_add_u32 v{vA}, v{vG}, 4, v{vA}
    v_lshlrev_b32 v32, 5, v{vN}
    v_sub_u32 v32, {LU_OFF + 4064 - 3584}, v32
    v_lshl_add_u32 v32, v{vG}, 4, v32
    v_add_u32 v{vB}, s{t3}, v32
    s_lshl_b32 s{t1}, s{sDVAL}, 16
    s_bitcmp1_b32 s{sW}, 0
    s_cselect_b32 s{t1}, s{sDVAL}, s{t1}
    s_and_b32 s{t1}, s{t1}, 0xffff0000
    s_lshr_b32 s{t2}, s{t1}, 16
    v_lshlrev_b32 v32, 3, v{vG}
    v_add_u32 v32, v32, v{vN}
    v_sub_u32 v32, 15, v32
    v_mov_b32 v33, s{t1}
    v_mov_b32 v34, s{t2}""")
    for r in range(4):
        p(f"""v_cmp_eq_u32 vcc, {2*r}, v32
        v_cndmask_b32 v{CAD+r}, 0, v34, vcc
        v_cmp_eq_u32 vcc, {2*r+1}, v32
        v_cndmask_b32 v{CAD+r}, v{CAD+r}, v33, vcc""")

KN = NAME + "_kernel"
p.raw(f"; @launch grid=(256,1,1) block=(256,1,1) lds={LDS_BYTES}")
p.raw('.amdgcn_target "amdgcn-amd-amdhsa--gfx950"')
p.raw(f".text\n.globl {KN}\n.p2align 8\n.type {KN},@function")
p.label(KN)
p(f"""s_cmp_ge_u32 s2, 256
s_cbranch_scc1 END
s_load_dwordx16 s[4:19], s[0:1], 0
s_load_dwordx8 s[20:27], s[0:1], 64
s_load_dwordx2 s[28:29], s[0:1], 96
s_getpc_b64 {pair(t6)}
s_lshr_b32 s{sSIG}, s2, 3
s_lshl_b32 s{t0}, s{sSIG}, 11
v_lshl_add_u32 v30, v0, 3, s{t0}
global_load_dword v{JUNK}, v30, {pair(t6)}""")
if STAMPS: p(f"v_mov_b32 v{vSTAMP}, 0")
stamp("start")
p(f"""v_lshrrev_b32 v30, 6, v0
v_and_b32 v0, 63, v0
v_readfirstlane_b32 s{sW}, v30
s_and_b32 s{sJ}, s2, 7
v_lshlrev_b32 v{vL8}, 3, v0
v_and_b32 v{vN}, 15, v0
v_lshrrev_b32 v{vG}, 4, v0
v_lshlrev_b32 v{vL16}, 4, v0
s_mov_b32 s{R_W+3}, 0x20000""")
row_pattern(38, 30)
p(f"""s_lshl_b32 s{t4}, s{sJ}, 9
s_add_u32 s{t4}, s{t4}, {WS_FT}
v_add_u32 v35, s{t4}, v{vL8}
s_lshl_b32 s{t5}, s2, 2
s_add_u32 s{t5}, s{t5}, s{sW}
s_lshl_b32 s{t6}, s{t5}, 7
s_add_u32 s{t6}, s{t6}, {WS_FY}
v_writelane_b32 v35, s{t6}, 4
s_add_u32 s{t6}, s{t6}, {WS_FW1 - WS_FY}
v_writelane_b32 v35, s{t6}, 8
s_lshl_b32 s{t5}, s{t5}, 8
v_writelane_b32 v35, s{t5}, 2
s_add_u32 s{t5}, s{t5}, 128
v_writelane_b32 v35, s{t5}, 3
s_add_u32 s{t6}, s{t4}, {WS_FL - WS_FT}
v_writelane_b32 v35, s{t6}, 5
s_add_u32 s{t6}, s{t6}, 128
v_writelane_b32 v35, s{t6}, 6
s_add_u32 s{t6}, s{t6}, 128
v_writelane_b32 v35, s{t6}, 7
s_lshl_b32 s{t0}, s{sSIG}, 2
s_add_u32 s{t0}, s{t0}, s{sW}
s_mul_i32 s{t1}, s{t0}, 20480
s_mul_i32 s{t2}, s{sJ}, 160
s_add_u32 s{t1}, s{t1}, s{t2}
v_add_u32 v38, s{t1}, v38
v_subrev_u32 v39, 5120, v38
s_mov_b32 s{R_K+2}, 2621440
s_mov_b32 s{R_K+3}, 0x20000
s_mov_b32 s{R_V+2}, 2621440
s_mov_b32 s{R_V+3}, 0x20000
s_mul_i32 s{t2}, s{sJ}, 640
v_lshl_add_u32 v30, v{vN}, 3, s{t2}
s_mul_i32 s{sG}, s{sJ}, 20
s_min_u32 s{t1}, s{sSIG}, 19
s_add_u32 s{sG}, s{sG}, s{t1}
s_lshl_b32 s{t3}, s{sG}, 2
s_add_u32 s{t3}, s{t3}, s{sW}
s_lshl_b32 s{t1}, s{t3}, 1
s_and_b32 s{t2}, s{t1}, 0xfffc
s_waitcnt lgkmcnt(0)
s_load_dword s{sE}, {pair(sWS)}, {WS_EPOCH}
s_load_dword s{sDVAL}, {pair(sD)}, s{t2}
global_load_dword v{JUNK}, v35, {pair(sWS)} sc1""")
SKP = 40
for dt in range(5):
    p(f"global_load_dwordx2 {vr(SKP+2*dt,2)}, v30, {pair(sSK)} offset:{128*dt}")
tokW = [p.tok()]
tokT = p.tok()
def kv_dma():
    p(f"""s_mov_b32 s{R_K}, s{sK}
    s_mov_b32 s{R_K+1}, s{sK+1}
    s_mov_b32 s{R_V}, s{sV}
    s_mov_b32 s{R_V+1}, s{sV+1}
    s_mul_i32 m0, s{sW}, {TW_PITCH}
    s_mov_b32 exec_hi, 0x3ffff""")
    for q in range(4):
        p(f"buffer_load_dwordx4 v39, {srd(R_K)}, 0 offen nt lds\ns_add_u32 m0, m0, 800")
        if q < 3: p(f"v_add_u32 v39, 6400, v39")
    for q in range(4):
        if q == 3: p("s_mov_b32 exec_hi, 0\ns_mov_b32 exec_lo, 0x3ff")
        p(f"buffer_load_dwordx4 v38, {srd(R_V)}, 0 offen nt lds", tok_wr=tokT)
        if q < 3: p(f"s_add_u32 m0, m0, 800\nv_add_u32 v38, 6400, v38")
    p("s_mov_b64 exec, -1")
kv_dma()
tokW = [p.tok(), p.tok()]
stamp('iss0')
p(f"""s_mov_b32 s{R_WS+2}, 0x10000000
s_mov_b32 s{R_WS+3}, 0x20000
s_mov_b32 s{R_H+2}, 2621440
s_mov_b32 s{R_H+3}, 0x20000
s_lshl_b32 s{t3}, s{t3}, 12
s_sub_u32 s{t3}, s{t3}, 32
s_cmp_lt_u32 s{sSIG}, 20
s_cselect_b32 s{t3}, s{t3}, 0x70000000
v_add_u32 v{vHOFF}, s{t3}, v{vL16}
s_mov_b32 s{R_H}, s{sH}
s_mov_b32 s{R_H+1}, s{sH+1}""")
def common_setup(tagl):
    p(f"""s_mov_b32 s{R_WS}, s{sWS}
    s_mov_b32 s{R_WS+1}, s{sWS+1}
    s_lshr_b32 s{t0}, s{sSIG}, 3
    s_lshl_b32 s{sA}, s{sJ}, 2
    s_add_u32 s{sA}, s{sA}, s{t0}
    s_and_b32 s{sB}, s{sSIG}, 7
    s_lshr_b32 s{sM}, s{sA}, 1
    s_and_b32 s{sN}, s{sSIG}, 15
    s_getreg_b32 s{sXV}, hwreg(HW_REG_XCC_ID)
    s_lshl_b32 s{sXV}, s{sXV}, 28
    s_lshl_b32 s{t0}, s{sJ}, 5
    s_add_u32 s{t0}, s{t0}, s{sSIG}
    s_lshl_b32 s{t0}, s{t0}, 5
    s_add_u32 s{t0}, s{t0}, {WS_XC}
    v_mov_b32 v30, 0
    s_mul_i32 s{sTAG}, s{sE}, 0x9E3779B1
    s_add_u32 s{sTAG}, s{sTAG}, 0x7F4A7C15
    s_xor_b32 s{sTAG2}, s{sTAG}, 0x5bd1e995
    s_xor_b32 s{sXV}, s{sXV}, s{sTAG}
    v_mov_b32 v31, s{sXV}
    s_cmp_eq_u32 s{sW}, 0
    s_cselect_b32 s{t0}, s{t0}, 0x70000000
    buffer_store_dword v31, v30, {WSR}, s{t0} offen sc1""")
    stamp("xpub")
    bases()
common_setup(0)
SKC = 92
for dt in range(5):
    a_, c = SKP + 2 * dt, SKC + 5 * dt
    p(f"""v_alignbit_b32 v{c}, v{a_}, v{a_}, 16
    v_alignbit_b32 v{c+1}, v{a_+1}, v{a_+1}, 16
    v_and_b32 v{c+2}, 0xffff, v{a_}
    v_and_b32 v{c+4}, 0xffff0000, v{a_+1}
    v_and_b32 v{c+3}, 0xffff0000, v{a_}
    v_and_b32 v{a_+1}, 0xffff, v{a_+1}
    v_or_b32 v{c+3}, v{c+3}, v{a_+1}""")
p(f"s_cmp_ge_u32 s{sSIG}, 20\ns_cbranch_scc1 PREP_W")
conv_prep()
w_unit_params(1)
p.label("PREP_DONE")
def prep_w():
    p.label("PREP_W")
    w_unit_params(0)
    if opt("w0e", 0) == 2: w_unit_dma(0, tokW[0])
    p("s_branch PREP_DONE")
tail_code.append(prep_w)
p(f"""v_lshrrev_b32 v30, 2, v0
v_mul_u32_u24 v30, 160, v30
v_and_b32 v31, 3, v0
v_lshl_add_u32 v30, v31, 3, v30
s_mul_i32 s{t3}, s{sW}, {TW_PITCH}
v_add_u32 v56, s{t3}, v30
s_lshl_b32 s{t2}, s{sW}, 5
s_sub_u32 s{t2}, {UT_BASE + 120}, s{t2}
v_mul_u32_u24 v57, 144, v{vN}
v_lshlrev_b32 v32, 3, v{vG}
v_sub_u32 v57, v57, v32
v_add_u32 v57, s{t2}, v57
s_mul_i32 s{t0}, s{sJ}, {80*4096}
s_lshl_b32 s{t2}, s{sSIG}, 7
s_sub_u32 s{t0}, s{t0}, s{t2}
s_lshl_b32 s{t2}, s{sW}, 15
s_add_u32 s{t0}, s{t0}, s{t2}
s_add_u32 s{t0}, s{t0}, {WS_UR + 3968}
v_lshrrev_b32 v60, 3, v0
v_and_b32 v61, 7, v0
v_lshlrev_b32 v61, 4, v61
v_lshl_add_u32 v62, v60, 12, v61
v_mul_u32_u24 v60, 144, v60
s_mul_i32 s{t2}, s{sW}, 1152
s_add_u32 s{t2}, s{t2}, {UT_BASE}
v_add3_u32 v60, v60, v61, s{t2}
s_lshl_b32 s{t5}, s{sJ}, 5
s_add_u32 s{t5}, s{t5}, s{sSIG}
s_lshl_b32 s{t5}, s{t5}, 2
s_add_u32 s{t5}, s{t5}, s{sW}
s_lshl_b32 s{t5}, s{t5}, 2
s_add_u32 s{t5}, s{t5}, {WS_FT}
s_add_u32 s{t1}, s{t0}, {4*32768}
s_add_u32 s{t2}, s{t0}, {8*32768}
s_cmp_lt_u32 s{sW}, 2
s_cselect_b32 s{t2}, s{t2}, 0x70000000
""")
stamp("issued")
def w_process(rep, st):
    sv = WU[rep]
    SK = p.L("WSKIP")
    tk = p.tok()
    p.need(tokW[rep])
    st(f"W_in{rep}")
    for ft in range(7):
        p(f"ds_read_b64_tr_b16 {vr(200+4*ft,2)}, v{WV[rep]+1} offset:{32*ft}\nds_read_b64_tr_b16 {vr(202+4*ft,2)}, v{WV[rep]+2} offset:{32*ft}")
    for ft in range(7):
        if ft == 5: p(f"s_cmp_lt_u32 s{sv+2}, 224\ns_cbranch_scc1 {SK}")
        if ft == 4: p(f"s_add_u32 s{sv}, s{sv}, 4096")
        p(f"buffer_store_dwordx4 {vr(200+4*ft,4)}, v{vL16}, {WSR}, s{sv} offen offset:{1024*(ft%4)} sc1", tok_wr=tk)
    if rep == 0:
        p(f"v_mov_b32 v64, 0x3f803f80\nv_mov_b32 v65, 0x3f803f80\nv_mov_b32 v66, 0x3f803f80\nv_mov_b32 v67, 0x3f803f80\nv_lshlrev_b32 v68, 4, v{vG}")
        for ft in range(7):
            p(f"{MF} {vr(120+4*ft,4)}, {vr(200+4*ft,4)}, v[64:67], 0")
        p("s_nop 7\ns_mov_b32 exec_lo, 0x00010001\ns_mov_b32 exec_hi, 0x00010001")
        for ft in range(7):
            p(f"buffer_store_dwordx4 {vr(120+4*ft,4)}, v68, {WSR}, s{sv+3} offen offset:{64*ft} sc1", tok_wr=tk)
        p("s_mov_b64 exec, -1")
    p.label(SK)
    return tk
if opt("w0e", 0) == 2:
    p(f"s_cmp_ge_u32 s{sSIG}, 20\ns_cbranch_scc1 KVW\ns_waitcnt vmcnt(1)\ns_branch KVD")
    p.label("KVW")
    p("s_waitcnt vmcnt(9)")
    p.label("KVD")
else:
    p.need(tokT)
stamp("kv_in")
KB = [148 - 28 + 6 * dt + 0 for dt in range(5)]
KB = [120 + 6 * dt for dt in range(5)]
for dt in range(5):
    b = KB[dt]
    p(f"ds_read_b64_tr_b16 {vr(b,2)}, v56 offset:{32*dt}\nds_read_b64_tr_b16 {vr(b+2,2)}, v56 offset:{32*dt+640}\nds_read_b64_tr_b16 {vr(b+4,2)}, v56 offset:{32*dt+3200}")
W0E = opt("w0e", 0)
p(f"s_cmp_ge_u32 s{sSIG}, 20\ns_cbranch_scc1 ROLE_W")
h_loads()
p.label("ROLE_DONE")
def role_w():
    p.label("ROLE_W")
    if W0E == 1: w_unit_dma(0, tokW[0])
    p("s_branch ROLE_DONE")
tail_code.append(role_w)
tokU = p.tok()
for dt in range(5):
    b, c, o, vv, st = KB[dt], SKC + 5 * dt, 150, 154, 158 + 2 * (dt & 1)
    p(f"""v_dot2_f32_bf16 v{o}, v{b}, v{c+4}, 0
    v_dot2_f32_bf16 v{o+1}, v{b+1}, v{c+1}, 0
    v_dot2_f32_bf16 v{o+2}, v{b+1}, v{c+4}, 0
    v_dot2_f32_bf16 v{o+3}, v{b+2}, v{c+1}, 0
    v_lshlrev_b32 v{vv}, 16, v{b+4}
    v_and_b32 v{vv+1}, 0xffff0000, v{b+4}
    v_dot2_f32_bf16 v{o}, v{b+1}, v{c+3}, v{o}
    v_dot2_f32_bf16 v{o+1}, v{b+2}, v{c}, v{o+1}
    v_dot2_f32_bf16 v{o+2}, v{b+2}, v{c+3}, v{o+2}
    v_dot2_f32_bf16 v{o+3}, v{b+3}, v{c}, v{o+3}
    v_dot2_f32_bf16 v{o}, v{b+2}, v{c+2}, v{o}
    v_dot2_f32_bf16 v{o+2}, v{b+3}, v{c+2}, v{o+2}
    v_lshlrev_b32 v{vv+2}, 16, v{b+5}
    v_and_b32 v{vv+3}, 0xffff0000, v{b+5}
    s_nop 0
    v_pk_mul_f32 {vr(o,2)}, {vr(o,2)}, {vr(vv,2)}
    v_pk_mul_f32 {vr(o+2,2)}, {vr(o+2,2)}, {vr(vv+2,2)}
    v_cvt_pk_bf16_f32 v{st+1}, v{o+1}, v{o}
    v_cvt_pk_bf16_f32 v{st}, v{o+3}, v{o+2}
    ds_write_b64 v57, {vr(st,2)} offset:{2304*dt}""")
stamp("T_calc")
p("s_waitcnt lgkmcnt(0)\ns_barrier")
for q in range(3):
    p(f"ds_read_b128 {vr(92+4*q,4)}, v60 offset:{4608*q}")
for q in range(3):
    p(f"buffer_store_dwordx4 {vr(92+4*q,4)}, v62, {WSR}, s{(t0, t1, t2)[q]} offen sc1", tok_wr=tokU)
stamp("u_st")
p(f"""s_mul_i32 s{t3}, s{sW}, {CONV_PITCH}
s_add_u32 s{t3}, s{t3}, {CONV_BASE}
v_add_u32 v33, s{t3}, v{vL16}""")
p(f"s_cmp_ge_u32 s{sSIG}, 20\ns_cbranch_scc1 HB1")
h_build(opt("hb1", 2))
p.label("HB1")
p(f"""v_mov_b32 v30, s{sTAG}
v_mov_b32 v31, 0
s_waitcnt vmcnt(0)
buffer_store_dword v30, v31, {WSR}, s{t5} offen""")
stamp("T_pub")
p(f"""s_lshl_b32 s{t4}, s{sJ}, 10
s_add_u32 s{t4}, s{t4}, {WS_XC}
v_and_b32 v63, 31, v0
v_lshlrev_b32 v63, 5, v63
buffer_load_dword v62, v63, {WSR}, s{t4} offen sc1""")
p(f"s_cmp_ge_u32 s{sSIG}, 20\ns_cbranch_scc1 MID_W")
h_build(None)
def mid_w():
    p.label("MID_W")
    if not W0E: w_unit_dma(0, tokW[0])
    tk = w_process(0, stamp)
    p(f"v_mov_b32 v30, s{sTAG}\nv_mov_b32 v31, 0")
    p.need(tk)
    p(f"buffer_store_dword v30, v31, {WSR}, s{WU[0]+1} offen sc1")
    stamp("W_done")
    p("s_branch CHECK")
tail_code.append(mid_w)
p.label("CHECK")
p(f"s_mov_b32 s{sSPIN}, 0\ns_branch VER2")
p.label("VER")
p(f"""s_sleep 1
s_add_u32 s{sSPIN}, s{sSPIN}, 1
s_cmp_gt_u32 s{sSPIN}, {SPIN}
s_cbranch_scc1 SLOW
buffer_load_dword v62, v63, {WSR}, s{t4} offen sc1""")
p.label("VER2")
p(f"""v_xor_b32 v62, s{sXV}, v62
v_cmp_ne_u32 vcc, 0, v62
s_cbranch_vccz {'SLOW' if FORCE_SLOW else 'FAST'}
v_and_b32 v62, 0x0fffffff, v62
v_cmp_ne_u32 vcc, 0, v62
s_cbranch_vccnz VER
s_branch SLOW""")

def body(slow):
    PF = "S" if slow else "F"
    sc = " sc1" if slow else ""
    lab = lambda n: f"{PF}_{n}"
    st = (lambda n, e=None: None) if slow else stamp
    LX = lambda stride, layer: stride * layer if slow else 0
    TG = lambda layer: sTAG2 if layer else sTAG
    HPW = opt("hpw", 1)
    WT = lambda layer: " sc1" if (slow or (layer == 0 and not HPW)) else ""
    p.label("SLOW" if slow else "FAST")
    st("verified")
    if slow:
        p(f"v_mov_b32 v30, s{sTAG}\nv_mov_b32 v31, 0\ns_add_u32 s{t0}, s{t5}, {WS_FTR - WS_FT}\nbuffer_store_dword v30, v31, {WSR}, s{t0} offen sc1")
    def xy_offset(dst):
        p(f"""s_and_b32 s{t1}, s{sW}, 1
        s_lshl_b32 s{t0}, s{sA}, 2
        s_add_u32 s{t0}, s{t0}, s{t1}
        s_mul_i32 s{t0}, s{t0}, 20480
        s_mul_i32 s{t1}, s{sB}, 160
        s_add_u32 s{t0}, s{t0}, s{t1}
        s_lshr_b32 s{t1}, s{sW}, 1
        s_lshl_b32 s{t1}, s{t1}, 2
        s_add_u32 s{t0}, s{t0}, s{t1}
        v_mul_u32_u24 v{dst}, 1280, v{vN}
        v_lshl_add_u32 v{dst}, v{vG}, 3, v{dst}
        v_add_u32 v{dst}, s{t0}, v{dst}
        v_add_u32 v{dst+1}, 40960, v{dst}""")
    def x0_dma(e, base, gap=0, pitch=PRIV):
        e.group(lambda: (row_pattern(83, 30), p(f"""s_lshl_b32 s{t0}, s{sA}, 2
        s_and_b32 s{t1}, s{sW}, 1
        s_add_u32 s{t0}, s{t0}, s{t1}
        s_mul_i32 s{t0}, s{t0}, 20480
        s_mul_i32 s{t1}, s{sB}, 160
        s_add_u32 s{t6}, s{t0}, s{t1}
        s_mov_b32 s{R_H}, s{sQ}
        s_mov_b32 s{R_H+1}, s{sQ+1}
        s_mul_i32 s{t7}, s{sW}, {pitch}""")), 60)
        tk = p.tok()
        for q in range(8):
            s_, r = q >> 2, q & 3
            dma(e, 83, R_H, t6, 40960 * s_ + 6400 * r, t7, base + 2560 * s_ + 800 * r, 0x3ffff if r < 3 else 0, None if r < 3 else 0x3ff, " nt", tk)
            if gap: e.skip(gap)
        return tk
    def x0_read(e, tk, base, pitch=PRIV):
        e(f"""s_mul_i32 s{t0}, s{sW}, {pitch}
        s_lshr_b32 s{t1}, s{sP8}, 1
        s_add_u32 s{t0}, s{t0}, s{t1}
        s_add_u32 s{t0}, s{t0}, {base}
        v_mul_u32_u24 v30, 160, v{vN}
        v_lshl_add_u32 v30, v{vG}, 3, v30
        v_add_u32 v30, s{t0}, v30""")
        e.need(tk)
        for s in range(2):
            for dt in range(5): e(f"ds_read_b32 v{XP[s]+dt}, v30 offset:{2560*s + 32*dt}")
        e.skip(6)
    def flag_prewarm(e):
        if not slow:
            e(f"""v_and_b32 v30, 1, v0
            v_lshlrev_b32 v31, 7, v30
            v_add_u32 v31, s{sFXW}, v31
            v_lshlrev_b32 v30, 12, v30
            v_add_u32 v30, s{sFHW}, v30
            v_cmp_gt_u32 vcc, 2, v0
            v_cndmask_b32 v30, v30, v31, vcc
            v_and_b32 v31, 7, v0
            v_lshlrev_b32 v31, 7, v31
            v_bfe_u32 v32, v0, 3, 1
            v_mul_u32_u24 v32, 40960, v32
            v_add3_u32 v31, v31, v32, s{sXS}
            v_cmp_gt_u32 vcc, 32, v0
            v_cndmask_b32 v30, v31, v30, vcc
            s_sub_u32 s{t0}, s{sXW}, s{sXS}
            v_add_u32 v31, s{t0}, v31
            v_cmp_gt_u32 vcc, 48, v0
            v_cndmask_b32 v30, v31, v30, vcc
            v_and_b32 v31, 1, v0
            v_lshlrev_b32 v31, 7, v31
            v_bfe_u32 v32, v0, 1, 1
            v_lshl_add_u32 v31, v32, 13, v31
            s_add_u32 s{t0}, s{sSTW}, {ST_K}
            v_add_u32 v31, s{t0}, v31
            v_bfe_u32 v32, v0, 2, 4
            v_cmp_eq_u32 vcc, 1, v32
            v_cndmask_b32 v30, v30, v31, vcc
            v_subrev_u32 v31, {ST_K}, v31
            v_cmp_eq_u32 vcc, 2, v32
            v_cndmask_b32 v30, v30, v31, vcc
            buffer_load_dword v{JUNK}, v30, {WSR}, 0 offen sc1""")
    X32, G0 = [38, 48], [58, 220 - 220 + 58]
    G0 = [58, 74]
    def x0_stats(e, unp=True):
        for s in range(2):
            if unp: unpack(e, X32[s], XP[s], 5)
            e(f"s_add_u32 s{t0}, s{sSTW}, {8192*s}")
            stats_publish(e, X32[s], G0[0], t0, 0, slow)
    def x0_norm(e):
        for s in range(2):
            late_check(e, stats_loads(G0[s], (t5, t4)[s]), stats_tags(G0[s]), 32, False)
            stats_finish(e, G0[s], 30)
            e(f"v_mul_f32 v32, -v30, v31")
            for i in range(10): e(f"v_fma_f32 v{G0[s]+i}, v{X32[s]+i}, v31, v32")
    XN0 = G0
    def w_flag_addr(e, dst):
        e.group(lambda: p(f"""v_and_b32 v33, 31, v0
        s_mul_i32 s{t1}, s{sW}, 12
        v_add_u32 v{dst}, s{t1}, v33
        s_lshl_b32 s{t2}, s{sW}, 1
        s_add_u32 s{t2}, s{t2}, 36
        v_add_u32 v{dst+1}, s{t2}, v33
        v_cmp_gt_u32 vcc, 12, v33
        v_cndmask_b32 v{dst}, v{dst+1}, v{dst}, vcc
        s_add_u32 s{t2}, s{t2}, 13
        s_min_u32 s{t2}, s{t2}, 53
        v_min_u32 v{dst}, s{t2}, v{dst}
        s_mul_i32 s{t1}, s{sB}, {54*128}
        s_add_u32 s{t1}, s{t1}, {WS_FW2}
        v_lshl_add_u32 v{dst}, v{dst}, 7, s{t1}
        v_min_u32 v{dst+1}, 19, v0
        s_mul_i32 s{t1}, s{sN}, {20*128}
        s_add_u32 s{t1}, s{t1}, {WS_FW1}
        v_lshl_add_u32 v{dst+1}, v{dst+1}, 7, s{t1}
        s_lshr_b32 s{t1}, s{sP8}, 2
        v_xor_b32 v{vW2}, s{t1}, v0
        v_lshlrev_b32 v{vW2}, 4, v{vW2}
        s_mul_i32 s{sGOTA}, s{sN}, 143360
        s_add_u32 s{sGOTA}, s{sGOTA}, {WS_W1F}"""), 100)
    def w1_one(e, base_reg, idx):
        if opt("now1", 0): return
        def fn():
            p(f"s_add_u32 m0, s{base_reg}, {1024*idx}\ns_add_u32 s{t2}, s{sGOTA}, m0")
            return p(f"buffer_load_dwordx4 v{vL16}, {WSR}, s{t2} offen{' sc1' if opt('w1sc', 1) else ''} lds")
        e.group(fn, 12)
    vW2 = 35
    NW2E = 0
    def w2_loads(e, q0, q1, vaddr):
        if opt("now2", 0): return
        for q in range(q0, q1):
            sb, qq = (sW2B, q) if q < 60 else (sW2S, q - 60)
            if qq % 4 == 0 and qq > 0: e(f"s_add_u32 s{sb}, s{sb}, 4096")
            e(f"buffer_load_dwordx4 {w2reg(q)}, v{vaddr}, {WSR}, s{sb} offen offset:{1024*(qq%4)}{' sc1' if opt('w2sc', 1) else ''}")
    p(f"s_cmp_ge_u32 s{sSIG}, 20\ns_cbranch_scc1 {lab('W_PHASE')}")
    p(f"""s_lshl_b32 s{t0}, s{sJ}, 9
    s_add_u32 s{t0}, s{t0}, {WS_FTR if slow else WS_FT}""")
    for t in range(8):
        p(f"ds_read_b64 {vr(CA+4*t,2)}, v{vA} offset:{512*t}\nds_read_b64 {vr(CA+4*t+2,2)}, v{vA} offset:{512*t+8}")
    w_flag_addr(D, 90)
    spin_wait(f"buffer_load_dwordx2 v[30:31], v{vL8}, {WSR}, s{t0} offen sc1", [30, 31], False, nap=(1 if not slow else 4))
    st("T_seen")
    tokUin = p.tok()
    p(f"""s_lshl_b32 s{t0}, s{sG}, 2
    s_add_u32 s{t0}, s{t0}, s{sW}
    s_lshl_b32 s{t0}, s{t0}, 12
    s_add_u32 s{t0}, s{t0}, {WS_UR}
    s_add_u32 m0, s{t3}, {LU_OFF}""")
    for q in range(4):
        p(f"buffer_load_dwordx4 v{vL16}, {WSR}, s{t0} offen offset:{1024*q} sc1 lds", tok_wr=(tokUin if q == 3 else None))
    p.need(tokUin)
    st("u_in")
    for m in range(8):
        p(f"ds_read_b128 {vr(CB_+4*m,4)}, v{vB} offset:{3584-512*m}")
    beats = [[f"{MF} {vr(CACC+4*j,4)}, {vr(CAD,4)}, {vr(CB_+4*j,4)}, 0"] for j in range(8)]
    for p0 in range(8):
        buf = p0 & 1
        reads = []
        if p0 < 7:
            for t in range(8):
                bb, ba = CB_ + 32 * (1 - buf) + 4 * t, CA + 32 * (1 - buf) + 4 * t
                reads += [f"ds_read_b128 {vr(bb,4)}, v{vB} offset:{3584-512*t+64*(p0+1)}",
                          f"ds_read_b64 {vr(ba,2)}, v{vA} offset:{64*(p0+1)+512*t}",
                          f"ds_read_b64 {vr(ba+2,2)}, v{vA} offset:{64*(p0+1)+512*t+8}"]
        prs = sorted([(t, m) for t in range(8) for m in range(8) if t + m <= 7], key=lambda x: (max(x), x[0] + x[1]))
        for i, (t, m) in enumerate(prs):
            b = [f"{MF} {vr(CACC+4*(t+m),4)}, {vr(CA+32*buf+4*t,4)}, {vr(CB_+32*buf+4*m,4)}, {vr(CACC+4*(t+m),4)}"]
            if i >= 8 and reads: b.append(reads.pop(0))
            beats.append(b)
    F = Fill()
    gap = opt("cgap", 1)
    wfl1 = f"buffer_load_dword v34, v91, {WSR}, 0 offen sc1"
    wfl2 = f"buffer_load_dword v34, v90, {WSR}, 0 offen sc1"
    na = NW1A // 4
    ar = lambda b, n: f"a[{b}:{b+n-1}]"
    tkw = p.tok()
    F(f"s_mov_b32 s{R_W}, s{sW2}\ns_mov_b32 s{R_W+1}, s{sW2+1}\ns_mul_i32 s{t5}, s{sW}, {PRIV}")
    for q in range(8):
        dma(F, WV[1], R_W, WX[1][q >> 2], 5120 * (q & 3), t5, PRIV - 10240 + 640 * q, 0xff, None, " nt", tkw)
        F.skip(1)
    tkx = x0_dma(F, PRIV - 5120, 1)
    flag_prewarm(F)
    F.skip(opt("wf_at", 150))
    F(wfl1)
    YT = 156
    F3 = Fill()
    F3(f"""s_mul_i32 s{t3}, s{sW}, {CONV_PITCH}
    s_add_u32 s{t3}, s{t3}, {CONV_BASE}
    v_lshlrev_b32 v80, 5, v{vN}
    v_lshl_add_u32 v80, v{vG}, 3, v80
    v_add_u32 v80, s{t3}, v80
    v_bfe_u32 v81, v0, 2, 2
    v_mul_u32_u24 v81, {CONV_PITCH}, v81
    v_and_b32 v82, 3, v0
    v_lshl_add_u32 v81, v82, 3, v81
    v_lshl_add_u32 v81, v{vG}, 5, v81
    s_lshl_b32 s{t0}, s{sW}, 10
    s_add_u32 s{t0}, s{t0}, {CONV_BASE}
    v_add_u32 v81, s{t0}, v81
    v_mul_u32_u24 v82, 20480, v{vG}
    v_lshl_add_u32 v82, v{vN}, 3, v82
    s_mul_i32 s{t4}, s{sW}, {32*20480}
    s_lshl_b32 s{t1}, s{sG}, 7
    s_add_u32 s{t4}, s{t4}, s{t1}
    s_add_u32 s{t4}, s{t4}, {WS_YG}
    s_lshl_b32 s{t0}, s{sG}, 9
    s_lshl_b32 s{t1}, s{sW}, 7
    s_add_u32 s{t0}, s{t0}, s{t1}
    s_add_u32 s{t0}, s{t0}, {WS_FY}
    v_mov_b32 v83, s{t0}
    s_lshl_b32 s{t0}, s{sJ}, 5
    s_add_u32 s{t0}, s{t0}, s{sSIG}
    s_lshl_b32 s{t0}, s{t0}, 4
    s_lshr_b32 s{t1}, s{t1}, 5
    s_add_u32 s{t0}, s{t0}, s{t1}
    s_add_u32 s{t0}, s{t0}, {WS_FL}
    v_mov_b32 v78, s{t0}
    v_mov_b32 v79, s{sTAG}""")
    merge(beats[:275], F)
    st("conv_cut")
    merge(beats[275:], F3)
    st("conv_done")
    for j in range(8):
        p(f"v_cvt_pk_bf16_f32 v{92+2*j}, v{CACC+4*j}, v{CACC+4*j+1}\nv_cvt_pk_bf16_f32 v{93+2*j}, v{CACC+4*j+2}, v{CACC+4*j+3}")
        p(f"ds_write_b64 v80, {vr(92+2*j,2)} offset:{512*j}")
    p("s_waitcnt lgkmcnt(0)\ns_barrier")
    for q in range(8):
        p(f"ds_read_b64_tr_b16 {vr(YT+2*q,2)}, v81 offset:{128*q}")
    for q in range(8):
        p(f"buffer_store_dwordx2 {vr(YT+2*q,2)}, v82, {WSR}, s{t4} offen sc1")
        if q < 7: p(f"s_add_u32 s{t4}, s{t4}, 81920")
    p(f"buffer_store_dword v79, v78, {WSR}, 0 offen{sc}")
    st("y_iss")
    for ft in range(5):
        p(f"ds_read_b64_tr_b16 {vr(108+4*ft,2)}, v{WV[1]+1} offset:{32*ft}\nds_read_b64_tr_b16 {vr(110+4*ft,2)}, v{WV[1]+2} offset:{32*ft}")
    x0_read(D, tkx, PRIV - 5120)
    for s_ in range(2): unpack(D, X32[s_], XP[s_], 5)
    p(f"s_waitcnt vmcnt(0)\nbuffer_store_dword v79, v83, {WSR}, 0 offen sc1")
    st("y_st")
    x0_stats(D, False)
    tkw2 = p.tok()
    for ft in range(5):
        if ft == 4: p(f"s_add_u32 s{WU[1]}, s{WU[1]}, 4096")
        p(f"buffer_store_dwordx4 {vr(108+4*ft,4)}, v{vL16}, {WSR}, s{WU[1]} offen offset:{1024*(ft%4)} sc1", tok_wr=tkw2)
    NAC, NAI = opt("nac", 0), opt("nai", 19)
    late_check(D, wfl1, [34], 32, False)
    st("w_late")
    p(f"s_mul_i32 s{t5}, s{sW}, {PRIV}")
    for q in range(NAC): w1_one(D, t5, q)
    publish(D, tkw2, WU[1] + 1, 0, 30, True, wb=False)
    p(f"s_branch {lab('W1DONE')}")

    p.label(lab("W_PHASE"))
    w_flag_addr(D, 90)
    tkx = x0_dma(D, RED_BASE, pitch=5120)
    flag_prewarm(D)
    p("s_barrier")
    spin_wait(wfl1, [34], False)
    st("w_flags")
    nb_ = (140 - NW1A) // 4
    def w1_range(q0, q1):
        if q0 < na: p(f"s_mul_i32 s{t5}, s{sW}, {PRIV}")
        for q in range(q0, q1):
            if q >= na and (q == na or q == q0): p(f"s_mul_i32 s{t5}, s{sW}, {nb_*1024}\ns_add_u32 s{t5}, s{t5}, {NW1A*1024}")
            w1_one(D, t5, q if q < na else q - na)
    w1_range(0, 8)
    x0_read(D, tkx, RED_BASE, pitch=5120)
    x0_stats(D)
    w1_range(8, NAI)
    p(f"""s_sub_u32 s{t0}, s{sSIG}, 20
    s_lshl_b32 s{t0}, s{t0}, 2
    s_add_u32 s{t0}, s{t0}, s{sW}
    s_mul_i32 s{t0}, s{t0}, {2*8192}
    s_add_u32 s{t0}, s{t0}, {WS_W1F}
    s_cmp_lt_u32 s{t0}, {WS_W1F + 4*143360}
    s_cselect_b32 s{t0}, s{t0}, 0x70000000
    s_add_u32 s{t1}, s{t0}, 8192
    v_lshlrev_b32 v30, 7, v0
    v_min_u32 v31, 79, v0
    v_lshlrev_b32 v31, 7, v31
    s_mov_b32 s{t2}, {WS_FW1}""")
    if not slow:
        p(f"v_add_u32 v33, 8192, v31\nv_min_u32 v33, {79*128}, v33")
        spin_wait(f"buffer_load_dword v32, v31, {WSR}, s{t2} offen sc1\nbuffer_load_dword v34, v33, {WSR}, s{t2} offen sc1", [32, 34], False, nap=4)
        p(f"buffer_load_dword v{JUNK}, v30, {WSR}, s{t0} offen sc1\nbuffer_load_dword v{JUNK}, v30, {WSR}, s{t1} offen sc1")
    p(f"""s_cmp_lg_u32 s{sSIG}, 31
    s_cbranch_scc1 {lab('NOCB')}
    s_cmp_gt_u32 s{sW}, 1
    s_cbranch_scc1 {lab('NOCB')}
    s_lshl_b32 s{t5}, s{sJ}, 1
    s_add_u32 s{t5}, s{t5}, s{sW}
    v_min_u32 v30, 19, v0
    s_mul_i32 s{t1}, s{t5}, {20*128}
    v_lshl_add_u32 v30, v30, 7, s{t1}
    s_mov_b32 s{t0}, {WS_FW1}
    s_mul_i32 s{t2}, s{t5}, 7
    s_mul_i32 s{t3}, s{t5}, 6
    s_add_u32 s{t3}, s{t3}, 12
    s_cmp_ge_u32 s{t5}, 12
    s_cselect_b32 s{t2}, s{t3}, s{t2}
    s_lshl_b32 s{t2}, s{t2}, 5
    v_min_u32 v32, 27, v0
    v_lshl_add_u32 v33, v32, 3, s{t2}
    v_min_u32 v33, 3448, v33
    global_load_dwordx2 v[92:93], v33, {pair(sB1)}
    v_lshlrev_b32 v32, 4, v32""")
    spin_wait(f"buffer_load_dword v31, v30, {WSR}, s{t0} offen sc1", [31], False)
    p(f"s_mul_i32 s{t0}, s{t5}, 8960\ns_add_u32 s{t0}, s{t0}, {WS_PS}")
    for ks in range(20):
        if ks % 9 == 0 and ks: p(f"s_add_u32 s{t0}, s{t0}, {448*9}")
        p(f"buffer_load_dwordx4 {vr(100+4*ks,4)}, v32, {WSR}, s{t0} offen offset:{448*(ks%9)} sc1")
    unpack(D, 96, 92, 2)
    for i in range(4): p(f"v_mul_f32 v{96+i}, 0x3fb8aa3b, v{96+i}")
    for ks in range(1, 20):
        p(f"v_pk_add_f32 v[100:101], v[100:101], {vr(100+4*ks,2)}\nv_pk_add_f32 v[102:103], v[102:103], {vr(102+4*ks,2)}")
    p(f"""s_mul_i32 s{t0}, s{t5}, 896
    s_add_u32 s{t0}, s{t0}, {WS_CB}
    buffer_store_dwordx4 v[100:103], v32, {WSR}, s{t0} offen sc1
    buffer_store_dwordx4 v[96:99], v32, {WSR}, s{t0} offen offset:448 sc1
    s_lshl_b32 s{t0}, s{t5}, 7
    s_add_u32 s{t0}, s{t0}, {WS_FC}
    v_mov_b32 v30, s{sTAG}
    v_mov_b32 v31, 0
    s_waitcnt vmcnt(0)
    buffer_store_dword v30, v31, {WSR}, s{t0} offen sc1""")
    p.label(lab("NOCB"))
    p(f"""s_lshl_b32 s{t0}, s{sJ}, 9
    s_add_u32 s{t0}, s{t0}, {WS_FL}
    v_lshlrev_b32 v31, 2, v0""")
    spin_wait(f"buffer_load_dword v30, v31, {WSR}, s{t0} offen sc1", [30], False, nap=4)
    st("hint")
    p.label(lab("W1DONE"))
    st("w1_issued")
    if not slow:
        pass
    p(f"s_mov_b32 s{t5}, s{sSTO}\ns_add_u32 s{t4}, s{sSTO}, 8192")
    p(stats_loads(G0[0], t5)); p(stats_loads(G0[1], t4))
    x0_norm(D)
    st("xn")

    def gate(e, s, layer, X2, G, YF, XN=None, defer=False, pk=False):
        if XN is None:
            stats_finish(e, G, 30)
            e(f"v_mul_f32 v32, -v30, v31")
        unpack(e, YF, YP[s], 5)
        if XN is None:
            XN = G
            if pk:
                for i in range(0, 10, 2): e(f"v_pk_fma_f32 {vr(G+i,2)}, {vr(X2+i,2)}, v[30:31], v[32:33] op_sel:[0,1,0] op_sel_hi:[1,1,0]")
            else:
                for i in range(10): e(f"v_fma_f32 v{G+i}, v{X2+i}, v31, v32")
        if pk:
            for i in range(0, 10, 2): e(f"v_pk_fma_f32 {vr(X2+i,2)}, {vr(XN+i,2)}, {vr(YF+i,2)}, {vr(X2+i,2)}")
        else:
            for i in range(10): e(f"v_fmac_f32 v{X2+i}, v{XN+i}, v{YF+i}")
        pack(e, XP[s], X2, 5)
        off = 40960 * s + LX(XF_LAYER, layer)
        wt = sc
        e(f"s_add_u32 s{t0}, s{sXW}, {off}\ns_add_u32 s{t1}, s{sXS}, {off}")
        e(f"buffer_store_dwordx4 {vr(XP[s],4)}, v{vL16}, {WSR}, s{t0} offen{wt}\nbuffer_store_dword v{XP[s]+4}, v{vL16}, {WSR}, s{t1} offen{sc}")
        tok = p.tok()
        if isinstance(e, Fill):
            c, fn = e.items[-1]
            e.items[-1] = (c, lambda fn=fn: setattr(fn(), "token_wr", tok))
        else:
            p.items[-1].token_wr = tok
        def stats():
            e(f"s_add_u32 s{t1}, s{sSTW}, {ST_K + LX(2*ST_K, layer) + 8192*s}")
            stats_publish(e, X2, G, t1, 0, slow, TG(layer))
        if defer: return tok, stats
        n0 = len(e.items) if isinstance(e, Fill) else None
        stats()
        last = e.items.pop()
        e(f"s_add_u32 s{t0}, s{sFXW}, {LX(8192, layer) + 128*s}")
        publish(e, tok, t0, 0, 32, slow, TG(layer), wb=False)
        e.items.append(last)

    AR, BR, NA, NB, AG = 160, 208, 12, 6, 4
    def a1_read(fi):
        fi0 = fi % 140
        return f"ds_read_b128 {vr(AR+4*(fi%NA),4)}, v{vA1[fi0//56]} offset:{1024*(fi0%56)}"
    def a_wait(fi):
        last = AR + 4 * ((fi + AG - 1) % NA)
        p.need(("v", last))
    def b_load(ks):
        l = []
        if ks % 4 == 0 and ks: l.append(f"s_add_u32 s{sB0}, s{sB0}, 4096")
        l.append(f"buffer_load_dwordx4 {vr(BR+4*(ks%NB),4)}, v{vL16}, {WSR}, s{sB0} offen offset:{1024*(ks%4)} sc1")
        return l
    def fx_load(s, layer, dst):
        return f"buffer_load_dword v{dst}, v{dst+1}, {WSR}, s{t2} offen sc1"
    def fx_prep(e, s, layer, dst):
        e(f"v_lshlrev_b32 v{dst+1}, 2, v{vN}\ns_add_u32 s{t2}, s{sFXR}, {LX(8192, layer) + 128*s}")
    def b_start(s, layer):
        p(f"s_add_u32 s{sB0}, s{sXR}, {40960*s + LX(XF_LAYER, layer)}")
        for ks in range(NB):
            for l in b_load(ks): p(l)
    def a_seq_read(seq, i):
        fi0 = seq[i]
        return f"ds_read_b128 {vr(AR+4*(i%NA),4)}, v{vA1[fi0//56]} offset:{1024*(fi0%56)}"
    def a_seq_wait(i):
        p.need(("v", AR + 4 * (i % NA)))
    def row_scalars(e, s, layer, G, o=30):
        e(f"s_add_u32 s{t5}, s{sSTR}, {ST_K + LX(2*ST_K, layer) + 8192*s}")
        e(stats_loads(G, t5))
        e.skip(30)
        late_check(e, stats_loads(G, t5), stats_tags(G), 32, False, TG(layer))
        stats_finish(e, G, o)
        e(f"v_mul_f32 v{o+1}, 0x3fb8aa3b, v{o+1}\nv_mul_f32 v{o}, -v{o}, v{o+1}")
    def act(s, layer, ACC, T, O, mid=None, sc_=30, extra=None, extra_from=0, every=5, K=(32, 34), extra0=None):
        LN2, M2 = K
        off = 110592 * s + LX(HF_LAYER, layer)
        p(f"v_mov_b32 v{LN2}, 0x3f317218\nv_mov_b32 v{M2}, 0xbfb17218\ns_add_u32 s{t0}, s{sHW}, {off}\ns_add_u32 s{t1}, s{sHS}, {off}")
        tok = p.tok()
        extra = list(extra or [])
        cnt = [0]
        def q(l, on):
            p(l)
            cnt[0] += 1
            if on and extra and cnt[0] % every == 0:
                for x in extra.pop(0): p(x)
            elif not on and extra0 and cnt[0] > 20 and cnt[0] % 5 == 0:
                for x in extra0.pop(0): p(x)
        for pr in range(4):
            n = 4 if pr < 3 else 2
            on = pr >= extra_from
            acc, cs, bb, o = ACC + 8 * pr, CS + 8 * pr, BB + 8 * pr, O + 4 * (pr % 2)
            for i in range(n): q(f"v_pk_fma_f32 {vr(T+2*i,2)}, {vr(cs+2*i,2)}, {vr(sc_,2)}, {vr(bb+2*i,2)} op_sel_hi:[1,0,1]", on)
            for i in range(n): q(f"v_pk_fma_f32 {vr(acc+2*i,2)}, {vr(acc+2*i,2)}, {vr(sc_,2)}, {vr(T+2*i,2)} op_sel:[0,1,0] op_sel_hi:[1,1,1]", on)
            for i in range(2*n): q(f"v_exp_f32 v{T+i}, v{acc+i}", on)
            if pr == 0 and mid and "start" in mid: mid["start"]()
            for i in range(n): q(f"v_pk_add_f32 {vr(T+2*i,2)}, {vr(T+2*i,2)}, 1.0 op_sel_hi:[1,0]", on)
            for i in range(n): q(f"v_pk_fma_f32 {vr(T+2*i,2)}, {vr(T+2*i,2)}, {vr(T+2*i,2)}, 1.0 op_sel_hi:[1,1,0]", on)
            for i in range(2*n): q(f"v_rcp_f32 v{T+i}, v{T+i}", on)
            for i in range(n): q(f"v_pk_fma_f32 {vr(T+2*i,2)}, {vr(T+2*i,2)}, {vr(M2,2)}, {vr(LN2,2)} op_sel_hi:[1,0,0]", on)
            for i in range(n): q(f"v_pk_mul_f32 {vr(acc+2*i,2)}, {vr(acc+2*i,2)}, {vr(T+2*i,2)}", on)
            pack(D, o, acc, n)
            if pr < 3:
                p(f"buffer_store_dwordx4 {vr(o,4)}, v{vL16}, {WSR}, s{t0} offen offset:{1024*pr}{WT(layer)}", tok_wr=tok)
            else:
                if s == 0 and layer == 0:
                    p(f"s_cmp_ge_u32 s{sN}, 12\ns_cselect_b32 s{sHS}, 0x70000000, s{sHS}\ns_cselect_b32 s{t1}, 0x70000000, s{t1}")
                p(f"buffer_store_dwordx2 {vr(o,2)}, v{vL8}, {WSR}, s{t1} offen{WT(layer)}", tok_wr=tok)
            if pr == extra_from - 1 and extra0:
                for g in extra0:
                    for x in g: p(x)
                extra0.clear()
            if mid and pr in mid: mid[pr]()
        for g in extra:
            for x in g: p(x)
        return tok
    def row_scalars2(e, s, layer, o):
        G = 120
        ld = "\n".join(f"buffer_load_dwordx3 {vr((G, G+4, G+8, 32)[i],3)}, v{vL16}, {WSR}, s{t5} offen offset:{1024*i} sc1" for i in range(4))
        e(f"s_add_u32 s{t5}, s{sSTR}, {ST_K + LX(2*ST_K, layer) + 8192*s}")
        e(ld)
        e.skip(30)
        late_check(e, ld, [G + 2, G + 6, G + 10, 34], 32, False, TG(layer))
        e(f"v_add_f32 v{G+8}, v{G+8}, v32\nv_add_f32 v{G+9}, v{G+9}, v33")
        stats_finish(e, G, o, three=True)
        e(f"v_mul_f32 v{o+1}, 0x3fb8aa3b, v{o+1}\nv_mul_f32 v{o}, -v{o}, v{o+1}")
    def act_fill(e, s, layer, ACC, T, O, sc_):
        off = 110592 * s + LX(HF_LAYER, layer)
        e(f"v_mov_b32 v34, 0x3f317218\ns_add_u32 s{t0}, s{sHW}, {off}\ns_add_u32 s{t1}, s{sHS}, {off}")
        tok = p.tok()
        for ft in range(7):
            acc, cs, bb, o = ACC + 4 * ft, CS + 4 * ft, BB + 4 * ft, O + 4 * ((ft // 2) % 2) + 2 * (ft % 2)
            for i in range(4): e(f"v_fma_f32 v{T+i}, v{cs+i}, v{sc_}, v{bb+i}")
            for i in range(4): e(f"v_fma_f32 v{acc+i}, v{acc+i}, v{sc_+1}, v{T+i}")
            for i in range(4): e(f"v_exp_f32 v{T+i}, v{acc+i}")
            for i in range(4): e(f"v_add_f32 v{T+i}, 1.0, v{T+i}")
            for i in range(4): e(f"v_fma_f32 v{T+i}, v{T+i}, v{T+i}, 1.0")
            for i in range(4): e(f"v_rcp_f32 v{T+i}, v{T+i}")
            for i in range(4): e(f"v_fmamk_f32 v{T+i}, v{T+i}, 0xbfb17218, v34")
            for i in range(4): e(f"v_mul_f32 v{acc+i}, v{acc+i}, v{T+i}")
            pack(e, o, acc, 2)
            if ft % 2 == 1: e(f"buffer_store_dwordx4 {vr(o-2,4)}, v{vL16}, {WSR}, s{t0} offen offset:{1024*(ft//2)}{WT(layer)}", tok_wr=tok)
            if ft == 6: e(f"buffer_store_dwordx2 {vr(o,2)}, v{vL8}, {WSR}, s{t1} offen{WT(layer)}", tok_wr=tok)
        return tok
    def w2_groups(q0, q1):
        out = []
        if opt("now2", 0): return out
        for qq_ in range(q0, q1):
            sb, qq = (sW2B, qq_) if qq_ < 60 else (sW2S, qq_ - 60)
            g = []
            if qq % 4 == 0 and qq > 0: g.append(f"s_add_u32 s{sb}, s{sb}, 4096")
            g.append(f"buffer_load_dwordx4 {w2reg(qq_)}, v{vW2}, {WSR}, s{sb} offen offset:{1024*(qq%4)}{' sc1' if opt('w2sc', 1) else ''}")
            out.append(g)
        return out
    HR, NH = 132, 15
    def fh_prep(e, s, layer, dst):
        e(f"v_bfe_u32 v{dst+1}, v0, 1, 2\nv_lshlrev_b32 v{dst+1}, 4, v{dst+1}\nv_and_b32 v{dst}, 1, v0\nv_lshl_add_u32 v{dst+1}, v{dst}, 2, v{dst+1}")
        e(f"s_add_u32 s{t3}, s{sFHR}, {LX(8192, layer) + 4096*s}")
    def fh_load(dst): return f"buffer_load_dword v{dst}, v{dst+1}, {WSR}, s{t3} offen sc1"
    def h_load(idx, layer):
        s, r = divmod(idx, 28)
        second, kl = divmod(r, 14)
        b = HR + 4 * (idx % NH)
        l = []
        if kl == 0:
            off = 110592 * s + LX(HF_LAYER, layer)
            if second: l.append(f"s_add_u32 s{sH0}, s{sHR}, {off}")
            else: l += [f"s_add_u32 s{sH0}, s{sH1}, {off}"]
        elif kl < 12 and kl % 4 == 0: l.append(f"s_add_u32 s{sH0}, s{sH0}, 4096")
        if kl < 12:
            l.append(f"buffer_load_dwordx4 {vr(b,4)}, v{vL16}, {WSR}, s{sH0} offen offset:{1024*(kl%4)} sc1")
        else:
            if kl == 12: l.append(f"s_add_u32 s{sH0}, s{sH0}, s{sB1_}")
            o = (kl - 12) * 1024
            l += [f"buffer_load_dwordx2 {vr(b,2)}, v{vL8}, {WSR}, s{sH0} offen offset:{o} sc1",
                  f"buffer_load_dwordx2 {vr(b+2,2)}, v{vL8}, {WSR}, s{sH0} offen offset:{o+512} sc1"]
        return l
    def g2_beats(s, layer, A, OWN, lim):
        beats = []
        for second in range(2):
            acc = OWN if second else A
            for kl in range(14):
                idx = 28 * s + 14 * second + kl
                for dt in range(5):
                    b = [f"{MF} {vr(acc+4*dt,4)}, {w2reg(kl*5+dt)}, {vr(HR+4*(idx%NH),4)}, {'0' if kl == 0 else vr(acc+4*dt,4)}"]
                    if dt == 4 and idx + NH < lim: b += h_load(idx + NH, layer)
                    beats.append(b)
        return beats
    def emit_tail(F, rest):
        items = F.items
        nb = sum(1 for c, _ in items if c == "skip")
        paced = [b_[1:] for b_ in rest]
        head = [[b_[0]] for b_ in rest]
        merge(head[:nb * 2], F)
        late = [x for pc in paced[:nb * 2] for x in pc]
        for l in late: p(l)
        merge([h_ + pc for h_, pc in zip(head[nb * 2:], paced[nb * 2:])])
    def red_addr(e, dst, x, extra=0, sh=4):
        e(f"s_xor_b32 s{t4}, s{sW}, {x}\ns_mul_i32 s{t4}, s{t4}, 5120\ns_add_u32 s{t4}, s{t4}, {RED_BASE + extra}\nv_add_u32 v{dst}, s{t4}, v{vL16 if sh == 4 else vL8}")
    def bar(e, tok=None):
        if tok is not None: e.need(tok)
        e.group(lambda: p("s_barrier"), 4)
    def roundA(e, s, A):
        red_addr(e, 33, 0)
        tk = p.tok()
        for dt in range(5): e(f"ds_write_b128 v33, {vr(A+4*dt,4)} offset:{1024*dt}", tok_wr=tk)
        red_addr(e, 33, 1); red_addr(e, 34, 3, 8)
        e.skip(opt("bs1", 6))
        bar(e, tk)
        for dt in range(5): e(f"ds_read_b64 {vr(A+2*dt,2)}, v33 offset:{1024*dt}")
        for dt in range(5): e(f"ds_read_b64 {vr(A+10+2*dt,2)}, v34 offset:{1024*dt}")
        e.skip(opt("bs2", 8))
        for i in range(10): e(f"v_add_f32 v{A+i}, v{A+i}, v{A+10+i}")
        bar(e)
        unpack(e, A + 10, XP[s], 5)
        for i in range(10): e(f"v_add_f32 v{A+i}, v{A+i}, v{A+10+i}")
    def roundB(e, s, A, OWN, last=False):
        tk = p.tok()
        for dt in range(5): e(f"ds_write_b64 v{vRB}, {vr(OWN+4*dt+2,2)} offset:{512*dt}", tok_wr=tk)
        for dt in range(5): e(f"v_add_f32 v{A+2*dt}, v{A+2*dt}, v{OWN+4*dt}\nv_add_f32 v{A+2*dt+1}, v{A+2*dt+1}, v{OWN+4*dt+1}")
        e.skip(opt("bs3", 2))
        bar(e, tk)
        for dt in range(5): e(f"ds_read_b64 {vr(A+10+2*dt,2)}, v{vRB+1} offset:{512*dt}")
        e.skip(opt("bs4", 5))
        for i in range(10): e(f"v_add_f32 v{A+i}, v{A+i}, v{A+10+i}")
    def roundB_addr(e):
        red_addr(e, vRB, 0, sh=3); red_addr(e, vRB + 1, 2, sh=3)
    vRB = 34
    def epi_stats(e, s, A, OWN):
        e(f"s_add_u32 s{t0}, s{sSTW}, {LX(2*ST_K, 1) + 8192*s}")
        stats_publish(e, A, OWN, t0, 0, slow, sTAG2)
    def epi_gate(e, s, A, OWN, w1=20, w2=20):
        e.skip(w1)
        e(f"s_add_u32 s{t5}, s{sSTO}, {LX(2*ST_K, 1) + 8192*s}")
        e(stats_loads(OWN, t5))
        e.skip(w2)
        st(f"eg{s}_chk", e)
        late_check(e, stats_loads(OWN, t5), stats_tags(OWN), 32, False, sTAG2)
        st(f"eg{s}_ok", e)
        gate(e, s, 1, A, OWN, A + 10)
    def out_store(e, s, A):
        pack(e, A + 10, A, 5)
        for dt in range(5): e(f"global_store_dword v{30+s}, v{A+10+dt}, {pair(sOUT)} offset:{32*dt}")

    p(f"""s_xor_b32 s{t0}, s{sW}, 1
    s_and_b32 s{t0}, s{t0}, 1
    s_sub_u32 s{sH1}, s{sHR}, 55296
    s_add_u32 s{t1}, s{sHR}, 55296
    s_cmp_eq_u32 s{t0}, 1
    s_cselect_b32 s{sH1}, s{t1}, s{sH1}
    s_mul_i32 s{sB1_}, s{sW}, 10240
    s_sub_u32 s{sB1_}, {49152 - 8192}, s{sB1_}
    s_cmp_eq_u32 s{sW}, 3
    s_cselect_b32 s{sB1_}, -8192, s{sB1_}
    s_lshl_b32 s{t0}, s{sA}, 2
    s_and_b32 s{t1}, s{sW}, 1
    s_add_u32 s{t0}, s{t0}, s{t1}
    s_lshl_b32 s{t0}, s{t0}, 3
    s_add_u32 s{t0}, s{t0}, s{sB}
    s_mul_i32 s{t4}, s{t0}, 2560
    s_lshr_b32 s{t1}, s{sP8}, 1
    s_add_u32 s{t4}, s{t4}, s{t1}
    s_add_u32 s{t4}, s{t4}, {WS_YG}
    s_add_u32 s{t5}, s{t4}, 40960
    v_min_u32 v31, 19, v0
    v_lshlrev_b32 v31, 9, v31
    s_mul_i32 s{t0}, s{sB}, 10240
    s_lshr_b32 s{t1}, s{sA}, 3
    s_lshl_b32 s{t1}, s{t1}, 7
    s_add_u32 s{t0}, s{t0}, s{t1}
    s_add_u32 s{t0}, s{t0}, {WS_FY}""")
    spin_wait(f"buffer_load_dword v30, v31, {WSR}, s{t0} offen sc1", [30], False)
    st("y_flag")
    for s in range(2):
        for t in range(5):
            p(f"buffer_load_dword v{YP[s]+t}, v{vL8}, {WSR}, s{(t4, t5)[s]} offen offset:{512*t} sc1")
    tka, sta = gate(D, 0, 0, X32[0], 112, 102, XN0[0], defer=True, pk=True)
    tkb, stb = gate(D, 1, 0, X32[1], 152, 142, XN0[1], defer=True, pk=True)
    sta()
    publish(D, tka, sFXW, 0, 32, slow, wb=False)
    publish(D, tkb, sFXW, 128, 32, slow, wb=False)
    stb()
    st('x_pub1')
    if not slow and HPW:
        p(f"""s_sub_u32 s{t2}, s{sHS}, 3072
        s_sub_u32 s{t3}, s{sHW}, 3072
        s_cmp_ge_u32 s{sN}, 12
        s_cselect_b32 s{t2}, s{t3}, s{t2}
        v_and_b32 v33, 31, v0
        v_min_u32 v33, 27, v33
        v_lshlrev_b32 v30, 7, v33
        v_add_u32 v31, s{sHW}, v30
        v_add_u32 v32, s{t2}, v30
        v_cmp_gt_u32 vcc, 24, v33
        v_cndmask_b32 v31, v32, v31, vcc
        v_lshrrev_b32 v32, 5, v0
        v_mul_u32_u24 v32, 110592, v32
        v_add_u32 v126, v31, v32""")
        if HPW == 1: p(f"buffer_load_dword v{JUNK}, v126, {WSR}, 0 offen sc1")
    p(f"s_cmp_ge_u32 s{sSIG}, 20\ns_cbranch_scc1 {lab('RESTI')}")
    w1_range(NAC, na)
    p("s_barrier")
    w1_range(na, 35)
    p(f"s_branch {lab('HAVEB')}")
    p.label(lab("RESTI"))
    w1_range(NAI, 35)
    p.label(lab("HAVEB"))
    p("s_waitcnt vmcnt(0)")
    st("w1_in")
    p("s_barrier")
    EX, EY = (192, 212), (92, 112)
    ACCX, ACCY = 132, 92
    class Ring:
        def __init__(self, slots): self.free, self.q, self.at = list(slots), [], {}
        def push(self, key, fn): self.q.append((key, fn))
        def issue(self, n=1):
            out = []
            while n and self.q and self.free:
                key, fn = self.q.pop(0)
                self.at[key] = self.free.pop(0)
                out += fn(self.at[key]); n -= 1
            return out
        def release(self, key): self.free.append(self.at[key])
    def x_load(s_, ks, base):
        sb = (sB0, sXY)[s_]
        def fn(r):
            l = []
            if ks == 0: l.append(f"s_add_u32 s{sb}, s{sXR}, {base + 40960*s_}")
            elif ks % 4 == 0: l.append(f"s_add_u32 s{sb}, s{sb}, 4096")
            return l + [f"buffer_load_dwordx4 {vr(r,4)}, v{vL16}, {WSR}, s{sb} offen offset:{1024*(ks%4)} sc1"]
        return fn
    def hq_load(idx, layer):
        def fn(r):
            old_ = f"v[{HR+4*(idx%NH)}:"
            out = []
            for l in h_load(idx, layer):
                b0 = HR + 4 * (idx % NH)
                l = l.replace(vr(b0, 4), vr(r, 4)).replace(vr(b0, 2) + ",", "@A,").replace(vr(b0 + 2, 2) + ",", "@B,")
                out.append(l.replace("@A", vr(r, 2)).replace("@B", vr(r + 2, 2)))
            return out
        return fn
    carry = None
    for layer in range(2):
        L = f"L{layer}_"
        if layer == 1 and opt("rerun", 0) and not slow:
            p(f"s_mov_b32 s{sE}, 0")
            p.label("RERUN")
            st("L1_head")
        seq = list(range(140)) * (1 + layer)
        for i in range(0 if layer == 0 else APRE, NA): p(a_seq_read(seq, i))
        def attach(b, i):
            if i + NA < len(seq): b.append(a_seq_read(seq, i + NA))
            if i % AG == AG - 1 and i + 1 < len(seq): b.append(lambda i=i: a_seq_wait(min(i + AG, len(seq) - 1)))
        xoff = LX(XF_LAYER, layer)
        H = Ring(range(HR, HR + 4 * NH, 4))
        for idx in range(28): H.push(idx, hq_load(idx, layer))
        if layer == 0:
            R = Ring(range(BR, BR + 4 * NB, 4))
            p(f"v_and_b32 v31, 16, v0\nv_lshlrev_b32 v31, 3, v31\nv_lshl_add_u32 v31, v{vN}, 2, v31\ns_mov_b32 s{t2}, s{sFXR}")
            spin_wait(fx_load(0, layer, 30), [30], False)
            st(L + "x_seen")
            for ks in range(20):
                for s_ in (1, 0): R.push((s_, ks), x_load(s_, ks, xoff))
            for l in R.issue(NB): p(l)
            p(f"""s_or_b32 s{t0}, s2, s{sW}
            s_cmp_eq_u32 s{t0}, 0
            s_cselect_b32 s{t0}, 0, 0x70000000
            v_mov_b32 v33, s{sTAG}
            v_mov_b32 v34, 0
            buffer_store_dword v33, v34, {WSR}, s{t0} offen sc1""")
            beats = []
            for ks in range(20):
                for ft in range(7):
                    i = ks * 7 + ft
                    for s_ in (1, 0):
                        acc = (ACCX, ACCY)[s_] + 4 * ft
                        b = [f"{MF} {vr(acc,4)}, {vr(AR+4*(i%NA),4)}, {vr(R.at[(s_, ks)],4)}, {'0' if ks == 0 else vr(acc,4)}"]
                        if s_ == 0: attach(b, i)
                        if ft == 6: R.release((s_, ks))
                        b += R.issue(1)
                        beats.append(b)
            F = Fill()
            F(f"s_lshl_b32 s{t3}, s{sN}, 7\ns_add_u32 s{t3}, s{t3}, {WS_FC}\nv_mov_b32 v121, v90\nv_writelane_b32 v121, s{t3}, 63\ns_mov_b32 s{t3}, 0")
            F(fh_load(120))
            st("s12_a", F)
            row_scalars(F, 0, layer, 36)
            st("s12_b", F)
            late_check(F, fh_load(120), [120], 124, False)
            st("s12_c", F)
            row_scalars(F, 1, layer, 36, 122)
            st("s12_d", F)
            F(f"s_mul_i32 s{t0}, s{sN}, 896\ns_add_u32 s{t0}, s{t0}, {WS_CB}\nv_lshlrev_b32 v124, 4, v{vG}")
            for i in range(14):
                F(f"buffer_load_dwordx4 {vr(CS+4*i,4)}, v124, {WSR}, s{t0} offen offset:{64*i} sc1")
            st("s12_e", F)
            if not slow and HPW == 2: F(f"buffer_load_dword v{JUNK}, v126, {WSR}, 0 offen sc1")
            N12 = opt("n12", 40)
            for q in range(NW2E, N12):
                w2_loads(F, q, q + 1, vW2)
                F.skip(opt("w2gap", 5))
            merge(beats, F)
            st(L + "S12")
            NA1 = max(N12, opt("na1", 70))
            NA2 = max(NA1, opt("na2", 70))
            tokx = act(0, layer, ACCX, 192, 200, extra=w2_groups(N12, NA1), every=opt("ev1", 3), K=(208, 210))
            p(f"s_add_u32 s{t4}, s{sFHW}, {LX(8192, layer)}")
            fh_prep(D, 0, layer, 120)
            st(L + "A1")
            tokh = act(1, layer, ACCY, 192, 200, sc_=122, K=(208, 210),
                       mid={"start": lambda: publish(D, tokx, t4, 0, 124, slow, TG(layer), wb=False), 1: lambda: p(fh_load(120)),
                            2: lambda: late_check(D, fh_load(120), [120], 124, False, TG(layer))},
                       extra=[H.issue(1) for _ in range(opt("hpre", 6))], extra_from=3, every=3, extra0=w2_groups(NA1, NA2))
        else:
            R = carry
            def g1_pass(s_, acc0):
                beats = []
                for ks in range(20):
                    for ft in range(7):
                        i = 140 * s_ + ks * 7 + ft
                        b = [f"{MF} {vr(acc0+4*ft,4)}, {vr(AR+4*(i%NA),4)}, {vr(R.at[(s_, ks)],4)}, {'0' if ks == 0 else vr(acc0+4*ft,4)}"]
                        attach(b, i)
                        if ft == 6:
                            R.release((s_, ks)); b += R.issue(1)
                        beats.append(b)
                return beats
            F = Fill()
            roundB(F, 1, *EY)
            epi_stats(F, 1, *EY)
            bar(F)
            st(L + "st_pub", F)
            epi_gate(F, 1, *EY, w1=opt("e1a", 6), w2=opt("e1b", 12))
            st(L + "yY_pub", F)
            row_scalars(F, 0, layer, 92)
            merge(g1_pass(0, ACCX), F, rate=opt("r1", 12))
            st(L + "S1")
            fx_prep(D, 1, layer, 120)
            p(fx_load(1, layer, 120))
            for ks in range(20): R.push((1, ks), x_load(1, ks, xoff))
            tokx = act(0, layer, ACCX, 92, 100, K=(108, 110), mid={opt("a1c", 1): lambda: late_check(D, fx_load(1, layer, 120), [120], 122, False, TG(layer))},
                       extra=[R.issue(1) for _ in range(NB)], extra_from=opt("a1c", 1) + 1, every=5)
            st(L + "A1")
            F = Fill()
            F.skip(8)
            F(f"s_add_u32 s{t4}, s{sFHW}, {LX(8192, layer)}")
            publish(F, tokx, t4, 0, 32, slow, TG(layer), wb=False)
            row_scalars(F, 1, layer, 120)
            fh_prep(F, 0, layer, 120)
            F(fh_load(120))
            merge(g1_pass(1, ACCY), F)
            st(L + "S2")
            late_check(D, fh_load(120), [120], 124, False, TG(layer))
            tokh = act(1, layer, ACCY, 192, 200, K=(208, 210), extra=[H.issue(1) for _ in range(NH)], every=8)
        st(L + "A2")
        c3 = opt("c3", 66)
        bts = []
        KOUT = layer == 0 and opt("kout", 0)
        late_w2 = w2_groups(NA2, 70) if layer == 0 else []
        for s_ in range(2):
            A_, OWN_ = (EX, EY)[s_]
            order = [(second, kl) for second in range(2) for kl in range(14)]
            if KOUT and s_ == 0: order = [(second, kl) for kl in range(14) for second in range(2)]
            for second, kl in order:
                acc = OWN_ if second else A_
                idx = 28 * s_ + 14 * second + kl
                for dt in range(5):
                    nb_i = len(bts)
                    b = [f"{MF} {vr(acc+4*dt,4)}, {w2reg(kl*5+dt)}, {vr(H.at[idx],4)}, {'0' if kl == 0 else vr(acc+4*dt,4)}"]
                    if nb_i == c3:
                        b.append(lambda: late_check(D, fh_load(120), [120], 122, False, TG(layer)))
                        for i2 in range(28, 56): H.push(i2, hq_load(i2, layer))
                    if dt == 4: H.release(idx)
                    if nb_i % 3 == 0 or dt == 4: b += H.issue(1)
                    if late_w2 and nb_i % 3 == 1: b += late_w2.pop(0)
                    bts.append(b)
        F = Fill()
        F.skip(opt("p3", 6))
        F(f"s_add_u32 s{t4}, s{sFHW}, {LX(8192, layer) + 4096}")
        publish(F, tokh, t4, 0, 32, slow, TG(layer), wb=False)
        fh_prep(F, 1, layer, 120)
        F.skip(c3 - opt("p3", 6) - 30)
        F(fh_load(120))
        merge(bts[:72], F)
        st(L + "S3a")
        F = Fill()
        roundA(F, 0, EX[0])
        roundB_addr(F)
        merge(bts[72:142], F)
        st(L + "S3")
        F = Fill()
        roundB(F, 0, *EX)
        F2 = Fill()
        if layer == 0:
            epi_stats(F, 0, *EX)
            bar(F)
            epi_gate(F, 0, *EX, w1=opt("e4a", 6), w2=opt("e4b", 12))
            st(L + "xX_pub", F)
            roundA(F2, 1, EY[0])
            roundB_addr(F2)
            carry = Ring(range(BR, BR + 4 * NB, 4))
            for ks in range(20): carry.push((0, ks), x_load(0, ks, LX(XF_LAYER, 1)))
            APRE = 0
            fx_prep(F2, 0, 1, 30)
            F2(fx_load(0, 1, 30))
            F2.skip(opt("e4c", 12))
            late_check(F2, fx_load(0, 1, 30), [30], 32, False, TG(1))
            st("L1_xX_seen", F2)
            for _ in range(NB):
                for l in carry.issue(1): F2(l)
        else:
            bar(F)
            F.group(lambda: xy_offset(30), 40)
            roundA(F2, 1, EY[0])
            roundB_addr(F2)
            out_store(F2, 0, EX[0])
        merge2(bts[142:], F, F2, 70, opt("r4", 12))
        st(L + "S4")
    if opt("rerun", 0) and not slow:
        p(f"s_cmp_lg_u32 s{sE}, 0\ns_cbranch_scc1 RERUN_DONE\ns_mov_b32 s{sE}, 1\nv_mov_b32 v{JUNK}, v{vSTAMP}\ns_branch RERUN")
        p.label("RERUN_DONE")
    roundB(D, 1, *EY)
    out_store(D, 1, EY[0])
    if STAMPS and not slow:
        stamp("end")
        if DBG is not None:
            p(f"""v_readlane_b32 s{t0}, v{vSTAMP}, 0
            s_not_b32 s{t0}, s{t0}
            v_writelane_b32 v{vSTAMP}, s{t0}, 15
            v_lshlrev_b32 v30, 2, v0
            s_mov_b64 exec, 0xffff
            global_atomic_umax v30, v{vSTAMP}, {pair(sDBG)}
            s_mov_b64 exec, -1""")
        p(f"""s_lshl_b32 s{t0}, s2, 2
        s_add_u32 s{t0}, s{t0}, s{sW}
        s_lshl_b32 s{t0}, s{t0}, 8
        s_add_u32 s{t0}, s{t0}, {WS_STAMP}
        v_lshlrev_b32 v30, 2, v0
        buffer_store_dword v{vSTAMP if opt("rerun", 0) != 2 else JUNK}, v30, {WSR}, s{t0} offen""")
    p("s_endpgm")
    while tail_code: tail_code.pop(0)()

body(False)
body(True)
p.label("END")
p("s_endpgm")
p.raw('.section .rodata,"a"\n.p2align 6')
p.raw(f".amdhsa_kernel {KN}")
for l in ["next_free_vgpr 512", "next_free_sgpr 102", "accum_offset 256", "group_segment_fixed_size 0", "kernarg_size 104",
          "user_sgpr_count 2", "user_sgpr_kernarg_segment_ptr 1", "system_sgpr_workgroup_id_x 1", "float_denorm_mode_32 3"]:
    p.raw("  .amdhsa_" + l)
p.raw(".end_amdhsa_kernel")
out = [a for a in ARGS if not a.startswith("--")][0]
open(out, "w").write(p.finalize())
if STAMPS: open(out + ".stamps", "w").write("\n".join(stamp_names))
```

```python
import sys
from gasm import Prog, Ins

NAME = "interleave_layers__ssm_conv_h3__dense_activation_mish__prompt"
ARGS = sys.argv[1:]
STAMPS = "--stamps" in ARGS or "--cstamps" in ARGS
STAMP_INS = "s_memtime" if "--cstamps" in ARGS else "s_memrealtime"
FORCE_SLOW = "--slow" in ARGS
def opt(name, default):
    for a in ARGS:
        if a.startswith(f"--{name}="): return type(default)(a.split("=", 1)[1])
    return default
SPIN = 400000
NT = lambda n, d: ' nt' if opt('nt_' + n, d) else ''

WS_EPOCH, WS_FT, WS_FC = 0, 0x1000, 0x2000
WS_FW1, WS_FW2 = 0x60000, 0x6A000
WS_FTR = 0x11000
WS_XC = 0x36000
WS_FL = 0x10000
WS_FY, WS_FX, WS_FH, WS_CB, WS_PS = 0x40000, 0x4000, 0x8000, 0xC000, 0x12000
WS_ST, WS_UR, WS_YG, WS_XF, WS_HF, WS_W1F, WS_W2F, WS_STAMP = 0x100000, 0x300000, 0x600000, 0xB00000, 0x1000000, 0x1E00000, 0x2100000, 0x3000000
XF_LAYER, HF_LAYER, ST_K = 128 * 20 * 1024, 128 * 54 * 1024, 128 * 4096

LDS_BYTES = 163840
CONV_PITCH, HC_PITCH = 21312, 4160
LU_OFF = 4 * HC_PITCH
CONV_BASE = LDS_BYTES - 4 * CONV_PITCH
T_BASE = 0
TW_PITCH = 6400
UT_BASE = 4 * TW_PITCH
WST_BASE = CONV_BASE
RED_BASE = 143360
NW1A = 76

sQ, sK, sV, sSK, sH, sD, sBX, sW1, sB1, sW2, sOUT, sDBG, sWS = [4 + 2 * i for i in range(13)]
R_WS, R_K, R_V, R_H, R_W = 32, 36, 40, 44, 48
sJ, sSIG, sW, sA, sB, sM, sN, sTAG, sE, sDVAL, sXV, sSPIN = range(52, 64)
t0, t1, t2, t3, t4, t5, t6, t7 = range(64, 72)
sSTAMP = 72
WU = [98, 98]
sXR, sXW, sXS, sHW, sHS, sHR, sFXR, sFXW, sFHR, sFHW, sSTW, sSTO, sSTR, sP8, sW2B, sW2S, sGOTA = range(76, 93)
sB0, sB1_, sH0, sH1 = 93, 94, 95, 96
sTAG2 = 97
sH2 = 99
sXY = 98
sG = 3
srd = lambda r: f"s[{r}:{r+3}]"
pair = lambda r: f"s[{r}:{r+1}]"
WSR = srd(R_WS)

vL16, vN, vG, vL8, vSTAMP = 1, 2, 3, 4, 5
XP = [6, 12]
YP = [17, 22]
JUNK = 27
vA1 = [vL16, 28, 29]
CS, BB = 36, 64
vr = lambda b, n: f"v[{b}:{b+n-1}]" if n > 1 else f"v{b}"
def w2reg(q):
    return f"a[{4*q}:{4*q+3}]" if q < 64 else f"v[{232+4*(q-64)}:{232+4*(q-64)+3}]"
MF = "v_mfma_f32_16x16x32_bf16"

p = Prog()
p.junk = {('v', JUNK)}
stamp_names = []
tail_code = []

class Fill:
    def __init__(self): self.items = []
    def __call__(self, s, tok_wr=None):
        ls = [l.strip() for l in s.strip("\n").split("\n") if l.strip() and not l.strip().startswith(";")]
        for i, l in enumerate(ls):
            c = 8 if l.split()[0] in ("v_exp_f32", "v_rcp_f32", "v_sqrt_f32", "v_rsq_f32") else 4
            self.items.append((c, (lambda l=l, t=(tok_wr if i == len(ls) - 1 else None): p(l, tok_wr=t))))
    def group(self, fn, cost): self.items.append((cost, fn))
    def skip(self, n): self.items.append(("skip", n))
    def until(self, n): self.items.append(("until", n))
    def need(self, *t): self.items.append((4, lambda: p.need(*t)))
    def L(self, x): return p.L(x)

class Direct:
    def __call__(self, s, tok_wr=None): p(s, tok_wr=tok_wr)
    def group(self, fn, cost): fn()
    def skip(self, n): pass
    def until(self, n): pass
    def need(self, *t): p.need(*t)
D = Direct()

def merge(beats, fill=None, rate=8, flush=True):
    items = list(fill.items) if fill else []
    credit = 0
    hold = 0
    for bi, b in enumerate(beats):
        for x in b:
            if callable(x): x()
            else: p(x)
        credit = min(credit, 0) + rate - 4 * (len(b) - 1)
        if hold > 0:
            hold -= 1; continue
        while items and credit > 0:
            c, fn = items[0]
            if c == "skip":
                items.pop(0); hold = fn; break
            if c == "until":
                if bi < fn: break
                items.pop(0); continue
            if c > credit and credit < 4: break
            items.pop(0); fn(); credit -= c
    if not flush: return items
    for c, fn in items:
        if c not in ("skip", "until"): fn()

def merge2(beats, F, F2, at, rate):
    n = len(F.items)
    items = list(F.items)
    class R: pass
    r = R(); r.items = items
    left = merge(beats[:at], r, rate, flush=False)
    r2 = R(); r2.items = left + list(F2.items)
    merge(beats[at:], r2, rate if left else opt('ra', 6))

DBG = opt("dbg", "").split(",") if opt("dbg", "") else None
ONLY = opt("only", "").split(",") if opt("only", "") else None
def stamp(name, e=None):
    if not STAMPS: return
    if ONLY is not None and name not in ONLY and name not in ("start", "end"): return
    if DBG is not None:
        if name not in DBG: return
        i = DBG.index(name)
        fn = lambda: p(f"{STAMP_INS} {pair(sSTAMP)}\ns_waitcnt lgkmcnt(0)\nv_writelane_b32 v{vSTAMP}, s{sSTAMP}, {i}")
        (e or D).group(fn, 12)
        return
    if name not in stamp_names: stamp_names.append(name)
    i = stamp_names.index(name)
    assert i < 64
    fn = lambda: p(f"{STAMP_INS} {pair(sSTAMP)}\ns_waitcnt lgkmcnt(0)\nv_writelane_b32 v{vSTAMP}, s{sSTAMP}, {i}")
    (e or D).group(fn, 12)

def spin_wait(load_lines, checks, slow_inv, tag=None, nap=None):
    L, L2, X = p.L("POLL"), p.L("POLLB"), p.L("POLLX")
    nap = opt("nap", 2) if nap is None else nap
    p(f"s_mov_b32 s{sSPIN}, 0\ns_branch {L2}")
    p.label(L)
    if nap: p(f"s_sleep {nap}")
    p(f"s_add_u32 s{sSPIN}, s{sSPIN}, 1\ns_cmp_gt_u32 s{sSPIN}, {SPIN}\ns_cbranch_scc1 {X}")
    p.label(L2)
    p(load_lines)
    p("s_waitcnt vmcnt(0)")
    for r in checks:
        p(f"v_cmp_ne_u32 vcc, s{tag or sTAG}, v{r}\ns_cbranch_vccnz {L}")
    p.label(X)
    if slow_inv: p("buffer_inv sc1\ns_waitcnt vmcnt(0)")

def late_check(e, load_lines, checks, tmp, slow_inv, tag=None):
    TG = tag or sTAG
    def fn():
        S, B = p.L("SPIN"), p.L("BACK")
        if len(checks) == 1:
            p(f"v_cmp_ne_u32 vcc, s{TG}, v{checks[0]}")
        else:
            assert len(checks) == 4
            a_, b_, c_, d_ = checks
            p(f"""v_xor_b32 v{a_}, v{a_}, v{b_}
            v_xor_b32 v{c_}, v{c_}, v{d_}
            v_xor_b32 v{b_}, v{b_}, v{d_}
            v_xor_b32 v{d_}, s{TG}, v{d_}
            v_or3_b32 v{a_}, v{a_}, v{b_}, v{c_}
            v_or_b32 v{a_}, v{a_}, v{d_}
            v_cmp_ne_u32 vcc, 0, v{a_}""")
        p(f"s_cbranch_vccnz {S}")
        p.label(B)
        if slow_inv: p("buffer_inv sc1\ns_waitcnt vmcnt(0)")
        def tail():
            p.label(S)
            spin_wait(load_lines, checks, False, TG)
            p(f"s_branch {B}")
        tail_code.append(tail)
    e.group(fn, 8 if len(checks) == 1 else 32)

def unpack(e, dst, src, n):
    for i in range(n):
        e(f"v_lshlrev_b32 v{dst+2*i}, 16, v{src+i}\nv_and_b32 v{dst+2*i+1}, 0xffff0000, v{src+i}")
def pack(e, dst, src, n):
    for i in range(n):
        e(f"v_cvt_pk_bf16_f32 v{dst+i}, v{src+2*i}, v{src+2*i+1}")
def bf16r(e, r):
    e(f"v_cvt_pk_bf16_f32 v{r}, v{r}, v{r}\nv_lshlrev_b32 v{r}, 16, v{r}")

def stats_publish(e, x, g, soff, imm, slow, tag=None):
    e(f"v_add_f32 v{g}, v{x}, v{x+1}\nv_mul_f32 v{g+1}, v{x}, v{x}\nv_mul_f32 v{g+3}, v{x+1}, v{x+1}\nv_add_f32 v{g+2}, v{x+2}, v{x+3}")
    for i in range(2, 10, 2):
        e(f"v_fmac_f32 v{g+1}, v{x+i}, v{x+i}\nv_fmac_f32 v{g+3}, v{x+i+1}, v{x+i+1}")
        if i >= 4: e(f"v_add_f32 v{g}, v{g}, v{x+i}\nv_add_f32 v{g+2}, v{g+2}, v{x+i+1}")
    e(f"v_add_f32 v{g}, v{g}, v{g+2}\nv_add_f32 v{g+1}, v{g+1}, v{g+3}\nv_lshlrev_b32 v{g+3}, 4, v{vN}\nv_mov_b32 v{g+2}, s{tag or sTAG}")
    e(f"v_permlane16_swap_b32 v{g}, v{g+1}\nv_add_f32 v{g}, v{g}, v{g+1}\nv_mov_b32 v{g+1}, v{g}")
    e(f"v_permlane32_swap_b32 v{g}, v{g+1}\nv_add_f32 v{g}, v{g}, v{g+1}\nv_mov_b32 v{g+1}, v{g}")
    e(f"v_permlane16_swap_b32 v{g}, v{g+1}")
    e(f"buffer_store_dwordx3 {vr(g,3)}, v{g+3}, {WSR}, s{soff} offen offset:{imm}{' sc1' if slow else ''}")

def stats_loads(G, soff):
    return "\n".join(f"buffer_load_dwordx3 {vr(G+4*i,3)}, v{vL16}, {WSR}, s{soff} offen offset:{1024*i} sc1" for i in range(4))
def stats_tags(G): return [G + 2, G + 6, G + 10, G + 14]

def stats_finish(e, G, o, three=False):
    e(f"v_add_f32 v{G}, v{G}, v{G+4}\nv_add_f32 v{G+1}, v{G+1}, v{G+5}")
    if not three: e(f"v_add_f32 v{G+8}, v{G+8}, v{G+12}\nv_add_f32 v{G+9}, v{G+9}, v{G+13}")
    e(f"v_add_f32 v{G}, v{G}, v{G+8}\nv_add_f32 v{G+1}, v{G+1}, v{G+9}")
    e(f"v_permlane16_swap_b32 v{G}, v{G+1}\nv_add_f32 v{G}, v{G}, v{G+1}\nv_mov_b32 v{G+1}, v{G}")
    e(f"v_permlane32_swap_b32 v{G}, v{G+1}\nv_add_f32 v{G}, v{G}, v{G+1}\nv_mul_f32 v{o}, 0x3acccccd, v{G}\nv_mul_f32 v{o+1}, 0x3acccccd, v{G}")
    e(f"v_permlane16_swap_b32 v{o}, v{o+1}")
    s, q = o, o + 1
    e(f"v_fma_f32 v{q}, -v{s}, v{s}, v{q}\nv_max_f32 v{q}, 0, v{q}")
    e(f"v_cvt_pk_bf16_f32 v{q}, v{q}, v{s}\nv_and_b32 v{s}, 0xffff0000, v{q}\nv_lshlrev_b32 v{q}, 16, v{q}")
    e(f"v_add_f32 v{q}, 0x3727c5ac, v{q}")
    bf16r(e, q)
    e(f"v_sqrt_f32 v{q}, v{q}")
    bf16r(e, q)
    e(f"v_rcp_f32 v{q}, v{q}")

def publish(e, tok, soff, imm, tmp, slow, tag=None, wb=True):
    e(f"v_mov_b32 v{tmp}, s{tag or sTAG}\nv_mov_b32 v{tmp+1}, 0")
    e.need(tok)
    if slow and wb:
        e.group(lambda: p(f"s_waitcnt vmcnt(0)\nbuffer_wbl2 sc1\ns_waitcnt vmcnt(0)"), 8)
    e(f"buffer_store_dword v{tmp}, v{tmp+1}, {WSR}, s{soff} offen offset:{imm}{' sc1' if slow else ''}")

vHOFF = 35
HD = 170
def h_loads():
    for q in range(5):
        if q == 4: p("s_mov_b64 exec, 15")
        p(f"buffer_load_dwordx4 {vr(HD+6*q,4)}, v{vHOFF}, {srd(R_H)}, 0 offen nt")
        if q < 4: p(f"v_add_u32 v{vHOFF}, 1024, v{vHOFF}")
    p("s_mov_b64 exec, -1")
def h_build(first):
    if first is None: return h_rows(range(HB_DONE[0], 5))
    HB_DONE[0] = first
    p(f"v_cmp_lt_u32 vcc, 1, v0")
    for i in range(4): p(f"v_cndmask_b32 v{HD+i}, 0, v{HD+i}, vcc")
    for q in range(5):
        d = HD + 6 * q
        for i in range(2):
            p(f"v_mov_b32_dpp v{d+4+i}, v{d+i} wave_shl:1 row_mask:0xf bank_mask:0xf")
        if q < 4:
            for i in range(2): p(f"v_readfirstlane_b32 s{t6+i}, v{d+6+i}")
            for i in range(2): p(f"v_writelane_b32 v{d+4+i}, s{t6+i}, 63")
    h_rows(range(first))
HB_DONE = [0]
def h_rows(rows):
    for q in rows:
        d, S = HD + 6 * q, 200 + 12 * (q % 2)
        if q == 4: p("s_mov_b64 exec, 7")
        p(f"ds_write_b128 v33, {vr(d,4)} offset:{1024*q}")
        for i in range(4): p(f"v_alignbit_b32 v{S+i}, v{d+i+1}, v{d+i}, 16")
        p(f"ds_write_b128 v33, {vr(S,4)} offset:{1024*q + HC_PITCH}")
        for i in range(4): p(f"v_mov_b32 v{S+4+i}, v{d+i+1}")
        p(f"ds_write_b128 v33, {vr(S+4,4)} offset:{1024*q + 2*HC_PITCH}")
        for i in range(4): p(f"v_alignbit_b32 v{S+8+i}, v{d+i+2}, v{d+i+1}, 16")
        p(f"ds_write_b128 v33, {vr(S+8,4)} offset:{1024*q + 3*HC_PITCH}")
    p("s_mov_b64 exec, -1")

def w_unit_params(rep):
    Bq, E = p.L("WU2"), p.L("WUE")
    sv = WU[rep]
    p(f"""s_sub_u32 s{t0}, s{sSIG}, {20 if rep == 0 else -12}
    s_lshl_b32 s{t0}, s{t0}, 2
    s_add_u32 s{t0}, s{t0}, s{sW}
    s_mov_b32 s{R_W+2}, 2211840
    v_mov_b32 v32, 0
    s_cmp_ge_u32 s{t0}, 40
    s_cbranch_scc1 {Bq}
    s_mul_i32 s{t1}, s{sJ}, 40
    s_add_u32 s{t0}, s{t0}, s{t1}
    s_and_b32 s{t7}, s{t0}, 15
    s_lshr_b32 s{t6}, s{t0}, 4
    s_mul_i32 s{t0}, s{t7}, 20
    s_add_u32 s{t0}, s{t0}, s{t6}
    s_mul_i32 s{sv}, s{t0}, 7168
    s_add_u32 s{sv}, s{sv}, {WS_W1F}
    s_mul_i32 s{sv+3}, s{t0}, 448
    s_add_u32 s{sv+3}, s{sv+3}, {WS_PS}
    s_lshr_b32 s{t1}, s{t6}, 1
    s_mul_i32 s{t1}, s{t1}, 80
    s_and_b32 s{t2}, s{t6}, 1
    s_lshl_b32 s{t2}, s{t2}, 1
    s_add_u32 s{t1}, s{t1}, s{t2}
    s_add_u32 s{t2}, s{t1}, 32
    s_sub_u32 s{t3}, s{t6}, 16
    s_mul_i32 s{t3}, s{t3}, 160
    s_add_u32 s{t4}, s{t3}, 64
    s_add_u32 s{t3}, s{t3}, 144
    s_cmp_ge_u32 s{t6}, 16
    s_cselect_b32 s{t1}, s{t4}, s{t1}
    s_cselect_b32 s{t2}, s{t3}, s{t2}
    s_cselect_b32 s{t3}, 0, 14
    v_mov_b32 v32, s{t3}
    s_mul_i32 s{t1}, s{t1}, 3456
    s_mul_i32 s{t2}, s{t2}, 3456
    s_lshl_b32 s{t6}, s{t0}, 7
    s_add_u32 s{sv+1}, s{t6}, {WS_FW1}
    s_mul_i32 s{t3}, s{t7}, 7
    s_mul_i32 s{t4}, s{t7}, 6
    s_add_u32 s{t4}, s{t4}, 12
    s_cmp_ge_u32 s{t7}, 12
    s_cselect_b32 s{t3}, s{t4}, s{t3}
    s_lshl_b32 s{t3}, s{t3}, 5
    s_add_u32 s{t1}, s{t1}, s{t3}
    s_add_u32 s{t2}, s{t2}, s{t3}
    s_mov_b32 s{t3}, 3456
    s_mov_b32 s{t4}, 14
    s_branch {E}""")
    p.label(Bq)
    p(f"""s_sub_u32 s{t0}, s{t0}, 40
    s_mov_b32 s{sv+3}, s{t0}
    s_min_u32 s{t0}, s{t0}, 53
    s_mul_i32 s{t1}, s{sJ}, 54
    s_add_u32 s{t0}, s{t0}, s{t1}
    s_and_b32 s{t7}, s{t0}, 7
    s_lshr_b32 s{t6}, s{t0}, 3
    s_mul_i32 s{t0}, s{t7}, 54
    s_add_u32 s{t0}, s{t0}, s{t6}
    s_mul_i32 s{sv}, s{t0}, 5120
    s_add_u32 s{sv}, s{sv}, {WS_W2F}
    s_mul_i32 s{t1}, s{t6}, 21846
    s_lshr_b32 s{t1}, s{t1}, 16
    s_mul_i32 s{t2}, s{t1}, 3
    s_sub_u32 s{t2}, s{t6}, s{t2}
    s_mul_i32 s{t3}, s{t1}, 7
    s_mul_i32 s{t4}, s{t1}, 6
    s_add_u32 s{t4}, s{t4}, 12
    s_cmp_ge_u32 s{t1}, 12
    s_cselect_b32 s{t1}, s{t4}, s{t3}
    s_lshl_b32 s{t2}, s{t2}, 1
    s_add_u32 s{t1}, s{t1}, s{t2}
    s_add_u32 s{t2}, s{t1}, 1
    s_sub_u32 s{t3}, s{t6}, 48
    s_mul_i32 s{t3}, s{t3}, 14
    s_add_u32 s{t4}, s{t3}, 6
    s_add_u32 s{t3}, s{t3}, 13
    s_cmp_ge_u32 s{t6}, 48
    s_cselect_b32 s{t1}, s{t4}, s{t1}
    s_cselect_b32 s{t2}, s{t3}, s{t2}
    s_mul_i32 s{t1}, s{t1}, 20480
    s_mul_i32 s{t2}, s{t2}, 20480
    s_lshl_b32 s{t6}, s{t0}, 7
    s_add_u32 s{sv+1}, s{t6}, {WS_FW2}
    s_mul_i32 s{t3}, s{t7}, 160
    s_add_u32 s{t1}, s{t1}, s{t3}
    s_add_u32 s{t2}, s{t2}, s{t3}
    s_mov_b32 s{t3}, 1280
    s_mov_b32 s{t4}, 10
    s_cmp_ge_u32 s{sv+3}, 54
    s_cselect_b32 s{t1}, 0x70000000, s{t1}
    s_cselect_b32 s{t2}, 0x70000000, s{t2}
    s_cselect_b32 s{sv}, 0x70000000, s{sv}
    s_cselect_b32 s{sv+1}, 0x70000000, s{sv+1}""")
    p.label(E)
    x = WX[rep]
    p(f"""s_lshl_b32 s{sv+2}, s{t4}, 4
    v_cvt_f32_u32 v30, v0
    v_cvt_f32_u32 v31, s{t4}
    v_add_f32 v30, 0.5, v30
    v_rcp_f32 v31, v31
    v_mul_f32 v30, v30, v31
    v_cvt_u32_f32 v30, v30
    v_mul_lo_u32 v31, v30, s{t4}
    v_sub_u32 v31, v0, v31
    v_lshlrev_b32 v31, 4, v31
    v_cmp_gt_u32 vcc, 4, v30
    v_lshrrev_b32 v33, 1, v30
    v_mad_u32_u24 v30, v33, v32, v30
    v_mul_lo_u32 v30, v30, s{t3}
    v_add_u32 v{WV[rep]}, v31, v30
    s_mov_b32 s{x[0]}, s{t1}
    s_mov_b32 s{x[1]}, s{t2}
    s_lshl_b32 s{x[2]}, s{t3}, 2
    s_mov_b32 s{x[3]}, vcc_hi
    v_lshrrev_b32 v32, 2, v0
    v_mul_lo_u32 v32, v32, s{sv+2}
    v_and_b32 v33, 3, v0
    v_lshl_add_u32 v32, v33, 3, v32
    s_mul_i32 s{t0}, s{sW}, {WSTG[rep][1]}
    s_add_u32 s{t0}, s{t0}, {WSTG[rep][0]}
    v_add_u32 v{WV[rep]+1}, s{t0}, v32
    s_lshl_b32 s{t1}, s{sv+2}, 4
    v_add_u32 v{WV[rep]+2}, s{t1}, v{WV[rep]+1}""")
WX = [(30, 31, 74, 75), (30, 31, 74, 75)]
PRIV = NW1A // 4 * 1024
WSTG = [(CONV_BASE, 7168), (PRIV - 10240, PRIV)]
WV = [84, 84]
def w_unit_dma(rep, tok):
    sv, x = WU[rep], WX[rep]
    p(f"""s_cmp_eq_u32 s{sv+2}, 224
    s_cselect_b32 s{R_W}, s{sW1}, s{sW2}
    s_cselect_b32 s{R_W+1}, s{sW1+1}, s{sW2+1}
    s_mul_i32 s{t7}, s{sW}, {WSTG[rep][1]}
    s_add_u32 m0, s{t7}, {WSTG[rep][0]}
    s_lshl_b32 s{t7}, s{sv+2}, 2
    s_mov_b32 exec_hi, s{x[3]}""")
    for q in range(8):
        so = x[0] if q < 4 else x[1]
        p(f"buffer_load_dwordx4 v{WV[rep]}, {srd(R_W)}, s{so} offen nt lds", tok_wr=(tok if q == 7 else None))
        if q < 7: p(f"s_add_u32 m0, m0, s{t7}\ns_add_u32 s{so}, s{so}, s{x[2]}")
    p("s_mov_b64 exec, -1")

def row_pattern(dst, tmp):
    p(f"""v_mul_u32_u24 v{tmp}, 205, v0
    v_lshrrev_b32 v{tmp}, 11, v{tmp}
    v_mul_u32_u24 v{dst}, 1120, v{tmp}
    v_lshl_add_u32 v{dst}, v0, 4, v{dst}""")

def dma(e, vaddr, rs, soff, add, m0base, m0add, ehi, elo=None, flags="", tok=None):
    def fn():
        p(f"s_add_u32 m0, s{m0base}, {m0add}\ns_add_u32 s{t2}, s{soff}, {add}\ns_mov_b32 exec_hi, {ehi}")
        if elo is not None: p(f"s_mov_b32 exec_lo, {elo}")
        p(f"buffer_load_dwordx4 v{vaddr}, {srd(rs)}, s{t2} offen{flags} lds", tok_wr=tok)
        p("s_mov_b64 exec, -1")
    e.group(fn, 20)
def bases():
    p(f"""s_and_b32 s{t0}, s{sW}, 1
    s_lshr_b32 s{t1}, s{sW}, 1
    s_lshl_b32 s{sP8}, s{t1}, 3
    s_lshl_b32 s{t2}, s{sA}, 2
    s_add_u32 s{t2}, s{t2}, s{t0}
    s_lshl_b32 s{t3}, s{sM}, 3
    s_add_u32 s{t3}, s{t3}, s{t0}
    s_lshl_b32 s{t4}, s{t1}, 2
    s_add_u32 s{t3}, s{t3}, s{t4}
    s_lshl_b32 s{t4}, s{sB}, 1
    s_add_u32 s{t4}, s{t4}, s{t1}
    s_mul_i32 s{sXR}, s{t3}, 20480
    s_add_u32 s{sXR}, s{sXR}, {WS_XF}
    s_mul_i32 s{t5}, s{t2}, 20480
    s_add_u32 s{t5}, s{t5}, {WS_XF}
    s_lshl_b32 s{sXW}, s{t4}, 10
    s_add_u32 s{sXW}, s{sXW}, s{t5}
    s_lshr_b32 s{sXS}, s{t4}, 2
    s_lshl_b32 s{sXS}, s{sXS}, 10
    s_and_b32 s{t6}, s{t4}, 3
    s_lshl_b32 s{t6}, s{t6}, 2
    s_add_u32 s{sXS}, s{sXS}, s{t6}
    s_add_u32 s{sXS}, s{sXS}, s{t5}
    s_add_u32 s{sXS}, s{sXS}, 16384
    s_mul_i32 s{t5}, s{t3}, 55296
    s_add_u32 s{t5}, s{t5}, {WS_HF}
    s_mul_i32 s{sHW}, s{sN}, 3072
    s_add_u32 s{sHW}, s{sHW}, s{t5}
    s_lshl_b32 s{sHS}, s{sN}, 9
    s_add_u32 s{sHS}, s{sHS}, s{t5}
    s_add_u32 s{sHS}, s{sHS}, 49152
    s_mul_i32 s{sHR}, s{t2}, 55296
    s_mul_i32 s{t5}, s{sW}, 12288
    s_add_u32 s{sHR}, s{sHR}, s{t5}
    s_add_u32 s{sHR}, s{sHR}, {WS_HF}
    s_lshl_b32 s{sFXR}, s{t3}, 6
    s_add_u32 s{sFXR}, s{sFXR}, {WS_FX}
    s_lshl_b32 s{sFXW}, s{t2}, 4
    s_add_u32 s{sFXW}, s{sFXW}, s{t4}
    s_lshl_b32 s{sFXW}, s{sFXW}, 2
    s_add_u32 s{sFXW}, s{sFXW}, {WS_FX}
    s_lshl_b32 s{sFHR}, s{sM}, 8
    s_lshl_b32 s{t5}, s{sW}, 6
    s_add_u32 s{sFHR}, s{sFHR}, s{t5}
    s_and_b32 s{t5}, s{sA}, 1
    s_lshl_b32 s{t5}, s{t5}, 3
    s_add_u32 s{sFHR}, s{sFHR}, s{t5}
    s_add_u32 s{sFHR}, s{sFHR}, {WS_FH}
    s_lshl_b32 s{sFHW}, s{sM}, 4
    s_add_u32 s{sFHW}, s{sFHW}, s{sN}
    s_lshl_b32 s{sFHW}, s{sFHW}, 2
    s_add_u32 s{sFHW}, s{sFHW}, s{sW}
    s_lshl_b32 s{sFHW}, s{sFHW}, 2
    s_add_u32 s{sFHW}, s{sFHW}, {WS_FH}
    s_lshl_b32 s{sSTO}, s{t2}, 12
    s_add_u32 s{sSTO}, s{sSTO}, {WS_ST}
    s_lshl_b32 s{sSTW}, s{t4}, 8
    s_add_u32 s{sSTW}, s{sSTW}, s{sSTO}
    s_lshl_b32 s{sSTR}, s{t3}, 12
    s_add_u32 s{sSTR}, s{sSTR}, {WS_ST}
    s_mul_i32 s{t0}, s{sB}, 54
    s_mul_i32 s{t5}, s{sW}, 12
    s_add_u32 s{t5}, s{t5}, s{t0}
    s_mul_i32 s{sW2B}, s{t5}, 5120
    s_add_u32 s{sW2B}, s{sW2B}, {WS_W2F}
    s_lshl_b32 s{t5}, s{sW}, 1
    s_min_u32 s{t5}, s{t5}, 4
    s_add_u32 s{t5}, s{t5}, s{t0}
    s_add_u32 s{t5}, s{t5}, 48
    s_mul_i32 s{sW2S}, s{t5}, 5120
    s_add_u32 s{sW2S}, s{sW2S}, {WS_W2F}
    s_cmp_eq_u32 s{sW}, 3
    s_cselect_b32 s{sW2S}, 0x70000000, s{sW2S}
    v_add_u32 v{vA1[1]}, 57344, v{vL16}
    v_add_u32 v{vA1[2]}, 114688, v{vL16}""")
CA, CB_, CACC, CAD = 92, 156, 220, 252
vA, vB = 36, 37
def conv_prep():
    p(f"""s_mul_i32 s{t3}, s{sW}, {CONV_PITCH}
    s_add_u32 s{t3}, s{t3}, {CONV_BASE}
    v_mov_b32 v30, 0
    v_mov_b32 v31, 0
    v_add_u32 v32, s{t3}, v{vL8}
    ds_write_b64 v32, v[30:31] offset:{LU_OFF+4096}
    v_add_u32 v32, 1, v{vN}
    v_and_b32 v33, 3, v32
    v_sub_u32 v32, v32, v33
    v_lshlrev_b32 v32, 1, v32
    v_mul_u32_u24 v33, {HC_PITCH}, v33
    v_add3_u32 v{vA}, v32, v33, s{t3}
    v_lshl_add_u32 v{vA}, v{vG}, 4, v{vA}
    v_lshlrev_b32 v32, 5, v{vN}
    v_sub_u32 v32, {LU_OFF + 4064 - 3584}, v32
    v_lshl_add_u32 v32, v{vG}, 4, v32
    v_add_u32 v{vB}, s{t3}, v32
    s_lshl_b32 s{t1}, s{sDVAL}, 16
    s_bitcmp1_b32 s{sW}, 0
    s_cselect_b32 s{t1}, s{sDVAL}, s{t1}
    s_and_b32 s{t1}, s{t1}, 0xffff0000
    s_lshr_b32 s{t2}, s{t1}, 16
    v_lshlrev_b32 v32, 3, v{vG}
    v_add_u32 v32, v32, v{vN}
    v_sub_u32 v32, 15, v32
    v_mov_b32 v33, s{t1}
    v_mov_b32 v34, s{t2}""")
    for r in range(4):
        p(f"""v_cmp_eq_u32 vcc, {2*r}, v32
        v_cndmask_b32 v{CAD+r}, 0, v34, vcc
        v_cmp_eq_u32 vcc, {2*r+1}, v32
        v_cndmask_b32 v{CAD+r}, v{CAD+r}, v33, vcc""")

KN = NAME + "_kernel"
p.raw(f"; @launch grid=(256,1,1) block=(256,1,1) lds={LDS_BYTES}")
p.raw('.amdgcn_target "amdgcn-amd-amdhsa--gfx950"')
p.raw(f".text\n.globl {KN}\n.p2align 8\n.type {KN},@function")
p.label(KN)
p(f"""s_cmp_ge_u32 s2, 256
s_cbranch_scc1 END
s_load_dwordx16 s[4:19], s[0:1], 0
s_load_dwordx8 s[20:27], s[0:1], 64
s_load_dwordx2 s[28:29], s[0:1], 96
s_getpc_b64 {pair(t6)}
s_lshr_b32 s{sSIG}, s2, 3
s_lshl_b32 s{t0}, s{sSIG}, 11
v_lshl_add_u32 v30, v0, 3, s{t0}
global_load_dword v{JUNK}, v30, {pair(t6)}""")
if STAMPS: p(f"v_mov_b32 v{vSTAMP}, 0")
stamp("start")
p(f"""v_lshrrev_b32 v30, 6, v0
v_and_b32 v0, 63, v0
v_readfirstlane_b32 s{sW}, v30
s_and_b32 s{sJ}, s2, 7
v_lshlrev_b32 v{vL8}, 3, v0
v_and_b32 v{vN}, 15, v0
v_lshrrev_b32 v{vG}, 4, v0
v_lshlrev_b32 v{vL16}, 4, v0
s_mov_b32 s{R_W+3}, 0x20000
s_mov_b64 s[{R_W}:{R_W+1}], s[0:1]
s_mov_b32 s{R_W+2}, 0""")
row_pattern(38, 30)
p(f"""s_lshl_b32 s{t4}, s{sJ}, 9
s_add_u32 s{t4}, s{t4}, {WS_FT}
v_add_u32 v35, s{t4}, v{vL8}
s_lshl_b32 s{t5}, s2, 2
s_add_u32 s{t5}, s{t5}, s{sW}
s_lshl_b32 s{t6}, s{t5}, 7
s_add_u32 s{t6}, s{t6}, {WS_FY}
v_writelane_b32 v35, s{t6}, 4
s_add_u32 s{t6}, s{t6}, {WS_FW1 - WS_FY}
v_writelane_b32 v35, s{t6}, 8
s_lshl_b32 s{t5}, s{t5}, 8
v_writelane_b32 v35, s{t5}, 2
s_add_u32 s{t5}, s{t5}, 128
v_writelane_b32 v35, s{t5}, 3
s_add_u32 s{t6}, s{t4}, {WS_FL - WS_FT}
v_writelane_b32 v35, s{t6}, 5
s_add_u32 s{t6}, s{t6}, 128
v_writelane_b32 v35, s{t6}, 6
s_add_u32 s{t6}, s{t6}, 128
v_writelane_b32 v35, s{t6}, 7
s_lshl_b32 s{t0}, s{sSIG}, 2
s_add_u32 s{t0}, s{t0}, s{sW}
s_mul_i32 s{t1}, s{t0}, 20480
s_mul_i32 s{t2}, s{sJ}, 160
s_add_u32 s{t1}, s{t1}, s{t2}
v_add_u32 v38, s{t1}, v38
v_subrev_u32 v39, 5120, v38
s_mov_b32 s{R_K+2}, 2621440
s_mov_b32 s{R_K+3}, 0x20000
s_mov_b32 s{R_V+2}, 2621440
s_mov_b32 s{R_V+3}, 0x20000
s_mul_i32 s{t2}, s{sJ}, 640
v_lshl_add_u32 v30, v{vN}, 3, s{t2}
s_mul_i32 s{sG}, s{sJ}, 20
s_min_u32 s{t1}, s{sSIG}, 19
s_add_u32 s{sG}, s{sG}, s{t1}
s_lshl_b32 s{t3}, s{sG}, 2
s_add_u32 s{t3}, s{t3}, s{sW}
s_lshl_b32 s{t1}, s{t3}, 1
s_and_b32 s{t2}, s{t1}, 0xfffc
s_waitcnt lgkmcnt(0)
s_load_dword s{sE}, {pair(sWS)}, {WS_EPOCH}
s_load_dword s{sDVAL}, {pair(sD)}, s{t2}
global_load_dword v{JUNK}, v35, {pair(sWS)} sc1""")
SKP = 40
for dt in range(5):
    p(f"global_load_dwordx2 {vr(SKP+2*dt,2)}, v30, {pair(sSK)} offset:{128*dt}")
tokW = [p.tok()]
tokT = p.tok()
def kv_dma():
    p(f"""s_mov_b32 s{R_K}, s{sK}
    s_mov_b32 s{R_K+1}, s{sK+1}
    s_mov_b32 s{R_V}, s{sV}
    s_mov_b32 s{R_V+1}, s{sV+1}
    s_mul_i32 m0, s{sW}, {TW_PITCH}
    s_mov_b32 exec_hi, 0x3ffff""")
    for q in range(4):
        p(f"buffer_load_dwordx4 v39, {srd(R_K)}, 0 offen{NT('kv', 1)} lds\ns_add_u32 m0, m0, 800")
        if q < 3: p(f"v_add_u32 v39, 6400, v39")
    for q in range(4):
        if q == 3: p("s_mov_b32 exec_hi, 0\ns_mov_b32 exec_lo, 0x3ff")
        p(f"buffer_load_dwordx4 v38, {srd(R_V)}, 0 offen{NT('kv', 1)} lds", tok_wr=tokT)
        if q < 3: p(f"s_add_u32 m0, m0, 800\nv_add_u32 v38, 6400, v38")
    p("s_mov_b64 exec, -1")
kv_dma()
tokW = [p.tok(), p.tok()]
stamp('iss0')
p(f"""s_mov_b32 s{R_WS+2}, 0x10000000
s_mov_b32 s{R_WS+3}, 0x20000
s_mov_b32 s{R_H+2}, 2621440
s_mov_b32 s{R_H+3}, 0x20000
s_lshl_b32 s{t3}, s{t3}, 12
s_sub_u32 s{t3}, s{t3}, 32
s_cmp_lt_u32 s{sSIG}, 20
s_cselect_b32 s{t3}, s{t3}, 0x70000000
v_add_u32 v{vHOFF}, s{t3}, v{vL16}
s_mov_b32 s{R_H}, s{sH}
s_mov_b32 s{R_H+1}, s{sH+1}""")
def common_setup(tagl):
    p(f"""s_mov_b32 s{R_WS}, s{sWS}
    s_mov_b32 s{R_WS+1}, s{sWS+1}
    s_lshr_b32 s{t0}, s{sSIG}, 3
    s_lshl_b32 s{sA}, s{sJ}, 2
    s_add_u32 s{sA}, s{sA}, s{t0}
    s_and_b32 s{sB}, s{sSIG}, 7
    s_lshr_b32 s{sM}, s{sA}, 1
    s_and_b32 s{sN}, s{sSIG}, 15
    s_getreg_b32 s{sXV}, hwreg(HW_REG_XCC_ID)
    s_lshl_b32 s{sXV}, s{sXV}, 28
    s_lshl_b32 s{t0}, s{sJ}, 5
    s_add_u32 s{t0}, s{t0}, s{sSIG}
    s_lshl_b32 s{t0}, s{t0}, 5
    s_add_u32 s{t0}, s{t0}, {WS_XC}
    v_mov_b32 v30, 0
    s_mul_i32 s{sTAG}, s{sE}, 0x9E3779B1
    s_add_u32 s{sTAG}, s{sTAG}, 0x7F4A7C15
    s_xor_b32 s{sTAG2}, s{sTAG}, 0x5bd1e995
    s_xor_b32 s{sXV}, s{sXV}, s{sTAG}
    v_mov_b32 v31, s{sXV}
    s_cmp_eq_u32 s{sW}, 0
    s_cselect_b32 s{t0}, s{t0}, 0x70000000
    buffer_store_dword v31, v30, {WSR}, s{t0} offen sc1""")
    stamp("xpub")
    bases()
common_setup(0)
SKC = 92
for dt in range(5):
    a_, c = SKP + 2 * dt, SKC + 5 * dt
    p(f"""v_alignbit_b32 v{c}, v{a_}, v{a_}, 16
    v_alignbit_b32 v{c+1}, v{a_+1}, v{a_+1}, 16
    v_and_b32 v{c+2}, 0xffff, v{a_}
    v_and_b32 v{c+4}, 0xffff0000, v{a_+1}
    v_and_b32 v{c+3}, 0xffff0000, v{a_}
    v_and_b32 v{a_+1}, 0xffff, v{a_+1}
    v_or_b32 v{c+3}, v{c+3}, v{a_+1}""")
p(f"s_cmp_ge_u32 s{sSIG}, 20\ns_cbranch_scc1 PREP_W")
conv_prep()
w_unit_params(1)
p.label("PREP_DONE")
def prep_w():
    p.label("PREP_W")
    w_unit_params(0)
    if opt("w0e", 0) == 2: w_unit_dma(0, tokW[0])
    p("s_branch PREP_DONE")
tail_code.append(prep_w)
p(f"""v_lshrrev_b32 v30, 2, v0
v_mul_u32_u24 v30, 160, v30
v_and_b32 v31, 3, v0
v_lshl_add_u32 v30, v31, 3, v30
s_mul_i32 s{t3}, s{sW}, {TW_PITCH}
v_add_u32 v56, s{t3}, v30
s_lshl_b32 s{t2}, s{sW}, 5
s_sub_u32 s{t2}, {UT_BASE + 120}, s{t2}
v_mul_u32_u24 v57, 144, v{vN}
v_lshlrev_b32 v32, 3, v{vG}
v_sub_u32 v57, v57, v32
v_add_u32 v57, s{t2}, v57
s_mul_i32 s{t0}, s{sJ}, {80*4096}
s_lshl_b32 s{t2}, s{sSIG}, 7
s_sub_u32 s{t0}, s{t0}, s{t2}
s_lshl_b32 s{t2}, s{sW}, 15
s_add_u32 s{t0}, s{t0}, s{t2}
s_add_u32 s{t0}, s{t0}, {WS_UR + 3968}
v_lshrrev_b32 v60, 3, v0
v_and_b32 v61, 7, v0
v_lshlrev_b32 v61, 4, v61
v_lshl_add_u32 v62, v60, 12, v61
v_mul_u32_u24 v60, 144, v60
s_mul_i32 s{t2}, s{sW}, 1152
s_add_u32 s{t2}, s{t2}, {UT_BASE}
v_add3_u32 v60, v60, v61, s{t2}
s_lshl_b32 s{t5}, s{sJ}, 5
s_add_u32 s{t5}, s{t5}, s{sSIG}
s_lshl_b32 s{t5}, s{t5}, 2
s_add_u32 s{t5}, s{t5}, s{sW}
s_lshl_b32 s{t5}, s{t5}, 2
s_add_u32 s{t5}, s{t5}, {WS_FT}
s_add_u32 s{t1}, s{t0}, {4*32768}
s_add_u32 s{t2}, s{t0}, {8*32768}
s_cmp_lt_u32 s{sW}, 2
s_cselect_b32 s{t2}, s{t2}, 0x70000000
""")
stamp("issued")
def w_process(rep, st):
    sv = WU[rep]
    SK = p.L("WSKIP")
    tk = p.tok()
    p.need(tokW[rep])
    st(f"W_in{rep}")
    for ft in range(7):
        p(f"ds_read_b64_tr_b16 {vr(200+4*ft,2)}, v{WV[rep]+1} offset:{32*ft}\nds_read_b64_tr_b16 {vr(202+4*ft,2)}, v{WV[rep]+2} offset:{32*ft}")
    for ft in range(7):
        if ft == 5: p(f"s_cmp_lt_u32 s{sv+2}, 224\ns_cbranch_scc1 {SK}")
        if ft == 4: p(f"s_add_u32 s{sv}, s{sv}, 4096")
        p(f"buffer_store_dwordx4 {vr(200+4*ft,4)}, v{vL16}, {WSR}, s{sv} offen offset:{1024*(ft%4)} sc1", tok_wr=tk)
    if rep == 0:
        p(f"v_mov_b32 v64, 0x3f803f80\nv_mov_b32 v65, 0x3f803f80\nv_mov_b32 v66, 0x3f803f80\nv_mov_b32 v67, 0x3f803f80\nv_lshlrev_b32 v68, 4, v{vG}")
        for ft in range(7):
            p(f"{MF} {vr(120+4*ft,4)}, {vr(200+4*ft,4)}, v[64:67], 0")
        p("s_nop 7\ns_mov_b32 exec_lo, 0x00010001\ns_mov_b32 exec_hi, 0x00010001")
        for ft in range(7):
            p(f"buffer_store_dwordx4 {vr(120+4*ft,4)}, v68, {WSR}, s{sv+3} offen offset:{64*ft} sc1", tok_wr=tk)
        p("s_mov_b64 exec, -1")
    p.label(SK)
    return tk
if opt("w0e", 0) == 2:
    p(f"s_cmp_ge_u32 s{sSIG}, 20\ns_cbranch_scc1 KVW\ns_waitcnt vmcnt(1)\ns_branch KVD")
    p.label("KVW")
    p("s_waitcnt vmcnt(9)")
    p.label("KVD")
else:
    p.need(tokT)
stamp("kv_in")
KB = [148 - 28 + 6 * dt + 0 for dt in range(5)]
KB = [120 + 6 * dt for dt in range(5)]
for dt in range(5):
    b = KB[dt]
    p(f"ds_read_b64_tr_b16 {vr(b,2)}, v56 offset:{32*dt}\nds_read_b64_tr_b16 {vr(b+2,2)}, v56 offset:{32*dt+640}\nds_read_b64_tr_b16 {vr(b+4,2)}, v56 offset:{32*dt+3200}")
W0E = opt("w0e", 0)
p(f"s_cmp_ge_u32 s{sSIG}, 20\ns_cbranch_scc1 ROLE_W")
h_loads()
p.label("ROLE_DONE")
def role_w():
    p.label("ROLE_W")
    if W0E == 1: w_unit_dma(0, tokW[0])
    p("s_branch ROLE_DONE")
tail_code.append(role_w)
tokU = p.tok()
for dt in range(5):
    b, c, o, vv, st = KB[dt], SKC + 5 * dt, 150, 154, 158 + 2 * (dt & 1)
    p(f"""v_dot2_f32_bf16 v{o}, v{b}, v{c+4}, 0
    v_dot2_f32_bf16 v{o+1}, v{b+1}, v{c+1}, 0
    v_dot2_f32_bf16 v{o+2}, v{b+1}, v{c+4}, 0
    v_dot2_f32_bf16 v{o+3}, v{b+2}, v{c+1}, 0
    v_lshlrev_b32 v{vv}, 16, v{b+4}
    v_and_b32 v{vv+1}, 0xffff0000, v{b+4}
    v_dot2_f32_bf16 v{o}, v{b+1}, v{c+3}, v{o}
    v_dot2_f32_bf16 v{o+1}, v{b+2}, v{c}, v{o+1}
    v_dot2_f32_bf16 v{o+2}, v{b+2}, v{c+3}, v{o+2}
    v_dot2_f32_bf16 v{o+3}, v{b+3}, v{c}, v{o+3}
    v_dot2_f32_bf16 v{o}, v{b+2}, v{c+2}, v{o}
    v_dot2_f32_bf16 v{o+2}, v{b+3}, v{c+2}, v{o+2}
    v_lshlrev_b32 v{vv+2}, 16, v{b+5}
    v_and_b32 v{vv+3}, 0xffff0000, v{b+5}
    s_nop 0
    v_pk_mul_f32 {vr(o,2)}, {vr(o,2)}, {vr(vv,2)}
    v_pk_mul_f32 {vr(o+2,2)}, {vr(o+2,2)}, {vr(vv+2,2)}
    v_cvt_pk_bf16_f32 v{st+1}, v{o+1}, v{o}
    v_cvt_pk_bf16_f32 v{st}, v{o+3}, v{o+2}
    ds_write_b64 v57, {vr(st,2)} offset:{2304*dt}""")
stamp("T_calc")
p("s_waitcnt lgkmcnt(0)\ns_barrier")
for q in range(3):
    p(f"ds_read_b128 {vr(92+4*q,4)}, v60 offset:{4608*q}")
for q in range(3):
    p(f"buffer_store_dwordx4 {vr(92+4*q,4)}, v62, {WSR}, s{(t0, t1, t2)[q]} offen sc1", tok_wr=tokU)
stamp("u_st")
p(f"""s_mul_i32 s{t3}, s{sW}, {CONV_PITCH}
s_add_u32 s{t3}, s{t3}, {CONV_BASE}
v_add_u32 v33, s{t3}, v{vL16}""")
p(f"s_cmp_ge_u32 s{sSIG}, 20\ns_cbranch_scc1 HB1")
h_build(opt("hb1", 2))
p.label("HB1")
p(f"""v_mov_b32 v30, s{sTAG}
v_mov_b32 v31, 0
s_waitcnt vmcnt(0)
buffer_store_dword v30, v31, {WSR}, s{t5} offen""")
stamp("T_pub")
p(f"""s_lshl_b32 s{t4}, s{sJ}, 10
s_add_u32 s{t4}, s{t4}, {WS_XC}
v_and_b32 v63, 31, v0
v_lshlrev_b32 v63, 5, v63
buffer_load_dword v62, v63, {WSR}, s{t4} offen sc1""")
p(f"s_cmp_ge_u32 s{sSIG}, 20\ns_cbranch_scc1 MID_W")
h_build(None)
def mid_w():
    p.label("MID_W")
    if not W0E: w_unit_dma(0, tokW[0])
    tk = w_process(0, stamp)
    p(f"v_mov_b32 v30, s{sTAG}\nv_mov_b32 v31, 0")
    p.need(tk)
    p(f"buffer_store_dword v30, v31, {WSR}, s{WU[0]+1} offen sc1")
    stamp("W_done")
    p("s_branch CHECK")
tail_code.append(mid_w)
p.label("CHECK")
p(f"s_mov_b32 s{sSPIN}, 0\ns_branch VER2")
p.label("VER")
p(f"""s_sleep 1
s_add_u32 s{sSPIN}, s{sSPIN}, 1
s_cmp_gt_u32 s{sSPIN}, {SPIN}
s_cbranch_scc1 SLOW
buffer_load_dword v62, v63, {WSR}, s{t4} offen sc1""")
p.label("VER2")
p(f"""v_xor_b32 v62, s{sXV}, v62
v_cmp_ne_u32 vcc, 0, v62
s_cbranch_vccz {'SLOW' if FORCE_SLOW else 'FAST'}
v_and_b32 v62, 0x0fffffff, v62
v_cmp_ne_u32 vcc, 0, v62
s_cbranch_vccnz VER
s_branch SLOW""")

def body(slow):
    PF = "S" if slow else "F"
    sc = " sc1" if slow else ""
    lab = lambda n: f"{PF}_{n}"
    st = (lambda n, e=None: None) if slow else stamp
    LX = lambda stride, layer: stride * layer if slow else 0
    TG = lambda layer: sTAG2 if layer else sTAG
    HPW = opt("hpw", 0)
    WT = lambda layer: " sc1" if (slow or (layer == 0 and not HPW)) else ""
    p.label("SLOW" if slow else "FAST")
    st("verified")
    if slow:
        p(f"v_mov_b32 v30, s{sTAG}\nv_mov_b32 v31, 0\ns_add_u32 s{t0}, s{t5}, {WS_FTR - WS_FT}\nbuffer_store_dword v30, v31, {WSR}, s{t0} offen sc1")
    def xy_offset(dst):
        p(f"""s_and_b32 s{t1}, s{sW}, 1
        s_lshl_b32 s{t0}, s{sA}, 2
        s_add_u32 s{t0}, s{t0}, s{t1}
        s_mul_i32 s{t0}, s{t0}, 20480
        s_mul_i32 s{t1}, s{sB}, 160
        s_add_u32 s{t0}, s{t0}, s{t1}
        s_lshr_b32 s{t1}, s{sW}, 1
        s_lshl_b32 s{t1}, s{t1}, 2
        s_add_u32 s{t0}, s{t0}, s{t1}
        v_mul_u32_u24 v{dst}, 1280, v{vN}
        v_lshl_add_u32 v{dst}, v{vG}, 3, v{dst}
        v_add_u32 v{dst}, s{t0}, v{dst}
        v_add_u32 v{dst+1}, 40960, v{dst}""")
    def x0_dma(e, base, gap=0, pitch=PRIV):
        e.group(lambda: (row_pattern(83, 30), p(f"""s_lshl_b32 s{t0}, s{sA}, 2
        s_and_b32 s{t1}, s{sW}, 1
        s_add_u32 s{t0}, s{t0}, s{t1}
        s_mul_i32 s{t0}, s{t0}, 20480
        s_mul_i32 s{t1}, s{sB}, 160
        s_add_u32 s{t6}, s{t0}, s{t1}
        s_mov_b32 s{R_H}, s{sQ}
        s_mov_b32 s{R_H+1}, s{sQ+1}
        s_mul_i32 s{t7}, s{sW}, {pitch}""")), 60)
        tk = p.tok()
        for q in range(8):
            s_, r = q >> 2, q & 3
            dma(e, 83, R_H, t6, 40960 * s_ + 6400 * r, t7, base + 2560 * s_ + 800 * r, 0x3ffff if r < 3 else 0, None if r < 3 else 0x3ff, " nt", tk)
            if gap: e.skip(gap)
        return tk
    def x0_read(e, tk, base, pitch=PRIV):
        e(f"""s_mul_i32 s{t0}, s{sW}, {pitch}
        s_lshr_b32 s{t1}, s{sP8}, 1
        s_add_u32 s{t0}, s{t0}, s{t1}
        s_add_u32 s{t0}, s{t0}, {base}
        v_mul_u32_u24 v30, 160, v{vN}
        v_lshl_add_u32 v30, v{vG}, 3, v30
        v_add_u32 v30, s{t0}, v30""")
        e.need(tk)
        for s in range(2):
            for dt in range(5): e(f"ds_read_b32 v{XP[s]+dt}, v30 offset:{2560*s + 32*dt}")
        e.skip(6)
    def flag_prewarm(e):
        if not slow:
            e(f"""v_and_b32 v30, 1, v0
            v_lshlrev_b32 v31, 7, v30
            v_add_u32 v31, s{sFXW}, v31
            v_lshlrev_b32 v30, 12, v30
            v_add_u32 v30, s{sFHW}, v30
            v_cmp_gt_u32 vcc, 2, v0
            v_cndmask_b32 v30, v30, v31, vcc
            v_and_b32 v31, 7, v0
            v_lshlrev_b32 v31, 7, v31
            v_bfe_u32 v32, v0, 3, 1
            v_mul_u32_u24 v32, 40960, v32
            v_add3_u32 v31, v31, v32, s{sXS}
            v_cmp_gt_u32 vcc, 32, v0
            v_cndmask_b32 v30, v31, v30, vcc
            s_sub_u32 s{t0}, s{sXW}, s{sXS}
            v_add_u32 v31, s{t0}, v31
            v_cmp_gt_u32 vcc, 48, v0
            v_cndmask_b32 v30, v31, v30, vcc
            v_and_b32 v31, 1, v0
            v_lshlrev_b32 v31, 7, v31
            v_bfe_u32 v32, v0, 1, 1
            v_lshl_add_u32 v31, v32, 13, v31
            s_add_u32 s{t0}, s{sSTW}, {ST_K}
            v_add_u32 v31, s{t0}, v31
            v_bfe_u32 v32, v0, 2, 4
            v_cmp_eq_u32 vcc, 1, v32
            v_cndmask_b32 v30, v30, v31, vcc
            v_subrev_u32 v31, {ST_K}, v31
            v_cmp_eq_u32 vcc, 2, v32
            v_cndmask_b32 v30, v30, v31, vcc
            buffer_load_dword v{JUNK}, v30, {WSR}, 0 offen sc1""")
    X32, G0 = [38, 48], [58, 220 - 220 + 58]
    G0 = [58, 74]
    def x0_stats(e, unp=True):
        for s in range(2):
            if unp: unpack(e, X32[s], XP[s], 5)
            e(f"s_add_u32 s{t0}, s{sSTW}, {8192*s}")
            stats_publish(e, X32[s], G0[0], t0, 0, slow)
    def x0_norm(e):
        for s in range(2):
            late_check(e, stats_loads(G0[s], (t5, t4)[s]), stats_tags(G0[s]), 32, False)
            stats_finish(e, G0[s], 30)
            e(f"v_mul_f32 v32, -v30, v31")
            for i in range(10): e(f"v_fma_f32 v{G0[s]+i}, v{X32[s]+i}, v31, v32")
    XN0 = G0
    def w_flag_addr(e, dst):
        e.group(lambda: p(f"""v_and_b32 v33, 31, v0
        s_mul_i32 s{t1}, s{sW}, 12
        v_add_u32 v{dst}, s{t1}, v33
        s_lshl_b32 s{t2}, s{sW}, 1
        s_add_u32 s{t2}, s{t2}, 36
        v_add_u32 v{dst+1}, s{t2}, v33
        v_cmp_gt_u32 vcc, 12, v33
        v_cndmask_b32 v{dst}, v{dst+1}, v{dst}, vcc
        s_add_u32 s{t2}, s{t2}, 13
        s_min_u32 s{t2}, s{t2}, 53
        v_min_u32 v{dst}, s{t2}, v{dst}
        s_mul_i32 s{t1}, s{sB}, {54*128}
        s_add_u32 s{t1}, s{t1}, {WS_FW2}
        v_lshl_add_u32 v{dst}, v{dst}, 7, s{t1}
        v_min_u32 v{dst+1}, 19, v0
        s_mul_i32 s{t1}, s{sN}, {20*128}
        s_add_u32 s{t1}, s{t1}, {WS_FW1}
        v_lshl_add_u32 v{dst+1}, v{dst+1}, 7, s{t1}
        s_lshr_b32 s{t1}, s{sP8}, 2
        v_xor_b32 v{vW2}, s{t1}, v0
        v_lshlrev_b32 v{vW2}, 4, v{vW2}
        s_mul_i32 s{sGOTA}, s{sN}, 143360
        s_add_u32 s{sGOTA}, s{sGOTA}, {WS_W1F}"""), 100)
    def w1_one(e, base_reg, idx):
        if opt("now1", 0): return
        def fn():
            p(f"s_add_u32 m0, s{base_reg}, {1024*idx}\ns_add_u32 s{t2}, s{sGOTA}, m0")
            return p(f"buffer_load_dwordx4 v{vL16}, {WSR}, s{t2} offen{' sc1' if opt('w1sc', 1) else ''} lds")
        e.group(fn, 12)
    vW2 = 35
    NW2E = 0
    def w2_loads(e, q0, q1, vaddr):
        if opt("now2", 0): return
        for q in range(q0, q1):
            sb, qq = (sW2B, q) if q < 60 else (sW2S, q - 60)
            if qq % 4 == 0 and qq > 0: e(f"s_add_u32 s{sb}, s{sb}, 4096")
            e(f"buffer_load_dwordx4 {w2reg(q)}, v{vaddr}, {WSR}, s{sb} offen offset:{1024*(qq%4)}{' sc1' if opt('w2sc', 1) else ''}")
    p(f"s_cmp_ge_u32 s{sSIG}, 20\ns_cbranch_scc1 {lab('W_PHASE')}")
    p(f"""s_lshl_b32 s{t0}, s{sJ}, 9
    s_add_u32 s{t0}, s{t0}, {WS_FTR if slow else WS_FT}""")
    for t in range(8):
        p(f"ds_read_b64 {vr(CA+4*t,2)}, v{vA} offset:{512*t}\nds_read_b64 {vr(CA+4*t+2,2)}, v{vA} offset:{512*t+8}")
    w_flag_addr(D, 90)
    spin_wait(f"buffer_load_dwordx2 v[30:31], v{vL8}, {WSR}, s{t0} offen sc1", [30, 31], False, nap=(1 if not slow else 4))
    st("T_seen")
    tokUin = p.tok()
    p(f"""s_lshl_b32 s{t0}, s{sG}, 2
    s_add_u32 s{t0}, s{t0}, s{sW}
    s_lshl_b32 s{t0}, s{t0}, 12
    s_add_u32 s{t0}, s{t0}, {WS_UR}
    s_add_u32 m0, s{t3}, {LU_OFF}""")
    for q in range(4):
        p(f"buffer_load_dwordx4 v{vL16}, {WSR}, s{t0} offen offset:{1024*q} sc1 lds", tok_wr=(tokUin if q == 3 else None))
    p.need(tokUin)
    st("u_in")
    for m in range(8):
        p(f"ds_read_b128 {vr(CB_+4*m,4)}, v{vB} offset:{3584-512*m}")
    beats = [[f"{MF} {vr(CACC+4*j,4)}, {vr(CAD,4)}, {vr(CB_+4*j,4)}, 0"] for j in range(8)]
    for p0 in range(8):
        buf = p0 & 1
        reads = []
        if p0 < 7:
            for t in range(8):
                bb, ba = CB_ + 32 * (1 - buf) + 4 * t, CA + 32 * (1 - buf) + 4 * t
                reads += [f"ds_read_b128 {vr(bb,4)}, v{vB} offset:{3584-512*t+64*(p0+1)}",
                          f"ds_read_b64 {vr(ba,2)}, v{vA} offset:{64*(p0+1)+512*t}",
                          f"ds_read_b64 {vr(ba+2,2)}, v{vA} offset:{64*(p0+1)+512*t+8}"]
        prs = sorted([(t, m) for t in range(8) for m in range(8) if t + m <= 7], key=lambda x: (max(x), x[0] + x[1]))
        for i, (t, m) in enumerate(prs):
            b = [f"{MF} {vr(CACC+4*(t+m),4)}, {vr(CA+32*buf+4*t,4)}, {vr(CB_+32*buf+4*m,4)}, {vr(CACC+4*(t+m),4)}"]
            if i >= 8 and reads: b.append(reads.pop(0))
            beats.append(b)
    F = Fill()
    gap = opt("cgap", 1)
    wfl1 = f"buffer_load_dword v34, v91, {WSR}, 0 offen sc1"
    wfl2 = f"buffer_load_dword v34, v90, {WSR}, 0 offen sc1"
    na = NW1A // 4
    ar = lambda b, n: f"a[{b}:{b+n-1}]"
    tkw = p.tok()
    F(f"s_mov_b32 s{R_W}, s{sW2}\ns_mov_b32 s{R_W+1}, s{sW2+1}\ns_mul_i32 s{t5}, s{sW}, {PRIV}")
    for q in range(8):
        dma(F, WV[1], R_W, WX[1][q >> 2], 5120 * (q & 3), t5, PRIV - 10240 + 640 * q, 0xff, None, " nt", tkw)
        F.skip(1)
    tkx = x0_dma(F, PRIV - 5120, 1)
    flag_prewarm(F)
    F.skip(opt("wf_at", 150))
    F(wfl1)
    YT = 156
    F3 = Fill()
    F3(f"""s_mul_i32 s{t3}, s{sW}, {CONV_PITCH}
    s_add_u32 s{t3}, s{t3}, {CONV_BASE}
    v_lshlrev_b32 v80, 5, v{vN}
    v_lshl_add_u32 v80, v{vG}, 3, v80
    v_add_u32 v80, s{t3}, v80
    v_bfe_u32 v81, v0, 2, 2
    v_mul_u32_u24 v81, {CONV_PITCH}, v81
    v_and_b32 v82, 3, v0
    v_lshl_add_u32 v81, v82, 3, v81
    v_lshl_add_u32 v81, v{vG}, 5, v81
    s_lshl_b32 s{t0}, s{sW}, 10
    s_add_u32 s{t0}, s{t0}, {CONV_BASE}
    v_add_u32 v81, s{t0}, v81
    v_mul_u32_u24 v82, 20480, v{vG}
    v_lshl_add_u32 v82, v{vN}, 3, v82
    s_mul_i32 s{t4}, s{sW}, {32*20480}
    s_lshl_b32 s{t1}, s{sG}, 7
    s_add_u32 s{t4}, s{t4}, s{t1}
    s_add_u32 s{t4}, s{t4}, {WS_YG}
    s_lshl_b32 s{t0}, s{sG}, 9
    s_lshl_b32 s{t1}, s{sW}, 7
    s_add_u32 s{t0}, s{t0}, s{t1}
    s_add_u32 s{t0}, s{t0}, {WS_FY}
    v_mov_b32 v83, s{t0}
    s_lshl_b32 s{t0}, s{sJ}, 5
    s_add_u32 s{t0}, s{t0}, s{sSIG}
    s_lshl_b32 s{t0}, s{t0}, 4
    s_lshr_b32 s{t1}, s{t1}, 5
    s_add_u32 s{t0}, s{t0}, s{t1}
    s_add_u32 s{t0}, s{t0}, {WS_FL}
    v_mov_b32 v78, s{t0}
    v_mov_b32 v79, s{sTAG}""")
    merge(beats[:275], F)
    st("conv_cut")
    merge(beats[275:], F3)
    st("conv_done")
    for j in range(8):
        p(f"v_cvt_pk_bf16_f32 v{92+2*j}, v{CACC+4*j}, v{CACC+4*j+1}\nv_cvt_pk_bf16_f32 v{93+2*j}, v{CACC+4*j+2}, v{CACC+4*j+3}")
        p(f"ds_write_b64 v80, {vr(92+2*j,2)} offset:{512*j}")
    p("s_waitcnt lgkmcnt(0)\ns_barrier")
    for q in range(8):
        p(f"ds_read_b64_tr_b16 {vr(YT+2*q,2)}, v81 offset:{128*q}")
    for q in range(8):
        p(f"buffer_store_dwordx2 {vr(YT+2*q,2)}, v82, {WSR}, s{t4} offen sc1")
        if q < 7: p(f"s_add_u32 s{t4}, s{t4}, 81920")
    p(f"buffer_store_dword v79, v78, {WSR}, 0 offen{sc}")
    st("y_iss")
    for ft in range(5):
        p(f"ds_read_b64_tr_b16 {vr(108+4*ft,2)}, v{WV[1]+1} offset:{32*ft}\nds_read_b64_tr_b16 {vr(110+4*ft,2)}, v{WV[1]+2} offset:{32*ft}")
    x0_read(D, tkx, PRIV - 5120)
    for s_ in range(2): unpack(D, X32[s_], XP[s_], 5)
    p(f"s_waitcnt vmcnt(0)\nbuffer_store_dword v79, v83, {WSR}, 0 offen sc1")
    st("y_st")
    x0_stats(D, False)
    tkw2 = p.tok()
    for ft in range(5):
        if ft == 4: p(f"s_add_u32 s{WU[1]}, s{WU[1]}, 4096")
        p(f"buffer_store_dwordx4 {vr(108+4*ft,4)}, v{vL16}, {WSR}, s{WU[1]} offen offset:{1024*(ft%4)} sc1", tok_wr=tkw2)
    NAC, NAI = opt("nac", 0), opt("nai", 19)
    late_check(D, wfl1, [34], 32, False)
    st("w_late")
    p(f"s_mul_i32 s{t5}, s{sW}, {PRIV}")
    for q in range(NAC): w1_one(D, t5, q)
    publish(D, tkw2, WU[1] + 1, 0, 30, True, wb=False)
    p(f"s_branch {lab('W1DONE')}")

    p.label(lab("W_PHASE"))
    w_flag_addr(D, 90)
    tkx = x0_dma(D, RED_BASE, pitch=5120)
    flag_prewarm(D)
    p(f"s_cmp_lg_u32 s{sW}, 0\ns_cbranch_scc1 {lab('NOWP')}")
    spin_wait(wfl1, [34], False, nap=opt("wnap", 6))
    p.label(lab("NOWP"))
    p("s_barrier")
    st("w_flags")
    nb_ = (140 - NW1A) // 4
    def w1_range(q0, q1):
        if q0 < na: p(f"s_mul_i32 s{t5}, s{sW}, {PRIV}")
        for q in range(q0, q1):
            if q >= na and (q == na or q == q0): p(f"s_mul_i32 s{t5}, s{sW}, {nb_*1024}\ns_add_u32 s{t5}, s{t5}, {NW1A*1024}")
            w1_one(D, t5, q if q < na else q - na)
    w1_range(0, 8)
    x0_read(D, tkx, RED_BASE, pitch=5120)
    x0_stats(D)
    w1_range(8, NAI)
    p(f"""s_sub_u32 s{t0}, s{sSIG}, 20
    s_lshl_b32 s{t0}, s{t0}, 2
    s_add_u32 s{t0}, s{t0}, s{sW}
    s_mul_i32 s{t0}, s{t0}, {2*8192}
    s_add_u32 s{t0}, s{t0}, {WS_W1F}
    s_cmp_lt_u32 s{t0}, {WS_W1F + 4*143360}
    s_cselect_b32 s{t0}, s{t0}, 0x70000000
    s_add_u32 s{t1}, s{t0}, 8192
    v_lshlrev_b32 v30, 7, v0
    v_min_u32 v31, 79, v0
    v_lshlrev_b32 v31, 7, v31
    s_mov_b32 s{t2}, {WS_FW1}""")
    if not slow:
        p("s_waitcnt vmcnt(8)")
        p(f"buffer_load_dword v{JUNK}, v30, {WSR}, s{t0} offen sc1\nbuffer_load_dword v{JUNK}, v30, {WSR}, s{t1} offen sc1")
    p(f"""s_cmp_lg_u32 s{sSIG}, 31
    s_cbranch_scc1 {lab('NOCB')}
    s_cmp_gt_u32 s{sW}, 1
    s_cbranch_scc1 {lab('NOCB')}
    s_lshl_b32 s{t5}, s{sJ}, 1
    s_add_u32 s{t5}, s{t5}, s{sW}
    v_min_u32 v30, 19, v0
    s_mul_i32 s{t1}, s{t5}, {20*128}
    v_lshl_add_u32 v30, v30, 7, s{t1}
    s_mov_b32 s{t0}, {WS_FW1}
    s_mul_i32 s{t2}, s{t5}, 7
    s_mul_i32 s{t3}, s{t5}, 6
    s_add_u32 s{t3}, s{t3}, 12
    s_cmp_ge_u32 s{t5}, 12
    s_cselect_b32 s{t2}, s{t3}, s{t2}
    s_lshl_b32 s{t2}, s{t2}, 5
    v_min_u32 v32, 27, v0
    v_lshl_add_u32 v33, v32, 3, s{t2}
    v_min_u32 v33, 3448, v33
    global_load_dwordx2 v[92:93], v33, {pair(sB1)}
    v_lshlrev_b32 v32, 4, v32""")
    spin_wait(f"buffer_load_dword v31, v30, {WSR}, s{t0} offen sc1", [31], False, nap=6)
    p(f"s_mul_i32 s{t0}, s{t5}, 8960\ns_add_u32 s{t0}, s{t0}, {WS_PS}")
    for ks in range(20):
        if ks % 9 == 0 and ks: p(f"s_add_u32 s{t0}, s{t0}, {448*9}")
        p(f"buffer_load_dwordx4 {vr(100+4*ks,4)}, v32, {WSR}, s{t0} offen offset:{448*(ks%9)} sc1")
    unpack(D, 96, 92, 2)
    for i in range(4): p(f"v_mul_f32 v{96+i}, 0x3fb8aa3b, v{96+i}")
    for ks in range(1, 20):
        p(f"v_pk_add_f32 v[100:101], v[100:101], {vr(100+4*ks,2)}\nv_pk_add_f32 v[102:103], v[102:103], {vr(102+4*ks,2)}")
    p(f"""s_mul_i32 s{t0}, s{t5}, 896
    s_add_u32 s{t0}, s{t0}, {WS_CB}
    buffer_store_dwordx4 v[100:103], v32, {WSR}, s{t0} offen sc1
    buffer_store_dwordx4 v[96:99], v32, {WSR}, s{t0} offen offset:448 sc1
    s_lshl_b32 s{t0}, s{t5}, 7
    s_add_u32 s{t0}, s{t0}, {WS_FC}
    v_mov_b32 v30, s{sTAG}
    v_mov_b32 v31, 0
    s_waitcnt vmcnt(0)
    buffer_store_dword v30, v31, {WSR}, s{t0} offen sc1""")
    p.label(lab("NOCB"))
    p(f"""s_lshl_b32 s{t0}, s{sJ}, 9
    s_add_u32 s{t0}, s{t0}, {WS_FL}
    v_lshlrev_b32 v31, 2, v0""")
    spin_wait(f"buffer_load_dword v30, v31, {WSR}, s{t0} offen sc1", [30], False, nap=4)
    st("hint")
    p.label(lab("W1DONE"))
    st("w1_issued")
    if not slow:
        pass
    p(f"s_mov_b32 s{t5}, s{sSTO}\ns_add_u32 s{t4}, s{sSTO}, 8192")
    p(stats_loads(G0[0], t5)); p(stats_loads(G0[1], t4))
    x0_norm(D)
    st("xn")

    def gate(e, s, layer, X2, G, YF, XN=None, defer=False, pk=False, later=None):
        if XN is None:
            stats_finish(e, G, 30)
            e(f"v_mul_f32 v32, -v30, v31")
        unpack(e, YF, YP[s], 5)
        if XN is None:
            XN = G
            if pk:
                for i in range(0, 10, 2): e(f"v_pk_fma_f32 {vr(G+i,2)}, {vr(X2+i,2)}, v[30:31], v[32:33] op_sel:[0,1,0] op_sel_hi:[1,1,0]")
            else:
                for i in range(10): e(f"v_fma_f32 v{G+i}, v{X2+i}, v31, v32")
        if pk:
            for i in range(0, 10, 2): e(f"v_pk_fma_f32 {vr(X2+i,2)}, {vr(XN+i,2)}, {vr(YF+i,2)}, {vr(X2+i,2)}")
        else:
            for i in range(10): e(f"v_fmac_f32 v{X2+i}, v{XN+i}, v{YF+i}")
        pack(e, XP[s], X2, 5)
        off = 40960 * s + LX(XF_LAYER, layer)
        wt = sc
        e(f"s_add_u32 s{t0}, s{sXW}, {off}\ns_add_u32 s{t1}, s{sXS}, {off}")
        e(f"buffer_store_dwordx4 {vr(XP[s],4)}, v{vL16}, {WSR}, s{t0} offen{wt}\nbuffer_store_dword v{XP[s]+4}, v{vL16}, {WSR}, s{t1} offen{sc}")
        tok = p.tok()
        if isinstance(e, Fill):
            c, fn = e.items[-1]
            e.items[-1] = (c, lambda fn=fn: setattr(fn(), "token_wr", tok))
        else:
            p.items[-1].token_wr = tok
        def stats():
            e2 = later or e
            e2(f"s_add_u32 s{t1}, s{sSTW}, {ST_K + LX(2*ST_K, layer) + 8192*s}")
            stats_publish(e2, X2, G, t1, 0, slow, TG(layer))
        if defer: return tok, stats
        n0 = len(e.items) if isinstance(e, Fill) else None
        stats()
        last = e.items.pop()
        e.skip(opt("gs", 0))
        e(f"s_add_u32 s{t0}, s{sFXW}, {LX(8192, layer) + 128*s}")
        publish(e, tok, t0, 0, 30, slow, TG(layer), wb=False)
        e.items.append(last)

    AR, BR, NA, NB, AG = 160, 208, 12, 6, 4
    def a1_read(fi):
        fi0 = fi % 140
        return f"ds_read_b128 {vr(AR+4*(fi%NA),4)}, v{vA1[fi0//56]} offset:{1024*(fi0%56)}"
    def a_wait(fi):
        last = AR + 4 * ((fi + AG - 1) % NA)
        p.need(("v", last))
    def b_load(ks):
        l = []
        if ks % 4 == 0 and ks: l.append(f"s_add_u32 s{sB0}, s{sB0}, 4096")
        l.append(f"buffer_load_dwordx4 {vr(BR+4*(ks%NB),4)}, v{vL16}, {WSR}, s{sB0} offen offset:{1024*(ks%4)} sc1")
        return l
    def fx_load(s, layer, dst):
        return f"buffer_load_dword v{dst}, v{dst+1}, {WSR}, s{t2} offen sc1"
    def fx_prep(e, s, layer, dst):
        e(f"v_lshlrev_b32 v{dst+1}, 2, v{vN}\ns_add_u32 s{t2}, s{sFXR}, {LX(8192, layer) + 128*s}")
    def b_start(s, layer):
        p(f"s_add_u32 s{sB0}, s{sXR}, {40960*s + LX(XF_LAYER, layer)}")
        for ks in range(NB):
            for l in b_load(ks): p(l)
    def a_seq_read(seq, i, NA):
        fi0 = seq[i]
        return f"ds_read_b128 {vr(AR+4*(i%NA),4)}, v{vA1[fi0//56]} offset:{1024*(fi0%56)}"
    def a_seq_wait(i, NA):
        p.need(("v", AR + 4 * (i % NA)))
    def row_scalars(e, s, layer, G, o=30):
        e(f"s_add_u32 s{t5}, s{sSTR}, {ST_K + LX(2*ST_K, layer) + 8192*s}")
        e(stats_loads(G, t5))
        e.skip(30)
        late_check(e, stats_loads(G, t5), stats_tags(G), 32, False, TG(layer))
        stats_finish(e, G, o)
        e(f"v_mul_f32 v{o+1}, 0x3fb8aa3b, v{o+1}\nv_mul_f32 v{o}, -v{o}, v{o+1}")
    def act(s, layer, ACC, T, O, mid=None, sc_=30, extra=None, extra_from=0, every=5, K=(32, 34), extra0=None):
        LN2, M2 = K
        off = 110592 * s + LX(HF_LAYER, layer)
        p(f"v_mov_b32 v{LN2}, 0x3f317218\nv_mov_b32 v{M2}, 0xbfb17218\ns_add_u32 s{t0}, s{sHW}, {off}\ns_add_u32 s{t1}, s{sHS}, {off}")
        tok = p.tok()
        extra = list(extra or [])
        cnt = [0]
        def q(l, on):
            p(l)
            cnt[0] += 1
            if on and extra and cnt[0] % every == 0:
                for x in extra.pop(0): p(x)
            elif not on and extra0 and cnt[0] > 20 and cnt[0] % 5 == 0:
                for x in extra0.pop(0): p(x)
        for pr in range(4):
            n = 4 if pr < 3 else 2
            on = pr >= extra_from
            acc, cs, bb, o = ACC + 8 * pr, CS + 8 * pr, BB + 8 * pr, O + 4 * (pr % 2)
            for i in range(n): q(f"v_pk_fma_f32 {vr(T+2*i,2)}, {vr(cs+2*i,2)}, {vr(sc_,2)}, {vr(bb+2*i,2)} op_sel_hi:[1,0,1]", on)
            for i in range(n): q(f"v_pk_fma_f32 {vr(acc+2*i,2)}, {vr(acc+2*i,2)}, {vr(sc_,2)}, {vr(T+2*i,2)} op_sel:[0,1,0] op_sel_hi:[1,1,1]", on)
            for i in range(2*n): q(f"v_exp_f32 v{T+i}, v{acc+i}", on)
            if pr == 0 and mid and "start" in mid: mid["start"]()
            for i in range(n): q(f"v_pk_add_f32 {vr(T+2*i,2)}, {vr(T+2*i,2)}, 1.0 op_sel_hi:[1,0]", on)
            for i in range(n): q(f"v_pk_fma_f32 {vr(T+2*i,2)}, {vr(T+2*i,2)}, {vr(T+2*i,2)}, 1.0 op_sel_hi:[1,1,0]", on)
            for i in range(2*n): q(f"v_rcp_f32 v{T+i}, v{T+i}", on)
            for i in range(n): q(f"v_pk_fma_f32 {vr(T+2*i,2)}, {vr(T+2*i,2)}, {vr(M2,2)}, {vr(LN2,2)} op_sel_hi:[1,0,0]", on)
            for i in range(n): q(f"v_pk_mul_f32 {vr(acc+2*i,2)}, {vr(acc+2*i,2)}, {vr(T+2*i,2)}", on)
            pack(D, o, acc, n)
            if pr < 3:
                p(f"buffer_store_dwordx4 {vr(o,4)}, v{vL16}, {WSR}, s{t0} offen offset:{1024*pr}{WT(layer)}", tok_wr=tok)
            else:
                if s == 0 and layer == 0:
                    p(f"s_cmp_ge_u32 s{sN}, 12\ns_cselect_b32 s{sHS}, 0x70000000, s{sHS}\ns_cselect_b32 s{t1}, 0x70000000, s{t1}")
                p(f"buffer_store_dwordx2 {vr(o,2)}, v{vL8}, {WSR}, s{t1} offen{WT(layer)}", tok_wr=tok)
            if pr == extra_from - 1 and extra0:
                for g in extra0:
                    for x in g: p(x)
                extra0.clear()
            if mid and pr in mid: mid[pr]()
        for g in extra:
            for x in g: p(x)
        return tok
    def row_scalars2(e, s, layer, o):
        G = 120
        ld = "\n".join(f"buffer_load_dwordx3 {vr((G, G+4, G+8, 32)[i],3)}, v{vL16}, {WSR}, s{t5} offen offset:{1024*i} sc1" for i in range(4))
        e(f"s_add_u32 s{t5}, s{sSTR}, {ST_K + LX(2*ST_K, layer) + 8192*s}")
        e(ld)
        e.skip(30)
        late_check(e, ld, [G + 2, G + 6, G + 10, 34], 32, False, TG(layer))
        e(f"v_add_f32 v{G+8}, v{G+8}, v32\nv_add_f32 v{G+9}, v{G+9}, v33")
        stats_finish(e, G, o, three=True)
        e(f"v_mul_f32 v{o+1}, 0x3fb8aa3b, v{o+1}\nv_mul_f32 v{o}, -v{o}, v{o+1}")
    def act_fill(e, s, layer, ACC, T, O, sc_):
        off = 110592 * s + LX(HF_LAYER, layer)
        e(f"v_mov_b32 v34, 0x3f317218\ns_add_u32 s{t0}, s{sHW}, {off}\ns_add_u32 s{t1}, s{sHS}, {off}")
        tok = p.tok()
        for ft in range(7):
            acc, cs, bb, o = ACC + 4 * ft, CS + 4 * ft, BB + 4 * ft, O + 4 * ((ft // 2) % 2) + 2 * (ft % 2)
            for i in range(4): e(f"v_fma_f32 v{T+i}, v{cs+i}, v{sc_}, v{bb+i}")
            for i in range(4): e(f"v_fma_f32 v{acc+i}, v{acc+i}, v{sc_+1}, v{T+i}")
            for i in range(4): e(f"v_exp_f32 v{T+i}, v{acc+i}")
            for i in range(4): e(f"v_add_f32 v{T+i}, 1.0, v{T+i}")
            for i in range(4): e(f"v_fma_f32 v{T+i}, v{T+i}, v{T+i}, 1.0")
            for i in range(4): e(f"v_rcp_f32 v{T+i}, v{T+i}")
            for i in range(4): e(f"v_fmamk_f32 v{T+i}, v{T+i}, 0xbfb17218, v34")
            for i in range(4): e(f"v_mul_f32 v{acc+i}, v{acc+i}, v{T+i}")
            pack(e, o, acc, 2)
            if ft % 2 == 1: e(f"buffer_store_dwordx4 {vr(o-2,4)}, v{vL16}, {WSR}, s{t0} offen offset:{1024*(ft//2)}{WT(layer)}", tok_wr=tok)
            if ft == 6: e(f"buffer_store_dwordx2 {vr(o,2)}, v{vL8}, {WSR}, s{t1} offen{WT(layer)}", tok_wr=tok)
        return tok
    def w2_groups(q0, q1):
        out = []
        if opt("now2", 0): return out
        for qq_ in range(q0, q1):
            sb, qq = (sW2B, qq_) if qq_ < 60 else (sW2S, qq_ - 60)
            g = []
            if qq % 4 == 0 and qq > 0: g.append(f"s_add_u32 s{sb}, s{sb}, 4096")
            g.append(f"buffer_load_dwordx4 {w2reg(qq_)}, v{vW2}, {WSR}, s{sb} offen offset:{1024*(qq%4)}{' sc1' if opt('w2sc', 1) else ''}")
            out.append(g)
        return out
    HR, NH = 132, 15
    def fh_prep(e, s, layer, dst):
        e(f"v_bfe_u32 v{dst+1}, v0, 1, 2\nv_lshlrev_b32 v{dst+1}, 4, v{dst+1}\nv_and_b32 v{dst}, 1, v0\nv_lshl_add_u32 v{dst+1}, v{dst}, 2, v{dst+1}")
        e(f"s_add_u32 s{t3}, s{sFHR}, {LX(8192, layer) + 4096*s}")
    def fh_load(dst): return f"buffer_load_dword v{dst}, v{dst+1}, {WSR}, s{t3} offen sc1"
    def h_load(idx, layer, b):
        s, r = divmod(idx, 28)
        second, kl = divmod(r, 14)
        ro = (sH0, sH2)[second]
        l = []
        if kl == 0:
            off = 110592 * s + LX(HF_LAYER, layer)
            l.append(f"s_add_u32 s{ro}, s{sHR if second else sH1}, {off}")
        elif kl < 12 and kl % 4 == 0: l.append(f"s_add_u32 s{ro}, s{ro}, 4096")
        if kl < 12:
            l.append(f"buffer_load_dwordx4 {vr(b,4)}, v{vL16}, {WSR}, s{ro} offen offset:{1024*(kl%4)} sc1")
        else:
            if kl == 12: l.append(f"s_add_u32 s{ro}, s{ro}, s{sB1_}")
            o = (kl - 12) * 1024
            l += [f"buffer_load_dwordx2 {vr(b,2)}, v{vL8}, {WSR}, s{ro} offen offset:{o} sc1",
                  f"buffer_load_dwordx2 {vr(b+2,2)}, v{vL8}, {WSR}, s{ro} offen offset:{o+512} sc1"]
        return l
    def emit_tail(F, rest):
        items = F.items
        nb = sum(1 for c, _ in items if c == "skip")
        paced = [b_[1:] for b_ in rest]
        head = [[b_[0]] for b_ in rest]
        merge(head[:nb * 2], F)
        late = [x for pc in paced[:nb * 2] for x in pc]
        for l in late: p(l)
        merge([h_ + pc for h_, pc in zip(head[nb * 2:], paced[nb * 2:])])
    def red_addr(e, dst, x, extra=0, sh=4):
        e(f"s_xor_b32 s{t4}, s{sW}, {x}\ns_mul_i32 s{t4}, s{t4}, 5120\ns_add_u32 s{t4}, s{t4}, {RED_BASE + extra}\nv_add_u32 v{dst}, s{t4}, v{vL16 if sh == 4 else vL8}")
    def bar(e, tok=None):
        if opt("x_nobar", 0): return
        if tok is not None: e.need(tok)
        e.group(lambda: p("s_barrier"), 4)
    def roundA(e, s, A):
        if opt("x_nored", 0): return
        red_addr(e, 33, 0)
        tk = p.tok()
        for dt in range(5): e(f"ds_write_b128 v33, {vr(A+4*dt,4)} offset:{1024*dt}", tok_wr=tk)
        red_addr(e, 33, 1); red_addr(e, 34, 3, 8)
        e.skip(opt("bs1", 6))
        bar(e, tk)
        for dt in range(5): e(f"ds_read_b64 {vr(A+2*dt,2)}, v33 offset:{1024*dt}")
        for dt in range(5): e(f"ds_read_b64 {vr(A+10+2*dt,2)}, v34 offset:{1024*dt}")
        e.skip(opt("bs2", 8))
        for i in range(10): e(f"v_add_f32 v{A+i}, v{A+i}, v{A+10+i}")
        bar(e)
        unpack(e, A + 10, XP[s], 5)
        for i in range(10): e(f"v_add_f32 v{A+i}, v{A+i}, v{A+10+i}")
    def roundB(e, s, A, OWN, last=False, mid=None):
        if opt("x_nored", 0): return
        tk = p.tok()
        for dt in range(5): e(f"ds_write_b64 v{vRB}, {vr(OWN+4*dt+2,2)} offset:{512*dt}", tok_wr=tk)
        for dt in range(5): e(f"v_add_f32 v{A+2*dt}, v{A+2*dt}, v{OWN+4*dt}\nv_add_f32 v{A+2*dt+1}, v{A+2*dt+1}, v{OWN+4*dt+1}")
        if mid: mid()
        e.skip(opt("bs3", 2))
        bar(e, tk)
        for dt in range(5): e(f"ds_read_b64 {vr(A+10+2*dt,2)}, v{vRB+1} offset:{512*dt}")
        e.skip(opt("bs4", 5))
        for i in range(10): e(f"v_add_f32 v{A+i}, v{A+i}, v{A+10+i}")
    def roundB_addr(e):
        red_addr(e, vRB, 0, sh=3); red_addr(e, vRB + 1, 2, sh=3)
    vRB = 34
    def epi_stats(e, s, A, OWN):
        e(f"s_add_u32 s{t0}, s{sSTW}, {LX(2*ST_K, 1) + 8192*s}")
        stats_publish(e, A, OWN, t0, 0, slow, sTAG2)
    def epi_gate(e, s, A, OWN, w1=20, w2=20):
        e.skip(w1)
        e(f"s_add_u32 s{t5}, s{sSTO}, {LX(2*ST_K, 1) + 8192*s}")
        e(stats_loads(OWN, t5))
        e.skip(w2)
        st(f"eg{s}_chk", e)
        late_check(e, stats_loads(OWN, t5), stats_tags(OWN), 32, False, sTAG2)
        st(f"eg{s}_ok", e)
        gate(e, s, 1, A, OWN, A + 10)
    def out_store(e, s, A):
        pack(e, A + 10, A, 5)
        for dt in range(5): e(f"global_store_dword v{30+s}, v{A+10+dt}, {pair(sOUT)} offset:{32*dt}")

    p(f"""s_xor_b32 s{t0}, s{sW}, 1
    s_and_b32 s{t0}, s{t0}, 1
    s_sub_u32 s{sH1}, s{sHR}, 55296
    s_add_u32 s{t1}, s{sHR}, 55296
    s_cmp_eq_u32 s{t0}, 1
    s_cselect_b32 s{sH1}, s{t1}, s{sH1}
    s_mul_i32 s{sB1_}, s{sW}, 10240
    s_sub_u32 s{sB1_}, {49152 - 8192}, s{sB1_}
    s_cmp_eq_u32 s{sW}, 3
    s_cselect_b32 s{sB1_}, -8192, s{sB1_}
    s_lshl_b32 s{t0}, s{sA}, 2
    s_and_b32 s{t1}, s{sW}, 1
    s_add_u32 s{t0}, s{t0}, s{t1}
    s_lshl_b32 s{t0}, s{t0}, 3
    s_add_u32 s{t0}, s{t0}, s{sB}
    s_mul_i32 s{t4}, s{t0}, 2560
    s_lshr_b32 s{t1}, s{sP8}, 1
    s_add_u32 s{t4}, s{t4}, s{t1}
    s_add_u32 s{t4}, s{t4}, {WS_YG}
    s_add_u32 s{t5}, s{t4}, 40960
    v_min_u32 v31, 19, v0
    v_lshlrev_b32 v31, 9, v31
    s_mul_i32 s{t0}, s{sB}, 10240
    s_lshr_b32 s{t1}, s{sA}, 3
    s_lshl_b32 s{t1}, s{t1}, 7
    s_add_u32 s{t0}, s{t0}, s{t1}
    s_add_u32 s{t0}, s{t0}, {WS_FY}""")
    spin_wait(f"buffer_load_dword v30, v31, {WSR}, s{t0} offen sc1", [30], False, nap=opt("ynap", 2))
    st("y_flag")
    for s in range(2):
        for t in range(5):
            p(f"buffer_load_dword v{YP[s]+t}, v{vL8}, {WSR}, s{(t4, t5)[s]} offen offset:{512*t} sc1")
    tka, sta = gate(D, 0, 0, X32[0], 112, 102, XN0[0], defer=True, pk=True)
    tkb, stb = gate(D, 1, 0, X32[1], 152, 142, XN0[1], defer=True, pk=True)
    sta()
    publish(D, tka, sFXW, 0, 32, slow, wb=False)
    publish(D, tkb, sFXW, 128, 32, slow, wb=False)
    stb()
    st('x_pub1')
    if not slow and HPW:
        p(f"""s_sub_u32 s{t2}, s{sHS}, 3072
        s_sub_u32 s{t3}, s{sHW}, 3072
        s_cmp_ge_u32 s{sN}, 12
        s_cselect_b32 s{t2}, s{t3}, s{t2}
        v_and_b32 v33, 31, v0
        v_min_u32 v33, 27, v33
        v_lshlrev_b32 v30, 7, v33
        v_add_u32 v31, s{sHW}, v30
        v_add_u32 v32, s{t2}, v30
        v_cmp_gt_u32 vcc, 24, v33
        v_cndmask_b32 v31, v32, v31, vcc
        v_lshrrev_b32 v32, 5, v0
        v_mul_u32_u24 v32, 110592, v32
        v_add_u32 v126, v31, v32""")
        if HPW == 1: p(f"buffer_load_dword v{JUNK}, v126, {WSR}, 0 offen sc1")
    p(f"s_cmp_ge_u32 s{sSIG}, 20\ns_cbranch_scc1 {lab('RESTI')}")
    w1_range(NAC, na)
    p("s_barrier")
    w1_range(na, 35)
    p(f"s_branch {lab('HAVEB')}")
    p.label(lab("RESTI"))
    w1_range(NAI, 35)
    p.label(lab("HAVEB"))
    p("s_waitcnt vmcnt(0)")
    st("w1_in")
    p("s_barrier")
    EX, EY = (192, 212), (92, 112)
    ACCX, ACCY = 132, 92
    class Ring:
        def __init__(self, slots): self.free, self.q, self.at = list(slots), [], {}
        def push(self, key, fn): self.q.append((key, fn))
        def issue(self, n=1):
            out = []
            while n and self.q and self.free:
                key, fn = self.q.pop(0)
                self.at[key] = self.free.pop(0)
                ls = fn(self.at[key]); n -= 1
                if not opt("x_nold", 0): out += ls
            return out
        def release(self, key): self.free.append(self.at[key])
    def x_load(s_, ks, base):
        sb = (sB0, sXY)[s_]
        def fn(r):
            l = []
            if ks == 0: l.append(f"s_add_u32 s{sb}, s{sXR}, {base + 40960*s_}")
            elif ks % 4 == 0: l.append(f"s_add_u32 s{sb}, s{sb}, 4096")
            return l + [f"buffer_load_dwordx4 {vr(r,4)}, v{vL16}, {WSR}, s{sb} offen offset:{1024*(ks%4)} sc1"]
        return fn
    def hq_load(idx, layer): return lambda r: h_load(idx, layer, r)
    carry = None
    for layer in range(2):
        L = f"L{layer}_"
        if layer == 1 and opt("rerun", 0) and not slow:
            p(f"s_mov_b32 s{sE}, 0")
            p.label("RERUN")
            st("L1_head")
        seq = list(range(140)) * (1 + layer)
        NA, AG = (opt("na0", 6), opt("ag0", 2)) if layer == 0 else (12, opt("ag1", 4))
        for i in range(NA): p(a_seq_read(seq, i, NA))
        def attach(b, i, NA=NA, AG=AG):
            if i + NA < len(seq): b.append(a_seq_read(seq, i + NA, NA))
            if i % AG == AG - 1 and i + 1 < len(seq): b.append(lambda i=i: a_seq_wait(min(i + AG, len(seq) - 1), NA))
        xoff = LX(XF_LAYER, layer)
        H = Ring(range(HR, HR + 4 * NH, 4))
        KH = opt("kh", 0) if layer == 0 else 0
        ORDX = [(second, kl) for kl in range(KH) for second in range(2)] + [(second, kl) for second in range(2) for kl in range(KH, 14)]
        for second, kl in ORDX: H.push(14 * second + kl, hq_load(14 * second + kl, layer))
        if layer == 0:
            R = Ring(range(AR + 4 * NA, 232, 4))
            p(f"v_and_b32 v31, 16, v0\nv_lshlrev_b32 v31, 3, v31\nv_lshl_add_u32 v31, v{vN}, 2, v31\ns_mov_b32 s{t2}, s{sFXR}")
            spin_wait(fx_load(0, layer, 30), [30], False)
            st(L + "x_seen")
            for ks in range(20):
                for s_ in (1, 0): R.push((s_, ks), x_load(s_, ks, xoff))
            for l in R.issue(opt("x_first", 6)): p(l)
            p(f"""s_or_b32 s{t0}, s2, s{sW}
            s_cmp_eq_u32 s{t0}, 0
            s_cselect_b32 s{t0}, 0, 0x70000000
            v_mov_b32 v33, s{sTAG}
            v_mov_b32 v34, 0
            buffer_store_dword v33, v34, {WSR}, s{t0} offen sc1""")
            beats = []
            for ks in range(20):
                for ft in range(7):
                    i = ks * 7 + ft
                    for s_ in (1, 0):
                        acc = (ACCX, ACCY)[s_] + 4 * ft
                        b = [f"{MF} {vr(acc,4)}, {vr(AR+4*(i%NA),4)}, {vr(R.at[(s_, ks)],4)}, {'0' if ks == 0 else vr(acc,4)}"]
                        if s_ == 0: attach(b, i)
                        if ft == 6: R.release((s_, ks))
                        if len(beats) % 3 == 0 or ft == 6: b += R.issue(1)
                        beats.append(b)
            F = Fill()
            F(f"s_lshl_b32 s{t3}, s{sN}, 7\ns_add_u32 s{t3}, s{t3}, {WS_FC}\nv_mov_b32 v121, v90\nv_writelane_b32 v121, s{t3}, 63\ns_mov_b32 s{t3}, 0")
            F(fh_load(120))
            st("s12_a", F)
            row_scalars(F, 0, layer, 36)
            st("s12_b", F)
            late_check(F, fh_load(120), [120], 124, False)
            st("s12_c", F)
            row_scalars(F, 1, layer, 36, 122)
            st("s12_d", F)
            tkt = p.tok()
            F(f"s_mul_i32 s{t0}, s{sN}, 896\ns_add_u32 s{t0}, s{t0}, {WS_CB}\ns_mul_i32 s{t1}, s{sW}, 5120\ns_add_u32 s{t1}, s{t1}, {RED_BASE}\nv_lshl_add_u32 v124, v{vG}, 4, s{t1}")
            F.group(lambda: (p(f"s_mov_b32 m0, s{t1}\ns_mov_b32 exec_hi, 0xffffff"), p(f"buffer_load_dwordx4 v{vL16}, {WSR}, s{t0} offen sc1 lds", tok_wr=tkt), p("s_mov_b64 exec, -1")), 16)
            Ft = Fill()
            Ft.need(tkt)
            for i in range(14): Ft(f"ds_read_b128 {vr(CS+4*i,4)}, v124 offset:{64*i}")
            st("s12_e", F)
            if not slow and HPW == 2: F(f"buffer_load_dword v{JUNK}, v126, {WSR}, 0 offen sc1")
            N12 = opt("n12", 40)
            for q in range(NW2E, N12):
                w2_loads(F, q, q + 1, vW2)
                F.skip(opt("w2gap", 4))
                if q == NW2E + 6: F.items += Ft.items
            merge(beats, F)
            st(L + "S12")
            NA1 = max(N12, opt("na1", 56))
            NA2 = max(NA1, opt("na2", 70))
            tokx = act(0, layer, ACCX, 192, 200, extra=w2_groups(N12, NA1), every=opt("ev1", 7), K=(208, 210))
            p(f"s_add_u32 s{t4}, s{sFHW}, {LX(8192, layer)}")
            fh_prep(D, 0, layer, 120)
            st(L + "A1")
            tokh = act(1, layer, ACCY, 192, 200, sc_=122, K=(208, 210),
                       mid={"start": lambda: publish(D, tokx, t4, 0, 124, slow, TG(layer), wb=False), 1: lambda: p(fh_load(120)),
                            2: lambda: late_check(D, fh_load(120), [120], 124, False, TG(layer))},
                       extra=[H.issue(1) for _ in range(opt("hpre", 6))], extra_from=3, every=3, extra0=w2_groups(NA1, NA2))
        else:
            R = carry
            HEAD_LOADS = R.issue(NB)
            def g1_pass(s_, acc0):
                beats = []
                for ks in range(20):
                    for ft in range(7):
                        i = 140 * s_ + ks * 7 + ft
                        b = [f"{MF} {vr(acc0+4*ft,4)}, {vr(AR+4*(i%NA),4)}, {vr(R.at[(s_, ks)],4)}, {'0' if ks == 0 else vr(acc0+4*ft,4)}"]
                        attach(b, i)
                        if ft == 6:
                            R.release((s_, ks)); b += R.issue(1)
                        beats.append(b)
                return beats
            g1x = g1_pass(0, ACCX)
            GX = EY[1] + 4
            def head_mid():
                late_check(D, fx_load(0, 1, 30), [30], 32, False, TG(1))
                st("L1_xX_seen")
                for l in HEAD_LOADS: p(l)
            roundB(D, 1, *EY, mid=head_mid)
            p(f"s_add_u32 s{t3}, s{sSTR}, {ST_K + LX(2*ST_K, layer)}")
            p(stats_loads(GX, t3))
            epi_stats(D, 1, *EY)
            st(L + "st_pub")
            F = Fill()
            bar(F)
            F.skip(opt("e1x", 4))
            late_check(F, stats_loads(GX, t3), stats_tags(GX), 32, False, TG(layer))
            stats_finish(F, GX, 34)
            F(f"v_mul_f32 v35, 0x3fb8aa3b, v35\nv_mul_f32 v34, -v34, v35")
            F(f"s_add_u32 s{t5}, s{sSTO}, {LX(2*ST_K, 1) + 8192}")
            F(stats_loads(EY[1], t5))
            c1 = opt("c1", 40)
            merge(g1x[:c1], F, rate=12)
            late_check(D, stats_loads(EY[1], t5), stats_tags(EY[1]), 32, False, sTAG2)
            st(L + "st_ok")
            F = Fill()
            tk, sts = gate(D, 1, 1, EY[0], EY[1], EY[0] + 10, defer=True, pk=True, later=F)
            F.skip(opt("e1p", 6))
            F(f"s_add_u32 s{t0}, s{sFXW}, {LX(8192, layer) + 128}")
            publish(F, tk, t0, 0, 30, slow, TG(layer), wb=False)
            st(L + "yY_pub", F)
            sts()
            merge(g1x[c1:], F, rate=opt("r1", 8))
            st(L + "S1")
            fx_prep(D, 1, layer, 120)
            p(fx_load(1, layer, 120))
            for ks in range(20): R.push((1, ks), x_load(1, ks, xoff))
            tokx = act(0, layer, ACCX, 92, 100, K=(108, 110), sc_=34, mid={opt("a1c", 1): lambda: late_check(D, fx_load(1, layer, 120), [120], 122, False, TG(layer))},
                       extra=[R.issue(1) for _ in range(NB)], extra_from=opt("a1c", 1) + 1, every=5)
            st(L + "A1")
            F = Fill()
            F.skip(opt("p2", 20))
            F(f"s_add_u32 s{t4}, s{sFHW}, {LX(8192, layer)}")
            publish(F, tokx, t4, 0, 32, slow, TG(layer), wb=False)
            row_scalars(F, 1, layer, 120)
            fh_prep(F, 0, layer, 120)
            F(fh_load(120))
            merge(g1_pass(1, ACCY), F)
            st(L + "S2")
            late_check(D, fh_load(120), [120], 124, False, TG(layer))
            tokh = act(1, layer, ACCY, 192, 200, K=(208, 210), extra=[H.issue(1) for _ in range(NH)], every=8)
        st(L + "A2")
        c3 = opt("c3", 90)
        bts = []
        KOUT = layer == 0 and opt("kout", 0)
        late_w2 = w2_groups(NA2, 70) if layer == 0 else []
        for s_ in range(2):
            A_, OWN_ = (EX, EY)[s_]
            order = [(second, kl) for second in range(2) for kl in range(14)]
            if s_ == 0: order = ORDX
            for second, kl in order:
                acc = OWN_ if second else A_
                idx = 28 * s_ + 14 * second + kl
                for dt in range(5):
                    nb_i = len(bts)
                    b = [f"{MF} {vr(acc+4*dt,4)}, {w2reg(kl*5+dt)}, {vr(H.at[idx],4)}, {'0' if kl == 0 else vr(acc+4*dt,4)}"]
                    if nb_i == c3:
                        b.append(lambda: late_check(D, fh_load(120), [120], 122, False, TG(layer)))
                        for i2 in range(28, 56): H.push(i2, hq_load(i2, layer))
                    if dt == 4: H.release(idx)
                    if nb_i % 3 == 0 or dt == 4: b += H.issue(1)
                    if late_w2 and nb_i % opt("lw", 2) == 1 % opt("lw", 2): b += late_w2.pop(0)
                    bts.append(b)
        F = Fill()
        F.skip(opt("p3", 10))
        F(f"s_add_u32 s{t4}, s{sFHW}, {LX(8192, layer) + 4096}")
        if not (opt("x_nopub", 0) and False): publish(F, tokh, t4, 0, 32, slow, TG(layer), wb=False)
        fh_prep(F, 1, layer, 120)
        F.skip(max(0, c3 - opt("p3", 10) - 28))
        F(fh_load(120))
        cA = 72 + 5 * KH
        merge(bts[:cA], F)
        st(L + "S3a")
        F = Fill()
        roundA(F, 0, EX[0])
        roundB_addr(F)
        merge(bts[cA:142], F, rate=(opt("ra", 6) if not KH else 12))
        st(L + "S3")
        F = Fill()
        roundB(F, 0, *EX)
        if layer == 0:
            epi_stats(F, 0, *EX)
            bar(F)
            F.until(opt("u4a", 40))
            F(f"s_add_u32 s{t5}, s{sSTO}, {LX(2*ST_K, 1)}")
            F(stats_loads(EX[1], t5))
            F.until(opt("u4b", 58))
            st("eg0_chk", F)
            late_check(F, stats_loads(EX[1], t5), stats_tags(EX[1]), 32, False, sTAG2)
            st("eg0_ok", F)
            tk, sts = gate(F, 0, 1, EX[0], EX[1], EX[0] + 10, defer=True)
            sts()
            lastst = F.items.pop()
            F(f"s_add_u32 s{t0}, s{sFXW}, {LX(8192, 1)}")
            publish(F, tk, t0, 0, 30, slow, TG(1), wb=False)
            F.items.append(lastst)
            st(L + "xX_pub", F)
            F.until(70)
            roundA(F, 1, EY[0])
            roundB_addr(F)
            carry = Ring(range(BR, BR + 4 * NB, 4))
            for ks in range(20): carry.push((0, ks), x_load(0, ks, LX(XF_LAYER, 1)))
            APRE = 0
            fx_prep(F, 0, 1, 30)
            F(fx_load(0, 1, 30))
            merge(bts[142:], F, rate=opt("r4", 10))
        else:
            bar(F)
            F.group(lambda: xy_offset(30), 40)
            F.until(70)
            roundA(F, 1, EY[0])
            roundB_addr(F)
            out_store(F, 0, EX[0])
            merge(bts[142:], F, rate=opt("ra", 6))
        st(L + "S4")
    if opt("rerun", 0) and not slow:
        p(f"s_cmp_lg_u32 s{sE}, 0\ns_cbranch_scc1 RERUN_DONE\ns_mov_b32 s{sE}, 1\nv_mov_b32 v{JUNK}, v{vSTAMP}\ns_branch RERUN")
        p.label("RERUN_DONE")
    roundB(D, 1, *EY)
    out_store(D, 1, EY[0])
    if STAMPS and not slow:
        stamp("end")
        if DBG is not None:
            p(f"""v_readlane_b32 s{t0}, v{vSTAMP}, 0
            s_not_b32 s{t0}, s{t0}
            v_writelane_b32 v{vSTAMP}, s{t0}, 15
            v_lshlrev_b32 v30, 2, v0
            s_mov_b64 exec, 0xffff
            global_atomic_umax v30, v{vSTAMP}, {pair(sDBG)}
            s_mov_b64 exec, -1""")
        p(f"""s_lshl_b32 s{t0}, s2, 2
        s_add_u32 s{t0}, s{t0}, s{sW}
        s_lshl_b32 s{t0}, s{t0}, 8
        s_add_u32 s{t0}, s{t0}, {WS_STAMP}
        v_lshlrev_b32 v30, 2, v0
        buffer_store_dword v{vSTAMP if opt("rerun", 0) != 2 else JUNK}, v30, {WSR}, s{t0} offen""")
    p("s_endpgm")
    while tail_code: tail_code.pop(0)()

body(False)
body(True)
p.label("END")
p("s_endpgm")
p.raw('.section .rodata,"a"\n.p2align 6')
p.raw(f".amdhsa_kernel {KN}")
for l in ["next_free_vgpr 512", "next_free_sgpr 102", "accum_offset 256", "group_segment_fixed_size 0", "kernarg_size 104",
          "user_sgpr_count 2", "user_sgpr_kernarg_segment_ptr 1", "system_sgpr_workgroup_id_x 1", "float_denorm_mode_32 3"]:
    p.raw("  .amdhsa_" + l)
p.raw(".end_amdhsa_kernel")
out = [a for a in ARGS if not a.startswith("--")][0]
open(out, "w").write(p.finalize())
if STAMPS: open(out + ".stamps", "w").write("\n".join(stamp_names))
```

```python
import sys
from gasm import Prog, Ins

NAME = "interleave_layers__ssm_conv_h3__dense_activation_mish__prompt"
ARGS = sys.argv[1:]
STAMPS = "--stamps" in ARGS or "--cstamps" in ARGS
STAMP_INS = "s_memtime" if "--cstamps" in ARGS else "s_memrealtime"
FORCE_SLOW = "--slow" in ARGS
def opt(name, default):
    for a in ARGS:
        if a.startswith(f"--{name}="): return type(default)(a.split("=", 1)[1])
    return default
SPIN = 400000
NT = lambda n, d: ' nt' if opt('nt_' + n, d) else ''

WS_EPOCH, WS_FT, WS_FC = 0, 0x1000, 0x2000
WS_FW1, WS_FW2 = 0x60000, 0x6A000
WS_FTR = 0x11000
WS_XC = 0x36000
WS_FL = 0x10000
WS_FY, WS_FX, WS_FH, WS_CB, WS_PS = 0x40000, 0x4000, 0x8000, 0xC000, 0x12000
WS_ST, WS_UR, WS_YG, WS_XF, WS_HF, WS_W1F, WS_W2F, WS_STAMP = 0x100000, 0x300000, 0x600000, 0xB00000, 0x1000000, 0x1E00000, 0x2100000, 0x3000000
XF_LAYER, HF_LAYER, ST_K = 128 * 20 * 1024, 128 * 54 * 1024, 128 * 4096

LDS_BYTES = 163840
CONV_PITCH, HC_PITCH = 21312, 4160
LU_OFF = 4 * HC_PITCH
CONV_BASE = LDS_BYTES - 4 * CONV_PITCH
T_BASE = 0
TW_PITCH = 6400
UT_BASE = 4 * TW_PITCH
WST_BASE = CONV_BASE
RED_BASE = 143360
NW1A = 76

sQ, sK, sV, sSK, sH, sD, sBX, sW1, sB1, sW2, sOUT, sDBG, sWS = [4 + 2 * i for i in range(13)]
R_WS, R_K, R_V, R_H, R_W = 32, 36, 40, 44, 48
sJ, sSIG, sW, sA, sB, sM, sN, sTAG, sE, sDVAL, sXV, sSPIN = range(52, 64)
t0, t1, t2, t3, t4, t5, t6, t7 = range(64, 72)
sSTAMP = 72
WU = [98, 98]
sXR, sXW, sXS, sHW, sHS, sHR, sFXR, sFXW, sFHR, sFHW, sSTW, sSTO, sSTR, sP8, sW2B, sW2S, sGOTA = range(76, 93)
sB0, sB1_, sH0, sH1 = 93, 94, 95, 96
sTAG2 = 97
sH2 = 99
sXY = 98
sG = 3
srd = lambda r: f"s[{r}:{r+3}]"
pair = lambda r: f"s[{r}:{r+1}]"
WSR = srd(R_WS)

vL16, vN, vG, vL8, vSTAMP = 1, 2, 3, 4, 5
XP = [6, 12]
YP = [17, 22]
JUNK = 27
vA1 = [vL16, 28, 29]
CS, BB = 36, 64
vr = lambda b, n: f"v[{b}:{b+n-1}]" if n > 1 else f"v{b}"
def w2reg(q):
    return f"a[{4*q}:{4*q+3}]" if q < 64 else f"v[{232+4*(q-64)}:{232+4*(q-64)+3}]"
MF = "v_mfma_f32_16x16x32_bf16"

p = Prog()
p.junk = {('v', JUNK)}
stamp_names = []
tail_code = []

class Fill:
    def __init__(self): self.items = []
    def __call__(self, s, tok_wr=None):
        ls = [l.strip() for l in s.strip("\n").split("\n") if l.strip() and not l.strip().startswith(";")]
        for i, l in enumerate(ls):
            c = 8 if l.split()[0] in ("v_exp_f32", "v_rcp_f32", "v_sqrt_f32", "v_rsq_f32") else 4
            self.items.append((c, (lambda l=l, t=(tok_wr if i == len(ls) - 1 else None): p(l, tok_wr=t))))
    def group(self, fn, cost): self.items.append((cost, fn))
    def skip(self, n): self.items.append(("skip", n))
    def until(self, n): self.items.append(("until", n))
    def need(self, *t): self.items.append((4, lambda: p.need(*t)))
    def L(self, x): return p.L(x)

class Direct:
    def __call__(self, s, tok_wr=None): p(s, tok_wr=tok_wr)
    def group(self, fn, cost): fn()
    def skip(self, n): pass
    def until(self, n): pass
    def need(self, *t): p.need(*t)
D = Direct()

def merge(beats, fill=None, rate=8, flush=True):
    items = list(fill.items) if fill else []
    credit = 0
    hold = 0
    for bi, b in enumerate(beats):
        for x in b:
            if callable(x): x()
            else: p(x)
        credit = min(credit, 0) + rate - 4 * (len(b) - 1)
        if hold > 0:
            hold -= 1; continue
        while items and credit > 0:
            c, fn = items[0]
            if c == "skip":
                items.pop(0); hold = fn; break
            if c == "until":
                if bi < fn: break
                items.pop(0); continue
            if c > credit and credit < 4: break
            items.pop(0); fn(); credit -= c
    if not flush: return items
    for c, fn in items:
        if c not in ("skip", "until"): fn()

def merge2(beats, F, F2, at, rate):
    n = len(F.items)
    items = list(F.items)
    class R: pass
    r = R(); r.items = items
    left = merge(beats[:at], r, rate, flush=False)
    r2 = R(); r2.items = left + list(F2.items)
    merge(beats[at:], r2, rate if left else opt('ra', 6))

DBG = opt("dbg", "").split(",") if opt("dbg", "") else None
ONLY = opt("only", "").split(",") if opt("only", "") else None
def stamp(name, e=None):
    if not STAMPS: return
    if ONLY is not None and name not in ONLY and name not in ("start", "end"): return
    if DBG is not None:
        if name not in DBG: return
        i = DBG.index(name)
        fn = lambda: p(f"{STAMP_INS} {pair(sSTAMP)}\ns_waitcnt lgkmcnt(0)\nv_writelane_b32 v{vSTAMP}, s{sSTAMP}, {i}")
        (e or D).group(fn, 12)
        return
    if name not in stamp_names: stamp_names.append(name)
    i = stamp_names.index(name)
    assert i < 64
    fn = lambda: p(f"{STAMP_INS} {pair(sSTAMP)}\ns_waitcnt lgkmcnt(0)\nv_writelane_b32 v{vSTAMP}, s{sSTAMP}, {i}")
    (e or D).group(fn, 12)

def spin_wait(load_lines, checks, slow_inv, tag=None, nap=None):
    L, L2, X = p.L("POLL"), p.L("POLLB"), p.L("POLLX")
    nap = opt("nap", 2) if nap is None else nap
    p(f"s_mov_b32 s{sSPIN}, 0\ns_branch {L2}")
    p.label(L)
    if nap: p(f"s_sleep {nap}")
    p(f"s_add_u32 s{sSPIN}, s{sSPIN}, 1\ns_cmp_gt_u32 s{sSPIN}, {SPIN}\ns_cbranch_scc1 {X}")
    p.label(L2)
    p(load_lines)
    p("s_waitcnt vmcnt(0)")
    for r in checks:
        p(f"v_cmp_ne_u32 vcc, s{tag or sTAG}, v{r}\ns_cbranch_vccnz {L}")
    p.label(X)
    if slow_inv: p("buffer_inv sc1\ns_waitcnt vmcnt(0)")

def late_check(e, load_lines, checks, tmp, slow_inv, tag=None):
    TG = tag or sTAG
    def fn():
        S, B = p.L("SPIN"), p.L("BACK")
        if len(checks) == 1:
            p(f"v_cmp_ne_u32 vcc, s{TG}, v{checks[0]}")
        else:
            assert len(checks) == 4
            a_, b_, c_, d_ = checks
            p(f"""v_xor_b32 v{a_}, v{a_}, v{b_}
            v_xor_b32 v{c_}, v{c_}, v{d_}
            v_xor_b32 v{b_}, v{b_}, v{d_}
            v_xor_b32 v{d_}, s{TG}, v{d_}
            v_or3_b32 v{a_}, v{a_}, v{b_}, v{c_}
            v_or_b32 v{a_}, v{a_}, v{d_}
            v_cmp_ne_u32 vcc, 0, v{a_}""")
        p(f"s_cbranch_vccnz {S}")
        p.label(B)
        if slow_inv: p("buffer_inv sc1\ns_waitcnt vmcnt(0)")
        def tail():
            p.label(S)
            spin_wait(load_lines, checks, False, TG)
            p(f"s_branch {B}")
        tail_code.append(tail)
    e.group(fn, 8 if len(checks) == 1 else 32)

def unpack(e, dst, src, n):
    for i in range(n):
        e(f"v_lshlrev_b32 v{dst+2*i}, 16, v{src+i}\nv_and_b32 v{dst+2*i+1}, 0xffff0000, v{src+i}")
def pack(e, dst, src, n):
    for i in range(n):
        e(f"v_cvt_pk_bf16_f32 v{dst+i}, v{src+2*i}, v{src+2*i+1}")
def bf16r(e, r):
    e(f"v_cvt_pk_bf16_f32 v{r}, v{r}, v{r}\nv_lshlrev_b32 v{r}, 16, v{r}")

def stats_publish(e, x, g, soff, imm, slow, tag=None):
    e(f"v_add_f32 v{g}, v{x}, v{x+1}\nv_mul_f32 v{g+1}, v{x}, v{x}\nv_mul_f32 v{g+3}, v{x+1}, v{x+1}\nv_add_f32 v{g+2}, v{x+2}, v{x+3}")
    for i in range(2, 10, 2):
        e(f"v_fmac_f32 v{g+1}, v{x+i}, v{x+i}\nv_fmac_f32 v{g+3}, v{x+i+1}, v{x+i+1}")
        if i >= 4: e(f"v_add_f32 v{g}, v{g}, v{x+i}\nv_add_f32 v{g+2}, v{g+2}, v{x+i+1}")
    e(f"v_add_f32 v{g}, v{g}, v{g+2}\nv_add_f32 v{g+1}, v{g+1}, v{g+3}\nv_lshlrev_b32 v{g+3}, 4, v{vN}\nv_mov_b32 v{g+2}, s{tag or sTAG}")
    e(f"v_permlane16_swap_b32 v{g}, v{g+1}\nv_add_f32 v{g}, v{g}, v{g+1}\nv_mov_b32 v{g+1}, v{g}")
    e(f"v_permlane32_swap_b32 v{g}, v{g+1}\nv_add_f32 v{g}, v{g}, v{g+1}\nv_mov_b32 v{g+1}, v{g}")
    e(f"v_permlane16_swap_b32 v{g}, v{g+1}")
    e(f"buffer_store_dwordx3 {vr(g,3)}, v{g+3}, {WSR}, s{soff} offen offset:{imm}{' sc1' if slow else ''}")

def stats_loads(G, soff):
    return "\n".join(f"buffer_load_dwordx3 {vr(G+4*i,3)}, v{vL16}, {WSR}, s{soff} offen offset:{1024*i} sc1" for i in range(4))
def stats_tags(G): return [G + 2, G + 6, G + 10, G + 14]

def stats_finish(e, G, o, three=False):
    e(f"v_add_f32 v{G}, v{G}, v{G+4}\nv_add_f32 v{G+1}, v{G+1}, v{G+5}")
    if not three: e(f"v_add_f32 v{G+8}, v{G+8}, v{G+12}\nv_add_f32 v{G+9}, v{G+9}, v{G+13}")
    e(f"v_add_f32 v{G}, v{G}, v{G+8}\nv_add_f32 v{G+1}, v{G+1}, v{G+9}")
    e(f"v_permlane16_swap_b32 v{G}, v{G+1}\nv_add_f32 v{G}, v{G}, v{G+1}\nv_mov_b32 v{G+1}, v{G}")
    e(f"v_permlane32_swap_b32 v{G}, v{G+1}\nv_add_f32 v{G}, v{G}, v{G+1}\nv_mul_f32 v{o}, 0x3acccccd, v{G}\nv_mul_f32 v{o+1}, 0x3acccccd, v{G}")
    e(f"v_permlane16_swap_b32 v{o}, v{o+1}")
    s, q = o, o + 1
    e(f"v_fma_f32 v{q}, -v{s}, v{s}, v{q}\nv_max_f32 v{q}, 0, v{q}")
    e(f"v_cvt_pk_bf16_f32 v{q}, v{q}, v{s}\nv_and_b32 v{s}, 0xffff0000, v{q}\nv_lshlrev_b32 v{q}, 16, v{q}")
    e(f"v_add_f32 v{q}, 0x3727c5ac, v{q}")
    bf16r(e, q)
    e(f"v_sqrt_f32 v{q}, v{q}")
    bf16r(e, q)
    e(f"v_rcp_f32 v{q}, v{q}")

def publish(e, tok, soff, imm, tmp, slow, tag=None, wb=True):
    e(f"v_mov_b32 v{tmp}, s{tag or sTAG}\nv_mov_b32 v{tmp+1}, 0")
    e.need(tok)
    if slow and wb:
        e.group(lambda: p(f"s_waitcnt vmcnt(0)\nbuffer_wbl2 sc1\ns_waitcnt vmcnt(0)"), 8)
    e(f"buffer_store_dword v{tmp}, v{tmp+1}, {WSR}, s{soff} offen offset:{imm}{' sc1' if slow else ''}")

vHOFF = 35
HD = 170
def h_loads():
    for q in range(5):
        if q == 4: p("s_mov_b64 exec, 15")
        p(f"buffer_load_dwordx4 {vr(HD+6*q,4)}, v{vHOFF}, {srd(R_H)}, 0 offen nt")
        if q < 4: p(f"v_add_u32 v{vHOFF}, 1024, v{vHOFF}")
    p("s_mov_b64 exec, -1")
def h_build(first):
    if first is None: return h_rows(range(HB_DONE[0], 5))
    HB_DONE[0] = first
    p(f"v_cmp_lt_u32 vcc, 1, v0")
    for i in range(4): p(f"v_cndmask_b32 v{HD+i}, 0, v{HD+i}, vcc")
    for q in range(5):
        d = HD + 6 * q
        for i in range(2):
            p(f"v_mov_b32_dpp v{d+4+i}, v{d+i} wave_shl:1 row_mask:0xf bank_mask:0xf")
        if q < 4:
            for i in range(2): p(f"v_readfirstlane_b32 s{t6+i}, v{d+6+i}")
            for i in range(2): p(f"v_writelane_b32 v{d+4+i}, s{t6+i}, 63")
    h_rows(range(first))
HB_DONE = [0]
def h_rows(rows):
    for q in rows:
        d, S = HD + 6 * q, 200 + 12 * (q % 2)
        if q == 4: p("s_mov_b64 exec, 7")
        p(f"ds_write_b128 v33, {vr(d,4)} offset:{1024*q}")
        for i in range(4): p(f"v_alignbit_b32 v{S+i}, v{d+i+1}, v{d+i}, 16")
        p(f"ds_write_b128 v33, {vr(S,4)} offset:{1024*q + HC_PITCH}")
        for i in range(4): p(f"v_mov_b32 v{S+4+i}, v{d+i+1}")
        p(f"ds_write_b128 v33, {vr(S+4,4)} offset:{1024*q + 2*HC_PITCH}")
        for i in range(4): p(f"v_alignbit_b32 v{S+8+i}, v{d+i+2}, v{d+i+1}, 16")
        p(f"ds_write_b128 v33, {vr(S+8,4)} offset:{1024*q + 3*HC_PITCH}")
    p("s_mov_b64 exec, -1")

def w_unit_params(rep):
    Bq, E = p.L("WU2"), p.L("WUE")
    sv = WU[rep]
    p(f"""s_sub_u32 s{t0}, s{sSIG}, {20 if rep == 0 else -12}
    s_lshl_b32 s{t0}, s{t0}, 2
    s_add_u32 s{t0}, s{t0}, s{sW}
    s_mov_b32 s{R_W+2}, 2211840
    v_mov_b32 v32, 0
    s_cmp_ge_u32 s{t0}, 40
    s_cbranch_scc1 {Bq}
    s_mul_i32 s{t1}, s{sJ}, 40
    s_add_u32 s{t0}, s{t0}, s{t1}
    s_and_b32 s{t7}, s{t0}, 15
    s_lshr_b32 s{t6}, s{t0}, 4
    s_mul_i32 s{t0}, s{t7}, 20
    s_add_u32 s{t0}, s{t0}, s{t6}
    s_mul_i32 s{sv}, s{t0}, 7168
    s_add_u32 s{sv}, s{sv}, {WS_W1F}
    s_mul_i32 s{sv+3}, s{t0}, 448
    s_add_u32 s{sv+3}, s{sv+3}, {WS_PS}
    s_lshr_b32 s{t1}, s{t6}, 1
    s_mul_i32 s{t1}, s{t1}, 80
    s_and_b32 s{t2}, s{t6}, 1
    s_lshl_b32 s{t2}, s{t2}, 1
    s_add_u32 s{t1}, s{t1}, s{t2}
    s_add_u32 s{t2}, s{t1}, 32
    s_sub_u32 s{t3}, s{t6}, 16
    s_mul_i32 s{t3}, s{t3}, 160
    s_add_u32 s{t4}, s{t3}, 64
    s_add_u32 s{t3}, s{t3}, 144
    s_cmp_ge_u32 s{t6}, 16
    s_cselect_b32 s{t1}, s{t4}, s{t1}
    s_cselect_b32 s{t2}, s{t3}, s{t2}
    s_cselect_b32 s{t3}, 0, 14
    v_mov_b32 v32, s{t3}
    s_mul_i32 s{t1}, s{t1}, 3456
    s_mul_i32 s{t2}, s{t2}, 3456
    s_lshl_b32 s{t6}, s{t0}, 7
    s_add_u32 s{sv+1}, s{t6}, {WS_FW1}
    s_mul_i32 s{t3}, s{t7}, 7
    s_mul_i32 s{t4}, s{t7}, 6
    s_add_u32 s{t4}, s{t4}, 12
    s_cmp_ge_u32 s{t7}, 12
    s_cselect_b32 s{t3}, s{t4}, s{t3}
    s_lshl_b32 s{t3}, s{t3}, 5
    s_add_u32 s{t1}, s{t1}, s{t3}
    s_add_u32 s{t2}, s{t2}, s{t3}
    s_mov_b32 s{t3}, 3456
    s_mov_b32 s{t4}, 14
    s_branch {E}""")
    p.label(Bq)
    p(f"""s_sub_u32 s{t0}, s{t0}, 40
    s_mov_b32 s{sv+3}, s{t0}
    s_min_u32 s{t0}, s{t0}, 53
    s_mul_i32 s{t1}, s{sJ}, 54
    s_add_u32 s{t0}, s{t0}, s{t1}
    s_and_b32 s{t7}, s{t0}, 7
    s_lshr_b32 s{t6}, s{t0}, 3
    s_mul_i32 s{t0}, s{t7}, 54
    s_add_u32 s{t0}, s{t0}, s{t6}
    s_mul_i32 s{sv}, s{t0}, 5120
    s_add_u32 s{sv}, s{sv}, {WS_W2F}
    s_mul_i32 s{t1}, s{t6}, 21846
    s_lshr_b32 s{t1}, s{t1}, 16
    s_mul_i32 s{t2}, s{t1}, 3
    s_sub_u32 s{t2}, s{t6}, s{t2}
    s_mul_i32 s{t3}, s{t1}, 7
    s_mul_i32 s{t4}, s{t1}, 6
    s_add_u32 s{t4}, s{t4}, 12
    s_cmp_ge_u32 s{t1}, 12
    s_cselect_b32 s{t1}, s{t4}, s{t3}
    s_lshl_b32 s{t2}, s{t2}, 1
    s_add_u32 s{t1}, s{t1}, s{t2}
    s_add_u32 s{t2}, s{t1}, 1
    s_sub_u32 s{t3}, s{t6}, 48
    s_mul_i32 s{t3}, s{t3}, 14
    s_add_u32 s{t4}, s{t3}, 6
    s_add_u32 s{t3}, s{t3}, 13
    s_cmp_ge_u32 s{t6}, 48
    s_cselect_b32 s{t1}, s{t4}, s{t1}
    s_cselect_b32 s{t2}, s{t3}, s{t2}
    s_mul_i32 s{t1}, s{t1}, 20480
    s_mul_i32 s{t2}, s{t2}, 20480
    s_lshl_b32 s{t6}, s{t0}, 7
    s_add_u32 s{sv+1}, s{t6}, {WS_FW2}
    s_mul_i32 s{t3}, s{t7}, 160
    s_add_u32 s{t1}, s{t1}, s{t3}
    s_add_u32 s{t2}, s{t2}, s{t3}
    s_mov_b32 s{t3}, 1280
    s_mov_b32 s{t4}, 10
    s_cmp_ge_u32 s{sv+3}, 54
    s_cselect_b32 s{t1}, 0x70000000, s{t1}
    s_cselect_b32 s{t2}, 0x70000000, s{t2}
    s_cselect_b32 s{sv}, 0x70000000, s{sv}
    s_cselect_b32 s{sv+1}, 0x70000000, s{sv+1}""")
    p.label(E)
    x = WX[rep]
    p(f"""s_lshl_b32 s{sv+2}, s{t4}, 4
    v_cvt_f32_u32 v30, v0
    v_cvt_f32_u32 v31, s{t4}
    v_add_f32 v30, 0.5, v30
    v_rcp_f32 v31, v31
    v_mul_f32 v30, v30, v31
    v_cvt_u32_f32 v30, v30
    v_mul_lo_u32 v31, v30, s{t4}
    v_sub_u32 v31, v0, v31
    v_lshlrev_b32 v31, 4, v31
    v_cmp_gt_u32 vcc, 4, v30
    v_lshrrev_b32 v33, 1, v30
    v_mad_u32_u24 v30, v33, v32, v30
    v_mul_lo_u32 v30, v30, s{t3}
    v_add_u32 v{WV[rep]}, v31, v30
    s_mov_b32 s{x[0]}, s{t1}
    s_mov_b32 s{x[1]}, s{t2}
    s_lshl_b32 s{x[2]}, s{t3}, 2
    s_mov_b32 s{x[3]}, vcc_hi
    v_lshrrev_b32 v32, 2, v0
    v_mul_lo_u32 v32, v32, s{sv+2}
    v_and_b32 v33, 3, v0
    v_lshl_add_u32 v32, v33, 3, v32
    s_mul_i32 s{t0}, s{sW}, {WSTG[rep][1]}
    s_add_u32 s{t0}, s{t0}, {WSTG[rep][0]}
    v_add_u32 v{WV[rep]+1}, s{t0}, v32
    s_lshl_b32 s{t1}, s{sv+2}, 4
    v_add_u32 v{WV[rep]+2}, s{t1}, v{WV[rep]+1}""")
WX = [(30, 31, 74, 75), (30, 31, 74, 75)]
PRIV = NW1A // 4 * 1024
WSTG = [(CONV_BASE, 7168), (PRIV - 10240, PRIV)]
WV = [84, 84]
def w_unit_dma(rep, tok):
    sv, x = WU[rep], WX[rep]
    p(f"""s_cmp_eq_u32 s{sv+2}, 224
    s_cselect_b32 s{R_W}, s{sW1}, s{sW2}
    s_cselect_b32 s{R_W+1}, s{sW1+1}, s{sW2+1}
    s_mul_i32 s{t7}, s{sW}, {WSTG[rep][1]}
    s_add_u32 m0, s{t7}, {WSTG[rep][0]}
    s_lshl_b32 s{t7}, s{sv+2}, 2
    s_mov_b32 exec_hi, s{x[3]}""")
    for q in range(8):
        so = x[0] if q < 4 else x[1]
        p(f"buffer_load_dwordx4 v{WV[rep]}, {srd(R_W)}, s{so} offen nt lds", tok_wr=(tok if q == 7 else None))
        if q < 7: p(f"s_add_u32 m0, m0, s{t7}\ns_add_u32 s{so}, s{so}, s{x[2]}")
    p("s_mov_b64 exec, -1")

def row_pattern(dst, tmp):
    p(f"""v_mul_u32_u24 v{tmp}, 205, v0
    v_lshrrev_b32 v{tmp}, 11, v{tmp}
    v_mul_u32_u24 v{dst}, 1120, v{tmp}
    v_lshl_add_u32 v{dst}, v0, 4, v{dst}""")

def dma(e, vaddr, rs, soff, add, m0base, m0add, ehi, elo=None, flags="", tok=None):
    def fn():
        p(f"s_add_u32 m0, s{m0base}, {m0add}\ns_add_u32 s{t2}, s{soff}, {add}\ns_mov_b32 exec_hi, {ehi}")
        if elo is not None: p(f"s_mov_b32 exec_lo, {elo}")
        p(f"buffer_load_dwordx4 v{vaddr}, {srd(rs)}, s{t2} offen{flags} lds", tok_wr=tok)
        p("s_mov_b64 exec, -1")
    e.group(fn, 20)
def bases():
    p(f"""s_and_b32 s{t0}, s{sW}, 1
    s_lshr_b32 s{t1}, s{sW}, 1
    s_lshl_b32 s{sP8}, s{t1}, 3
    s_lshl_b32 s{t2}, s{sA}, 2
    s_add_u32 s{t2}, s{t2}, s{t0}
    s_lshl_b32 s{t3}, s{sM}, 3
    s_add_u32 s{t3}, s{t3}, s{t0}
    s_lshl_b32 s{t4}, s{t1}, 2
    s_add_u32 s{t3}, s{t3}, s{t4}
    s_lshl_b32 s{t4}, s{sB}, 1
    s_add_u32 s{t4}, s{t4}, s{t1}
    s_mul_i32 s{sXR}, s{t3}, 20480
    s_add_u32 s{sXR}, s{sXR}, {WS_XF}
    s_mul_i32 s{t5}, s{t2}, 20480
    s_add_u32 s{t5}, s{t5}, {WS_XF}
    s_lshl_b32 s{sXW}, s{t4}, 10
    s_add_u32 s{sXW}, s{sXW}, s{t5}
    s_lshr_b32 s{sXS}, s{t4}, 2
    s_lshl_b32 s{sXS}, s{sXS}, 10
    s_and_b32 s{t6}, s{t4}, 3
    s_lshl_b32 s{t6}, s{t6}, 2
    s_add_u32 s{sXS}, s{sXS}, s{t6}
    s_add_u32 s{sXS}, s{sXS}, s{t5}
    s_add_u32 s{sXS}, s{sXS}, 16384
    s_mul_i32 s{t5}, s{t3}, 55296
    s_add_u32 s{t5}, s{t5}, {WS_HF}
    s_mul_i32 s{sHW}, s{sN}, 3072
    s_add_u32 s{sHW}, s{sHW}, s{t5}
    s_lshl_b32 s{sHS}, s{sN}, 9
    s_add_u32 s{sHS}, s{sHS}, s{t5}
    s_add_u32 s{sHS}, s{sHS}, 49152
    s_mul_i32 s{sHR}, s{t2}, 55296
    s_mul_i32 s{t5}, s{sW}, 12288
    s_add_u32 s{sHR}, s{sHR}, s{t5}
    s_add_u32 s{sHR}, s{sHR}, {WS_HF}
    s_lshl_b32 s{sFXR}, s{t3}, 6
    s_add_u32 s{sFXR}, s{sFXR}, {WS_FX}
    s_lshl_b32 s{sFXW}, s{t2}, 4
    s_add_u32 s{sFXW}, s{sFXW}, s{t4}
    s_lshl_b32 s{sFXW}, s{sFXW}, 2
    s_add_u32 s{sFXW}, s{sFXW}, {WS_FX}
    s_lshl_b32 s{sFHR}, s{sM}, 8
    s_lshl_b32 s{t5}, s{sW}, 6
    s_add_u32 s{sFHR}, s{sFHR}, s{t5}
    s_and_b32 s{t5}, s{sA}, 1
    s_lshl_b32 s{t5}, s{t5}, 3
    s_add_u32 s{sFHR}, s{sFHR}, s{t5}
    s_add_u32 s{sFHR}, s{sFHR}, {WS_FH}
    s_lshl_b32 s{sFHW}, s{sM}, 4
    s_add_u32 s{sFHW}, s{sFHW}, s{sN}
    s_lshl_b32 s{sFHW}, s{sFHW}, 2
    s_add_u32 s{sFHW}, s{sFHW}, s{sW}
    s_lshl_b32 s{sFHW}, s{sFHW}, 2
    s_add_u32 s{sFHW}, s{sFHW}, {WS_FH}
    s_lshl_b32 s{sSTO}, s{t2}, 12
    s_add_u32 s{sSTO}, s{sSTO}, {WS_ST}
    s_lshl_b32 s{sSTW}, s{t4}, 8
    s_add_u32 s{sSTW}, s{sSTW}, s{sSTO}
    s_lshl_b32 s{sSTR}, s{t3}, 12
    s_add_u32 s{sSTR}, s{sSTR}, {WS_ST}
    s_mul_i32 s{t0}, s{sB}, 54
    s_mul_i32 s{t5}, s{sW}, 12
    s_add_u32 s{t5}, s{t5}, s{t0}
    s_mul_i32 s{sW2B}, s{t5}, 5120
    s_add_u32 s{sW2B}, s{sW2B}, {WS_W2F}
    s_lshl_b32 s{t5}, s{sW}, 1
    s_min_u32 s{t5}, s{t5}, 4
    s_add_u32 s{t5}, s{t5}, s{t0}
    s_add_u32 s{t5}, s{t5}, 48
    s_mul_i32 s{sW2S}, s{t5}, 5120
    s_add_u32 s{sW2S}, s{sW2S}, {WS_W2F}
    s_cmp_eq_u32 s{sW}, 3
    s_cselect_b32 s{sW2S}, 0x70000000, s{sW2S}
    v_add_u32 v{vA1[1]}, 57344, v{vL16}
    v_add_u32 v{vA1[2]}, 114688, v{vL16}""")
CA, CB_, CACC, CAD = 92, 156, 220, 252
vA, vB = 36, 37
def conv_prep():
    p(f"""s_mul_i32 s{t3}, s{sW}, {CONV_PITCH}
    s_add_u32 s{t3}, s{t3}, {CONV_BASE}
    v_mov_b32 v30, 0
    v_mov_b32 v31, 0
    v_add_u32 v32, s{t3}, v{vL8}
    ds_write_b64 v32, v[30:31] offset:{LU_OFF+4096}
    v_add_u32 v32, 1, v{vN}
    v_and_b32 v33, 3, v32
    v_sub_u32 v32, v32, v33
    v_lshlrev_b32 v32, 1, v32
    v_mul_u32_u24 v33, {HC_PITCH}, v33
    v_add3_u32 v{vA}, v32, v33, s{t3}
    v_lshl_add_u32 v{vA}, v{vG}, 4, v{vA}
    v_lshlrev_b32 v32, 5, v{vN}
    v_sub_u32 v32, {LU_OFF + 4064 - 3584}, v32
    v_lshl_add_u32 v32, v{vG}, 4, v32
    v_add_u32 v{vB}, s{t3}, v32
    s_lshl_b32 s{t1}, s{sDVAL}, 16
    s_bitcmp1_b32 s{sW}, 0
    s_cselect_b32 s{t1}, s{sDVAL}, s{t1}
    s_and_b32 s{t1}, s{t1}, 0xffff0000
    s_lshr_b32 s{t2}, s{t1}, 16
    v_lshlrev_b32 v32, 3, v{vG}
    v_add_u32 v32, v32, v{vN}
    v_sub_u32 v32, 15, v32
    v_mov_b32 v33, s{t1}
    v_mov_b32 v34, s{t2}""")
    for r in range(4):
        p(f"""v_cmp_eq_u32 vcc, {2*r}, v32
        v_cndmask_b32 v{CAD+r}, 0, v34, vcc
        v_cmp_eq_u32 vcc, {2*r+1}, v32
        v_cndmask_b32 v{CAD+r}, v{CAD+r}, v33, vcc""")

KN = NAME + "_kernel"
p.raw(f"; @launch grid=(256,1,1) block=(256,1,1) lds={LDS_BYTES}")
p.raw('.amdgcn_target "amdgcn-amd-amdhsa--gfx950"')
p.raw(f".text\n.globl {KN}\n.p2align 8\n.type {KN},@function")
p.label(KN)
p(f"""s_cmp_ge_u32 s2, 256
s_cbranch_scc1 END
s_load_dwordx16 s[4:19], s[0:1], 0
s_load_dwordx8 s[20:27], s[0:1], 64
s_load_dwordx2 s[28:29], s[0:1], 96
s_getpc_b64 {pair(t6)}
s_lshr_b32 s{sSIG}, s2, 3
s_lshl_b32 s{t0}, s{sSIG}, 11
v_lshl_add_u32 v30, v0, 3, s{t0}
global_load_dword v{JUNK}, v30, {pair(t6)}""")
if STAMPS: p(f"v_mov_b32 v{vSTAMP}, 0")
stamp("start")
p(f"""v_lshrrev_b32 v30, 6, v0
v_and_b32 v0, 63, v0
v_readfirstlane_b32 s{sW}, v30
s_and_b32 s{sJ}, s2, 7
v_lshlrev_b32 v{vL8}, 3, v0
v_and_b32 v{vN}, 15, v0
v_lshrrev_b32 v{vG}, 4, v0
v_lshlrev_b32 v{vL16}, 4, v0
s_mov_b32 s{R_W+3}, 0x20000
s_mov_b64 s[{R_W}:{R_W+1}], s[0:1]
s_mov_b32 s{R_W+2}, 0""")
row_pattern(38, 30)
p(f"""s_lshl_b32 s{t4}, s{sJ}, 9
s_add_u32 s{t4}, s{t4}, {WS_FT}
v_add_u32 v35, s{t4}, v{vL8}
s_lshl_b32 s{t5}, s2, 2
s_add_u32 s{t5}, s{t5}, s{sW}
s_lshl_b32 s{t6}, s{t5}, 7
s_add_u32 s{t6}, s{t6}, {WS_FY}
v_writelane_b32 v35, s{t6}, 4
s_add_u32 s{t6}, s{t6}, {WS_FW1 - WS_FY}
v_writelane_b32 v35, s{t6}, 8
s_lshl_b32 s{t5}, s{t5}, 8
v_writelane_b32 v35, s{t5}, 2
s_add_u32 s{t5}, s{t5}, 128
v_writelane_b32 v35, s{t5}, 3
s_add_u32 s{t6}, s{t4}, {WS_FL - WS_FT}
v_writelane_b32 v35, s{t6}, 5
s_add_u32 s{t6}, s{t6}, 128
v_writelane_b32 v35, s{t6}, 6
s_add_u32 s{t6}, s{t6}, 128
v_writelane_b32 v35, s{t6}, 7
s_lshl_b32 s{t0}, s{sSIG}, 2
s_add_u32 s{t0}, s{t0}, s{sW}
s_mul_i32 s{t1}, s{t0}, 20480
s_mul_i32 s{t2}, s{sJ}, 160
s_add_u32 s{t1}, s{t1}, s{t2}
v_add_u32 v38, s{t1}, v38
v_subrev_u32 v39, 5120, v38
s_mov_b32 s{R_K+2}, 2621440
s_mov_b32 s{R_K+3}, 0x20000
s_mov_b32 s{R_V+2}, 2621440
s_mov_b32 s{R_V+3}, 0x20000
s_mul_i32 s{t2}, s{sJ}, 640
v_lshl_add_u32 v30, v{vN}, 3, s{t2}
s_mul_i32 s{sG}, s{sJ}, 20
s_min_u32 s{t1}, s{sSIG}, 19
s_add_u32 s{sG}, s{sG}, s{t1}
s_lshl_b32 s{t3}, s{sG}, 2
s_add_u32 s{t3}, s{t3}, s{sW}
s_lshl_b32 s{t1}, s{t3}, 1
s_and_b32 s{t2}, s{t1}, 0xfffc
s_waitcnt lgkmcnt(0)
s_load_dword s{sE}, {pair(sWS)}, {WS_EPOCH}
s_load_dword s{sDVAL}, {pair(sD)}, s{t2}
global_load_dword v{JUNK}, v35, {pair(sWS)} sc1""")
SKP = 40
for dt in range(5):
    p(f"global_load_dwordx2 {vr(SKP+2*dt,2)}, v30, {pair(sSK)} offset:{128*dt}")
tokW = [p.tok()]
tokT = p.tok()
def kv_dma():
    p(f"""s_mov_b32 s{R_K}, s{sK}
    s_mov_b32 s{R_K+1}, s{sK+1}
    s_mov_b32 s{R_V}, s{sV}
    s_mov_b32 s{R_V+1}, s{sV+1}
    s_mul_i32 m0, s{sW}, {TW_PITCH}
    s_mov_b32 exec_hi, 0x3ffff""")
    for q in range(4):
        p(f"buffer_load_dwordx4 v39, {srd(R_K)}, 0 offen{NT('kv', 1)} lds\ns_add_u32 m0, m0, 800")
        if q < 3: p(f"v_add_u32 v39, 6400, v39")
    for q in range(4):
        if q == 3: p("s_mov_b32 exec_hi, 0\ns_mov_b32 exec_lo, 0x3ff")
        p(f"buffer_load_dwordx4 v38, {srd(R_V)}, 0 offen{NT('kv', 1)} lds", tok_wr=tokT)
        if q < 3: p(f"s_add_u32 m0, m0, 800\nv_add_u32 v38, 6400, v38")
    p("s_mov_b64 exec, -1")
kv_dma()
tokW = [p.tok(), p.tok()]
stamp('iss0')
p(f"""s_mov_b32 s{R_WS+2}, 0x10000000
s_mov_b32 s{R_WS+3}, 0x20000
s_mov_b32 s{R_H+2}, 2621440
s_mov_b32 s{R_H+3}, 0x20000
s_lshl_b32 s{t3}, s{t3}, 12
s_sub_u32 s{t3}, s{t3}, 32
s_cmp_lt_u32 s{sSIG}, 20
s_cselect_b32 s{t3}, s{t3}, 0x70000000
v_add_u32 v{vHOFF}, s{t3}, v{vL16}
s_mov_b32 s{R_H}, s{sH}
s_mov_b32 s{R_H+1}, s{sH+1}""")
def common_setup(tagl):
    p(f"""s_mov_b32 s{R_WS}, s{sWS}
    s_mov_b32 s{R_WS+1}, s{sWS+1}
    s_lshr_b32 s{t0}, s{sSIG}, 3
    s_lshl_b32 s{sA}, s{sJ}, 2
    s_add_u32 s{sA}, s{sA}, s{t0}
    s_and_b32 s{sB}, s{sSIG}, 7
    s_lshr_b32 s{sM}, s{sA}, 1
    s_and_b32 s{sN}, s{sSIG}, 15
    s_getreg_b32 s{sXV}, hwreg(HW_REG_XCC_ID)
    s_lshl_b32 s{sXV}, s{sXV}, 28
    s_lshl_b32 s{t0}, s{sJ}, 5
    s_add_u32 s{t0}, s{t0}, s{sSIG}
    s_lshl_b32 s{t0}, s{t0}, 5
    s_add_u32 s{t0}, s{t0}, {WS_XC}
    v_mov_b32 v30, 0
    s_mul_i32 s{sTAG}, s{sE}, 0x9E3779B1
    s_add_u32 s{sTAG}, s{sTAG}, 0x7F4A7C15
    s_xor_b32 s{sTAG2}, s{sTAG}, 0x5bd1e995
    s_xor_b32 s{sXV}, s{sXV}, s{sTAG}
    v_mov_b32 v31, s{sXV}
    s_cmp_eq_u32 s{sW}, 0
    s_cselect_b32 s{t0}, s{t0}, 0x70000000
    buffer_store_dword v31, v30, {WSR}, s{t0} offen sc1""")
    stamp("xpub")
    bases()
common_setup(0)
SKC = 92
for dt in range(5):
    a_, c = SKP + 2 * dt, SKC + 5 * dt
    p(f"""v_alignbit_b32 v{c}, v{a_}, v{a_}, 16
    v_alignbit_b32 v{c+1}, v{a_+1}, v{a_+1}, 16
    v_and_b32 v{c+2}, 0xffff, v{a_}
    v_and_b32 v{c+4}, 0xffff0000, v{a_+1}
    v_and_b32 v{c+3}, 0xffff0000, v{a_}
    v_and_b32 v{a_+1}, 0xffff, v{a_+1}
    v_or_b32 v{c+3}, v{c+3}, v{a_+1}""")
p(f"s_cmp_ge_u32 s{sSIG}, 20\ns_cbranch_scc1 PREP_W")
conv_prep()
w_unit_params(1)
p.label("PREP_DONE")
def prep_w():
    p.label("PREP_W")
    w_unit_params(0)
    if opt("w0e", 0) == 2: w_unit_dma(0, tokW[0])
    p("s_branch PREP_DONE")
tail_code.append(prep_w)
p(f"""v_lshrrev_b32 v30, 2, v0
v_mul_u32_u24 v30, 160, v30
v_and_b32 v31, 3, v0
v_lshl_add_u32 v30, v31, 3, v30
s_mul_i32 s{t3}, s{sW}, {TW_PITCH}
v_add_u32 v56, s{t3}, v30
s_lshl_b32 s{t2}, s{sW}, 5
s_sub_u32 s{t2}, {UT_BASE + 120}, s{t2}
v_mul_u32_u24 v57, 144, v{vN}
v_lshlrev_b32 v32, 3, v{vG}
v_sub_u32 v57, v57, v32
v_add_u32 v57, s{t2}, v57
s_mul_i32 s{t0}, s{sJ}, {80*4096}
s_lshl_b32 s{t2}, s{sSIG}, 7
s_sub_u32 s{t0}, s{t0}, s{t2}
s_lshl_b32 s{t2}, s{sW}, 15
s_add_u32 s{t0}, s{t0}, s{t2}
s_add_u32 s{t0}, s{t0}, {WS_UR + 3968}
v_lshrrev_b32 v60, 3, v0
v_and_b32 v61, 7, v0
v_lshlrev_b32 v61, 4, v61
v_lshl_add_u32 v62, v60, 12, v61
v_mul_u32_u24 v60, 144, v60
s_mul_i32 s{t2}, s{sW}, 1152
s_add_u32 s{t2}, s{t2}, {UT_BASE}
v_add3_u32 v60, v60, v61, s{t2}
s_lshl_b32 s{t5}, s{sJ}, 5
s_add_u32 s{t5}, s{t5}, s{sSIG}
s_lshl_b32 s{t5}, s{t5}, 2
s_add_u32 s{t5}, s{t5}, s{sW}
s_lshl_b32 s{t5}, s{t5}, 2
s_add_u32 s{t5}, s{t5}, {WS_FT}
s_add_u32 s{t1}, s{t0}, {4*32768}
s_add_u32 s{t2}, s{t0}, {8*32768}
s_cmp_lt_u32 s{sW}, 2
s_cselect_b32 s{t2}, s{t2}, 0x70000000
""")
stamp("issued")
def w_process(rep, st):
    sv = WU[rep]
    SK = p.L("WSKIP")
    tk = p.tok()
    p.need(tokW[rep])
    st(f"W_in{rep}")
    for ft in range(7):
        p(f"ds_read_b64_tr_b16 {vr(200+4*ft,2)}, v{WV[rep]+1} offset:{32*ft}\nds_read_b64_tr_b16 {vr(202+4*ft,2)}, v{WV[rep]+2} offset:{32*ft}")
    for ft in range(7):
        if ft == 5: p(f"s_cmp_lt_u32 s{sv+2}, 224\ns_cbranch_scc1 {SK}")
        if ft == 4: p(f"s_add_u32 s{sv}, s{sv}, 4096")
        p(f"buffer_store_dwordx4 {vr(200+4*ft,4)}, v{vL16}, {WSR}, s{sv} offen offset:{1024*(ft%4)} sc1", tok_wr=tk)
    if rep == 0:
        p(f"v_mov_b32 v64, 0x3f803f80\nv_mov_b32 v65, 0x3f803f80\nv_mov_b32 v66, 0x3f803f80\nv_mov_b32 v67, 0x3f803f80\nv_lshlrev_b32 v68, 4, v{vG}")
        for ft in range(7):
            p(f"{MF} {vr(120+4*ft,4)}, {vr(200+4*ft,4)}, v[64:67], 0")
        p("s_nop 7\ns_mov_b32 exec_lo, 0x00010001\ns_mov_b32 exec_hi, 0x00010001")
        for ft in range(7):
            p(f"buffer_store_dwordx4 {vr(120+4*ft,4)}, v68, {WSR}, s{sv+3} offen offset:{64*ft} sc1", tok_wr=tk)
        p("s_mov_b64 exec, -1")
    p.label(SK)
    return tk
if opt("w0e", 0) == 2:
    p(f"s_cmp_ge_u32 s{sSIG}, 20\ns_cbranch_scc1 KVW\ns_waitcnt vmcnt(1)\ns_branch KVD")
    p.label("KVW")
    p("s_waitcnt vmcnt(9)")
    p.label("KVD")
else:
    p.need(tokT)
stamp("kv_in")
KB = [148 - 28 + 6 * dt + 0 for dt in range(5)]
KB = [120 + 6 * dt for dt in range(5)]
for dt in range(5):
    b = KB[dt]
    p(f"ds_read_b64_tr_b16 {vr(b,2)}, v56 offset:{32*dt}\nds_read_b64_tr_b16 {vr(b+2,2)}, v56 offset:{32*dt+640}\nds_read_b64_tr_b16 {vr(b+4,2)}, v56 offset:{32*dt+3200}")
W0E = opt("w0e", 0)
p(f"s_cmp_ge_u32 s{sSIG}, 20\ns_cbranch_scc1 ROLE_W")
h_loads()
p.label("ROLE_DONE")
def role_w():
    p.label("ROLE_W")
    if W0E == 1: w_unit_dma(0, tokW[0])
    p("s_branch ROLE_DONE")
tail_code.append(role_w)
tokU = p.tok()
for dt in range(5):
    b, c, o, vv, st = KB[dt], SKC + 5 * dt, 150, 154, 158 + 2 * (dt & 1)
    p(f"""v_dot2_f32_bf16 v{o}, v{b}, v{c+4}, 0
    v_dot2_f32_bf16 v{o+1}, v{b+1}, v{c+1}, 0
    v_dot2_f32_bf16 v{o+2}, v{b+1}, v{c+4}, 0
    v_dot2_f32_bf16 v{o+3}, v{b+2}, v{c+1}, 0
    v_lshlrev_b32 v{vv}, 16, v{b+4}
    v_and_b32 v{vv+1}, 0xffff0000, v{b+4}
    v_dot2_f32_bf16 v{o}, v{b+1}, v{c+3}, v{o}
    v_dot2_f32_bf16 v{o+1}, v{b+2}, v{c}, v{o+1}
    v_dot2_f32_bf16 v{o+2}, v{b+2}, v{c+3}, v{o+2}
    v_dot2_f32_bf16 v{o+3}, v{b+3}, v{c}, v{o+3}
    v_dot2_f32_bf16 v{o}, v{b+2}, v{c+2}, v{o}
    v_dot2_f32_bf16 v{o+2}, v{b+3}, v{c+2}, v{o+2}
    v_lshlrev_b32 v{vv+2}, 16, v{b+5}
    v_and_b32 v{vv+3}, 0xffff0000, v{b+5}
    s_nop 0
    v_pk_mul_f32 {vr(o,2)}, {vr(o,2)}, {vr(vv,2)}
    v_pk_mul_f32 {vr(o+2,2)}, {vr(o+2,2)}, {vr(vv+2,2)}
    v_cvt_pk_bf16_f32 v{st+1}, v{o+1}, v{o}
    v_cvt_pk_bf16_f32 v{st}, v{o+3}, v{o+2}
    ds_write_b64 v57, {vr(st,2)} offset:{2304*dt}""")
stamp("T_calc")
p("s_waitcnt lgkmcnt(0)\ns_barrier")
for q in range(3):
    p(f"ds_read_b128 {vr(92+4*q,4)}, v60 offset:{4608*q}")
for q in range(3):
    p(f"buffer_store_dwordx4 {vr(92+4*q,4)}, v62, {WSR}, s{(t0, t1, t2)[q]} offen sc1", tok_wr=tokU)
stamp("u_st")
p(f"""s_mul_i32 s{t3}, s{sW}, {CONV_PITCH}
s_add_u32 s{t3}, s{t3}, {CONV_BASE}
v_add_u32 v33, s{t3}, v{vL16}""")
p(f"s_cmp_ge_u32 s{sSIG}, 20\ns_cbranch_scc1 HB1")
h_build(opt("hb1", 2))
p.label("HB1")
p(f"""v_mov_b32 v30, s{sTAG}
v_mov_b32 v31, 0
s_waitcnt vmcnt(0)
buffer_store_dword v30, v31, {WSR}, s{t5} offen""")
stamp("T_pub")
p(f"""s_lshl_b32 s{t4}, s{sJ}, 10
s_add_u32 s{t4}, s{t4}, {WS_XC}
v_and_b32 v63, 31, v0
v_lshlrev_b32 v63, 5, v63
buffer_load_dword v62, v63, {WSR}, s{t4} offen sc1""")
p(f"s_cmp_ge_u32 s{sSIG}, 20\ns_cbranch_scc1 MID_W")
h_build(None)
def mid_w():
    p.label("MID_W")
    if not W0E: w_unit_dma(0, tokW[0])
    tk = w_process(0, stamp)
    p(f"v_mov_b32 v30, s{sTAG}\nv_mov_b32 v31, 0")
    p.need(tk)
    p(f"buffer_store_dword v30, v31, {WSR}, s{WU[0]+1} offen sc1")
    stamp("W_done")
    p("s_branch CHECK")
tail_code.append(mid_w)
p.label("CHECK")
p(f"s_mov_b32 s{sSPIN}, 0\ns_branch VER2")
p.label("VER")
p(f"""s_sleep 1
s_add_u32 s{sSPIN}, s{sSPIN}, 1
s_cmp_gt_u32 s{sSPIN}, {SPIN}
s_cbranch_scc1 SLOW
buffer_load_dword v62, v63, {WSR}, s{t4} offen sc1""")
p.label("VER2")
p(f"""v_xor_b32 v62, s{sXV}, v62
v_cmp_ne_u32 vcc, 0, v62
s_cbranch_vccz {'SLOW' if FORCE_SLOW else 'FAST'}
v_and_b32 v62, 0x0fffffff, v62
v_cmp_ne_u32 vcc, 0, v62
s_cbranch_vccnz VER
s_branch SLOW""")

def body(slow):
    PF = "S" if slow else "F"
    sc = " sc1" if slow else ""
    lab = lambda n: f"{PF}_{n}"
    st = (lambda n, e=None: None) if slow else stamp
    LX = lambda stride, layer: stride * layer if slow else 0
    TG = lambda layer: sTAG2 if layer else sTAG
    HPW = opt("hpw", 0)
    WT = lambda layer: " sc1" if (slow or (layer == 0 and not HPW)) else ""
    p.label("SLOW" if slow else "FAST")
    st("verified")
    if slow:
        p(f"v_mov_b32 v30, s{sTAG}\nv_mov_b32 v31, 0\ns_add_u32 s{t0}, s{t5}, {WS_FTR - WS_FT}\nbuffer_store_dword v30, v31, {WSR}, s{t0} offen sc1")
    def xy_offset(dst):
        p(f"""s_and_b32 s{t1}, s{sW}, 1
        s_lshl_b32 s{t0}, s{sA}, 2
        s_add_u32 s{t0}, s{t0}, s{t1}
        s_mul_i32 s{t0}, s{t0}, 20480
        s_mul_i32 s{t1}, s{sB}, 160
        s_add_u32 s{t0}, s{t0}, s{t1}
        s_lshr_b32 s{t1}, s{sW}, 1
        s_lshl_b32 s{t1}, s{t1}, 2
        s_add_u32 s{t0}, s{t0}, s{t1}
        v_mul_u32_u24 v{dst}, 1280, v{vN}
        v_lshl_add_u32 v{dst}, v{vG}, 3, v{dst}
        v_add_u32 v{dst}, s{t0}, v{dst}
        v_add_u32 v{dst+1}, 40960, v{dst}""")
    def x0_dma(e, base, gap=0, pitch=PRIV):
        e.group(lambda: (row_pattern(83, 30), p(f"""s_lshl_b32 s{t0}, s{sA}, 2
        s_and_b32 s{t1}, s{sW}, 1
        s_add_u32 s{t0}, s{t0}, s{t1}
        s_mul_i32 s{t0}, s{t0}, 20480
        s_mul_i32 s{t1}, s{sB}, 160
        s_add_u32 s{t6}, s{t0}, s{t1}
        s_mov_b32 s{R_H}, s{sQ}
        s_mov_b32 s{R_H+1}, s{sQ+1}
        s_mul_i32 s{t7}, s{sW}, {pitch}""")), 60)
        tk = p.tok()
        for q in range(8):
            s_, r = q >> 2, q & 3
            dma(e, 83, R_H, t6, 40960 * s_ + 6400 * r, t7, base + 2560 * s_ + 800 * r, 0x3ffff if r < 3 else 0, None if r < 3 else 0x3ff, " nt", tk)
            if gap: e.skip(gap)
        return tk
    def x0_read(e, tk, base, pitch=PRIV):
        e(f"""s_mul_i32 s{t0}, s{sW}, {pitch}
        s_lshr_b32 s{t1}, s{sP8}, 1
        s_add_u32 s{t0}, s{t0}, s{t1}
        s_add_u32 s{t0}, s{t0}, {base}
        v_mul_u32_u24 v30, 160, v{vN}
        v_lshl_add_u32 v30, v{vG}, 3, v30
        v_add_u32 v30, s{t0}, v30""")
        e.need(tk)
        for s in range(2):
            for dt in range(5): e(f"ds_read_b32 v{XP[s]+dt}, v30 offset:{2560*s + 32*dt}")
        e.skip(6)
    def flag_prewarm(e):
        if not slow:
            e(f"""v_and_b32 v30, 1, v0
            v_lshlrev_b32 v31, 7, v30
            v_add_u32 v31, s{sFXW}, v31
            v_lshlrev_b32 v30, 12, v30
            v_add_u32 v30, s{sFHW}, v30
            v_cmp_gt_u32 vcc, 2, v0
            v_cndmask_b32 v30, v30, v31, vcc
            v_and_b32 v31, 7, v0
            v_lshlrev_b32 v31, 7, v31
            v_bfe_u32 v32, v0, 3, 1
            v_mul_u32_u24 v32, 40960, v32
            v_add3_u32 v31, v31, v32, s{sXS}
            v_cmp_gt_u32 vcc, 32, v0
            v_cndmask_b32 v30, v31, v30, vcc
            s_sub_u32 s{t0}, s{sXW}, s{sXS}
            v_add_u32 v31, s{t0}, v31
            v_cmp_gt_u32 vcc, 48, v0
            v_cndmask_b32 v30, v31, v30, vcc
            v_and_b32 v31, 1, v0
            v_lshlrev_b32 v31, 7, v31
            v_bfe_u32 v32, v0, 1, 1
            v_lshl_add_u32 v31, v32, 13, v31
            s_add_u32 s{t0}, s{sSTW}, {ST_K}
            v_add_u32 v31, s{t0}, v31
            v_bfe_u32 v32, v0, 2, 4
            v_cmp_eq_u32 vcc, 1, v32
            v_cndmask_b32 v30, v30, v31, vcc
            v_subrev_u32 v31, {ST_K}, v31
            v_cmp_eq_u32 vcc, 2, v32
            v_cndmask_b32 v30, v30, v31, vcc
            buffer_load_dword v{JUNK}, v30, {WSR}, 0 offen sc1""")
    X32, G0 = [38, 48], [58, 220 - 220 + 58]
    G0 = [58, 74]
    def x0_stats(e, unp=True):
        for s in range(2):
            if unp: unpack(e, X32[s], XP[s], 5)
            e(f"s_add_u32 s{t0}, s{sSTW}, {8192*s}")
            stats_publish(e, X32[s], G0[0], t0, 0, slow)
    def x0_norm(e):
        for s in range(2):
            late_check(e, stats_loads(G0[s], (t5, t4)[s]), stats_tags(G0[s]), 32, False)
            stats_finish(e, G0[s], 30)
            e(f"v_mul_f32 v32, -v30, v31")
            for i in range(10): e(f"v_fma_f32 v{G0[s]+i}, v{X32[s]+i}, v31, v32")
    XN0 = G0
    def w_flag_addr(e, dst):
        e.group(lambda: p(f"""v_and_b32 v33, 31, v0
        s_mul_i32 s{t1}, s{sW}, 12
        v_add_u32 v{dst}, s{t1}, v33
        s_lshl_b32 s{t2}, s{sW}, 1
        s_add_u32 s{t2}, s{t2}, 36
        v_add_u32 v{dst+1}, s{t2}, v33
        v_cmp_gt_u32 vcc, 12, v33
        v_cndmask_b32 v{dst}, v{dst+1}, v{dst}, vcc
        s_add_u32 s{t2}, s{t2}, 13
        s_min_u32 s{t2}, s{t2}, 53
        v_min_u32 v{dst}, s{t2}, v{dst}
        s_mul_i32 s{t1}, s{sB}, {54*128}
        s_add_u32 s{t1}, s{t1}, {WS_FW2}
        v_lshl_add_u32 v{dst}, v{dst}, 7, s{t1}
        v_min_u32 v{dst+1}, 19, v0
        s_mul_i32 s{t1}, s{sN}, {20*128}
        s_add_u32 s{t1}, s{t1}, {WS_FW1}
        v_lshl_add_u32 v{dst+1}, v{dst+1}, 7, s{t1}
        s_lshr_b32 s{t1}, s{sP8}, 2
        v_xor_b32 v{vW2}, s{t1}, v0
        v_lshlrev_b32 v{vW2}, 4, v{vW2}
        s_mul_i32 s{sGOTA}, s{sN}, 143360
        s_add_u32 s{sGOTA}, s{sGOTA}, {WS_W1F}"""), 100)
    def w1_one(e, base_reg, idx):
        if opt("now1", 0): return
        def fn():
            p(f"s_add_u32 m0, s{base_reg}, {1024*idx}\ns_add_u32 s{t2}, s{sGOTA}, m0")
            return p(f"buffer_load_dwordx4 v{vL16}, {WSR}, s{t2} offen{' sc1' if opt('w1sc', 1) else ''} lds")
        e.group(fn, 12)
    vW2 = 35
    NW2E = 0
    def w2_loads(e, q0, q1, vaddr):
        if opt("now2", 0): return
        for q in range(q0, q1):
            sb, qq = (sW2B, q) if q < 60 else (sW2S, q - 60)
            if qq % 4 == 0 and qq > 0: e(f"s_add_u32 s{sb}, s{sb}, 4096")
            e(f"buffer_load_dwordx4 {w2reg(q)}, v{vaddr}, {WSR}, s{sb} offen offset:{1024*(qq%4)}{' sc1' if opt('w2sc', 1) else ''}")
    p(f"s_cmp_ge_u32 s{sSIG}, 20\ns_cbranch_scc1 {lab('W_PHASE')}")
    p(f"""s_lshl_b32 s{t0}, s{sJ}, 9
    s_add_u32 s{t0}, s{t0}, {WS_FTR if slow else WS_FT}""")
    for t in range(8):
        p(f"ds_read_b64 {vr(CA+4*t,2)}, v{vA} offset:{512*t}\nds_read_b64 {vr(CA+4*t+2,2)}, v{vA} offset:{512*t+8}")
    w_flag_addr(D, 90)
    spin_wait(f"buffer_load_dwordx2 v[30:31], v{vL8}, {WSR}, s{t0} offen sc1", [30, 31], False, nap=(1 if not slow else 4))
    st("T_seen")
    tokUin = p.tok()
    p(f"""s_lshl_b32 s{t0}, s{sG}, 2
    s_add_u32 s{t0}, s{t0}, s{sW}
    s_lshl_b32 s{t0}, s{t0}, 12
    s_add_u32 s{t0}, s{t0}, {WS_UR}
    s_add_u32 m0, s{t3}, {LU_OFF}""")
    for q in range(4):
        p(f"buffer_load_dwordx4 v{vL16}, {WSR}, s{t0} offen offset:{1024*q} sc1 lds", tok_wr=(tokUin if q == 3 else None))
    p.need(tokUin)
    st("u_in")
    for m in range(8):
        p(f"ds_read_b128 {vr(CB_+4*m,4)}, v{vB} offset:{3584-512*m}")
    beats = [[f"{MF} {vr(CACC+4*j,4)}, {vr(CAD,4)}, {vr(CB_+4*j,4)}, 0"] for j in range(8)]
    for p0 in range(8):
        buf = p0 & 1
        reads = []
        if p0 < 7:
            for t in range(8):
                bb, ba = CB_ + 32 * (1 - buf) + 4 * t, CA + 32 * (1 - buf) + 4 * t
                reads += [f"ds_read_b128 {vr(bb,4)}, v{vB} offset:{3584-512*t+64*(p0+1)}",
                          f"ds_read_b64 {vr(ba,2)}, v{vA} offset:{64*(p0+1)+512*t}",
                          f"ds_read_b64 {vr(ba+2,2)}, v{vA} offset:{64*(p0+1)+512*t+8}"]
        prs = sorted([(t, m) for t in range(8) for m in range(8) if t + m <= 7], key=lambda x: (max(x), x[0] + x[1]))
        for i, (t, m) in enumerate(prs):
            b = [f"{MF} {vr(CACC+4*(t+m),4)}, {vr(CA+32*buf+4*t,4)}, {vr(CB_+32*buf+4*m,4)}, {vr(CACC+4*(t+m),4)}"]
            if i >= 8 and reads: b.append(reads.pop(0))
            beats.append(b)
    F = Fill()
    gap = opt("cgap", 1)
    wfl1 = f"buffer_load_dword v34, v91, {WSR}, 0 offen sc1"
    wfl2 = f"buffer_load_dword v34, v90, {WSR}, 0 offen sc1"
    na = NW1A // 4
    ar = lambda b, n: f"a[{b}:{b+n-1}]"
    tkw = p.tok()
    F(f"s_mov_b32 s{R_W}, s{sW2}\ns_mov_b32 s{R_W+1}, s{sW2+1}\ns_mul_i32 s{t5}, s{sW}, {PRIV}")
    for q in range(8):
        dma(F, WV[1], R_W, WX[1][q >> 2], 5120 * (q & 3), t5, PRIV - 10240 + 640 * q, 0xff, None, " nt", tkw)
        F.skip(1)
    tkx = x0_dma(F, PRIV - 5120, 1)
    flag_prewarm(F)
    F.skip(opt("wf_at", 150))
    F(wfl1)
    YT = 156
    F3 = Fill()
    F3(f"""s_mul_i32 s{t3}, s{sW}, {CONV_PITCH}
    s_add_u32 s{t3}, s{t3}, {CONV_BASE}
    v_lshlrev_b32 v80, 5, v{vN}
    v_lshl_add_u32 v80, v{vG}, 3, v80
    v_add_u32 v80, s{t3}, v80
    v_bfe_u32 v81, v0, 2, 2
    v_mul_u32_u24 v81, {CONV_PITCH}, v81
    v_and_b32 v82, 3, v0
    v_lshl_add_u32 v81, v82, 3, v81
    v_lshl_add_u32 v81, v{vG}, 5, v81
    s_lshl_b32 s{t0}, s{sW}, 10
    s_add_u32 s{t0}, s{t0}, {CONV_BASE}
    v_add_u32 v81, s{t0}, v81
    v_mul_u32_u24 v82, 20480, v{vG}
    v_lshl_add_u32 v82, v{vN}, 3, v82
    s_mul_i32 s{t4}, s{sW}, {32*20480}
    s_lshl_b32 s{t1}, s{sG}, 7
    s_add_u32 s{t4}, s{t4}, s{t1}
    s_add_u32 s{t4}, s{t4}, {WS_YG}
    s_lshl_b32 s{t0}, s{sG}, 9
    s_lshl_b32 s{t1}, s{sW}, 7
    s_add_u32 s{t0}, s{t0}, s{t1}
    s_add_u32 s{t0}, s{t0}, {WS_FY}
    v_mov_b32 v83, s{t0}
    s_lshl_b32 s{t0}, s{sJ}, 5
    s_add_u32 s{t0}, s{t0}, s{sSIG}
    s_lshl_b32 s{t0}, s{t0}, 4
    s_lshr_b32 s{t1}, s{t1}, 5
    s_add_u32 s{t0}, s{t0}, s{t1}
    s_add_u32 s{t0}, s{t0}, {WS_FL}
    v_mov_b32 v78, s{t0}
    v_mov_b32 v79, s{sTAG}""")
    merge(beats[:275], F)
    st("conv_cut")
    merge(beats[275:], F3)
    st("conv_done")
    for j in range(8):
        p(f"v_cvt_pk_bf16_f32 v{92+2*j}, v{CACC+4*j}, v{CACC+4*j+1}\nv_cvt_pk_bf16_f32 v{93+2*j}, v{CACC+4*j+2}, v{CACC+4*j+3}")
        p(f"ds_write_b64 v80, {vr(92+2*j,2)} offset:{512*j}")
    p("s_waitcnt lgkmcnt(0)\ns_barrier")
    for q in range(8):
        p(f"ds_read_b64_tr_b16 {vr(YT+2*q,2)}, v81 offset:{128*q}")
    for q in range(8):
        p(f"buffer_store_dwordx2 {vr(YT+2*q,2)}, v82, {WSR}, s{t4} offen sc1")
        if q < 7: p(f"s_add_u32 s{t4}, s{t4}, 81920")
    p(f"buffer_store_dword v79, v78, {WSR}, 0 offen{sc}")
    st("y_iss")
    for ft in range(5):
        p(f"ds_read_b64_tr_b16 {vr(108+4*ft,2)}, v{WV[1]+1} offset:{32*ft}\nds_read_b64_tr_b16 {vr(110+4*ft,2)}, v{WV[1]+2} offset:{32*ft}")
    x0_read(D, tkx, PRIV - 5120)
    for s_ in range(2): unpack(D, X32[s_], XP[s_], 5)
    p(f"s_waitcnt vmcnt(0)\nbuffer_store_dword v79, v83, {WSR}, 0 offen sc1")
    st("y_st")
    x0_stats(D, False)
    tkw2 = p.tok()
    for ft in range(5):
        if ft == 4: p(f"s_add_u32 s{WU[1]}, s{WU[1]}, 4096")
        p(f"buffer_store_dwordx4 {vr(108+4*ft,4)}, v{vL16}, {WSR}, s{WU[1]} offen offset:{1024*(ft%4)} sc1", tok_wr=tkw2)
    NAC, NAI = opt("nac", 0), opt("nai", 19)
    late_check(D, wfl1, [34], 32, False)
    st("w_late")
    p(f"s_mul_i32 s{t5}, s{sW}, {PRIV}")
    for q in range(NAC): w1_one(D, t5, q)
    publish(D, tkw2, WU[1] + 1, 0, 30, True, wb=False)
    p(f"s_branch {lab('W1DONE')}")

    p.label(lab("W_PHASE"))
    w_flag_addr(D, 90)
    tkx = x0_dma(D, RED_BASE, pitch=5120)
    flag_prewarm(D)
    p(f"s_cmp_lg_u32 s{sW}, 0\ns_cbranch_scc1 {lab('NOWP')}")
    spin_wait(wfl1, [34], False, nap=opt("wnap", 6))
    p.label(lab("NOWP"))
    p("s_barrier")
    st("w_flags")
    nb_ = (140 - NW1A) // 4
    def w1_range(q0, q1):
        if q0 < na: p(f"s_mul_i32 s{t5}, s{sW}, {PRIV}")
        for q in range(q0, q1):
            if q >= na and (q == na or q == q0): p(f"s_mul_i32 s{t5}, s{sW}, {nb_*1024}\ns_add_u32 s{t5}, s{t5}, {NW1A*1024}")
            w1_one(D, t5, q if q < na else q - na)
    w1_range(0, 8)
    x0_read(D, tkx, RED_BASE, pitch=5120)
    x0_stats(D)
    w1_range(8, NAI)
    p(f"""s_sub_u32 s{t0}, s{sSIG}, 20
    s_lshl_b32 s{t0}, s{t0}, 2
    s_add_u32 s{t0}, s{t0}, s{sW}
    s_mul_i32 s{t0}, s{t0}, {2*8192}
    s_add_u32 s{t0}, s{t0}, {WS_W1F}
    s_cmp_lt_u32 s{t0}, {WS_W1F + 4*143360}
    s_cselect_b32 s{t0}, s{t0}, 0x70000000
    s_add_u32 s{t1}, s{t0}, 8192
    v_lshlrev_b32 v30, 7, v0
    v_min_u32 v31, 79, v0
    v_lshlrev_b32 v31, 7, v31
    s_mov_b32 s{t2}, {WS_FW1}""")
    if not slow:
        p("s_waitcnt vmcnt(8)")
        p(f"buffer_load_dword v{JUNK}, v30, {WSR}, s{t0} offen sc1\nbuffer_load_dword v{JUNK}, v30, {WSR}, s{t1} offen sc1")
    p(f"""s_cmp_lg_u32 s{sSIG}, 31
    s_cbranch_scc1 {lab('NOCB')}
    s_cmp_gt_u32 s{sW}, 1
    s_cbranch_scc1 {lab('NOCB')}
    s_lshl_b32 s{t5}, s{sJ}, 1
    s_add_u32 s{t5}, s{t5}, s{sW}
    v_min_u32 v30, 19, v0
    s_mul_i32 s{t1}, s{t5}, {20*128}
    v_lshl_add_u32 v30, v30, 7, s{t1}
    s_mov_b32 s{t0}, {WS_FW1}
    s_mul_i32 s{t2}, s{t5}, 7
    s_mul_i32 s{t3}, s{t5}, 6
    s_add_u32 s{t3}, s{t3}, 12
    s_cmp_ge_u32 s{t5}, 12
    s_cselect_b32 s{t2}, s{t3}, s{t2}
    s_lshl_b32 s{t2}, s{t2}, 5
    v_min_u32 v32, 27, v0
    v_lshl_add_u32 v33, v32, 3, s{t2}
    v_min_u32 v33, 3448, v33
    global_load_dwordx2 v[92:93], v33, {pair(sB1)}
    v_lshlrev_b32 v32, 4, v32""")
    spin_wait(f"buffer_load_dword v31, v30, {WSR}, s{t0} offen sc1", [31], False, nap=6)
    p(f"s_mul_i32 s{t0}, s{t5}, 8960\ns_add_u32 s{t0}, s{t0}, {WS_PS}")
    for ks in range(20):
        if ks % 9 == 0 and ks: p(f"s_add_u32 s{t0}, s{t0}, {448*9}")
        p(f"buffer_load_dwordx4 {vr(100+4*ks,4)}, v32, {WSR}, s{t0} offen offset:{448*(ks%9)} sc1")
    unpack(D, 96, 92, 2)
    for i in range(4): p(f"v_mul_f32 v{96+i}, 0x3fb8aa3b, v{96+i}")
    for ks in range(1, 20):
        p(f"v_pk_add_f32 v[100:101], v[100:101], {vr(100+4*ks,2)}\nv_pk_add_f32 v[102:103], v[102:103], {vr(102+4*ks,2)}")
    p(f"""s_mul_i32 s{t0}, s{t5}, 896
    s_add_u32 s{t0}, s{t0}, {WS_CB}
    buffer_store_dwordx4 v[100:103], v32, {WSR}, s{t0} offen sc1
    buffer_store_dwordx4 v[96:99], v32, {WSR}, s{t0} offen offset:448 sc1
    s_lshl_b32 s{t0}, s{t5}, 7
    s_add_u32 s{t0}, s{t0}, {WS_FC}
    v_mov_b32 v30, s{sTAG}
    v_mov_b32 v31, 0
    s_waitcnt vmcnt(0)
    buffer_store_dword v30, v31, {WSR}, s{t0} offen sc1""")
    p.label(lab("NOCB"))
    p(f"""s_lshl_b32 s{t0}, s{sJ}, 9
    s_add_u32 s{t0}, s{t0}, {WS_FL}
    v_lshlrev_b32 v31, 2, v0""")
    spin_wait(f"buffer_load_dword v30, v31, {WSR}, s{t0} offen sc1", [30], False, nap=4)
    st("hint")
    p.label(lab("W1DONE"))
    st("w1_issued")
    if not slow:
        pass
    p(f"s_mov_b32 s{t5}, s{sSTO}\ns_add_u32 s{t4}, s{sSTO}, 8192")
    p(stats_loads(G0[0], t5)); p(stats_loads(G0[1], t4))
    x0_norm(D)
    st("xn")

    def gate(e, s, layer, X2, G, YF, XN=None, defer=False, pk=False, later=None):
        if XN is None:
            stats_finish(e, G, 30)
            e(f"v_mul_f32 v32, -v30, v31")
        unpack(e, YF, YP[s], 5)
        if XN is None:
            XN = G
            if pk:
                for i in range(0, 10, 2): e(f"v_pk_fma_f32 {vr(G+i,2)}, {vr(X2+i,2)}, v[30:31], v[32:33] op_sel:[0,1,0] op_sel_hi:[1,1,0]")
            else:
                for i in range(10): e(f"v_fma_f32 v{G+i}, v{X2+i}, v31, v32")
        if pk:
            for i in range(0, 10, 2): e(f"v_pk_fma_f32 {vr(X2+i,2)}, {vr(XN+i,2)}, {vr(YF+i,2)}, {vr(X2+i,2)}")
        else:
            for i in range(10): e(f"v_fmac_f32 v{X2+i}, v{XN+i}, v{YF+i}")
        pack(e, XP[s], X2, 5)
        off = 40960 * s + LX(XF_LAYER, layer)
        wt = sc
        e(f"s_add_u32 s{t0}, s{sXW}, {off}\ns_add_u32 s{t1}, s{sXS}, {off}")
        e(f"buffer_store_dwordx4 {vr(XP[s],4)}, v{vL16}, {WSR}, s{t0} offen{wt}\nbuffer_store_dword v{XP[s]+4}, v{vL16}, {WSR}, s{t1} offen{sc}")
        tok = p.tok()
        if isinstance(e, Fill):
            c, fn = e.items[-1]
            e.items[-1] = (c, lambda fn=fn: setattr(fn(), "token_wr", tok))
        else:
            p.items[-1].token_wr = tok
        def stats():
            e2 = later or e
            e2(f"s_add_u32 s{t1}, s{sSTW}, {ST_K + LX(2*ST_K, layer) + 8192*s}")
            stats_publish(e2, X2, G, t1, 0, slow, TG(layer))
        if defer: return tok, stats
        n0 = len(e.items) if isinstance(e, Fill) else None
        stats()
        last = e.items.pop()
        e.skip(opt("gs", 0))
        e(f"s_add_u32 s{t0}, s{sFXW}, {LX(8192, layer) + 128*s}")
        publish(e, tok, t0, 0, 30, slow, TG(layer), wb=False)
        e.items.append(last)

    AR, BR, NA, NB, AG = 160, 208, 12, 6, 4
    def a1_read(fi):
        fi0 = fi % 140
        return f"ds_read_b128 {vr(AR+4*(fi%NA),4)}, v{vA1[fi0//56]} offset:{1024*(fi0%56)}"
    def a_wait(fi):
        last = AR + 4 * ((fi + AG - 1) % NA)
        p.need(("v", last))
    def b_load(ks):
        l = []
        if ks % 4 == 0 and ks: l.append(f"s_add_u32 s{sB0}, s{sB0}, 4096")
        l.append(f"buffer_load_dwordx4 {vr(BR+4*(ks%NB),4)}, v{vL16}, {WSR}, s{sB0} offen offset:{1024*(ks%4)} sc1")
        return l
    def fx_load(s, layer, dst):
        return f"buffer_load_dword v{dst}, v{dst+1}, {WSR}, s{t2} offen sc1"
    def fx_prep(e, s, layer, dst):
        e(f"v_lshlrev_b32 v{dst+1}, 2, v{vN}\ns_add_u32 s{t2}, s{sFXR}, {LX(8192, layer) + 128*s}")
    def b_start(s, layer):
        p(f"s_add_u32 s{sB0}, s{sXR}, {40960*s + LX(XF_LAYER, layer)}")
        for ks in range(NB):
            for l in b_load(ks): p(l)
    def a_seq_read(seq, i, NA):
        fi0 = seq[i]
        return f"ds_read_b128 {vr(AR+4*(i%NA),4)}, v{vA1[fi0//56]} offset:{1024*(fi0%56)}"
    def a_seq_wait(i, NA):
        p.need(("v", AR + 4 * (i % NA)))
    def row_scalars(e, s, layer, G, o=30):
        e(f"s_add_u32 s{t5}, s{sSTR}, {ST_K + LX(2*ST_K, layer) + 8192*s}")
        e(stats_loads(G, t5))
        e.skip(30)
        late_check(e, stats_loads(G, t5), stats_tags(G), 32, False, TG(layer))
        stats_finish(e, G, o)
        e(f"v_mul_f32 v{o+1}, 0x3fb8aa3b, v{o+1}\nv_mul_f32 v{o}, -v{o}, v{o+1}")
    def act(s, layer, ACC, T, O, mid=None, sc_=30, extra=None, extra_from=0, every=5, K=(32, 34), extra0=None):
        LN2, M2 = K
        off = 110592 * s + LX(HF_LAYER, layer)
        p(f"v_mov_b32 v{LN2}, 0x3f317218\nv_mov_b32 v{M2}, 0xbfb17218\ns_add_u32 s{t0}, s{sHW}, {off}\ns_add_u32 s{t1}, s{sHS}, {off}")
        tok = p.tok()
        extra = list(extra or [])
        cnt = [0]
        def q(l, on):
            p(l)
            cnt[0] += 1
            if on and extra and cnt[0] % every == 0:
                for x in extra.pop(0): p(x)
            elif not on and extra0 and cnt[0] > 20 and cnt[0] % 5 == 0:
                for x in extra0.pop(0): p(x)
        for pr in range(4):
            n = 4 if pr < 3 else 2
            on = pr >= extra_from
            acc, cs, bb, o = ACC + 8 * pr, CS + 8 * pr, BB + 8 * pr, O + 4 * (pr % 2)
            for i in range(n): q(f"v_pk_fma_f32 {vr(T+2*i,2)}, {vr(cs+2*i,2)}, {vr(sc_,2)}, {vr(bb+2*i,2)} op_sel_hi:[1,0,1]", on)
            for i in range(n): q(f"v_pk_fma_f32 {vr(acc+2*i,2)}, {vr(acc+2*i,2)}, {vr(sc_,2)}, {vr(T+2*i,2)} op_sel:[0,1,0] op_sel_hi:[1,1,1]", on)
            for i in range(2*n): q(f"v_exp_f32 v{T+i}, v{acc+i}", on)
            if pr == 0 and mid and "start" in mid: mid["start"]()
            for i in range(n): q(f"v_pk_add_f32 {vr(T+2*i,2)}, {vr(T+2*i,2)}, 1.0 op_sel_hi:[1,0]", on)
            for i in range(n): q(f"v_pk_fma_f32 {vr(T+2*i,2)}, {vr(T+2*i,2)}, {vr(T+2*i,2)}, 1.0 op_sel_hi:[1,1,0]", on)
            for i in range(2*n): q(f"v_rcp_f32 v{T+i}, v{T+i}", on)
            for i in range(n): q(f"v_pk_fma_f32 {vr(T+2*i,2)}, {vr(T+2*i,2)}, {vr(M2,2)}, {vr(LN2,2)} op_sel_hi:[1,0,0]", on)
            for i in range(n): q(f"v_pk_mul_f32 {vr(acc+2*i,2)}, {vr(acc+2*i,2)}, {vr(T+2*i,2)}", on)
            pack(D, o, acc, n)
            if pr < 3:
                p(f"buffer_store_dwordx4 {vr(o,4)}, v{vL16}, {WSR}, s{t0} offen offset:{1024*pr}{WT(layer)}", tok_wr=tok)
            else:
                if s == 0 and layer == 0:
                    p(f"s_cmp_ge_u32 s{sN}, 12\ns_cselect_b32 s{sHS}, 0x70000000, s{sHS}\ns_cselect_b32 s{t1}, 0x70000000, s{t1}")
                p(f"buffer_store_dwordx2 {vr(o,2)}, v{vL8}, {WSR}, s{t1} offen{WT(layer)}", tok_wr=tok)
            if pr == extra_from - 1 and extra0:
                for g in extra0:
                    for x in g: p(x)
                extra0.clear()
            if mid and pr in mid: mid[pr]()
        for g in extra:
            for x in g: p(x)
        return tok
    def row_scalars2(e, s, layer, o):
        G = 120
        ld = "\n".join(f"buffer_load_dwordx3 {vr((G, G+4, G+8, 32)[i],3)}, v{vL16}, {WSR}, s{t5} offen offset:{1024*i} sc1" for i in range(4))
        e(f"s_add_u32 s{t5}, s{sSTR}, {ST_K + LX(2*ST_K, layer) + 8192*s}")
        e(ld)
        e.skip(30)
        late_check(e, ld, [G + 2, G + 6, G + 10, 34], 32, False, TG(layer))
        e(f"v_add_f32 v{G+8}, v{G+8}, v32\nv_add_f32 v{G+9}, v{G+9}, v33")
        stats_finish(e, G, o, three=True)
        e(f"v_mul_f32 v{o+1}, 0x3fb8aa3b, v{o+1}\nv_mul_f32 v{o}, -v{o}, v{o+1}")
    def act_fill(e, s, layer, ACC, T, O, sc_):
        off = 110592 * s + LX(HF_LAYER, layer)
        e(f"v_mov_b32 v34, 0x3f317218\ns_add_u32 s{t0}, s{sHW}, {off}\ns_add_u32 s{t1}, s{sHS}, {off}")
        tok = p.tok()
        for ft in range(7):
            acc, cs, bb, o = ACC + 4 * ft, CS + 4 * ft, BB + 4 * ft, O + 4 * ((ft // 2) % 2) + 2 * (ft % 2)
            for i in range(4): e(f"v_fma_f32 v{T+i}, v{cs+i}, v{sc_}, v{bb+i}")
            for i in range(4): e(f"v_fma_f32 v{acc+i}, v{acc+i}, v{sc_+1}, v{T+i}")
            for i in range(4): e(f"v_exp_f32 v{T+i}, v{acc+i}")
            for i in range(4): e(f"v_add_f32 v{T+i}, 1.0, v{T+i}")
            for i in range(4): e(f"v_fma_f32 v{T+i}, v{T+i}, v{T+i}, 1.0")
            for i in range(4): e(f"v_rcp_f32 v{T+i}, v{T+i}")
            for i in range(4): e(f"v_fmamk_f32 v{T+i}, v{T+i}, 0xbfb17218, v34")
            for i in range(4): e(f"v_mul_f32 v{acc+i}, v{acc+i}, v{T+i}")
            pack(e, o, acc, 2)
            if ft % 2 == 1: e(f"buffer_store_dwordx4 {vr(o-2,4)}, v{vL16}, {WSR}, s{t0} offen offset:{1024*(ft//2)}{WT(layer)}", tok_wr=tok)
            if ft == 6: e(f"buffer_store_dwordx2 {vr(o,2)}, v{vL8}, {WSR}, s{t1} offen{WT(layer)}", tok_wr=tok)
        return tok
    def w2_groups(q0, q1):
        out = []
        if opt("now2", 0): return out
        for qq_ in range(q0, q1):
            sb, qq = (sW2B, qq_) if qq_ < 60 else (sW2S, qq_ - 60)
            g = []
            if qq % 4 == 0 and qq > 0: g.append(f"s_add_u32 s{sb}, s{sb}, 4096")
            g.append(f"buffer_load_dwordx4 {w2reg(qq_)}, v{vW2}, {WSR}, s{sb} offen offset:{1024*(qq%4)}{' sc1' if opt('w2sc', 1) else ''}")
            out.append(g)
        return out
    HR, NH = 132, 15
    def fh_prep(e, s, layer, dst):
        e(f"v_bfe_u32 v{dst+1}, v0, 1, 2\nv_lshlrev_b32 v{dst+1}, 4, v{dst+1}\nv_and_b32 v{dst}, 1, v0\nv_lshl_add_u32 v{dst+1}, v{dst}, 2, v{dst+1}")
        e(f"s_add_u32 s{t3}, s{sFHR}, {LX(8192, layer) + 4096*s}")
    def fh_load(dst): return f"buffer_load_dword v{dst}, v{dst+1}, {WSR}, s{t3} offen sc1"
    def h_load(idx, layer, b):
        s, r = divmod(idx, 28)
        second, kl = divmod(r, 14)
        ro = (sH0, sH2)[second]
        l = []
        if kl == 0:
            off = 110592 * s + LX(HF_LAYER, layer)
            l.append(f"s_add_u32 s{ro}, s{sHR if second else sH1}, {off}")
        elif kl < 12 and kl % 4 == 0: l.append(f"s_add_u32 s{ro}, s{ro}, 4096")
        if kl < 12:
            l.append(f"buffer_load_dwordx4 {vr(b,4)}, v{vL16}, {WSR}, s{ro} offen offset:{1024*(kl%4)} sc1")
        else:
            if kl == 12: l.append(f"s_add_u32 s{ro}, s{ro}, s{sB1_}")
            o = (kl - 12) * 1024
            l += [f"buffer_load_dwordx2 {vr(b,2)}, v{vL8}, {WSR}, s{ro} offen offset:{o} sc1",
                  f"buffer_load_dwordx2 {vr(b+2,2)}, v{vL8}, {WSR}, s{ro} offen offset:{o+512} sc1"]
        return l
    def emit_tail(F, rest):
        items = F.items
        nb = sum(1 for c, _ in items if c == "skip")
        paced = [b_[1:] for b_ in rest]
        head = [[b_[0]] for b_ in rest]
        merge(head[:nb * 2], F)
        late = [x for pc in paced[:nb * 2] for x in pc]
        for l in late: p(l)
        merge([h_ + pc for h_, pc in zip(head[nb * 2:], paced[nb * 2:])])
    def red_addr(e, dst, x, extra=0, sh=4):
        e(f"s_xor_b32 s{t4}, s{sW}, {x}\ns_mul_i32 s{t4}, s{t4}, 5120\ns_add_u32 s{t4}, s{t4}, {RED_BASE + extra}\nv_add_u32 v{dst}, s{t4}, v{vL16 if sh == 4 else vL8}")
    def bar(e, tok=None):
        if opt("x_nobar", 0): return
        if tok is not None: e.need(tok)
        e.group(lambda: p("s_barrier"), 4)
    def roundA(e, s, A):
        if opt("x_nored", 0): return
        red_addr(e, 33, 0)
        tk = p.tok()
        for dt in range(5): e(f"ds_write_b128 v33, {vr(A+4*dt,4)} offset:{1024*dt}", tok_wr=tk)
        red_addr(e, 33, 1); red_addr(e, 34, 3, 8)
        e.skip(opt("bs1", 6))
        bar(e, tk)
        for dt in range(5): e(f"ds_read_b64 {vr(A+2*dt,2)}, v33 offset:{1024*dt}")
        for dt in range(5): e(f"ds_read_b64 {vr(A+10+2*dt,2)}, v34 offset:{1024*dt}")
        e.skip(opt("bs2", 8))
        for i in range(10): e(f"v_add_f32 v{A+i}, v{A+i}, v{A+10+i}")
        unpack(e, A + 10, XP[s], 5)
        for i in range(10): e(f"v_add_f32 v{A+i}, v{A+i}, v{A+10+i}")
    def roundB(e, s, A, OWN, last=False, mid=None):
        if opt("x_nored", 0): return
        tk = p.tok()
        pk = e is D
        for dt in range(5): e(f"ds_write_b64 v{vRB}, {vr(OWN+4*dt+2,2)} offset:{1024*dt}", tok_wr=tk)
        for dt in range(5):
            if pk: e(f"v_pk_add_f32 {vr(A+2*dt,2)}, {vr(A+2*dt,2)}, {vr(OWN+4*dt,2)}")
            else: e(f"v_add_f32 v{A+2*dt}, v{A+2*dt}, v{OWN+4*dt}\nv_add_f32 v{A+2*dt+1}, v{A+2*dt+1}, v{OWN+4*dt+1}")
        if mid: mid()
        e.skip(opt("bs3", 2))
        bar(e, tk)
        for dt in range(5): e(f"ds_read_b64 {vr(A+10+2*dt,2)}, v{vRB+1} offset:{1024*dt}")
        e.skip(opt("bs4", 5))
        for i in range(0, 10, 2):
            if pk: e(f"v_pk_add_f32 {vr(A+i,2)}, {vr(A+i,2)}, {vr(A+10+i,2)}")
            else: e(f"v_add_f32 v{A+i}, v{A+i}, v{A+10+i}\nv_add_f32 v{A+i+1}, v{A+i+1}, v{A+11+i}")
    def roundB_addr(e):
        e(f"v_subrev_u32 v{vRB+1}, 8, v34\nv_mov_b32 v{vRB}, v33")
    vRB = 34
    def epi_stats(e, s, A, OWN):
        e(f"s_add_u32 s{t0}, s{sSTW}, {LX(2*ST_K, 1) + 8192*s}")
        stats_publish(e, A, OWN, t0, 0, slow, sTAG2)
    def epi_gate(e, s, A, OWN, w1=20, w2=20):
        e.skip(w1)
        e(f"s_add_u32 s{t5}, s{sSTO}, {LX(2*ST_K, 1) + 8192*s}")
        e(stats_loads(OWN, t5))
        e.skip(w2)
        st(f"eg{s}_chk", e)
        late_check(e, stats_loads(OWN, t5), stats_tags(OWN), 32, False, sTAG2)
        st(f"eg{s}_ok", e)
        gate(e, s, 1, A, OWN, A + 10)
    def out_store(e, s, A):
        pack(e, A + 10, A, 5)
        for dt in range(5): e(f"global_store_dword v{30+s}, v{A+10+dt}, {pair(sOUT)} offset:{32*dt}")

    p(f"""s_xor_b32 s{t0}, s{sW}, 1
    s_and_b32 s{t0}, s{t0}, 1
    s_sub_u32 s{sH1}, s{sHR}, 55296
    s_add_u32 s{t1}, s{sHR}, 55296
    s_cmp_eq_u32 s{t0}, 1
    s_cselect_b32 s{sH1}, s{t1}, s{sH1}
    s_mul_i32 s{sB1_}, s{sW}, 10240
    s_sub_u32 s{sB1_}, {49152 - 8192}, s{sB1_}
    s_cmp_eq_u32 s{sW}, 3
    s_cselect_b32 s{sB1_}, -8192, s{sB1_}
    s_lshl_b32 s{t0}, s{sA}, 2
    s_and_b32 s{t1}, s{sW}, 1
    s_add_u32 s{t0}, s{t0}, s{t1}
    s_lshl_b32 s{t0}, s{t0}, 3
    s_add_u32 s{t0}, s{t0}, s{sB}
    s_mul_i32 s{t4}, s{t0}, 2560
    s_lshr_b32 s{t1}, s{sP8}, 1
    s_add_u32 s{t4}, s{t4}, s{t1}
    s_add_u32 s{t4}, s{t4}, {WS_YG}
    s_add_u32 s{t5}, s{t4}, 40960
    v_min_u32 v31, 19, v0
    v_lshlrev_b32 v31, 9, v31
    s_mul_i32 s{t0}, s{sB}, 10240
    s_lshr_b32 s{t1}, s{sA}, 3
    s_lshl_b32 s{t1}, s{t1}, 7
    s_add_u32 s{t0}, s{t0}, s{t1}
    s_add_u32 s{t0}, s{t0}, {WS_FY}""")
    spin_wait(f"buffer_load_dword v30, v31, {WSR}, s{t0} offen sc1", [30], False, nap=opt("ynap", 2))
    st("y_flag")
    for s in range(2):
        for t in range(5):
            p(f"buffer_load_dword v{YP[s]+t}, v{vL8}, {WSR}, s{(t4, t5)[s]} offen offset:{512*t} sc1")
    tka, sta = gate(D, 0, 0, X32[0], 112, 102, XN0[0], defer=True, pk=True)
    tkb, stb = gate(D, 1, 0, X32[1], 152, 142, XN0[1], defer=True, pk=True)
    sta()
    publish(D, tka, sFXW, 0, 32, slow, wb=False)
    publish(D, tkb, sFXW, 128, 32, slow, wb=False)
    stb()
    st('x_pub1')
    if not slow and HPW:
        p(f"""s_sub_u32 s{t2}, s{sHS}, 3072
        s_sub_u32 s{t3}, s{sHW}, 3072
        s_cmp_ge_u32 s{sN}, 12
        s_cselect_b32 s{t2}, s{t3}, s{t2}
        v_and_b32 v33, 31, v0
        v_min_u32 v33, 27, v33
        v_lshlrev_b32 v30, 7, v33
        v_add_u32 v31, s{sHW}, v30
        v_add_u32 v32, s{t2}, v30
        v_cmp_gt_u32 vcc, 24, v33
        v_cndmask_b32 v31, v32, v31, vcc
        v_lshrrev_b32 v32, 5, v0
        v_mul_u32_u24 v32, 110592, v32
        v_add_u32 v126, v31, v32""")
        if HPW == 1: p(f"buffer_load_dword v{JUNK}, v126, {WSR}, 0 offen sc1")
    p(f"s_cmp_ge_u32 s{sSIG}, 20\ns_cbranch_scc1 {lab('RESTI')}")
    w1_range(NAC, na)
    p("s_barrier")
    w1_range(na, 35)
    p(f"s_branch {lab('HAVEB')}")
    p.label(lab("RESTI"))
    w1_range(NAI, 35)
    p.label(lab("HAVEB"))
    p("s_waitcnt vmcnt(0)")
    st("w1_in")
    p("s_barrier")
    EX, EY = (192, 212), (92, 112)
    ACCX, ACCY = 132, 92
    class Ring:
        def __init__(self, slots): self.free, self.q, self.at = list(slots), [], {}
        def push(self, key, fn): self.q.append((key, fn))
        def issue(self, n=1):
            out = []
            while n and self.q and self.free:
                key, fn = self.q.pop(0)
                self.at[key] = self.free.pop(0)
                ls = fn(self.at[key]); n -= 1
                if not opt("x_nold", 0): out += ls
            return out
        def release(self, key): self.free.append(self.at[key])
    def x_load(s_, ks, base):
        sb = (sB0, sXY)[s_]
        def fn(r):
            l = []
            if ks == 0: l.append(f"s_add_u32 s{sb}, s{sXR}, {base + 40960*s_}")
            elif ks % 4 == 0: l.append(f"s_add_u32 s{sb}, s{sb}, 4096")
            return l + [f"buffer_load_dwordx4 {vr(r,4)}, v{vL16}, {WSR}, s{sb} offen offset:{1024*(ks%4)} sc1"]
        return fn
    def hq_load(idx, layer): return lambda r: h_load(idx, layer, r)
    carry = None
    for layer in range(2):
        L = f"L{layer}_"
        if layer == 1 and opt("rerun", 0) and not slow:
            p(f"s_mov_b32 s{sE}, 0")
            p.label("RERUN")
            st("L1_head")
        seq = list(range(140)) * (1 + layer)
        NA, AG = (opt("na0", 6), opt("ag0", 2)) if layer == 0 else (12, opt("ag1", 4))
        for i in range(NA): p(a_seq_read(seq, i, NA))
        def attach(b, i, NA=NA, AG=AG):
            if i + NA < len(seq): b.append(a_seq_read(seq, i + NA, NA))
            if i % AG == AG - 1 and i + 1 < len(seq): b.append(lambda i=i: a_seq_wait(min(i + AG, len(seq) - 1), NA))
        xoff = LX(XF_LAYER, layer)
        H = Ring(range(HR, HR + 4 * NH, 4))
        KH = opt("kh", 0) if layer == 0 else 0
        ORDX = [(second, kl) for kl in range(KH) for second in range(2)] + [(second, kl) for second in range(2) for kl in range(KH, 14)]
        for second, kl in ORDX: H.push(14 * second + kl, hq_load(14 * second + kl, layer))
        if layer == 0:
            R = Ring(range(AR + 4 * NA, 232, 4))
            p(f"v_and_b32 v31, 16, v0\nv_lshlrev_b32 v31, 3, v31\nv_lshl_add_u32 v31, v{vN}, 2, v31\ns_mov_b32 s{t2}, s{sFXR}")
            spin_wait(fx_load(0, layer, 30), [30], False)
            st(L + "x_seen")
            for ks in range(20):
                for s_ in (1, 0): R.push((s_, ks), x_load(s_, ks, xoff))
            for l in R.issue(opt("x_first", 6)): p(l)
            p(f"""s_or_b32 s{t0}, s2, s{sW}
            s_cmp_eq_u32 s{t0}, 0
            s_cselect_b32 s{t0}, 0, 0x70000000
            v_mov_b32 v33, s{sTAG}
            v_mov_b32 v34, 0
            buffer_store_dword v33, v34, {WSR}, s{t0} offen sc1""")
            beats = []
            for ks in range(20):
                for ft in range(7):
                    i = ks * 7 + ft
                    for s_ in (1, 0):
                        acc = (ACCX, ACCY)[s_] + 4 * ft
                        b = [f"{MF} {vr(acc,4)}, {vr(AR+4*(i%NA),4)}, {vr(R.at[(s_, ks)],4)}, {'0' if ks == 0 else vr(acc,4)}"]
                        if s_ == 0: attach(b, i)
                        if ft == 6: R.release((s_, ks))
                        if len(beats) % 3 == 0 or ft == 6: b += R.issue(1)
                        beats.append(b)
            F = Fill()
            F(f"s_lshl_b32 s{t3}, s{sN}, 7\ns_add_u32 s{t3}, s{t3}, {WS_FC}\nv_mov_b32 v121, v90\nv_writelane_b32 v121, s{t3}, 63\ns_mov_b32 s{t3}, 0")
            F(fh_load(120))
            st("s12_a", F)
            row_scalars(F, 0, layer, 36)
            st("s12_b", F)
            late_check(F, fh_load(120), [120], 124, False)
            st("s12_c", F)
            row_scalars(F, 1, layer, 36, 122)
            st("s12_d", F)
            tkt = p.tok()
            F(f"s_mul_i32 s{t0}, s{sN}, 896\ns_add_u32 s{t0}, s{t0}, {WS_CB}\ns_mul_i32 s{t1}, s{sW}, 5120\ns_add_u32 s{t1}, s{t1}, {RED_BASE}\nv_lshl_add_u32 v124, v{vG}, 4, s{t1}")
            F.group(lambda: (p(f"s_mov_b32 m0, s{t1}\ns_mov_b32 exec_hi, 0xffffff"), p(f"buffer_load_dwordx4 v{vL16}, {WSR}, s{t0} offen sc1 lds", tok_wr=tkt), p("s_mov_b64 exec, -1")), 16)
            Ft = Fill()
            Ft.need(tkt)
            for i in range(14): Ft(f"ds_read_b128 {vr(CS+4*i,4)}, v124 offset:{64*i}")
            st("s12_e", F)
            if not slow and HPW == 2: F(f"buffer_load_dword v{JUNK}, v126, {WSR}, 0 offen sc1")
            N12 = opt("n12", 40)
            for q in range(NW2E, N12):
                w2_loads(F, q, q + 1, vW2)
                F.skip(opt("w2gap", 4))
                if q == NW2E + 6: F.items += Ft.items
            merge(beats, F)
            st(L + "S12")
            NA1 = max(N12, opt("na1", 56))
            NA2 = max(NA1, opt("na2", 70))
            tokx = act(0, layer, ACCX, 192, 200, extra=w2_groups(N12, NA1), every=opt("ev1", 7), K=(208, 210))
            p(f"s_add_u32 s{t4}, s{sFHW}, {LX(8192, layer)}")
            fh_prep(D, 0, layer, 120)
            st(L + "A1")
            tokh = act(1, layer, ACCY, 192, 200, sc_=122, K=(208, 210),
                       mid={"start": lambda: publish(D, tokx, t4, 0, 124, slow, TG(layer), wb=False), 1: lambda: p(fh_load(120)),
                            2: lambda: late_check(D, fh_load(120), [120], 124, False, TG(layer))},
                       extra=[H.issue(1) for _ in range(opt("hpre", 6))], extra_from=3, every=3, extra0=w2_groups(NA1, NA2))
        else:
            R = carry
            HEAD_LOADS = R.issue(NB)
            def g1_pass(s_, acc0):
                beats = []
                for ks in range(20):
                    for ft in range(7):
                        i = 140 * s_ + ks * 7 + ft
                        b = [f"{MF} {vr(acc0+4*ft,4)}, {vr(AR+4*(i%NA),4)}, {vr(R.at[(s_, ks)],4)}, {'0' if ks == 0 else vr(acc0+4*ft,4)}"]
                        attach(b, i)
                        if ft == 6:
                            R.release((s_, ks)); b += R.issue(1)
                        beats.append(b)
                return beats
            g1x = g1_pass(0, ACCX)
            GX = EY[1] + 4
            def head_mid():
                late_check(D, fx_load(0, 1, 30), [30], 32, False, TG(1))
                st("L1_xX_seen")
                for l in HEAD_LOADS: p(l)
            roundB(D, 1, *EY, mid=head_mid)
            p(f"s_add_u32 s{t3}, s{sSTR}, {ST_K + LX(2*ST_K, layer)}")
            p(stats_loads(GX, t3))
            epi_stats(D, 1, *EY)
            st(L + "st_pub")
            F = Fill()
            bar(F)
            F.skip(opt("e1x", 4))
            late_check(F, stats_loads(GX, t3), stats_tags(GX), 32, False, TG(layer))
            stats_finish(F, GX, 34)
            F(f"v_mul_f32 v35, 0x3fb8aa3b, v35\nv_mul_f32 v34, -v34, v35")
            F(f"s_add_u32 s{t5}, s{sSTO}, {LX(2*ST_K, 1) + 8192}")
            F(stats_loads(EY[1], t5))
            c1 = opt("c1", 40)
            merge(g1x[:c1], F, rate=12)
            late_check(D, stats_loads(EY[1], t5), stats_tags(EY[1]), 32, False, sTAG2)
            st(L + "st_ok")
            F = Fill()
            tk, sts = gate(D, 1, 1, EY[0], EY[1], EY[0] + 10, defer=True, pk=True, later=F)
            F.skip(opt("e1p", 6))
            F(f"s_add_u32 s{t0}, s{sFXW}, {LX(8192, layer) + 128}")
            publish(F, tk, t0, 0, 30, slow, TG(layer), wb=False)
            st(L + "yY_pub", F)
            sts()
            merge(g1x[c1:], F, rate=opt("r1", 8))
            st(L + "S1")
            fx_prep(D, 1, layer, 120)
            p(fx_load(1, layer, 120))
            for ks in range(20): R.push((1, ks), x_load(1, ks, xoff))
            tokx = act(0, layer, ACCX, 92, 100, K=(108, 110), sc_=34, mid={opt("a1c", 1): lambda: late_check(D, fx_load(1, layer, 120), [120], 122, False, TG(layer))},
                       extra=[R.issue(1) for _ in range(NB)], extra_from=opt("a1c", 1) + 1, every=5)
            st(L + "A1")
            F = Fill()
            F.skip(opt("p2", 20))
            F(f"s_add_u32 s{t4}, s{sFHW}, {LX(8192, layer)}")
            publish(F, tokx, t4, 0, 32, slow, TG(layer), wb=False)
            row_scalars(F, 1, layer, 120)
            fh_prep(F, 0, layer, 120)
            F(fh_load(120))
            merge(g1_pass(1, ACCY), F)
            st(L + "S2")
            late_check(D, fh_load(120), [120], 124, False, TG(layer))
            tokh = act(1, layer, ACCY, 192, 200, K=(208, 210), extra=[H.issue(1) for _ in range(NH)], every=8)
        st(L + "A2")
        c3 = opt("c3", 90)
        bts = []
        KOUT = layer == 0 and opt("kout", 0)
        late_w2 = w2_groups(NA2, 70) if layer == 0 else []
        for s_ in range(2):
            A_, OWN_ = (EX, EY)[s_]
            order = [(second, kl) for second in range(2) for kl in range(14)]
            if s_ == 0: order = ORDX
            for second, kl in order:
                acc = OWN_ if second else A_
                idx = 28 * s_ + 14 * second + kl
                for dt in range(5):
                    nb_i = len(bts)
                    b = [f"{MF} {vr(acc+4*dt,4)}, {w2reg(kl*5+dt)}, {vr(H.at[idx],4)}, {'0' if kl == 0 else vr(acc+4*dt,4)}"]
                    if nb_i == c3:
                        b.append(lambda: late_check(D, fh_load(120), [120], 122, False, TG(layer)))
                        for i2 in range(28, 56): H.push(i2, hq_load(i2, layer))
                    if dt == 4: H.release(idx)
                    if nb_i % 3 == 0 or dt == 4: b += H.issue(1)
                    if late_w2 and nb_i % opt("lw", 2) == 1 % opt("lw", 2): b += late_w2.pop(0)
                    bts.append(b)
        F = Fill()
        F.skip(opt("p3", 10))
        F(f"s_add_u32 s{t4}, s{sFHW}, {LX(8192, layer) + 4096}")
        if not (opt("x_nopub", 0) and False): publish(F, tokh, t4, 0, 32, slow, TG(layer), wb=False)
        fh_prep(F, 1, layer, 120)
        F.skip(max(0, c3 - opt("p3", 10) - 28))
        F(fh_load(120))
        cA = 72 + 5 * KH
        merge(bts[:cA], F)
        st(L + "S3a")
        F = Fill()
        roundA(F, 0, EX[0])
        roundB_addr(F)
        merge(bts[cA:142], F, rate=(opt("ra", 6) if not KH else 12))
        st(L + "S3")
        F = Fill()
        roundB(F, 0, *EX)
        if layer == 0:
            epi_stats(F, 0, *EX)
            bar(F)
            F.until(opt("u4a", 40))
            F(f"s_add_u32 s{t5}, s{sSTO}, {LX(2*ST_K, 1)}")
            F(stats_loads(EX[1], t5))
            F.until(opt("u4b", 58))
            st("eg0_chk", F)
            late_check(F, stats_loads(EX[1], t5), stats_tags(EX[1]), 32, False, sTAG2)
            st("eg0_ok", F)
            tk, sts = gate(F, 0, 1, EX[0], EX[1], EX[0] + 10, defer=True)
            sts()
            lastst = F.items.pop()
            F(f"s_add_u32 s{t0}, s{sFXW}, {LX(8192, 1)}")
            publish(F, tk, t0, 0, 30, slow, TG(1), wb=False)
            F.items.append(lastst)
            st(L + "xX_pub", F)
            F.until(70)
            roundA(F, 1, EY[0])
            roundB_addr(F)
            carry = Ring(range(BR, BR + 4 * NB, 4))
            for ks in range(20): carry.push((0, ks), x_load(0, ks, LX(XF_LAYER, 1)))
            APRE = 0
            fx_prep(F, 0, 1, 30)
            F(fx_load(0, 1, 30))
            merge(bts[142:], F, rate=opt("r4", 10))
        else:
            bar(F)
            F.group(lambda: xy_offset(30), 40)
            F.until(70)
            roundA(F, 1, EY[0])
            roundB_addr(F)
            out_store(F, 0, EX[0])
            merge(bts[142:], F, rate=opt("ra", 6))
        st(L + "S4")
    if opt("rerun", 0) and not slow:
        p(f"s_cmp_lg_u32 s{sE}, 0\ns_cbranch_scc1 RERUN_DONE\ns_mov_b32 s{sE}, 1\nv_mov_b32 v{JUNK}, v{vSTAMP}\ns_branch RERUN")
        p.label("RERUN_DONE")
    roundB(D, 1, *EY)
    out_store(D, 1, EY[0])
    if STAMPS and not slow:
        stamp("end")
        if DBG is not None:
            p(f"""v_readlane_b32 s{t0}, v{vSTAMP}, 0
            s_not_b32 s{t0}, s{t0}
            v_writelane_b32 v{vSTAMP}, s{t0}, 15
            v_lshlrev_b32 v30, 2, v0
            s_mov_b64 exec, 0xffff
            global_atomic_umax v30, v{vSTAMP}, {pair(sDBG)}
            s_mov_b64 exec, -1""")
        p(f"""s_lshl_b32 s{t0}, s2, 2
        s_add_u32 s{t0}, s{t0}, s{sW}
        s_lshl_b32 s{t0}, s{t0}, 8
        s_add_u32 s{t0}, s{t0}, {WS_STAMP}
        v_lshlrev_b32 v30, 2, v0
        buffer_store_dword v{vSTAMP if opt("rerun", 0) != 2 else JUNK}, v30, {WSR}, s{t0} offen""")
    p("s_endpgm")
    while tail_code: tail_code.pop(0)()

body(False)
body(True)
p.label("END")
p("s_endpgm")
p.raw('.section .rodata,"a"\n.p2align 6')
p.raw(f".amdhsa_kernel {KN}")
for l in ["next_free_vgpr 512", "next_free_sgpr 102", "accum_offset 256", "group_segment_fixed_size 0", "kernarg_size 104",
          "user_sgpr_count 2", "user_sgpr_kernarg_segment_ptr 1", "system_sgpr_workgroup_id_x 1", "float_denorm_mode_32 3"]:
    p.raw("  .amdhsa_" + l)
p.raw(".end_amdhsa_kernel")
out = [a for a in ARGS if not a.startswith("--")][0]
open(out, "w").write(p.finalize())
if STAMPS: open(out + ".stamps", "w").write("\n".join(stamp_names))
```

```python
import sys
from gasm import Prog, Ins

NAME = "interleave_layers__ssm_conv_h3__dense_activation_mish__prompt"
ARGS = sys.argv[1:]
STAMPS = "--stamps" in ARGS or "--cstamps" in ARGS
STAMP_INS = "s_memtime" if "--cstamps" in ARGS else "s_memrealtime"
FORCE_SLOW = "--slow" in ARGS
def opt(name, default):
    for a in ARGS:
        if a.startswith(f"--{name}="): return type(default)(a.split("=", 1)[1])
    return default
SPIN = 400000
NT = lambda n, d: ' nt' if opt('nt_' + n, d) else ''

WS_EPOCH, WS_FT, WS_FC = 0, 0x1000, 0x2000
WS_FW1, WS_FW2 = 0x60000, 0x6A000
WS_FTR = 0x11000
WS_XC = 0x36000
WS_FL = 0x10000
WS_FY, WS_FX, WS_FH, WS_CB, WS_PS = 0x40000, 0x4000, 0x8000, 0xC000, 0x12000
WS_ST, WS_UR, WS_YG, WS_XF, WS_HF, WS_W1F, WS_W2F, WS_STAMP = 0x100000, 0x300000, 0x600000, 0xB00000, 0x1000000, 0x1E00000, 0x2100000, 0x3000000
XF_LAYER, HF_LAYER, ST_K = 128 * 20 * 1024, 128 * 54 * 1024, 128 * 4096

LDS_BYTES = 163840
CONV_PITCH, HC_PITCH = 21312, 4160
LU_OFF = 4 * HC_PITCH
CONV_BASE = LDS_BYTES - 4 * CONV_PITCH
T_BASE = 0
TW_PITCH = 6400
UT_BASE = 4 * TW_PITCH
WST_BASE = CONV_BASE
RED_BASE = 143360
NW1A = 76

sQ, sK, sV, sSK, sH, sD, sBX, sW1, sB1, sW2, sOUT, sDBG, sWS = [4 + 2 * i for i in range(13)]
R_WS, R_K, R_V, R_H, R_W = 32, 36, 40, 44, 48
sJ, sSIG, sW, sA, sB, sM, sN, sTAG, sE, sDVAL, sXV, sSPIN = range(52, 64)
t0, t1, t2, t3, t4, t5, t6, t7 = range(64, 72)
sSTAMP = 72
WU = [98, 98]
sXR, sXW, sXS, sHW, sHS, sHR, sFXR, sFXW, sFHR, sFHW, sSTW, sSTO, sSTR, sP8, sW2B, sW2S, sGOTA = range(76, 93)
sB0, sB1_, sH0, sH1 = 93, 94, 95, 96
sTAG2 = 97
sH2 = 99
sG0 = 100
sXY = 98
sG = 3
srd = lambda r: f"s[{r}:{r+3}]"
pair = lambda r: f"s[{r}:{r+1}]"
WSR = srd(R_WS)

vL16, vN, vG, vL8, vSTAMP = 1, 2, 3, 4, 5
XP = [6, 12]
YP = [17, 22]
JUNK = 27
vA1 = [vL16, 28, 29]
AP, SCB, SCR, XR0 = 36, (50, 52), 54, 56
vr = lambda b, n: f"v[{b}:{b+n-1}]" if n > 1 else f"v{b}"
def w2reg(q):
    return f"a[{4*q}:{4*q+3}]" if q < 64 else f"v[{232+4*(q-64)}:{232+4*(q-64)+3}]"
MF = "v_mfma_f32_16x16x32_bf16"

p = Prog()
p.junk = {('v', JUNK)}
stamp_names = []
tail_code = []

class Fill:
    def __init__(self): self.items = []
    def __call__(self, s, tok_wr=None):
        ls = [l.strip() for l in s.strip("\n").split("\n") if l.strip() and not l.strip().startswith(";")]
        for i, l in enumerate(ls):
            c = 8 if l.split()[0] in ("v_exp_f32", "v_rcp_f32", "v_sqrt_f32", "v_rsq_f32") else 4
            self.items.append((c, (lambda l=l, t=(tok_wr if i == len(ls) - 1 else None): p(l, tok_wr=t))))
    def group(self, fn, cost): self.items.append((cost, fn))
    def skip(self, n): self.items.append(("skip", n))
    def until(self, n): self.items.append(("until", n))
    def need(self, *t): self.items.append((4, lambda: p.need(*t)))
    def L(self, x): return p.L(x)

class Direct:
    def __call__(self, s, tok_wr=None): p(s, tok_wr=tok_wr)
    def group(self, fn, cost): fn()
    def skip(self, n): pass
    def until(self, n): pass
    def need(self, *t): p.need(*t)
D = Direct()

def merge(beats, fill=None, rate=8, flush=True):
    items = list(fill.items) if fill else []
    credit = 0
    hold = 0
    for bi, b in enumerate(beats):
        for x in b:
            if callable(x): x()
            else: p(x)
        credit = min(credit, 0) + rate - 4 * (len(b) - 1)
        if hold > 0:
            hold -= 1; continue
        while items and credit > 0:
            c, fn = items[0]
            if c == "skip":
                items.pop(0); hold = fn; break
            if c == "until":
                if bi < fn: break
                items.pop(0); continue
            if c > credit and credit < 4: break
            items.pop(0); fn(); credit -= c
    if not flush: return items
    for c, fn in items:
        if c not in ("skip", "until"): fn()

def merge2(beats, F, F2, at, rate):
    n = len(F.items)
    items = list(F.items)
    class R: pass
    r = R(); r.items = items
    left = merge(beats[:at], r, rate, flush=False)
    r2 = R(); r2.items = left + list(F2.items)
    merge(beats[at:], r2, rate if left else opt('ra', 8))

DBG = opt("dbg", "").split(",") if opt("dbg", "") else None
ONLY = opt("only", "").split(",") if opt("only", "") else None
def stamp(name, e=None):
    if not STAMPS: return
    if ONLY is not None and name not in ONLY and name not in ("start", "end"): return
    if DBG is not None:
        if name not in DBG: return
        i = DBG.index(name)
        fn = lambda: p(f"{STAMP_INS} {pair(sSTAMP)}\ns_waitcnt lgkmcnt(0)\nv_writelane_b32 v{vSTAMP}, s{sSTAMP}, {i}")
        (e or D).group(fn, 12)
        return
    if name not in stamp_names: stamp_names.append(name)
    i = stamp_names.index(name)
    assert i < 64
    fn = lambda: p(f"{STAMP_INS} {pair(sSTAMP)}\ns_waitcnt lgkmcnt(0)\nv_writelane_b32 v{vSTAMP}, s{sSTAMP}, {i}")
    (e or D).group(fn, 12)

def spin_wait(load_lines, checks, slow_inv, tag=None, nap=None):
    L, L2, X = p.L("POLL"), p.L("POLLB"), p.L("POLLX")
    nap = opt("nap", 2) if nap is None else nap
    p(f"s_mov_b32 s{sSPIN}, 0\ns_branch {L2}")
    p.label(L)
    if nap: p(f"s_sleep {nap}")
    p(f"s_add_u32 s{sSPIN}, s{sSPIN}, 1\ns_cmp_gt_u32 s{sSPIN}, {SPIN}\ns_cbranch_scc1 {X}")
    p.label(L2)
    p(load_lines)
    p("s_waitcnt vmcnt(0)")
    for r in checks:
        p(f"v_cmp_ne_u32 vcc, s{tag or sTAG}, v{r}\ns_cbranch_vccnz {L}")
    p.label(X)
    if slow_inv: p("buffer_inv sc1\ns_waitcnt vmcnt(0)")

def late_check(e, load_lines, checks, tmp, slow_inv, tag=None):
    TG = tag or sTAG
    def fn():
        S, B = p.L("SPIN"), p.L("BACK")
        if len(checks) == 1:
            p(f"v_cmp_ne_u32 vcc, s{TG}, v{checks[0]}")
        else:
            assert len(checks) == 4
            a_, b_, c_, d_ = checks
            p(f"""v_xor_b32 v{a_}, v{a_}, v{b_}
            v_xor_b32 v{c_}, v{c_}, v{d_}
            v_xor_b32 v{b_}, v{b_}, v{d_}
            v_xor_b32 v{d_}, s{TG}, v{d_}
            v_or3_b32 v{a_}, v{a_}, v{b_}, v{c_}
            v_or_b32 v{a_}, v{a_}, v{d_}
            v_cmp_ne_u32 vcc, 0, v{a_}""")
        p(f"s_cbranch_vccnz {S}")
        p.label(B)
        if slow_inv: p("buffer_inv sc1\ns_waitcnt vmcnt(0)")
        def tail():
            p.label(S)
            spin_wait(load_lines, checks, False, TG)
            p(f"s_branch {B}")
        tail_code.append(tail)
    e.group(fn, 8 if len(checks) == 1 else 32)

def unpack(e, dst, src, n):
    for i in range(n):
        e(f"v_lshlrev_b32 v{dst+2*i}, 16, v{src+i}\nv_and_b32 v{dst+2*i+1}, 0xffff0000, v{src+i}")
def pack(e, dst, src, n):
    for i in range(n):
        e(f"v_cvt_pk_bf16_f32 v{dst+i}, v{src+2*i}, v{src+2*i+1}")
def bf16r(e, r):
    e(f"v_cvt_pk_bf16_f32 v{r}, v{r}, v{r}\nv_lshlrev_b32 v{r}, 16, v{r}")

def stats_publish(e, x, g, soff, imm, slow, tag=None):
    e(f"v_add_f32 v{g}, v{x}, v{x+1}\nv_mul_f32 v{g+1}, v{x}, v{x}\nv_mul_f32 v{g+3}, v{x+1}, v{x+1}\nv_add_f32 v{g+2}, v{x+2}, v{x+3}")
    for i in range(2, 10, 2):
        e(f"v_fmac_f32 v{g+1}, v{x+i}, v{x+i}\nv_fmac_f32 v{g+3}, v{x+i+1}, v{x+i+1}")
        if i >= 4: e(f"v_add_f32 v{g}, v{g}, v{x+i}\nv_add_f32 v{g+2}, v{g+2}, v{x+i+1}")
    e(f"v_add_f32 v{g}, v{g}, v{g+2}\nv_add_f32 v{g+1}, v{g+1}, v{g+3}\nv_lshlrev_b32 v{g+3}, 4, v{vN}\nv_mov_b32 v{g+2}, s{tag or sTAG}")
    e(f"v_permlane16_swap_b32 v{g}, v{g+1}\nv_add_f32 v{g}, v{g}, v{g+1}\nv_mov_b32 v{g+1}, v{g}")
    e(f"v_permlane32_swap_b32 v{g}, v{g+1}\nv_add_f32 v{g}, v{g}, v{g+1}\nv_mov_b32 v{g+1}, v{g}")
    e(f"v_permlane16_swap_b32 v{g}, v{g+1}")
    e(f"buffer_store_dwordx3 {vr(g,3)}, v{g+3}, {WSR}, s{soff} offen offset:{imm}{' sc1' if slow else ''}")

def stats_loads(G, soff):
    return "\n".join(f"buffer_load_dwordx3 {vr(G+4*i,3)}, v{vL16}, {WSR}, s{soff} offen offset:{1024*i} sc1" for i in range(4))
def stats_tags(G): return [G + 2, G + 6, G + 10, G + 14]

def stats_finish(e, G, o, three=False, rcp=True):
    e(f"v_add_f32 v{G}, v{G}, v{G+4}\nv_add_f32 v{G+1}, v{G+1}, v{G+5}")
    if not three: e(f"v_add_f32 v{G+8}, v{G+8}, v{G+12}\nv_add_f32 v{G+9}, v{G+9}, v{G+13}")
    e(f"v_add_f32 v{G}, v{G}, v{G+8}\nv_add_f32 v{G+1}, v{G+1}, v{G+9}")
    e(f"v_permlane16_swap_b32 v{G}, v{G+1}\nv_add_f32 v{G}, v{G}, v{G+1}\nv_mov_b32 v{G+1}, v{G}")
    e(f"v_permlane32_swap_b32 v{G}, v{G+1}\nv_add_f32 v{G}, v{G}, v{G+1}\nv_mul_f32 v{o}, 0x3acccccd, v{G}\nv_mul_f32 v{o+1}, 0x3acccccd, v{G}")
    e(f"v_permlane16_swap_b32 v{o}, v{o+1}")
    s, q = o, o + 1
    e(f"v_fma_f32 v{q}, -v{s}, v{s}, v{q}\nv_max_f32 v{q}, 0, v{q}")
    e(f"v_cvt_pk_bf16_f32 v{q}, v{q}, v{s}\nv_and_b32 v{s}, 0xffff0000, v{q}\nv_lshlrev_b32 v{q}, 16, v{q}")
    e(f"v_add_f32 v{q}, 0x3727c5ac, v{q}")
    bf16r(e, q)
    e(f"v_sqrt_f32 v{q}, v{q}")
    bf16r(e, q)
    if rcp: e(f"v_rcp_f32 v{q}, v{q}")

def publish(e, tok, soff, imm, tmp, slow, tag=None, wb=True):
    e(f"v_mov_b32 v{tmp}, s{tag or sTAG}\nv_mov_b32 v{tmp+1}, 0")
    e.need(tok)
    if slow and wb:
        e.group(lambda: p(f"s_waitcnt vmcnt(0)\nbuffer_wbl2 sc1\ns_waitcnt vmcnt(0)"), 8)
    e(f"buffer_store_dword v{tmp}, v{tmp+1}, {WSR}, s{soff} offen offset:{imm}{' sc1' if slow else ''}")

vHOFF = 35
HD = 170
def h_loads():
    for q in range(5):
        if q == 4: p("s_mov_b64 exec, 15")
        p(f"buffer_load_dwordx4 {vr(HD+6*q,4)}, v{vHOFF}, {srd(R_H)}, 0 offen nt")
        if q < 4: p(f"v_add_u32 v{vHOFF}, 1024, v{vHOFF}")
    p("s_mov_b64 exec, -1")
def h_build(first):
    if first is None: return h_rows(range(HB_DONE[0], 5))
    HB_DONE[0] = first
    p(f"v_cmp_lt_u32 vcc, 1, v0")
    for i in range(4): p(f"v_cndmask_b32 v{HD+i}, 0, v{HD+i}, vcc")
    for q in range(5):
        d = HD + 6 * q
        for i in range(2):
            p(f"v_mov_b32_dpp v{d+4+i}, v{d+i} wave_shl:1 row_mask:0xf bank_mask:0xf")
        if q < 4:
            for i in range(2): p(f"v_readfirstlane_b32 s{t6+i}, v{d+6+i}")
            for i in range(2): p(f"v_writelane_b32 v{d+4+i}, s{t6+i}, 63")
    h_rows(range(first))
HB_DONE = [0]
def h_rows(rows):
    for q in rows:
        d, S = HD + 6 * q, 200 + 12 * (q % 2)
        if q == 4: p("s_mov_b64 exec, 7")
        p(f"ds_write_b128 v33, {vr(d,4)} offset:{1024*q}")
        for i in range(4): p(f"v_alignbit_b32 v{S+i}, v{d+i+1}, v{d+i}, 16")
        p(f"ds_write_b128 v33, {vr(S,4)} offset:{1024*q + HC_PITCH}")
        for i in range(4): p(f"v_mov_b32 v{S+4+i}, v{d+i+1}")
        p(f"ds_write_b128 v33, {vr(S+4,4)} offset:{1024*q + 2*HC_PITCH}")
        for i in range(4): p(f"v_alignbit_b32 v{S+8+i}, v{d+i+2}, v{d+i+1}, 16")
        p(f"ds_write_b128 v33, {vr(S+8,4)} offset:{1024*q + 3*HC_PITCH}")
    p("s_mov_b64 exec, -1")

def w_unit_params(rep):
    Bq, E = p.L("WU2"), p.L("WUE")
    sv = WU[rep]
    p(f"""s_sub_u32 s{t0}, s{sSIG}, {20 if rep == 0 else -12}
    s_lshl_b32 s{t0}, s{t0}, 2
    s_add_u32 s{t0}, s{t0}, s{sW}
    s_mov_b32 s{R_W+2}, 2211840
    v_mov_b32 v32, 0
    s_cmp_ge_u32 s{t0}, 40
    s_cbranch_scc1 {Bq}
    s_mul_i32 s{t1}, s{sJ}, 40
    s_add_u32 s{t0}, s{t0}, s{t1}
    s_and_b32 s{t7}, s{t0}, 15
    s_lshr_b32 s{t6}, s{t0}, 4
    s_mul_i32 s{t0}, s{t7}, 20
    s_add_u32 s{t0}, s{t0}, s{t6}
    s_mul_i32 s{sv}, s{t0}, 7168
    s_add_u32 s{sv}, s{sv}, {WS_W1F}
    s_mul_i32 s{sv+3}, s{t0}, 448
    s_add_u32 s{sv+3}, s{sv+3}, {WS_PS}
    s_lshr_b32 s{t1}, s{t6}, 1
    s_mul_i32 s{t1}, s{t1}, 80
    s_and_b32 s{t2}, s{t6}, 1
    s_lshl_b32 s{t2}, s{t2}, 1
    s_add_u32 s{t1}, s{t1}, s{t2}
    s_add_u32 s{t2}, s{t1}, 32
    s_sub_u32 s{t3}, s{t6}, 16
    s_mul_i32 s{t3}, s{t3}, 160
    s_add_u32 s{t4}, s{t3}, 64
    s_add_u32 s{t3}, s{t3}, 144
    s_cmp_ge_u32 s{t6}, 16
    s_cselect_b32 s{t1}, s{t4}, s{t1}
    s_cselect_b32 s{t2}, s{t3}, s{t2}
    s_cselect_b32 s{t3}, 0, 14
    v_mov_b32 v32, s{t3}
    s_mul_i32 s{t1}, s{t1}, 3456
    s_mul_i32 s{t2}, s{t2}, 3456
    s_lshl_b32 s{t6}, s{t0}, 7
    s_add_u32 s{sv+1}, s{t6}, {WS_FW1}
    s_mul_i32 s{t3}, s{t7}, 7
    s_mul_i32 s{t4}, s{t7}, 6
    s_add_u32 s{t4}, s{t4}, 12
    s_cmp_ge_u32 s{t7}, 12
    s_cselect_b32 s{t3}, s{t4}, s{t3}
    s_lshl_b32 s{t3}, s{t3}, 5
    s_add_u32 s{t1}, s{t1}, s{t3}
    s_add_u32 s{t2}, s{t2}, s{t3}
    s_mov_b32 s{t3}, 3456
    s_mov_b32 s{t4}, 14
    s_branch {E}""")
    p.label(Bq)
    p(f"""s_sub_u32 s{t0}, s{t0}, 40
    s_mov_b32 s{sv+3}, s{t0}
    s_min_u32 s{t0}, s{t0}, 53
    s_mul_i32 s{t1}, s{sJ}, 54
    s_add_u32 s{t0}, s{t0}, s{t1}
    s_and_b32 s{t7}, s{t0}, 7
    s_lshr_b32 s{t6}, s{t0}, 3
    s_mul_i32 s{t0}, s{t7}, 54
    s_add_u32 s{t0}, s{t0}, s{t6}
    s_mul_i32 s{sv}, s{t0}, 5120
    s_add_u32 s{sv}, s{sv}, {WS_W2F}
    s_mul_i32 s{t1}, s{t6}, 21846
    s_lshr_b32 s{t1}, s{t1}, 16
    s_mul_i32 s{t2}, s{t1}, 3
    s_sub_u32 s{t2}, s{t6}, s{t2}
    s_mul_i32 s{t3}, s{t1}, 7
    s_mul_i32 s{t4}, s{t1}, 6
    s_add_u32 s{t4}, s{t4}, 12
    s_cmp_ge_u32 s{t1}, 12
    s_cselect_b32 s{t1}, s{t4}, s{t3}
    s_lshl_b32 s{t2}, s{t2}, 1
    s_add_u32 s{t1}, s{t1}, s{t2}
    s_add_u32 s{t2}, s{t1}, 1
    s_sub_u32 s{t3}, s{t6}, 48
    s_mul_i32 s{t3}, s{t3}, 14
    s_add_u32 s{t4}, s{t3}, 6
    s_add_u32 s{t3}, s{t3}, 13
    s_cmp_ge_u32 s{t6}, 48
    s_cselect_b32 s{t1}, s{t4}, s{t1}
    s_cselect_b32 s{t2}, s{t3}, s{t2}
    s_mul_i32 s{t1}, s{t1}, 20480
    s_mul_i32 s{t2}, s{t2}, 20480
    s_lshl_b32 s{t6}, s{t0}, 7
    s_add_u32 s{sv+1}, s{t6}, {WS_FW2}
    s_mul_i32 s{t3}, s{t7}, 160
    s_add_u32 s{t1}, s{t1}, s{t3}
    s_add_u32 s{t2}, s{t2}, s{t3}
    s_mov_b32 s{t3}, 1280
    s_mov_b32 s{t4}, 10
    s_cmp_ge_u32 s{sv+3}, 54
    s_cselect_b32 s{t1}, 0x70000000, s{t1}
    s_cselect_b32 s{t2}, 0x70000000, s{t2}
    s_cselect_b32 s{sv}, 0x70000000, s{sv}
    s_cselect_b32 s{sv+1}, 0x70000000, s{sv+1}""")
    p.label(E)
    x = WX[rep]
    p(f"""s_lshl_b32 s{sv+2}, s{t4}, 4
    v_cvt_f32_u32 v30, v0
    v_cvt_f32_u32 v31, s{t4}
    v_add_f32 v30, 0.5, v30
    v_rcp_f32 v31, v31
    v_mul_f32 v30, v30, v31
    v_cvt_u32_f32 v30, v30
    v_mul_lo_u32 v31, v30, s{t4}
    v_sub_u32 v31, v0, v31
    v_lshlrev_b32 v31, 4, v31
    v_cmp_gt_u32 vcc, 4, v30
    v_lshrrev_b32 v33, 1, v30
    v_mad_u32_u24 v30, v33, v32, v30
    v_mul_lo_u32 v30, v30, s{t3}
    v_add_u32 v{WV[rep]}, v31, v30
    s_mov_b32 s{x[0]}, s{t1}
    s_mov_b32 s{x[1]}, s{t2}
    s_lshl_b32 s{x[2]}, s{t3}, 2
    s_mov_b32 s{x[3]}, vcc_hi
    v_lshrrev_b32 v32, 2, v0
    v_mul_lo_u32 v32, v32, s{sv+2}
    v_and_b32 v33, 3, v0
    v_lshl_add_u32 v32, v33, 3, v32
    s_mul_i32 s{t0}, s{sW}, {WSTG[rep][1]}
    s_add_u32 s{t0}, s{t0}, {WSTG[rep][0]}
    v_add_u32 v{WV[rep]+1}, s{t0}, v32
    s_lshl_b32 s{t1}, s{sv+2}, 4
    v_add_u32 v{WV[rep]+2}, s{t1}, v{WV[rep]+1}""")
WX = [(30, 31, 74, 75), (30, 31, 74, 75)]
PRIV = NW1A // 4 * 1024
WSTG = [(CONV_BASE, 7168), (PRIV - 10240, PRIV)]
WV = [84, 84]
def w_unit_dma(rep, tok):
    sv, x = WU[rep], WX[rep]
    p(f"""s_cmp_eq_u32 s{sv+2}, 224
    s_cselect_b32 s{R_W}, s{sW1}, s{sW2}
    s_cselect_b32 s{R_W+1}, s{sW1+1}, s{sW2+1}
    s_mul_i32 s{t7}, s{sW}, {WSTG[rep][1]}
    s_add_u32 m0, s{t7}, {WSTG[rep][0]}
    s_lshl_b32 s{t7}, s{sv+2}, 2
    s_mov_b32 exec_hi, s{x[3]}""")
    for q in range(8):
        so = x[0] if q < 4 else x[1]
        p(f"buffer_load_dwordx4 v{WV[rep]}, {srd(R_W)}, s{so} offen nt lds", tok_wr=(tok if q == 7 else None))
        if q < 7: p(f"s_add_u32 m0, m0, s{t7}\ns_add_u32 s{so}, s{so}, s{x[2]}")
    p("s_mov_b64 exec, -1")

def row_pattern(dst, tmp):
    p(f"""v_mul_u32_u24 v{tmp}, 205, v0
    v_lshrrev_b32 v{tmp}, 11, v{tmp}
    v_mul_u32_u24 v{dst}, 1120, v{tmp}
    v_lshl_add_u32 v{dst}, v0, 4, v{dst}""")

def dma(e, vaddr, rs, soff, add, m0base, m0add, ehi, elo=None, flags="", tok=None):
    def fn():
        p(f"s_add_u32 m0, s{m0base}, {m0add}\ns_add_u32 s{t2}, s{soff}, {add}\ns_mov_b32 exec_hi, {ehi}")
        if elo is not None: p(f"s_mov_b32 exec_lo, {elo}")
        p(f"buffer_load_dwordx4 v{vaddr}, {srd(rs)}, s{t2} offen{flags} lds", tok_wr=tok)
        p("s_mov_b64 exec, -1")
    e.group(fn, 20)
def bases():
    p(f"""s_and_b32 s{t0}, s{sW}, 1
    s_lshr_b32 s{t1}, s{sW}, 1
    s_lshl_b32 s{sP8}, s{t1}, 3
    s_lshl_b32 s{t2}, s{sA}, 2
    s_add_u32 s{t2}, s{t2}, s{t0}
    s_lshl_b32 s{t3}, s{sM}, 3
    s_add_u32 s{t3}, s{t3}, s{t0}
    s_lshl_b32 s{t4}, s{t1}, 2
    s_add_u32 s{t3}, s{t3}, s{t4}
    s_lshl_b32 s{t4}, s{sB}, 1
    s_add_u32 s{t4}, s{t4}, s{t1}
    s_mul_i32 s{sXR}, s{t3}, 20480
    s_add_u32 s{sXR}, s{sXR}, {WS_XF}
    s_mul_i32 s{t5}, s{t2}, 20480
    s_add_u32 s{t5}, s{t5}, {WS_XF}
    s_lshl_b32 s{sXW}, s{t4}, 10
    s_add_u32 s{sXW}, s{sXW}, s{t5}
    s_lshr_b32 s{sXS}, s{t4}, 2
    s_lshl_b32 s{sXS}, s{sXS}, 10
    s_and_b32 s{t6}, s{t4}, 3
    s_lshl_b32 s{t6}, s{t6}, 2
    s_add_u32 s{sXS}, s{sXS}, s{t6}
    s_add_u32 s{sXS}, s{sXS}, s{t5}
    s_add_u32 s{sXS}, s{sXS}, 16384
    s_mul_i32 s{t5}, s{t3}, 55296
    s_add_u32 s{t5}, s{t5}, {WS_HF}
    s_mul_i32 s{sHW}, s{sN}, 3072
    s_add_u32 s{sHW}, s{sHW}, s{t5}
    s_lshl_b32 s{sHS}, s{sN}, 9
    s_add_u32 s{sHS}, s{sHS}, s{t5}
    s_add_u32 s{sHS}, s{sHS}, 49152
    s_mul_i32 s{sHR}, s{t2}, 55296
    s_mul_i32 s{t5}, s{sW}, 12288
    s_add_u32 s{sHR}, s{sHR}, s{t5}
    s_add_u32 s{sHR}, s{sHR}, {WS_HF}
    s_lshl_b32 s{sFXR}, s{t3}, 6
    s_add_u32 s{sFXR}, s{sFXR}, {WS_FX}
    s_lshl_b32 s{sFXW}, s{t2}, 4
    s_add_u32 s{sFXW}, s{sFXW}, s{t4}
    s_lshl_b32 s{sFXW}, s{sFXW}, 2
    s_add_u32 s{sFXW}, s{sFXW}, {WS_FX}
    s_lshl_b32 s{sFHR}, s{sM}, 8
    s_lshl_b32 s{t5}, s{sW}, 6
    s_add_u32 s{sFHR}, s{sFHR}, s{t5}
    s_and_b32 s{t5}, s{sA}, 1
    s_lshl_b32 s{t5}, s{t5}, 3
    s_add_u32 s{sFHR}, s{sFHR}, s{t5}
    s_add_u32 s{sFHR}, s{sFHR}, {WS_FH}
    s_lshl_b32 s{sFHW}, s{sM}, 4
    s_add_u32 s{sFHW}, s{sFHW}, s{sN}
    s_lshl_b32 s{sFHW}, s{sFHW}, 2
    s_add_u32 s{sFHW}, s{sFHW}, s{sW}
    s_lshl_b32 s{sFHW}, s{sFHW}, 2
    s_add_u32 s{sFHW}, s{sFHW}, {WS_FH}
    s_lshl_b32 s{sSTO}, s{t2}, 12
    s_add_u32 s{sSTO}, s{sSTO}, {WS_ST}
    s_lshl_b32 s{sSTW}, s{t4}, 8
    s_add_u32 s{sSTW}, s{sSTW}, s{sSTO}
    s_lshl_b32 s{sSTR}, s{t3}, 12
    s_add_u32 s{sSTR}, s{sSTR}, {WS_ST}
    s_mul_i32 s{t0}, s{sB}, 54
    s_mul_i32 s{t5}, s{sW}, 12
    s_add_u32 s{t5}, s{t5}, s{t0}
    s_mul_i32 s{sW2B}, s{t5}, 5120
    s_add_u32 s{sW2B}, s{sW2B}, {WS_W2F}
    s_lshl_b32 s{t5}, s{sW}, 1
    s_min_u32 s{t5}, s{t5}, 4
    s_add_u32 s{t5}, s{t5}, s{t0}
    s_add_u32 s{t5}, s{t5}, 48
    s_mul_i32 s{sW2S}, s{t5}, 5120
    s_add_u32 s{sW2S}, s{sW2S}, {WS_W2F}
    s_cmp_eq_u32 s{sW}, 3
    s_cselect_b32 s{sW2S}, 0x70000000, s{sW2S}
    v_add_u32 v{vA1[1]}, 57344, v{vL16}
    v_add_u32 v{vA1[2]}, 114688, v{vL16}""")
CA, CB_, CACC, CAD = 92, 156, 220, 252
vA, vB = 36, 37
def conv_prep():
    p(f"""s_mul_i32 s{t3}, s{sW}, {CONV_PITCH}
    s_add_u32 s{t3}, s{t3}, {CONV_BASE}
    v_mov_b32 v30, 0
    v_mov_b32 v31, 0
    v_add_u32 v32, s{t3}, v{vL8}
    ds_write_b64 v32, v[30:31] offset:{LU_OFF+4096}
    v_add_u32 v32, 1, v{vN}
    v_and_b32 v33, 3, v32
    v_sub_u32 v32, v32, v33
    v_lshlrev_b32 v32, 1, v32
    v_mul_u32_u24 v33, {HC_PITCH}, v33
    v_add3_u32 v{vA}, v32, v33, s{t3}
    v_lshl_add_u32 v{vA}, v{vG}, 4, v{vA}
    v_lshlrev_b32 v32, 5, v{vN}
    v_sub_u32 v32, {LU_OFF + 4064 - 3584}, v32
    v_lshl_add_u32 v32, v{vG}, 4, v32
    v_add_u32 v{vB}, s{t3}, v32
    s_lshl_b32 s{t1}, s{sDVAL}, 16
    s_bitcmp1_b32 s{sW}, 0
    s_cselect_b32 s{t1}, s{sDVAL}, s{t1}
    s_and_b32 s{t1}, s{t1}, 0xffff0000
    s_lshr_b32 s{t2}, s{t1}, 16
    v_lshlrev_b32 v32, 3, v{vG}
    v_add_u32 v32, v32, v{vN}
    v_sub_u32 v32, 15, v32
    v_mov_b32 v33, s{t1}
    v_mov_b32 v34, s{t2}""")
    for r in range(4):
        p(f"""v_cmp_eq_u32 vcc, {2*r}, v32
        v_cndmask_b32 v{CAD+r}, 0, v34, vcc
        v_cmp_eq_u32 vcc, {2*r+1}, v32
        v_cndmask_b32 v{CAD+r}, v{CAD+r}, v33, vcc""")

KN = NAME + "_kernel"
p.raw(f"; @launch grid=(256,1,1) block=(256,1,1) lds={LDS_BYTES}")
p.raw('.amdgcn_target "amdgcn-amd-amdhsa--gfx950"')
p.raw(f".text\n.globl {KN}\n.p2align 8\n.type {KN},@function")
p.label(KN)
p(f"""s_cmp_ge_u32 s2, 256
s_cbranch_scc1 END
s_load_dwordx16 s[4:19], s[0:1], 0
s_load_dwordx8 s[20:27], s[0:1], 64
s_load_dwordx2 s[28:29], s[0:1], 96
s_getpc_b64 {pair(t6)}
s_lshr_b32 s{sSIG}, s2, 3
s_lshl_b32 s{t0}, s{sSIG}, 11
v_lshl_add_u32 v30, v0, 3, s{t0}
global_load_dword v{JUNK}, v30, {pair(t6)}""")
if STAMPS: p(f"v_mov_b32 v{vSTAMP}, 0")
stamp("start")
p(f"""v_lshrrev_b32 v30, 6, v0
v_and_b32 v0, 63, v0
v_readfirstlane_b32 s{sW}, v30
s_and_b32 s{sJ}, s2, 7
v_lshlrev_b32 v{vL8}, 3, v0
v_and_b32 v{vN}, 15, v0
v_lshrrev_b32 v{vG}, 4, v0
v_lshlrev_b32 v{vL16}, 4, v0
s_mov_b32 s{R_W+3}, 0x20000
s_mov_b64 s[{R_W}:{R_W+1}], s[0:1]
s_mov_b32 s{R_W+2}, 0""")
row_pattern(38, 30)
p(f"""s_lshl_b32 s{t4}, s{sJ}, 9
s_add_u32 s{t4}, s{t4}, {WS_FT}
v_add_u32 v35, s{t4}, v{vL8}
s_lshl_b32 s{t5}, s2, 2
s_add_u32 s{t5}, s{t5}, s{sW}
s_lshl_b32 s{t6}, s{t5}, 7
s_add_u32 s{t6}, s{t6}, {WS_FY}
v_writelane_b32 v35, s{t6}, 4
s_add_u32 s{t6}, s{t6}, {WS_FW1 - WS_FY}
v_writelane_b32 v35, s{t6}, 8
s_lshl_b32 s{t5}, s{t5}, 8
v_writelane_b32 v35, s{t5}, 2
s_add_u32 s{t5}, s{t5}, 128
v_writelane_b32 v35, s{t5}, 3
s_add_u32 s{t6}, s{t4}, {WS_FL - WS_FT}
v_writelane_b32 v35, s{t6}, 5
s_add_u32 s{t6}, s{t6}, 128
v_writelane_b32 v35, s{t6}, 6
s_add_u32 s{t6}, s{t6}, 128
v_writelane_b32 v35, s{t6}, 7
s_lshl_b32 s{t0}, s{sSIG}, 2
s_add_u32 s{t0}, s{t0}, s{sW}
s_mul_i32 s{t1}, s{t0}, 20480
s_mul_i32 s{t2}, s{sJ}, 160
s_add_u32 s{t1}, s{t1}, s{t2}
v_add_u32 v38, s{t1}, v38
v_subrev_u32 v39, 5120, v38
s_mov_b32 s{R_K+2}, 2621440
s_mov_b32 s{R_K+3}, 0x20000
s_mov_b32 s{R_V+2}, 2621440
s_mov_b32 s{R_V+3}, 0x20000
s_mul_i32 s{t2}, s{sJ}, 640
v_lshl_add_u32 v30, v{vN}, 3, s{t2}
s_mul_i32 s{sG}, s{sJ}, 20
s_min_u32 s{t1}, s{sSIG}, 19
s_add_u32 s{sG}, s{sG}, s{t1}
s_lshl_b32 s{t3}, s{sG}, 2
s_add_u32 s{t3}, s{t3}, s{sW}
s_lshl_b32 s{t1}, s{t3}, 1
s_and_b32 s{t2}, s{t1}, 0xfffc
s_waitcnt lgkmcnt(0)
s_load_dword s{sE}, {pair(sWS)}, {WS_EPOCH}
s_load_dword s{sDVAL}, {pair(sD)}, s{t2}
global_load_dword v{JUNK}, v35, {pair(sWS)} sc1""")
SKP = 40
for dt in range(5):
    p(f"global_load_dwordx2 {vr(SKP+2*dt,2)}, v30, {pair(sSK)} offset:{128*dt}")
tokW = [p.tok()]
tokT = p.tok()
def kv_dma():
    p(f"""s_mov_b32 s{R_K}, s{sK}
    s_mov_b32 s{R_K+1}, s{sK+1}
    s_mov_b32 s{R_V}, s{sV}
    s_mov_b32 s{R_V+1}, s{sV+1}
    s_mul_i32 m0, s{sW}, {TW_PITCH}
    s_mov_b32 exec_hi, 0x3ffff""")
    for q in range(4):
        p(f"buffer_load_dwordx4 v39, {srd(R_K)}, 0 offen{NT('kv', 1)} lds\ns_add_u32 m0, m0, 800")
        if q < 3: p(f"v_add_u32 v39, 6400, v39")
    for q in range(4):
        if q == 3: p("s_mov_b32 exec_hi, 0\ns_mov_b32 exec_lo, 0x3ff")
        p(f"buffer_load_dwordx4 v38, {srd(R_V)}, 0 offen{NT('kv', 1)} lds", tok_wr=tokT)
        if q < 3: p(f"s_add_u32 m0, m0, 800\nv_add_u32 v38, 6400, v38")
    p("s_mov_b64 exec, -1")
kv_dma()
tokW = [p.tok(), p.tok()]
stamp('iss0')
p(f"""s_mov_b32 s{R_WS+2}, 0x10000000
s_mov_b32 s{R_WS+3}, 0x20000
s_mov_b32 s{R_H+2}, 2621440
s_mov_b32 s{R_H+3}, 0x20000
s_lshl_b32 s{t3}, s{t3}, 12
s_sub_u32 s{t3}, s{t3}, 32
s_cmp_lt_u32 s{sSIG}, 20
s_cselect_b32 s{t3}, s{t3}, 0x70000000
v_add_u32 v{vHOFF}, s{t3}, v{vL16}
s_mov_b32 s{R_H}, s{sH}
s_mov_b32 s{R_H+1}, s{sH+1}""")
def common_setup(tagl):
    p(f"""s_mov_b32 s{R_WS}, s{sWS}
    s_mov_b32 s{R_WS+1}, s{sWS+1}
    s_lshr_b32 s{t0}, s{sSIG}, 3
    s_lshl_b32 s{sA}, s{sJ}, 2
    s_add_u32 s{sA}, s{sA}, s{t0}
    s_and_b32 s{sB}, s{sSIG}, 7
    s_lshr_b32 s{sM}, s{sA}, 1
    s_and_b32 s{sN}, s{sSIG}, 15
    s_getreg_b32 s{sXV}, hwreg(HW_REG_XCC_ID)
    s_lshl_b32 s{sXV}, s{sXV}, 28
    s_lshl_b32 s{t0}, s{sJ}, 5
    s_add_u32 s{t0}, s{t0}, s{sSIG}
    s_lshl_b32 s{t0}, s{t0}, 5
    s_add_u32 s{t0}, s{t0}, {WS_XC}
    v_mov_b32 v30, 0
    s_mul_i32 s{sTAG}, s{sE}, 0x9E3779B1
    s_add_u32 s{sTAG}, s{sTAG}, 0x7F4A7C15
    s_xor_b32 s{sTAG2}, s{sTAG}, 0x5bd1e995
    s_xor_b32 s{sXV}, s{sXV}, s{sTAG}
    v_mov_b32 v31, s{sXV}
    s_cmp_eq_u32 s{sW}, 0
    s_cselect_b32 s{t0}, s{t0}, 0x70000000
    buffer_store_dword v31, v30, {WSR}, s{t0} offen sc1""")
    stamp("xpub")
    bases()
common_setup(0)
SKC = 92
for dt in range(5):
    a_, c = SKP + 2 * dt, SKC + 5 * dt
    p(f"""v_alignbit_b32 v{c}, v{a_}, v{a_}, 16
    v_alignbit_b32 v{c+1}, v{a_+1}, v{a_+1}, 16
    v_and_b32 v{c+2}, 0xffff, v{a_}
    v_and_b32 v{c+4}, 0xffff0000, v{a_+1}
    v_and_b32 v{c+3}, 0xffff0000, v{a_}
    v_and_b32 v{a_+1}, 0xffff, v{a_+1}
    v_or_b32 v{c+3}, v{c+3}, v{a_+1}""")
p(f"s_cmp_ge_u32 s{sSIG}, 20\ns_cbranch_scc1 PREP_W")
conv_prep()
w_unit_params(1)
p.label("PREP_DONE")
def prep_w():
    p.label("PREP_W")
    w_unit_params(0)
    if opt("w0e", 0) == 2: w_unit_dma(0, tokW[0])
    p("s_branch PREP_DONE")
tail_code.append(prep_w)
p(f"""v_lshrrev_b32 v30, 2, v0
v_mul_u32_u24 v30, 160, v30
v_and_b32 v31, 3, v0
v_lshl_add_u32 v30, v31, 3, v30
s_mul_i32 s{t3}, s{sW}, {TW_PITCH}
v_add_u32 v56, s{t3}, v30
s_lshl_b32 s{t2}, s{sW}, 5
s_sub_u32 s{t2}, {UT_BASE + 120}, s{t2}
v_mul_u32_u24 v57, 144, v{vN}
v_lshlrev_b32 v32, 3, v{vG}
v_sub_u32 v57, v57, v32
v_add_u32 v57, s{t2}, v57
s_mul_i32 s{t0}, s{sJ}, {80*4096}
s_lshl_b32 s{t2}, s{sSIG}, 7
s_sub_u32 s{t0}, s{t0}, s{t2}
s_lshl_b32 s{t2}, s{sW}, 15
s_add_u32 s{t0}, s{t0}, s{t2}
s_add_u32 s{t0}, s{t0}, {WS_UR + 3968}
v_lshrrev_b32 v60, 3, v0
v_and_b32 v61, 7, v0
v_lshlrev_b32 v61, 4, v61
v_lshl_add_u32 v62, v60, 12, v61
v_mul_u32_u24 v60, 144, v60
s_mul_i32 s{t2}, s{sW}, 1152
s_add_u32 s{t2}, s{t2}, {UT_BASE}
v_add3_u32 v60, v60, v61, s{t2}
s_lshl_b32 s{t5}, s{sJ}, 5
s_add_u32 s{t5}, s{t5}, s{sSIG}
s_lshl_b32 s{t5}, s{t5}, 2
s_add_u32 s{t5}, s{t5}, s{sW}
s_lshl_b32 s{t5}, s{t5}, 2
s_add_u32 s{t5}, s{t5}, {WS_FT}
s_add_u32 s{t1}, s{t0}, {4*32768}
s_add_u32 s{t2}, s{t0}, {8*32768}
s_cmp_lt_u32 s{sW}, 2
s_cselect_b32 s{t2}, s{t2}, 0x70000000
""")
stamp("issued")
def w_process(rep, st):
    sv = WU[rep]
    SK = p.L("WSKIP")
    tk = p.tok()
    p.need(tokW[rep])
    st(f"W_in{rep}")
    for ft in range(7):
        p(f"ds_read_b64_tr_b16 {vr(200+4*ft,2)}, v{WV[rep]+1} offset:{32*ft}\nds_read_b64_tr_b16 {vr(202+4*ft,2)}, v{WV[rep]+2} offset:{32*ft}")
    for ft in range(7):
        if ft == 5: p(f"s_cmp_lt_u32 s{sv+2}, 224\ns_cbranch_scc1 {SK}")
        if ft == 4: p(f"s_add_u32 s{sv}, s{sv}, 4096")
        p(f"buffer_store_dwordx4 {vr(200+4*ft,4)}, v{vL16}, {WSR}, s{sv} offen offset:{1024*(ft%4)} sc1", tok_wr=tk)
    if rep == 0:
        p(f"v_mov_b32 v64, 0x3f803f80\nv_mov_b32 v65, 0x3f803f80\nv_mov_b32 v66, 0x3f803f80\nv_mov_b32 v67, 0x3f803f80\nv_lshlrev_b32 v68, 4, v{vG}")
        for ft in range(7):
            p(f"{MF} {vr(120+4*ft,4)}, {vr(200+4*ft,4)}, v[64:67], 0")
        p("s_nop 7\ns_mov_b32 exec_lo, 0x00010001\ns_mov_b32 exec_hi, 0x00010001")
        for ft in range(7):
            p(f"buffer_store_dwordx4 {vr(120+4*ft,4)}, v68, {WSR}, s{sv+3} offen offset:{64*ft} sc1", tok_wr=tk)
        p("s_mov_b64 exec, -1")
    p.label(SK)
    return tk
if opt("w0e", 0) == 2:
    p(f"s_cmp_ge_u32 s{sSIG}, 20\ns_cbranch_scc1 KVW\ns_waitcnt vmcnt(1)\ns_branch KVD")
    p.label("KVW")
    p("s_waitcnt vmcnt(9)")
    p.label("KVD")
else:
    p.need(tokT)
stamp("kv_in")
KB = [148 - 28 + 6 * dt + 0 for dt in range(5)]
KB = [120 + 6 * dt for dt in range(5)]
for dt in range(5):
    b = KB[dt]
    p(f"ds_read_b64_tr_b16 {vr(b,2)}, v56 offset:{32*dt}\nds_read_b64_tr_b16 {vr(b+2,2)}, v56 offset:{32*dt+640}\nds_read_b64_tr_b16 {vr(b+4,2)}, v56 offset:{32*dt+3200}")
W0E = opt("w0e", 0)
p(f"s_cmp_ge_u32 s{sSIG}, 20\ns_cbranch_scc1 ROLE_W")
h_loads()
p.label("ROLE_DONE")
def role_w():
    p.label("ROLE_W")
    if W0E == 1: w_unit_dma(0, tokW[0])
    p("s_branch ROLE_DONE")
tail_code.append(role_w)
tokU = p.tok()
for dt in range(5):
    b, c, o, vv, st = KB[dt], SKC + 5 * dt, 150, 154, 158 + 2 * (dt & 1)
    p(f"""v_dot2_f32_bf16 v{o}, v{b}, v{c+4}, 0
    v_dot2_f32_bf16 v{o+1}, v{b+1}, v{c+1}, 0
    v_dot2_f32_bf16 v{o+2}, v{b+1}, v{c+4}, 0
    v_dot2_f32_bf16 v{o+3}, v{b+2}, v{c+1}, 0
    v_lshlrev_b32 v{vv}, 16, v{b+4}
    v_and_b32 v{vv+1}, 0xffff0000, v{b+4}
    v_dot2_f32_bf16 v{o}, v{b+1}, v{c+3}, v{o}
    v_dot2_f32_bf16 v{o+1}, v{b+2}, v{c}, v{o+1}
    v_dot2_f32_bf16 v{o+2}, v{b+2}, v{c+3}, v{o+2}
    v_dot2_f32_bf16 v{o+3}, v{b+3}, v{c}, v{o+3}
    v_dot2_f32_bf16 v{o}, v{b+2}, v{c+2}, v{o}
    v_dot2_f32_bf16 v{o+2}, v{b+3}, v{c+2}, v{o+2}
    v_lshlrev_b32 v{vv+2}, 16, v{b+5}
    v_and_b32 v{vv+3}, 0xffff0000, v{b+5}
    s_nop 0
    v_pk_mul_f32 {vr(o,2)}, {vr(o,2)}, {vr(vv,2)}
    v_pk_mul_f32 {vr(o+2,2)}, {vr(o+2,2)}, {vr(vv+2,2)}
    v_cvt_pk_bf16_f32 v{st+1}, v{o+1}, v{o}
    v_cvt_pk_bf16_f32 v{st}, v{o+3}, v{o+2}
    ds_write_b64 v57, {vr(st,2)} offset:{2304*dt}""")
stamp("T_calc")
p("s_waitcnt lgkmcnt(0)\ns_barrier")
for q in range(3):
    p(f"ds_read_b128 {vr(92+4*q,4)}, v60 offset:{4608*q}")
for q in range(3):
    p(f"buffer_store_dwordx4 {vr(92+4*q,4)}, v62, {WSR}, s{(t0, t1, t2)[q]} offen sc1", tok_wr=tokU)
stamp("u_st")
p(f"""s_mul_i32 s{t3}, s{sW}, {CONV_PITCH}
s_add_u32 s{t3}, s{t3}, {CONV_BASE}
v_add_u32 v33, s{t3}, v{vL16}""")
p(f"s_cmp_ge_u32 s{sSIG}, 20\ns_cbranch_scc1 HB1")
h_build(opt("hb1", 2))
p.label("HB1")
p(f"""v_mov_b32 v30, s{sTAG}
v_mov_b32 v31, 0
s_waitcnt vmcnt(0)
buffer_store_dword v30, v31, {WSR}, s{t5} offen""")
stamp("T_pub")
p(f"""s_lshl_b32 s{t4}, s{sJ}, 10
s_add_u32 s{t4}, s{t4}, {WS_XC}
v_and_b32 v63, 31, v0
v_lshlrev_b32 v63, 5, v63
buffer_load_dword v62, v63, {WSR}, s{t4} offen sc1""")
p(f"s_cmp_ge_u32 s{sSIG}, 20\ns_cbranch_scc1 MID_W")
h_build(None)
def mid_w():
    p.label("MID_W")
    if not W0E: w_unit_dma(0, tokW[0])
    tk = w_process(0, stamp)
    p(f"v_mov_b32 v30, s{sTAG}\nv_mov_b32 v31, 0")
    p.need(tk)
    p(f"buffer_store_dword v30, v31, {WSR}, s{WU[0]+1} offen sc1")
    stamp("W_done")
    p("s_branch CHECK")
tail_code.append(mid_w)
p.label("CHECK")
p(f"s_mov_b32 s{sSPIN}, 0\ns_branch VER2")
p.label("VER")
p(f"""s_sleep 1
s_add_u32 s{sSPIN}, s{sSPIN}, 1
s_cmp_gt_u32 s{sSPIN}, {SPIN}
s_cbranch_scc1 SLOW
buffer_load_dword v62, v63, {WSR}, s{t4} offen sc1""")
p.label("VER2")
p(f"""v_xor_b32 v62, s{sXV}, v62
v_cmp_ne_u32 vcc, 0, v62
s_cbranch_vccz {'SLOW' if FORCE_SLOW else 'FAST'}
v_and_b32 v62, 0x0fffffff, v62
v_cmp_ne_u32 vcc, 0, v62
s_cbranch_vccnz VER
s_branch SLOW""")

def body(slow):
    PF = "S" if slow else "F"
    sc = " sc1" if slow else ""
    lab = lambda n: f"{PF}_{n}"
    st = (lambda n, e=None: None) if slow else stamp
    LX = lambda stride, layer: stride * layer if slow else 0
    TG = lambda layer: sTAG2 if layer else sTAG
    HPW = opt("hpw", 0)
    WT = lambda layer, s=0: " sc1" if (slow or (layer == 0 and not HPW) or opt("wt1", 1) in (1, 3 - s)) else ""
    p.label("SLOW" if slow else "FAST")
    st("verified")
    if slow:
        p(f"v_mov_b32 v30, s{sTAG}\nv_mov_b32 v31, 0\ns_add_u32 s{t0}, s{t5}, {WS_FTR - WS_FT}\nbuffer_store_dword v30, v31, {WSR}, s{t0} offen sc1")
    def xy_offset(dst):
        p(f"""s_and_b32 s{t1}, s{sW}, 1
        s_lshl_b32 s{t0}, s{sA}, 2
        s_add_u32 s{t0}, s{t0}, s{t1}
        s_mul_i32 s{t0}, s{t0}, 20480
        s_mul_i32 s{t1}, s{sB}, 160
        s_add_u32 s{t0}, s{t0}, s{t1}
        s_lshr_b32 s{t1}, s{sW}, 1
        s_lshl_b32 s{t1}, s{t1}, 2
        s_add_u32 s{t0}, s{t0}, s{t1}
        v_mul_u32_u24 v{dst}, 1280, v{vN}
        v_lshl_add_u32 v{dst}, v{vG}, 3, v{dst}
        v_add_u32 v{dst}, s{t0}, v{dst}
        v_add_u32 v{dst+1}, 40960, v{dst}""")
    def x0_dma(e, base, gap=0, pitch=PRIV):
        e.group(lambda: (row_pattern(83, 30), p(f"""s_lshl_b32 s{t0}, s{sA}, 2
        s_and_b32 s{t1}, s{sW}, 1
        s_add_u32 s{t0}, s{t0}, s{t1}
        s_mul_i32 s{t0}, s{t0}, 20480
        s_mul_i32 s{t1}, s{sB}, 160
        s_add_u32 s{t6}, s{t0}, s{t1}
        s_mov_b32 s{R_H}, s{sQ}
        s_mov_b32 s{R_H+1}, s{sQ+1}
        s_mul_i32 s{t7}, s{sW}, {pitch}""")), 60)
        tk = p.tok()
        for q in range(8):
            s_, r = q >> 2, q & 3
            dma(e, 83, R_H, t6, 40960 * s_ + 6400 * r, t7, base + 2560 * s_ + 800 * r, 0x3ffff if r < 3 else 0, None if r < 3 else 0x3ff, " nt", tk)
            if gap: e.skip(gap)
        return tk
    def x0_read(e, tk, base, pitch=PRIV):
        e(f"""s_mul_i32 s{t0}, s{sW}, {pitch}
        s_lshr_b32 s{t1}, s{sP8}, 1
        s_add_u32 s{t0}, s{t0}, s{t1}
        s_add_u32 s{t0}, s{t0}, {base}
        v_mul_u32_u24 v30, 160, v{vN}
        v_lshl_add_u32 v30, v{vG}, 3, v30
        v_add_u32 v30, s{t0}, v30""")
        e.need(tk)
        for s in range(2):
            for dt in range(5): e(f"ds_read_b32 v{XP[s]+dt}, v30 offset:{2560*s + 32*dt}")
        e.skip(6)
    def flag_prewarm(e):
        if not slow:
            e(f"""v_and_b32 v30, 1, v0
            v_lshlrev_b32 v31, 7, v30
            v_add_u32 v31, s{sFXW}, v31
            v_lshlrev_b32 v30, 12, v30
            v_add_u32 v30, s{sFHW}, v30
            v_cmp_gt_u32 vcc, 2, v0
            v_cndmask_b32 v30, v30, v31, vcc
            v_and_b32 v31, 7, v0
            v_lshlrev_b32 v31, 7, v31
            v_bfe_u32 v32, v0, 3, 1
            v_mul_u32_u24 v32, 40960, v32
            v_add3_u32 v31, v31, v32, s{sXS}
            v_cmp_gt_u32 vcc, 32, v0
            v_cndmask_b32 v30, v31, v30, vcc
            s_sub_u32 s{t0}, s{sXW}, s{sXS}
            v_add_u32 v31, s{t0}, v31
            v_cmp_gt_u32 vcc, 48, v0
            v_cndmask_b32 v30, v31, v30, vcc
            v_and_b32 v31, 1, v0
            v_lshlrev_b32 v31, 7, v31
            v_bfe_u32 v32, v0, 1, 1
            v_lshl_add_u32 v31, v32, 13, v31
            s_add_u32 s{t0}, s{sSTW}, {ST_K}
            v_add_u32 v31, s{t0}, v31
            v_bfe_u32 v32, v0, 2, 4
            v_cmp_eq_u32 vcc, 1, v32
            v_cndmask_b32 v30, v30, v31, vcc
            v_subrev_u32 v31, {ST_K}, v31
            v_cmp_eq_u32 vcc, 2, v32
            v_cndmask_b32 v30, v30, v31, vcc
            buffer_load_dword v{JUNK}, v30, {WSR}, 0 offen sc1""")
    X32, G0 = [38, 48], [58, 220 - 220 + 58]
    G0 = [58, 74]
    def x0_stats(e, unp=True):
        for s in range(2):
            if unp: unpack(e, X32[s], XP[s], 5)
            e(f"s_add_u32 s{t0}, s{sSTW}, {8192*s}")
            stats_publish(e, X32[s], G0[0], t0, 0, slow)
    def x0_norm(e):
        for s in range(2):
            late_check(e, stats_loads(G0[s], (t5, t4)[s]), stats_tags(G0[s]), 32, False)
            stats_finish(e, G0[s], 30)
            e(f"v_mul_f32 v32, -v30, v31")
            for i in range(10): e(f"v_fma_f32 v{G0[s]+i}, v{X32[s]+i}, v31, v32")
    XN0 = G0
    def w_flag_addr(e, dst):
        e.group(lambda: p(f"""v_and_b32 v33, 31, v0
        s_mul_i32 s{t1}, s{sW}, 12
        v_add_u32 v{dst}, s{t1}, v33
        s_lshl_b32 s{t2}, s{sW}, 1
        s_add_u32 s{t2}, s{t2}, 36
        v_add_u32 v{dst+1}, s{t2}, v33
        v_cmp_gt_u32 vcc, 12, v33
        v_cndmask_b32 v{dst}, v{dst+1}, v{dst}, vcc
        s_add_u32 s{t2}, s{t2}, 13
        s_min_u32 s{t2}, s{t2}, 53
        v_min_u32 v{dst}, s{t2}, v{dst}
        s_mul_i32 s{t1}, s{sB}, {54*128}
        s_add_u32 s{t1}, s{t1}, {WS_FW2}
        v_lshl_add_u32 v{dst}, v{dst}, 7, s{t1}
        v_min_u32 v{dst+1}, 19, v0
        s_mul_i32 s{t1}, s{sN}, {20*128}
        s_add_u32 s{t1}, s{t1}, {WS_FW1}
        v_lshl_add_u32 v{dst+1}, v{dst+1}, 7, s{t1}
        s_lshr_b32 s{t1}, s{sP8}, 2
        v_xor_b32 v{vW2}, s{t1}, v0
        v_lshlrev_b32 v{vW2}, 4, v{vW2}
        s_mul_i32 s{sGOTA}, s{sN}, 143360
        s_add_u32 s{sGOTA}, s{sGOTA}, {WS_W1F}"""), 100)
    def w1_one(e, base_reg, idx):
        if opt("now1", 0): return
        def fn():
            p(f"s_add_u32 m0, s{base_reg}, {1024*idx}\ns_add_u32 s{t2}, s{sGOTA}, m0")
            return p(f"buffer_load_dwordx4 v{vL16}, {WSR}, s{t2} offen{' sc1' if opt('w1sc', 1) else ''} lds")
        e.group(fn, 12)
    vW2 = 35
    NW2E = 0
    def w2_loads(e, q0, q1, vaddr):
        if opt("now2", 0): return
        for q in range(q0, q1):
            sb, qq = (sW2B, q) if q < 60 else (sW2S, q - 60)
            if qq % 4 == 0 and qq > 0: e(f"s_add_u32 s{sb}, s{sb}, 4096")
            e(f"buffer_load_dwordx4 {w2reg(q)}, v{vaddr}, {WSR}, s{sb} offen offset:{1024*(qq%4)}{' sc1' if opt('w2sc', 1) else ''}")
    p(f"s_cmp_ge_u32 s{sSIG}, 20\ns_cbranch_scc1 {lab('W_PHASE')}")
    p(f"""s_lshl_b32 s{t0}, s{sJ}, 9
    s_add_u32 s{t0}, s{t0}, {WS_FTR if slow else WS_FT}""")
    for t in range(8):
        p(f"ds_read_b64 {vr(CA+4*t,2)}, v{vA} offset:{512*t}\nds_read_b64 {vr(CA+4*t+2,2)}, v{vA} offset:{512*t+8}")
    w_flag_addr(D, 90)
    spin_wait(f"buffer_load_dwordx2 v[30:31], v{vL8}, {WSR}, s{t0} offen sc1", [30, 31], False, nap=(1 if not slow else 4))
    st("T_seen")
    tokUin = p.tok()
    p(f"""s_lshl_b32 s{t0}, s{sG}, 2
    s_add_u32 s{t0}, s{t0}, s{sW}
    s_lshl_b32 s{t0}, s{t0}, 12
    s_add_u32 s{t0}, s{t0}, {WS_UR}
    s_add_u32 m0, s{t3}, {LU_OFF}""")
    for q in range(4):
        p(f"buffer_load_dwordx4 v{vL16}, {WSR}, s{t0} offen offset:{1024*q} sc1 lds", tok_wr=(tokUin if q == 3 else None))
    p.need(tokUin)
    st("u_in")
    for m in range(8):
        p(f"ds_read_b128 {vr(CB_+4*m,4)}, v{vB} offset:{3584-512*m}")
    beats = [[f"{MF} {vr(CACC+4*j,4)}, {vr(CAD,4)}, {vr(CB_+4*j,4)}, 0"] for j in range(8)]
    for p0 in range(8):
        buf = p0 & 1
        reads = []
        if p0 < 7:
            for t in range(8):
                bb, ba = CB_ + 32 * (1 - buf) + 4 * t, CA + 32 * (1 - buf) + 4 * t
                reads += [f"ds_read_b128 {vr(bb,4)}, v{vB} offset:{3584-512*t+64*(p0+1)}",
                          f"ds_read_b64 {vr(ba,2)}, v{vA} offset:{64*(p0+1)+512*t}",
                          f"ds_read_b64 {vr(ba+2,2)}, v{vA} offset:{64*(p0+1)+512*t+8}"]
        prs = sorted([(t, m) for t in range(8) for m in range(8) if t + m <= 7], key=lambda x: (max(x), x[0] + x[1]))
        for i, (t, m) in enumerate(prs):
            b = [f"{MF} {vr(CACC+4*(t+m),4)}, {vr(CA+32*buf+4*t,4)}, {vr(CB_+32*buf+4*m,4)}, {vr(CACC+4*(t+m),4)}"]
            if i >= 8 and reads: b.append(reads.pop(0))
            beats.append(b)
    F = Fill()
    gap = opt("cgap", 1)
    wfl1 = f"buffer_load_dword v34, v91, {WSR}, 0 offen sc1"
    wfl2 = f"buffer_load_dword v34, v90, {WSR}, 0 offen sc1"
    na = NW1A // 4
    ar = lambda b, n: f"a[{b}:{b+n-1}]"
    tkw = p.tok()
    F(f"s_mov_b32 s{R_W}, s{sW2}\ns_mov_b32 s{R_W+1}, s{sW2+1}\ns_mul_i32 s{t5}, s{sW}, {PRIV}")
    for q in range(8):
        dma(F, WV[1], R_W, WX[1][q >> 2], 5120 * (q & 3), t5, PRIV - 10240 + 640 * q, 0xff, None, " nt", tkw)
        F.skip(1)
    tkx = x0_dma(F, PRIV - 5120, 1)
    flag_prewarm(F)
    F.skip(opt("wf_at", 150))
    F(wfl1)
    YT = 156
    F3 = Fill()
    F3(f"""s_mul_i32 s{t3}, s{sW}, {CONV_PITCH}
    s_add_u32 s{t3}, s{t3}, {CONV_BASE}
    v_lshlrev_b32 v80, 5, v{vN}
    v_lshl_add_u32 v80, v{vG}, 3, v80
    v_add_u32 v80, s{t3}, v80
    v_bfe_u32 v81, v0, 2, 2
    v_mul_u32_u24 v81, {CONV_PITCH}, v81
    v_and_b32 v82, 3, v0
    v_lshl_add_u32 v81, v82, 3, v81
    v_lshl_add_u32 v81, v{vG}, 5, v81
    s_lshl_b32 s{t0}, s{sW}, 10
    s_add_u32 s{t0}, s{t0}, {CONV_BASE}
    v_add_u32 v81, s{t0}, v81
    v_mul_u32_u24 v82, 20480, v{vG}
    v_lshl_add_u32 v82, v{vN}, 3, v82
    s_mul_i32 s{t4}, s{sW}, {32*20480}
    s_lshl_b32 s{t1}, s{sG}, 7
    s_add_u32 s{t4}, s{t4}, s{t1}
    s_add_u32 s{t4}, s{t4}, {WS_YG}
    s_lshl_b32 s{t0}, s{sG}, 9
    s_lshl_b32 s{t1}, s{sW}, 7
    s_add_u32 s{t0}, s{t0}, s{t1}
    s_add_u32 s{t0}, s{t0}, {WS_FY}
    v_mov_b32 v83, s{t0}
    s_lshl_b32 s{t0}, s{sJ}, 5
    s_add_u32 s{t0}, s{t0}, s{sSIG}
    s_lshl_b32 s{t0}, s{t0}, 4
    s_lshr_b32 s{t1}, s{t1}, 5
    s_add_u32 s{t0}, s{t0}, s{t1}
    s_add_u32 s{t0}, s{t0}, {WS_FL}
    v_mov_b32 v78, s{t0}
    v_mov_b32 v79, s{sTAG}""")
    merge(beats[:275], F)
    st("conv_cut")
    merge(beats[275:], F3)
    st("conv_done")
    for j in range(8):
        p(f"v_cvt_pk_bf16_f32 v{92+2*j}, v{CACC+4*j}, v{CACC+4*j+1}\nv_cvt_pk_bf16_f32 v{93+2*j}, v{CACC+4*j+2}, v{CACC+4*j+3}")
        p(f"ds_write_b64 v80, {vr(92+2*j,2)} offset:{512*j}")
    p("s_waitcnt lgkmcnt(0)\ns_barrier")
    for q in range(8):
        p(f"ds_read_b64_tr_b16 {vr(YT+2*q,2)}, v81 offset:{128*q}")
    for q in range(8):
        p(f"buffer_store_dwordx2 {vr(YT+2*q,2)}, v82, {WSR}, s{t4} offen sc1")
        if q < 7: p(f"s_add_u32 s{t4}, s{t4}, 81920")
    p(f"buffer_store_dword v79, v78, {WSR}, 0 offen{sc}")
    st("y_iss")
    for ft in range(5):
        p(f"ds_read_b64_tr_b16 {vr(108+4*ft,2)}, v{WV[1]+1} offset:{32*ft}\nds_read_b64_tr_b16 {vr(110+4*ft,2)}, v{WV[1]+2} offset:{32*ft}")
    x0_read(D, tkx, PRIV - 5120)
    for s_ in range(2): unpack(D, X32[s_], XP[s_], 5)
    p(f"s_waitcnt vmcnt(0)\nbuffer_store_dword v79, v83, {WSR}, 0 offen sc1")
    st("y_st")
    x0_stats(D, False)
    tkw2 = p.tok()
    for ft in range(5):
        if ft == 4: p(f"s_add_u32 s{WU[1]}, s{WU[1]}, 4096")
        p(f"buffer_store_dwordx4 {vr(108+4*ft,4)}, v{vL16}, {WSR}, s{WU[1]} offen offset:{1024*(ft%4)} sc1", tok_wr=tkw2)
    NAC, NAI = opt("nac", 0), opt("nai", 19)
    late_check(D, wfl1, [34], 32, False)
    st("w_late")
    p(f"s_mul_i32 s{t5}, s{sW}, {PRIV}")
    for q in range(NAC): w1_one(D, t5, q)
    publish(D, tkw2, WU[1] + 1, 0, 30, True, wb=False)
    p(f"s_branch {lab('W1DONE')}")

    p.label(lab("W_PHASE"))
    w_flag_addr(D, 90)
    tkx = x0_dma(D, RED_BASE, pitch=5120)
    flag_prewarm(D)
    p(f"s_cmp_lg_u32 s{sW}, 0\ns_cbranch_scc1 {lab('NOWP')}")
    spin_wait(wfl1, [34], False, nap=opt("wnap", 6))
    p.label(lab("NOWP"))
    p("s_barrier")
    st("w_flags")
    nb_ = (140 - NW1A) // 4
    def w1_range(q0, q1):
        if q0 < na: p(f"s_mul_i32 s{t5}, s{sW}, {PRIV}")
        for q in range(q0, q1):
            if q >= na and (q == na or q == q0): p(f"s_mul_i32 s{t5}, s{sW}, {nb_*1024}\ns_add_u32 s{t5}, s{t5}, {NW1A*1024}")
            w1_one(D, t5, q if q < na else q - na)
    w1_range(0, 8)
    x0_read(D, tkx, RED_BASE, pitch=5120)
    x0_stats(D)
    w1_range(8, NAI)
    p(f"""s_sub_u32 s{t0}, s{sSIG}, 20
    s_lshl_b32 s{t0}, s{t0}, 2
    s_add_u32 s{t0}, s{t0}, s{sW}
    s_mul_i32 s{t0}, s{t0}, {2*8192}
    s_add_u32 s{t0}, s{t0}, {WS_W1F}
    s_cmp_lt_u32 s{t0}, {WS_W1F + 4*143360}
    s_cselect_b32 s{t0}, s{t0}, 0x70000000
    s_add_u32 s{t1}, s{t0}, 8192
    v_lshlrev_b32 v30, 7, v0
    v_min_u32 v31, 79, v0
    v_lshlrev_b32 v31, 7, v31
    s_mov_b32 s{t2}, {WS_FW1}""")
    if not slow:
        p("s_waitcnt vmcnt(8)")
        p(f"buffer_load_dword v{JUNK}, v30, {WSR}, s{t0} offen sc1\nbuffer_load_dword v{JUNK}, v30, {WSR}, s{t1} offen sc1")
    p(f"""s_cmp_lg_u32 s{sSIG}, 31
    s_cbranch_scc1 {lab('NOCB')}
    s_cmp_gt_u32 s{sW}, 1
    s_cbranch_scc1 {lab('NOCB')}
    s_lshl_b32 s{t5}, s{sJ}, 1
    s_add_u32 s{t5}, s{t5}, s{sW}
    v_min_u32 v30, 19, v0
    s_mul_i32 s{t1}, s{t5}, {20*128}
    v_lshl_add_u32 v30, v30, 7, s{t1}
    s_mov_b32 s{t0}, {WS_FW1}
    s_mul_i32 s{t2}, s{t5}, 7
    s_mul_i32 s{t3}, s{t5}, 6
    s_add_u32 s{t3}, s{t3}, 12
    s_cmp_ge_u32 s{t5}, 12
    s_cselect_b32 s{t2}, s{t3}, s{t2}
    s_lshl_b32 s{t2}, s{t2}, 5
    v_min_u32 v32, 27, v0
    v_lshl_add_u32 v33, v32, 3, s{t2}
    v_min_u32 v33, 3448, v33
    global_load_dwordx2 v[92:93], v33, {pair(sB1)}
    v_lshlrev_b32 v32, 4, v32""")
    spin_wait(f"buffer_load_dword v31, v30, {WSR}, s{t0} offen sc1", [31], False, nap=6)
    p(f"s_mul_i32 s{t0}, s{t5}, 8960\ns_add_u32 s{t0}, s{t0}, {WS_PS}")
    for ks in range(20):
        if ks % 9 == 0 and ks: p(f"s_add_u32 s{t0}, s{t0}, {448*9}")
        p(f"buffer_load_dwordx4 {vr(100+4*ks,4)}, v32, {WSR}, s{t0} offen offset:{448*(ks%9)} sc1")
    for ks in range(1, 20):
        p(f"v_pk_add_f32 v[100:101], v[100:101], {vr(100+4*ks,2)}\nv_pk_add_f32 v[102:103], v[102:103], {vr(102+4*ks,2)}")
    for i in range(4):
        c, o = 100 + i, 104 + 2 * i
        p(f"""v_cvt_pk_bf16_f32 v{o}, v{c}, v{c}
        v_and_b32 v112, 0xffff0000, v{o}
        v_sub_f32 v{c}, v{c}, v112
        v_cvt_pk_bf16_f32 v113, v{c}, v{c}
        v_and_b32 v112, 0xffff0000, v113
        v_sub_f32 v{c}, v{c}, v112
        v_cvt_pk_bf16_f32 v113, v{c}, v{c}
        v_and_b32 v{o}, 0xffff, v{o}
        v_or_b32 v{o}, v{o}, v112
        v_and_b32 v113, 0xffff, v113
        {'v_lshlrev_b32 v112, 16, v%d' % (92 + i // 2) if i % 2 == 0 else 'v_and_b32 v112, 0xffff0000, v%d' % (92 + i // 2)}
        v_or_b32 v{o+1}, v113, v112""")
    p(f"""s_mul_i32 s{t0}, s{t5}, 896
    s_add_u32 s{t0}, s{t0}, {WS_CB}
    v_lshlrev_b32 v32, 1, v32
    buffer_store_dwordx4 v[104:107], v32, {WSR}, s{t0} offen sc1
    buffer_store_dwordx4 v[108:111], v32, {WSR}, s{t0} offen offset:16 sc1
    s_lshl_b32 s{t0}, s{t5}, 7
    s_add_u32 s{t0}, s{t0}, {WS_FC}
    v_mov_b32 v30, s{sTAG}
    v_mov_b32 v31, 0
    s_waitcnt vmcnt(0)
    buffer_store_dword v30, v31, {WSR}, s{t0} offen sc1""")
    p.label(lab("NOCB"))
    p(f"""s_lshl_b32 s{t0}, s{sJ}, 9
    s_add_u32 s{t0}, s{t0}, {WS_FL}
    v_lshlrev_b32 v31, 2, v0""")
    spin_wait(f"buffer_load_dword v30, v31, {WSR}, s{t0} offen sc1", [30], False, nap=4)
    st("hint")
    p.label(lab("W1DONE"))
    st("w1_issued")
    if not slow:
        pass
    p(f"s_mov_b32 s{t5}, s{sSTO}\ns_add_u32 s{t4}, s{sSTO}, 8192")
    p(stats_loads(G0[0], t5)); p(stats_loads(G0[1], t4))
    x0_norm(D)
    st("xn")

    def gate(e, s, layer, X2, G, YF, XN=None, defer=False, pk=False, later=None):
        if XN is None:
            stats_finish(e, G, 30)
            e(f"v_mul_f32 v32, -v30, v31")
        unpack(e, YF, YP[s], 5)
        if XN is None:
            XN = G
            if pk:
                for i in range(0, 10, 2): e(f"v_pk_fma_f32 {vr(G+i,2)}, {vr(X2+i,2)}, v[30:31], v[32:33] op_sel:[0,1,0] op_sel_hi:[1,1,0]")
            else:
                for i in range(10): e(f"v_fma_f32 v{G+i}, v{X2+i}, v31, v32")
        if pk:
            for i in range(0, 10, 2): e(f"v_pk_fma_f32 {vr(X2+i,2)}, {vr(XN+i,2)}, {vr(YF+i,2)}, {vr(X2+i,2)}")
        else:
            for i in range(10): e(f"v_fmac_f32 v{X2+i}, v{XN+i}, v{YF+i}")
        pack(e, XP[s], X2, 5)
        off = 40960 * s + LX(XF_LAYER, layer)
        wt = sc
        e(f"s_add_u32 s{t0}, s{sXW}, {off}\ns_add_u32 s{t1}, s{sXS}, {off}")
        e(f"buffer_store_dwordx4 {vr(XP[s],4)}, v{vL16}, {WSR}, s{t0} offen{wt}\nbuffer_store_dword v{XP[s]+4}, v{vL16}, {WSR}, s{t1} offen{sc}")
        tok = p.tok()
        if isinstance(e, Fill):
            c, fn = e.items[-1]
            e.items[-1] = (c, lambda fn=fn: setattr(fn(), "token_wr", tok))
        else:
            p.items[-1].token_wr = tok
        def stats():
            e2 = later or e
            e2(f"s_add_u32 s{t1}, s{sSTW}, {ST_K + LX(2*ST_K, layer) + 8192*s}")
            stats_publish(e2, X2, G, t1, 0, slow, TG(layer))
        if defer: return tok, stats
        n0 = len(e.items) if isinstance(e, Fill) else None
        stats()
        last = e.items.pop()
        e.skip(opt("gs", 0))
        e(f"s_add_u32 s{t0}, s{sFXW}, {LX(8192, layer) + 128*s}")
        publish(e, tok, t0, 0, 30, slow, TG(layer), wb=False)
        e.items.append(last)

    AR, BR, NA, NB, AG = 160, 208, 12, 6, 4
    def a1_read(fi):
        fi0 = fi % 140
        return f"ds_read_b128 {vr(AR+4*(fi%NA),4)}, v{vA1[fi0//56]} offset:{1024*(fi0%56)}"
    def a_wait(fi):
        last = AR + 4 * ((fi + AG - 1) % NA)
        p.need(("v", last))
    def b_load(ks):
        l = []
        if ks % 4 == 0 and ks: l.append(f"s_add_u32 s{sB0}, s{sB0}, 4096")
        l.append(f"buffer_load_dwordx4 {vr(BR+4*(ks%NB),4)}, v{vL16}, {WSR}, s{sB0} offen offset:{1024*(ks%4)} sc1")
        return l
    def fx_load(s, layer, dst):
        return f"buffer_load_dword v{dst}, v{dst+1}, {WSR}, s{t2} offen sc1"
    def fx_prep(e, s, layer, dst):
        e(f"v_lshlrev_b32 v{dst+1}, 2, v{vN}\ns_add_u32 s{t2}, s{sFXR}, {LX(8192, layer) + 128*s}")
    def b_start(s, layer):
        p(f"s_add_u32 s{sB0}, s{sXR}, {40960*s + LX(XF_LAYER, layer)}")
        for ks in range(NB):
            for l in b_load(ks): p(l)
    def a_seq_read(seq, i, NA):
        fi0 = seq[i]
        return f"ds_read_b128 {vr(AR+4*(i%NA),4)}, v{vA1[fi0//56]} offset:{1024*(fi0%56)}"
    def a_seq_wait(i, NA):
        p.need(("v", AR + 4 * (i % NA)))
    def row_finish(e, s, G):
        stats_finish(e, G, G + 4, rcp=False)
        m, d, b = G + 4, G + 5, SCB[s]
        e(f"""v_rcp_f32 v{G+6}, v{d}
        v_xor_b32 v{m}, 0x80000000, v{m}
        v_lshrrev_b32 v{G+7}, 16, v{m}
        v_or_b32 v{m}, v{m}, v{G+7}
        v_or_b32 v{d}, v{d}, v{G+7}
        v_mul_f32 v{SCR+s}, 0x3fb8aa3b, v{G+6}
        v_cndmask_b32 v{b}, 0, v{m}, s[{sG0}:{sG0+1}]
        v_cndmask_b32 v{b+1}, 0, v{d}, s[{sG0}:{sG0+1}]""")
    def row_scalars(e, s, layer, G):
        e(f"s_add_u32 s{t5}, s{sSTR}, {ST_K + LX(2*ST_K, layer) + 8192*s}")
        e(stats_loads(G, t5))
        e.skip(30)
        late_check(e, stats_loads(G, t5), stats_tags(G), 32, False, TG(layer))
        row_finish(e, s, G)
    def fix_beats(s, ACC):
        return [[f"v_mfma_f32_16x16x16_bf16 {vr(ACC+4*ft,4)}, {vr(AP+2*ft,2)}, {vr(SCB[s],2)}, {vr(ACC+4*ft,4)}"] for ft in range(7)]
    def act(s, layer, ACC, T, O, mid=None, extra=None, extra_from=0, every=5, K=(32, 34), extra0=None):
        LN2, M2 = K
        off = 110592 * s + LX(HF_LAYER, layer)
        p(f"v_mov_b32 v{LN2}, 0x3f317218\nv_mov_b32 v{M2}, 0xbfb17218\ns_add_u32 s{t0}, s{sHW}, {off}\ns_add_u32 s{t1}, s{sHS}, {off}")
        tok = p.tok()
        extra = list(extra or [])
        cnt = [0]
        def q(l, on):
            p(l)
            cnt[0] += 1
            if on and extra and cnt[0] % every == 0:
                for x in extra.pop(0): p(x)
            elif not on and extra0 and cnt[0] > 20 and cnt[0] % 5 == 0:
                for x in extra0.pop(0): p(x)
        for pr in range(4):
            n = 4 if pr < 3 else 2
            on = pr >= extra_from
            acc, o = ACC + 8 * pr, O + 4 * (pr % 2)
            for i in range(n): q(f"v_pk_mul_f32 {vr(acc+2*i,2)}, {vr(acc+2*i,2)}, {vr(SCR,2)} op_sel:[0,{s}] op_sel_hi:[1,{s}]", on)
            for i in range(2*n): q(f"v_exp_f32 v{T+i}, v{acc+i}", on)
            if pr == 0 and mid and "start" in mid: mid["start"]()
            for i in range(n): q(f"v_pk_add_f32 {vr(T+2*i,2)}, {vr(T+2*i,2)}, 1.0 op_sel_hi:[1,0]", on)
            for i in range(n): q(f"v_pk_fma_f32 {vr(T+2*i,2)}, {vr(T+2*i,2)}, {vr(T+2*i,2)}, 1.0 op_sel_hi:[1,1,0]", on)
            for i in range(2*n): q(f"v_rcp_f32 v{T+i}, v{T+i}", on)
            for i in range(n): q(f"v_pk_fma_f32 {vr(T+2*i,2)}, {vr(T+2*i,2)}, {vr(M2,2)}, {vr(LN2,2)} op_sel_hi:[1,0,0]", on)
            for i in range(n): q(f"v_pk_mul_f32 {vr(acc+2*i,2)}, {vr(acc+2*i,2)}, {vr(T+2*i,2)}", on)
            pack(D, o, acc, n)
            if pr < 3:
                p(f"buffer_store_dwordx4 {vr(o,4)}, v{vL16}, {WSR}, s{t0} offen offset:{1024*pr}{WT(layer, s)}", tok_wr=tok)
            else:
                if s == 0 and layer == 0:
                    p(f"s_cmp_ge_u32 s{sN}, 12\ns_cselect_b32 s{sHS}, 0x70000000, s{sHS}\ns_cselect_b32 s{t1}, 0x70000000, s{t1}")
                p(f"buffer_store_dwordx2 {vr(o,2)}, v{vL8}, {WSR}, s{t1} offen{WT(layer, s)}", tok_wr=tok)
            if pr == extra_from - 1 and extra0:
                for g in extra0:
                    for x in g: p(x)
                extra0.clear()
            if mid and pr in mid: mid[pr]()
        for g in extra:
            for x in g: p(x)
        return tok
    def w2_groups(q0, q1):
        out = []
        if opt("now2", 0): return out
        for qq_ in range(q0, q1):
            sb, qq = (sW2B, qq_) if qq_ < 60 else (sW2S, qq_ - 60)
            g = []
            if qq % 4 == 0 and qq > 0: g.append(f"s_add_u32 s{sb}, s{sb}, 4096")
            g.append(f"buffer_load_dwordx4 {w2reg(qq_)}, v{vW2}, {WSR}, s{sb} offen offset:{1024*(qq%4)}{' sc1' if opt('w2sc', 1) else ''}")
            out.append(g)
        return out
    HR, NH = 132, 15
    def fh_prep(e, s, layer, dst):
        e(f"v_bfe_u32 v{dst+1}, v0, 1, 2\nv_lshlrev_b32 v{dst+1}, 4, v{dst+1}\nv_and_b32 v{dst}, 1, v0\nv_lshl_add_u32 v{dst+1}, v{dst}, 2, v{dst+1}")
        e(f"s_add_u32 s{t3}, s{sFHR}, {LX(8192, layer) + 4096*s}")
    def fh_load(dst): return f"buffer_load_dword v{dst}, v{dst+1}, {WSR}, s{t3} offen sc1"
    def h_load(idx, layer, b):
        s, r = divmod(idx, 28)
        second, kl = divmod(r, 14)
        ro = (sH0, sH2)[second]
        l = []
        if kl == 0:
            off = 110592 * s + LX(HF_LAYER, layer)
            l.append(f"s_add_u32 s{ro}, s{sHR if second else sH1}, {off}")
        elif kl < 12 and kl % 4 == 0: l.append(f"s_add_u32 s{ro}, s{ro}, 4096")
        if kl < 12:
            l.append(f"buffer_load_dwordx4 {vr(b,4)}, v{vL16}, {WSR}, s{ro} offen offset:{1024*(kl%4)} sc1")
        else:
            if kl == 12: l.append(f"s_add_u32 s{ro}, s{ro}, s{sB1_}")
            o = (kl - 12) * 1024
            l += [f"buffer_load_dwordx2 {vr(b,2)}, v{vL8}, {WSR}, s{ro} offen offset:{o} sc1",
                  f"buffer_load_dwordx2 {vr(b+2,2)}, v{vL8}, {WSR}, s{ro} offen offset:{o+512} sc1"]
        return l
    def emit_tail(F, rest):
        items = F.items
        nb = sum(1 for c, _ in items if c == "skip")
        paced = [b_[1:] for b_ in rest]
        head = [[b_[0]] for b_ in rest]
        merge(head[:nb * 2], F)
        late = [x for pc in paced[:nb * 2] for x in pc]
        for l in late: p(l)
        merge([h_ + pc for h_, pc in zip(head[nb * 2:], paced[nb * 2:])])
    def red_addr(e, dst, x, extra=0, sh=4):
        e(f"s_xor_b32 s{t4}, s{sW}, {x}\ns_mul_i32 s{t4}, s{t4}, 5120\ns_add_u32 s{t4}, s{t4}, {RED_BASE + extra}\nv_add_u32 v{dst}, s{t4}, v{vL16 if sh == 4 else vL8}")
    def bar(e, tok=None):
        if opt("x_nobar", 0): return
        if tok is not None: e.need(tok)
        e.group(lambda: p("s_barrier"), 4)
    def roundA(e, s, A):
        if opt("x_nored", 0): return
        red_addr(e, 33, 0)
        tk = p.tok()
        for dt in range(5): e(f"ds_write_b128 v33, {vr(A+4*dt,4)} offset:{1024*dt}", tok_wr=tk)
        red_addr(e, 33, 1); red_addr(e, 34, 3, 8)
        e.skip(opt("bs1", 6))
        bar(e, tk)
        for dt in range(5): e(f"ds_read_b64 {vr(A+2*dt,2)}, v33 offset:{1024*dt}")
        for dt in range(5): e(f"ds_read_b64 {vr(A+10+2*dt,2)}, v34 offset:{1024*dt}")
        e.skip(opt("bs2", 8))
        for i in range(10): e(f"v_add_f32 v{A+i}, v{A+i}, v{A+10+i}")
        unpack(e, A + 10, XP[s], 5)
        for i in range(10): e(f"v_add_f32 v{A+i}, v{A+i}, v{A+10+i}")
    def roundB(e, s, A, OWN, last=False, mid=None):
        if opt("x_nored", 0): return
        tk = p.tok()
        pk = e is D
        for dt in range(5): e(f"ds_write_b64 v{vRB}, {vr(OWN+4*dt+2,2)} offset:{1024*dt}", tok_wr=tk)
        for dt in range(5):
            if pk: e(f"v_pk_add_f32 {vr(A+2*dt,2)}, {vr(A+2*dt,2)}, {vr(OWN+4*dt,2)}")
            else: e(f"v_add_f32 v{A+2*dt}, v{A+2*dt}, v{OWN+4*dt}\nv_add_f32 v{A+2*dt+1}, v{A+2*dt+1}, v{OWN+4*dt+1}")
        if mid: mid()
        e.skip(opt("bs3", 2))
        bar(e, tk)
        for dt in range(5): e(f"ds_read_b64 {vr(A+10+2*dt,2)}, v{vRB+1} offset:{1024*dt}")
        e.skip(opt("bs4", 5))
        for i in range(0, 10, 2):
            if pk: e(f"v_pk_add_f32 {vr(A+i,2)}, {vr(A+i,2)}, {vr(A+10+i,2)}")
            else: e(f"v_add_f32 v{A+i}, v{A+i}, v{A+10+i}\nv_add_f32 v{A+i+1}, v{A+i+1}, v{A+11+i}")
    def roundB_addr(e):
        e(f"v_subrev_u32 v{vRB+1}, 8, v34\nv_mov_b32 v{vRB}, v33")
    vRB = 34
    def epi_stats(e, s, A, OWN):
        e(f"s_add_u32 s{t0}, s{sSTW}, {LX(2*ST_K, 1) + 8192*s}")
        stats_publish(e, A, OWN, t0, 0, slow, sTAG2)
    def epi_gate(e, s, A, OWN, w1=20, w2=20):
        e.skip(w1)
        e(f"s_add_u32 s{t5}, s{sSTO}, {LX(2*ST_K, 1) + 8192*s}")
        e(stats_loads(OWN, t5))
        e.skip(w2)
        st(f"eg{s}_chk", e)
        late_check(e, stats_loads(OWN, t5), stats_tags(OWN), 32, False, sTAG2)
        st(f"eg{s}_ok", e)
        gate(e, s, 1, A, OWN, A + 10)
    def out_store(e, s, A):
        pack(e, A + 10, A, 5)
        for dt in range(5): e(f"global_store_dword v{30+s}, v{A+10+dt}, {pair(sOUT)} offset:{32*dt}")

    p(f"""s_xor_b32 s{t0}, s{sW}, 1
    s_and_b32 s{t0}, s{t0}, 1
    s_sub_u32 s{sH1}, s{sHR}, 55296
    s_add_u32 s{t1}, s{sHR}, 55296
    s_cmp_eq_u32 s{t0}, 1
    s_cselect_b32 s{sH1}, s{t1}, s{sH1}
    s_mul_i32 s{sB1_}, s{sW}, 10240
    s_sub_u32 s{sB1_}, {49152 - 8192}, s{sB1_}
    s_cmp_eq_u32 s{sW}, 3
    s_cselect_b32 s{sB1_}, -8192, s{sB1_}
    s_lshl_b32 s{t0}, s{sA}, 2
    s_and_b32 s{t1}, s{sW}, 1
    s_add_u32 s{t0}, s{t0}, s{t1}
    s_lshl_b32 s{t0}, s{t0}, 3
    s_add_u32 s{t0}, s{t0}, s{sB}
    s_mul_i32 s{t4}, s{t0}, 2560
    s_lshr_b32 s{t1}, s{sP8}, 1
    s_add_u32 s{t4}, s{t4}, s{t1}
    s_add_u32 s{t4}, s{t4}, {WS_YG}
    s_add_u32 s{t5}, s{t4}, 40960
    v_min_u32 v31, 19, v0
    v_lshlrev_b32 v31, 9, v31
    s_mul_i32 s{t0}, s{sB}, 10240
    s_lshr_b32 s{t1}, s{sA}, 3
    s_lshl_b32 s{t1}, s{t1}, 7
    s_add_u32 s{t0}, s{t0}, s{t1}
    s_add_u32 s{t0}, s{t0}, {WS_FY}""")
    spin_wait(f"buffer_load_dword v30, v31, {WSR}, s{t0} offen sc1", [30], False, nap=opt("ynap", 2))
    st("y_flag")
    for s in range(2):
        for t in range(5):
            p(f"buffer_load_dword v{YP[s]+t}, v{vL8}, {WSR}, s{(t4, t5)[s]} offen offset:{512*t} sc1")
    tka, sta = gate(D, 0, 0, X32[0], 112, 102, XN0[0], defer=True, pk=True)
    tkb, stb = gate(D, 1, 0, X32[1], 152, 142, XN0[1], defer=True, pk=True)
    sta()
    publish(D, tka, sFXW, 0, 32, slow, wb=False)
    publish(D, tkb, sFXW, 128, 32, slow, wb=False)
    stb()
    st('x_pub1')
    if not slow and HPW:
        p(f"""s_sub_u32 s{t2}, s{sHS}, 3072
        s_sub_u32 s{t3}, s{sHW}, 3072
        s_cmp_ge_u32 s{sN}, 12
        s_cselect_b32 s{t2}, s{t3}, s{t2}
        v_and_b32 v33, 31, v0
        v_min_u32 v33, 27, v33
        v_lshlrev_b32 v30, 7, v33
        v_add_u32 v31, s{sHW}, v30
        v_add_u32 v32, s{t2}, v30
        v_cmp_gt_u32 vcc, 24, v33
        v_cndmask_b32 v31, v32, v31, vcc
        v_lshrrev_b32 v32, 5, v0
        v_mul_u32_u24 v32, 110592, v32
        v_add_u32 v126, v31, v32""")
        if HPW == 1: p(f"buffer_load_dword v{JUNK}, v126, {WSR}, 0 offen sc1")
    p(f"s_cmp_ge_u32 s{sSIG}, 20\ns_cbranch_scc1 {lab('RESTI')}")
    w1_range(NAC, na)
    p("s_barrier")
    w1_range(na, 35)
    p(f"s_branch {lab('HAVEB')}")
    p.label(lab("RESTI"))
    w1_range(NAI, 35)
    p.label(lab("HAVEB"))
    p("s_waitcnt vmcnt(0)")
    st("w1_in")
    p("s_barrier")
    p(f"v_mov_b32 v121, v90\ns_mov_b64 s[{sG0}:{sG0+1}], 0xffff")
    EX, EY = (192, 212), (92, 112)
    ACCX, ACCY = 132, 92
    class Ring:
        def __init__(self, slots): self.free, self.q, self.at = list(slots), [], {}
        def push(self, key, fn): self.q.append((key, fn))
        def issue(self, n=1):
            out = []
            while n and self.q and self.free:
                key, fn = self.q.pop(0)
                self.at[key] = self.free.pop(0)
                ls = fn(self.at[key]); n -= 1
                if not opt("x_nold", 0): out += ls
            return out
        def release(self, key): self.free.append(self.at[key])
    def x_load(s_, ks, base):
        sb = (sB0, sXY)[s_]
        def fn(r):
            l = []
            if ks == 0: l.append(f"s_add_u32 s{sb}, s{sXR}, {base + 40960*s_}")
            elif ks % 4 == 0: l.append(f"s_add_u32 s{sb}, s{sb}, 4096")
            return l + [f"buffer_load_dwordx4 {vr(r,4)}, v{vL16}, {WSR}, s{sb} offen offset:{1024*(ks%4)} sc1"]
        return fn
    def hq_load(idx, layer): return lambda r: h_load(idx, layer, r)
    carry = None
    for layer in range(2):
        L = f"L{layer}_"
        if layer == 1 and opt("rerun", 0) and not slow:
            p(f"s_mov_b32 s{sE}, 0")
            p.label("RERUN")
            st("L1_head")
        seq = list(range(140)) * (1 + layer)
        NA, AG = (opt("na0", 6), opt("ag0", 2)) if layer == 0 else (12, opt("ag1", 4))
        for i in range(NA): p(a_seq_read(seq, i, NA))
        def attach(b, i, NA=NA, AG=AG):
            if i + NA < len(seq): b.append(a_seq_read(seq, i + NA, NA))
            if i % AG == AG - 1 and i + 1 < len(seq): b.append(lambda i=i: a_seq_wait(min(i + AG, len(seq) - 1), NA))
        xoff = LX(XF_LAYER, layer)
        H = Ring(list(range(XR0, XR0 + 4 * opt('hx', 0), 4)) + list(range(HR, HR + 4 * NH, 4)))
        KH = opt("kh", 0) if layer == 0 else 0
        ORDX = [(second, kl) for kl in range(KH) for second in range(2)] + [(second, kl) for second in range(2) for kl in range(KH, 14)]
        for second, kl in ORDX: H.push(14 * second + kl, hq_load(14 * second + kl, layer))
        if layer == 0:
            R = Ring(list(range(AR + 4 * NA, 232, 4)) + list(range(XR0, 76, 4)))
            p(f"v_and_b32 v31, 16, v0\nv_lshlrev_b32 v31, 3, v31\nv_lshl_add_u32 v31, v{vN}, 2, v31\ns_mov_b32 s{t2}, s{sFXR}")
            spin_wait(fx_load(0, layer, 30), [30], False)
            st(L + "x_seen")
            for ks in range(20):
                for s_ in (1, 0): R.push((s_, ks), x_load(s_, ks, xoff))
            for l in R.issue(opt("x_first", 6)): p(l)
            p(f"""s_or_b32 s{t0}, s2, s{sW}
            s_cmp_eq_u32 s{t0}, 0
            s_cselect_b32 s{t0}, 0, 0x70000000
            v_mov_b32 v33, s{sTAG}
            v_mov_b32 v34, 0
            buffer_store_dword v33, v34, {WSR}, s{t0} offen sc1""")
            beats = []
            for ks in range(20):
                for ft in range(7):
                    i = ks * 7 + ft
                    for s_ in (1, 0):
                        acc = (ACCX, ACCY)[s_] + 4 * ft
                        b = [f"{MF} {vr(acc,4)}, {vr(AR+4*(i%NA),4)}, {vr(R.at[(s_, ks)],4)}, {'0' if ks == 0 else vr(acc,4)}"]
                        if s_ == 0: attach(b, i)
                        if ft == 6: R.release((s_, ks))
                        if len(beats) % 3 == 0 or ft == 6: b += R.issue(1)
                        beats.append(b)
            F = Fill()
            F(f"s_lshl_b32 s{t3}, s{sN}, 7\ns_add_u32 s{t3}, s{t3}, {WS_FC}\nv_writelane_b32 v121, s{t3}, 63\ns_mov_b32 s{t3}, 0")
            F(fh_load(120))
            st("s12_a", F)
            row_scalars(F, 0, layer, 76)
            st("s12_b", F)
            late_check(F, fh_load(120), [120], 124, False)
            st("s12_c", F)
            row_scalars(F, 1, layer, 76)
            st("s12_d", F)
            tkt = p.tok()
            F(f"s_mul_i32 s{t0}, s{sN}, 896\ns_add_u32 s{t0}, s{t0}, {WS_CB}\ns_mul_i32 s{t1}, s{sW}, 5120\ns_add_u32 s{t1}, s{t1}, {RED_BASE}\nv_lshl_add_u32 v124, v{vN}, 3, s{t1}")
            F.group(lambda: (p(f"s_mov_b32 m0, s{t1}\ns_mov_b32 exec_hi, 0xffffff"), p(f"buffer_load_dwordx4 v{vL16}, {WSR}, s{t0} offen sc1 lds", tok_wr=tkt), p("s_mov_b64 exec, -1")), 16)
            Ft = Fill()
            Ft.need(tkt)
            for i in range(7): Ft(f"ds_read_b64 {vr(AP+2*i,2)}, v124 offset:{128*i}")
            st("s12_e", F)
            if not slow and HPW == 2: F(f"buffer_load_dword v{JUNK}, v126, {WSR}, 0 offen sc1")
            N12 = opt("n12", 40)
            for q in range(NW2E, N12):
                w2_loads(F, q, q + 1, vW2)
                F.skip(opt("w2gap", 4))
                if q == NW2E + 6: F.items += Ft.items
            merge(beats, F)
            merge(fix_beats(1, ACCY) + fix_beats(0, ACCX))
            st(L + "S12")
            NA1 = max(N12, opt("na1", 56))
            NA2 = max(NA1, opt("na2", 70))
            tokx = act(0, layer, ACCX, 192, 200, extra=w2_groups(N12, NA1), every=opt("ev1", 7), K=(208, 210))
            p(f"s_add_u32 s{t4}, s{sFHW}, {LX(8192, layer)}")
            fh_prep(D, 0, layer, 120)
            st(L + "A1")
            tokh = act(1, layer, ACCY, 192, 200, K=(208, 210),
                       mid={"start": lambda: publish(D, tokx, t4, 0, 124, slow, TG(layer), wb=False), 1: lambda: p(fh_load(120)),
                            2: lambda: late_check(D, fh_load(120), [120], 124, False, TG(layer))},
                       extra=[H.issue(1) for _ in range(opt("hpre", 6))], extra_from=3, every=3, extra0=w2_groups(NA1, NA2))
        else:
            R = carry
            HEAD_LOADS = R.issue(NB)
            def g1_pass(s_, acc0):
                beats = []
                for ks in range(20):
                    for ft in range(7):
                        i = 140 * s_ + ks * 7 + ft
                        b = [f"{MF} {vr(acc0+4*ft,4)}, {vr(AR+4*(i%NA),4)}, {vr(R.at[(s_, ks)],4)}, {'0' if ks == 0 else vr(acc0+4*ft,4)}"]
                        attach(b, i)
                        if ft == 6:
                            R.release((s_, ks)); b += R.issue(1)
                        beats.append(b)
                return beats + fix_beats(s_, acc0)
            g1x = g1_pass(0, ACCX)
            GX = EY[1] + 4
            def head_mid():
                late_check(D, fx_load(0, 1, 30), [30], 32, False, TG(1))
                st("L1_xX_seen")
                for l in HEAD_LOADS: p(l)
            roundB(D, 1, *EY, mid=head_mid)
            p(f"s_add_u32 s{t3}, s{sSTR}, {ST_K + LX(2*ST_K, layer)}")
            p(stats_loads(GX, t3))
            epi_stats(D, 1, *EY)
            st(L + "st_pub")
            F = Fill()
            bar(F)
            F.skip(opt("e1x", 4))
            late_check(F, stats_loads(GX, t3), stats_tags(GX), 32, False, TG(layer))
            row_finish(F, 0, GX)
            F(f"s_add_u32 s{t5}, s{sSTO}, {LX(2*ST_K, 1) + 8192}")
            F(stats_loads(EY[1], t5))
            c1 = opt("c1", 40)
            merge(g1x[:c1], F, rate=12)
            late_check(D, stats_loads(EY[1], t5), stats_tags(EY[1]), 32, False, sTAG2)
            st(L + "st_ok")
            F = Fill()
            tk, sts = gate(D, 1, 1, EY[0], EY[1], EY[0] + 10, defer=True, pk=True, later=F)
            F.skip(opt("e1p", 6))
            F(f"s_add_u32 s{t0}, s{sFXW}, {LX(8192, layer) + 128}")
            publish(F, tk, t0, 0, 30, slow, TG(layer), wb=False)
            st(L + "yY_pub", F)
            sts()
            merge(g1x[c1:], F, rate=opt("r1", 8))
            st(L + "S1")
            fx_prep(D, 1, layer, 120)
            p(fx_load(1, layer, 120))
            for ks in range(20): R.push((1, ks), x_load(1, ks, xoff))
            tokx = act(0, layer, ACCX, 92, 100, K=(108, 110), mid={opt("a1c", 1): lambda: late_check(D, fx_load(1, layer, 120), [120], 122, False, TG(layer))},
                       extra=[R.issue(1) for _ in range(NB)], extra_from=opt("a1c", 1) + 1, every=5)
            st(L + "A1")
            F = Fill()
            F.skip(opt("p2", 20))
            F(f"s_add_u32 s{t4}, s{sFHW}, {LX(8192, layer)}")
            publish(F, tokx, t4, 0, 32, slow, TG(layer), wb=False)
            row_scalars(F, 1, layer, 120)
            fh_prep(F, 0, layer, 120)
            F(fh_load(120))
            merge(g1_pass(1, ACCY), F)
            st(L + "S2")
            late_check(D, fh_load(120), [120], 124, False, TG(layer))
            tokh = act(1, layer, ACCY, 192, 200, K=(208, 210), extra=[H.issue(1) for _ in range(opt('hp1', 15))], every=opt('hev', 7))
        st(L + "A2")
        c3 = opt("c3", 80)
        bts = []
        KOUT = layer == 0 and opt("kout", 0)
        late_w2 = w2_groups(NA2, 70) if layer == 0 else []
        for s_ in range(2):
            A_, OWN_ = (EX, EY)[s_]
            order = [(second, kl) for second in range(2) for kl in range(14)]
            if s_ == 0: order = ORDX
            for second, kl in order:
                acc = OWN_ if second else A_
                idx = 28 * s_ + 14 * second + kl
                for dt in range(5):
                    nb_i = len(bts)
                    b = [f"{MF} {vr(acc+4*dt,4)}, {w2reg(kl*5+dt)}, {vr(H.at[idx],4)}, {'0' if kl == 0 else vr(acc+4*dt,4)}"]
                    if nb_i == c3:
                        b.append(lambda: late_check(D, fh_load(120), [120], 122, False, TG(layer)))
                        for i2 in range(28, 56): H.push(i2, hq_load(i2, layer))
                    if dt == 4: H.release(idx)
                    if nb_i % 3 == 0 or dt == 4: b += H.issue(1)
                    if late_w2 and nb_i % opt("lw", 2) == 1 % opt("lw", 2): b += late_w2.pop(0)
                    bts.append(b)
        F = Fill()
        F.skip(opt("p3", 10))
        F(f"s_add_u32 s{t4}, s{sFHW}, {LX(8192, layer) + 4096}")
        if not (opt("x_nopub", 0) and False): publish(F, tokh, t4, 0, 32, slow, TG(layer), wb=False)
        fh_prep(F, 1, layer, 120)
        F.skip(max(0, c3 - opt("p3", 10) - 28))
        F(fh_load(120))
        cA = 72 + 5 * KH
        merge(bts[:cA], F)
        st(L + "S3a")
        F = Fill()
        roundA(F, 0, EX[0])
        roundB_addr(F)
        merge(bts[cA:142], F, rate=(opt("ra", 8) if not KH else 12))
        st(L + "S3")
        F = Fill()
        roundB(F, 0, *EX)
        if layer == 0:
            epi_stats(F, 0, *EX)
            bar(F)
            F.until(opt("u4a", 40))
            F(f"s_add_u32 s{t5}, s{sSTO}, {LX(2*ST_K, 1)}")
            F(stats_loads(EX[1], t5))
            F.until(opt("u4b", 58))
            st("eg0_chk", F)
            late_check(F, stats_loads(EX[1], t5), stats_tags(EX[1]), 32, False, sTAG2)
            st("eg0_ok", F)
            tk, sts = gate(F, 0, 1, EX[0], EX[1], EX[0] + 10, defer=True)
            sts()
            lastst = F.items.pop()
            F(f"s_add_u32 s{t0}, s{sFXW}, {LX(8192, 1)}")
            publish(F, tk, t0, 0, 30, slow, TG(1), wb=False)
            F.items.append(lastst)
            st(L + "xX_pub", F)
            F.until(70)
            roundA(F, 1, EY[0])
            roundB_addr(F)
            carry = Ring(range(BR, BR + 4 * NB, 4))
            for ks in range(20): carry.push((0, ks), x_load(0, ks, LX(XF_LAYER, 1)))
            APRE = 0
            fx_prep(F, 0, 1, 30)
            F(fx_load(0, 1, 30))
            merge(bts[142:], F, rate=opt("r4", 10))
        else:
            bar(F)
            F.group(lambda: xy_offset(30), 40)
            if opt("wb", 60) and not slow:
                def wb():
                    X = p.L("NOWB")
                    p(f"s_lshl_b32 s{t0}, s{sW}, 8\ns_or_b32 s{t0}, s{t0}, s{sSIG}\ns_cmp_lg_u32 s{t0}, 31\ns_cbranch_scc1 {X}\nbuffer_wbl2 sc1")
                    p.label(X)
                F.until(opt("wb", 60))
                F.group(wb, 20)
            F.until(70)
            roundA(F, 1, EY[0])
            roundB_addr(F)
            out_store(F, 0, EX[0])
            merge(bts[142:], F, rate=opt("ra", 8))
        st(L + "S4")
    if opt("rerun", 0) and not slow:
        p(f"s_cmp_lg_u32 s{sE}, 0\ns_cbranch_scc1 RERUN_DONE\ns_mov_b32 s{sE}, 1\nv_mov_b32 v{JUNK}, v{vSTAMP}\ns_branch RERUN")
        p.label("RERUN_DONE")
    roundB(D, 1, *EY)
    out_store(D, 1, EY[0])
    if STAMPS and not slow:
        stamp("end")
        if DBG is not None:
            p(f"""v_readlane_b32 s{t0}, v{vSTAMP}, 0
            s_not_b32 s{t0}, s{t0}
            v_writelane_b32 v{vSTAMP}, s{t0}, 15
            v_lshlrev_b32 v30, 2, v0
            s_mov_b64 exec, 0xffff
            global_atomic_umax v30, v{vSTAMP}, {pair(sDBG)}
            s_mov_b64 exec, -1""")
        p(f"""s_lshl_b32 s{t0}, s2, 2
        s_add_u32 s{t0}, s{t0}, s{sW}
        s_lshl_b32 s{t0}, s{t0}, 8
        s_add_u32 s{t0}, s{t0}, {WS_STAMP}
        v_lshlrev_b32 v30, 2, v0
        buffer_store_dword v{vSTAMP if opt("rerun", 0) != 2 else JUNK}, v30, {WSR}, s{t0} offen""")
    p("s_endpgm")
    while tail_code: tail_code.pop(0)()

body(False)
body(True)
p.label("END")
p("s_endpgm")
p.raw('.section .rodata,"a"\n.p2align 6')
p.raw(f".amdhsa_kernel {KN}")
for l in ["next_free_vgpr 512", "next_free_sgpr 102", "accum_offset 256", "group_segment_fixed_size 0", "kernarg_size 104",
          "user_sgpr_count 2", "user_sgpr_kernarg_segment_ptr 1", "system_sgpr_workgroup_id_x 1", "float_denorm_mode_32 3"]:
    p.raw("  .amdhsa_" + l)
p.raw(".end_amdhsa_kernel")
out = [a for a in ARGS if not a.startswith("--")][0]
open(out, "w").write(p.finalize())
if STAMPS: open(out + ".stamps", "w").write("\n".join(stamp_names))
```

```python
import sys
from gasm import Prog, Ins

NAME = "interleave_layers__ssm_conv_h3__dense_activation_mish__prompt"
ARGS = sys.argv[1:]
STAMPS = "--stamps" in ARGS or "--cstamps" in ARGS
STAMP_INS = "s_memtime" if "--cstamps" in ARGS else "s_memrealtime"
FORCE_SLOW = "--slow" in ARGS
def opt(name, default):
    for a in ARGS:
        if a.startswith(f"--{name}="): return type(default)(a.split("=", 1)[1])
    return default
SPIN = 400000
NT = lambda n, d: ' nt' if opt('nt_' + n, d) else ''

WS_EPOCH, WS_FT, WS_FC = 0, 0x1000, 0x2000
WS_FW1, WS_FW2 = 0x60000, 0x6A000
WS_FTR = 0x11000
WS_XC = 0x36000
WS_FL = 0x10000
WS_FY, WS_FX, WS_FH, WS_CB, WS_PS = 0x40000, 0x4000, 0x8000, 0xC000, 0x12000
WS_ST, WS_UR, WS_YG, WS_XF, WS_HF, WS_W1F, WS_W2F, WS_STAMP = 0x100000, 0x300000, 0x600000, 0xB00000, 0x1000000, 0x1E00000, 0x2100000, 0x3000000
XF_LAYER, HF_LAYER, ST_K = 128 * 20 * 1024, 128 * 54 * 1024, 128 * 4096

LDS_BYTES = 163840
CONV_PITCH, HC_PITCH = 21312, 4160
LU_OFF = 4 * HC_PITCH
CONV_BASE = LDS_BYTES - 4 * CONV_PITCH
T_BASE = 0
TW_PITCH = 6400
UT_BASE = 4 * TW_PITCH
WST_BASE = CONV_BASE
RED_BASE = 143360
NW1A = 76

sQ, sK, sV, sSK, sH, sD, sBX, sW1, sB1, sW2, sOUT, sDBG, sWS = [4 + 2 * i for i in range(13)]
R_WS, R_K, R_V, R_H, R_W = 32, 36, 40, 44, 48
sJ, sSIG, sW, sA, sB, sM, sN, sTAG, sE, sDVAL, sXV, sSPIN = range(52, 64)
t0, t1, t2, t3, t4, t5, t6, t7 = range(64, 72)
sSTAMP = 72
WU = [98, 98]
sXR, sXW, sXS, sHW, sHS, sHR, sFXR, sFXW, sFHR, sFHW, sSTW, sSTO, sSTR, sP8, sW2B, sW2S, sGOTA = range(76, 93)
sB0, sB1_, sH0, sH1 = 93, 94, 95, 96
sTAG2 = 97
sH2 = 99
sG0 = 100
sXY = 98
sG = 3
srd = lambda r: f"s[{r}:{r+3}]"
pair = lambda r: f"s[{r}:{r+1}]"
WSR = srd(R_WS)

vL16, vN, vG, vL8, vSTAMP = 1, 2, 3, 4, 5
XP = [6, 12]
YP = [17, 22]
JUNK = 27
vA1 = [vL16, 28, 29]
AP, SCB, SCR, XR0 = 36, (50, 52), 54, 56
vr = lambda b, n: f"v[{b}:{b+n-1}]" if n > 1 else f"v{b}"
def w2reg(q):
    return f"a[{4*q}:{4*q+3}]" if q < 64 else f"v[{232+4*(q-64)}:{232+4*(q-64)+3}]"
MF = "v_mfma_f32_16x16x32_bf16"

p = Prog()
p.junk = {('v', JUNK)}
stamp_names = []
tail_code = []

class Fill:
    def __init__(self): self.items = []
    def __call__(self, s, tok_wr=None):
        ls = [l.strip() for l in s.strip("\n").split("\n") if l.strip() and not l.strip().startswith(";")]
        for i, l in enumerate(ls):
            c = 8 if l.split()[0] in ("v_exp_f32", "v_rcp_f32", "v_sqrt_f32", "v_rsq_f32") else 4
            self.items.append((c, (lambda l=l, t=(tok_wr if i == len(ls) - 1 else None): p(l, tok_wr=t))))
    def group(self, fn, cost): self.items.append((cost, fn))
    def skip(self, n): self.items.append(("skip", n))
    def until(self, n): self.items.append(("until", n))
    def need(self, *t): self.items.append((4, lambda: p.need(*t)))
    def L(self, x): return p.L(x)

class Direct:
    def __call__(self, s, tok_wr=None): p(s, tok_wr=tok_wr)
    def group(self, fn, cost): fn()
    def skip(self, n): pass
    def until(self, n): pass
    def need(self, *t): p.need(*t)
D = Direct()

def merge(beats, fill=None, rate=8, flush=True):
    items = list(fill.items) if fill else []
    credit = 0
    hold = 0
    for bi, b in enumerate(beats):
        for x in b:
            if callable(x): x()
            else: p(x)
        credit = min(credit, 0) + rate - 4 * (len(b) - 1)
        if hold > 0:
            hold -= 1; continue
        while items and credit > 0:
            c, fn = items[0]
            if c == "skip":
                items.pop(0); hold = fn; break
            if c == "until":
                if bi < fn: break
                items.pop(0); continue
            if c > credit and credit < 4: break
            items.pop(0); fn(); credit -= c
    if not flush: return items
    for c, fn in items:
        if c not in ("skip", "until"): fn()

def merge2(beats, F, F2, at, rate):
    n = len(F.items)
    items = list(F.items)
    class R: pass
    r = R(); r.items = items
    left = merge(beats[:at], r, rate, flush=False)
    r2 = R(); r2.items = left + list(F2.items)
    merge(beats[at:], r2, rate if left else opt('ra', 8))

DBG = opt("dbg", "").split(",") if opt("dbg", "") else None
ONLY = opt("only", "").split(",") if opt("only", "") else None
def stamp(name, e=None):
    if not STAMPS: return
    if ONLY is not None and name not in ONLY and name not in ("start", "end"): return
    if DBG is not None:
        if name not in DBG: return
        i = DBG.index(name)
        fn = lambda: p(f"{STAMP_INS} {pair(sSTAMP)}\ns_waitcnt lgkmcnt(0)\nv_writelane_b32 v{vSTAMP}, s{sSTAMP}, {i}")
        (e or D).group(fn, 12)
        return
    if name not in stamp_names: stamp_names.append(name)
    i = stamp_names.index(name)
    assert i < 64
    fn = lambda: p(f"{STAMP_INS} {pair(sSTAMP)}\ns_waitcnt lgkmcnt(0)\nv_writelane_b32 v{vSTAMP}, s{sSTAMP}, {i}")
    (e or D).group(fn, 12)

def spin_wait(load_lines, checks, slow_inv, tag=None, nap=None):
    L, L2, X = p.L("POLL"), p.L("POLLB"), p.L("POLLX")
    nap = opt("nap", 2) if nap is None else nap
    p(f"s_mov_b32 s{sSPIN}, 0\ns_branch {L2}")
    p.label(L)
    if nap: p(f"s_sleep {nap}")
    p(f"s_add_u32 s{sSPIN}, s{sSPIN}, 1\ns_cmp_gt_u32 s{sSPIN}, {SPIN}\ns_cbranch_scc1 {X}")
    p.label(L2)
    p(load_lines)
    p("s_waitcnt vmcnt(0)")
    for r in checks:
        p(f"v_cmp_ne_u32 vcc, s{tag or sTAG}, v{r}\ns_cbranch_vccnz {L}")
    p.label(X)
    if slow_inv: p("buffer_inv sc1\ns_waitcnt vmcnt(0)")

def late_check(e, load_lines, checks, tmp, slow_inv, tag=None):
    TG = tag or sTAG
    def fn():
        S, B = p.L("SPIN"), p.L("BACK")
        if len(checks) == 1:
            p(f"v_cmp_ne_u32 vcc, s{TG}, v{checks[0]}")
        else:
            assert len(checks) == 4
            a_, b_, c_, d_ = checks
            p(f"""v_xor_b32 v{a_}, v{a_}, v{b_}
            v_xor_b32 v{c_}, v{c_}, v{d_}
            v_xor_b32 v{b_}, v{b_}, v{d_}
            v_xor_b32 v{d_}, s{TG}, v{d_}
            v_or3_b32 v{a_}, v{a_}, v{b_}, v{c_}
            v_or_b32 v{a_}, v{a_}, v{d_}
            v_cmp_ne_u32 vcc, 0, v{a_}""")
        p(f"s_cbranch_vccnz {S}")
        p.label(B)
        if slow_inv: p("buffer_inv sc1\ns_waitcnt vmcnt(0)")
        def tail():
            p.label(S)
            spin_wait(load_lines, checks, False, TG)
            p(f"s_branch {B}")
        tail_code.append(tail)
    e.group(fn, 8 if len(checks) == 1 else 32)

def unpack(e, dst, src, n):
    for i in range(n):
        e(f"v_lshlrev_b32 v{dst+2*i}, 16, v{src+i}\nv_and_b32 v{dst+2*i+1}, 0xffff0000, v{src+i}")
def pack(e, dst, src, n):
    for i in range(n):
        e(f"v_cvt_pk_bf16_f32 v{dst+i}, v{src+2*i}, v{src+2*i+1}")
def bf16r(e, r):
    e(f"v_cvt_pk_bf16_f32 v{r}, v{r}, v{r}\nv_lshlrev_b32 v{r}, 16, v{r}")

def stats_publish(e, x, g, soff, imm, slow, tag=None):
    e(f"v_add_f32 v{g}, v{x}, v{x+1}\nv_mul_f32 v{g+1}, v{x}, v{x}\nv_mul_f32 v{g+3}, v{x+1}, v{x+1}\nv_add_f32 v{g+2}, v{x+2}, v{x+3}")
    for i in range(2, 10, 2):
        e(f"v_fmac_f32 v{g+1}, v{x+i}, v{x+i}\nv_fmac_f32 v{g+3}, v{x+i+1}, v{x+i+1}")
        if i >= 4: e(f"v_add_f32 v{g}, v{g}, v{x+i}\nv_add_f32 v{g+2}, v{g+2}, v{x+i+1}")
    e(f"v_add_f32 v{g}, v{g}, v{g+2}\nv_add_f32 v{g+1}, v{g+1}, v{g+3}\nv_lshlrev_b32 v{g+3}, 4, v{vN}\nv_mov_b32 v{g+2}, s{tag or sTAG}")
    e(f"v_permlane16_swap_b32 v{g}, v{g+1}\nv_add_f32 v{g}, v{g}, v{g+1}\nv_mov_b32 v{g+1}, v{g}")
    e(f"v_permlane32_swap_b32 v{g}, v{g+1}\nv_add_f32 v{g}, v{g}, v{g+1}\nv_mov_b32 v{g+1}, v{g}")
    e(f"v_permlane16_swap_b32 v{g}, v{g+1}")
    e(f"buffer_store_dwordx3 {vr(g,3)}, v{g+3}, {WSR}, s{soff} offen offset:{imm}{' sc1' if slow else ''}")

def stats_loads(G, soff):
    return "\n".join(f"buffer_load_dwordx3 {vr(G+4*i,3)}, v{vL16}, {WSR}, s{soff} offen offset:{1024*i} sc1" for i in range(4))
def stats_tags(G): return [G + 2, G + 6, G + 10, G + 14]

def stats_finish(e, G, o, three=False, rcp=True):
    e(f"v_add_f32 v{G}, v{G}, v{G+4}\nv_add_f32 v{G+1}, v{G+1}, v{G+5}")
    if not three: e(f"v_add_f32 v{G+8}, v{G+8}, v{G+12}\nv_add_f32 v{G+9}, v{G+9}, v{G+13}")
    e(f"v_add_f32 v{G}, v{G}, v{G+8}\nv_add_f32 v{G+1}, v{G+1}, v{G+9}")
    e(f"v_permlane16_swap_b32 v{G}, v{G+1}\nv_add_f32 v{G}, v{G}, v{G+1}\nv_mov_b32 v{G+1}, v{G}")
    e(f"v_permlane32_swap_b32 v{G}, v{G+1}\nv_add_f32 v{G}, v{G}, v{G+1}\nv_mul_f32 v{o}, 0x3acccccd, v{G}\nv_mul_f32 v{o+1}, 0x3acccccd, v{G}")
    e(f"v_permlane16_swap_b32 v{o}, v{o+1}")
    s, q = o, o + 1
    e(f"v_fma_f32 v{q}, -v{s}, v{s}, v{q}\nv_max_f32 v{q}, 0, v{q}")
    e(f"v_cvt_pk_bf16_f32 v{q}, v{q}, v{s}\nv_and_b32 v{s}, 0xffff0000, v{q}\nv_lshlrev_b32 v{q}, 16, v{q}")
    e(f"v_add_f32 v{q}, 0x3727c5ac, v{q}")
    bf16r(e, q)
    e(f"v_sqrt_f32 v{q}, v{q}")
    bf16r(e, q)
    if rcp: e(f"v_rcp_f32 v{q}, v{q}")

def publish(e, tok, soff, imm, tmp, slow, tag=None, wb=True):
    e(f"v_mov_b32 v{tmp}, s{tag or sTAG}\nv_mov_b32 v{tmp+1}, 0")
    e.need(tok)
    if slow and wb:
        e.group(lambda: p(f"s_waitcnt vmcnt(0)\nbuffer_wbl2 sc1\ns_waitcnt vmcnt(0)"), 8)
    e(f"buffer_store_dword v{tmp}, v{tmp+1}, {WSR}, s{soff} offen offset:{imm}{' sc1' if slow else ''}")

vHOFF = 35
HD = 170
def h_loads():
    for q in range(5):
        if q == 4: p("s_mov_b64 exec, 15")
        p(f"buffer_load_dwordx4 {vr(HD+6*q,4)}, v{vHOFF}, {srd(R_H)}, 0 offen nt")
        if q < 4: p(f"v_add_u32 v{vHOFF}, 1024, v{vHOFF}")
    p("s_mov_b64 exec, -1")
def h_build(first):
    if first is None: return h_rows(range(HB_DONE[0], 5))
    HB_DONE[0] = first
    p(f"v_cmp_lt_u32 vcc, 1, v0")
    for i in range(4): p(f"v_cndmask_b32 v{HD+i}, 0, v{HD+i}, vcc")
    for q in range(5):
        d = HD + 6 * q
        for i in range(2):
            p(f"v_mov_b32_dpp v{d+4+i}, v{d+i} wave_shl:1 row_mask:0xf bank_mask:0xf")
        if q < 4:
            for i in range(2): p(f"v_readfirstlane_b32 s{t6+i}, v{d+6+i}")
            for i in range(2): p(f"v_writelane_b32 v{d+4+i}, s{t6+i}, 63")
    h_rows(range(first))
HB_DONE = [0]
def h_rows(rows):
    for q in rows:
        d, S = HD + 6 * q, 200 + 12 * (q % 2)
        if q == 4: p("s_mov_b64 exec, 7")
        p(f"ds_write_b128 v33, {vr(d,4)} offset:{1024*q}")
        for i in range(4): p(f"v_alignbit_b32 v{S+i}, v{d+i+1}, v{d+i}, 16")
        p(f"ds_write_b128 v33, {vr(S,4)} offset:{1024*q + HC_PITCH}")
        for i in range(4): p(f"v_mov_b32 v{S+4+i}, v{d+i+1}")
        p(f"ds_write_b128 v33, {vr(S+4,4)} offset:{1024*q + 2*HC_PITCH}")
        for i in range(4): p(f"v_alignbit_b32 v{S+8+i}, v{d+i+2}, v{d+i+1}, 16")
        p(f"ds_write_b128 v33, {vr(S+8,4)} offset:{1024*q + 3*HC_PITCH}")
    p("s_mov_b64 exec, -1")

def w_unit_params(rep):
    Bq, E = p.L("WU2"), p.L("WUE")
    sv = WU[rep]
    p(f"""s_sub_u32 s{t0}, s{sSIG}, {20 if rep == 0 else -12}
    s_lshl_b32 s{t0}, s{t0}, 2
    s_add_u32 s{t0}, s{t0}, s{sW}
    s_mov_b32 s{R_W+2}, 2211840
    v_mov_b32 v32, 0
    s_cmp_ge_u32 s{t0}, 40
    s_cbranch_scc1 {Bq}
    s_mul_i32 s{t1}, s{sJ}, 40
    s_add_u32 s{t0}, s{t0}, s{t1}
    s_and_b32 s{t7}, s{t0}, 15
    s_lshr_b32 s{t6}, s{t0}, 4
    s_mul_i32 s{t0}, s{t7}, 20
    s_add_u32 s{t0}, s{t0}, s{t6}
    s_mul_i32 s{sv}, s{t0}, 7168
    s_add_u32 s{sv}, s{sv}, {WS_W1F}
    s_mul_i32 s{sv+3}, s{t0}, 448
    s_add_u32 s{sv+3}, s{sv+3}, {WS_PS}
    s_lshr_b32 s{t1}, s{t6}, 1
    s_mul_i32 s{t1}, s{t1}, 80
    s_and_b32 s{t2}, s{t6}, 1
    s_lshl_b32 s{t2}, s{t2}, 1
    s_add_u32 s{t1}, s{t1}, s{t2}
    s_add_u32 s{t2}, s{t1}, 32
    s_sub_u32 s{t3}, s{t6}, 16
    s_mul_i32 s{t3}, s{t3}, 160
    s_add_u32 s{t4}, s{t3}, 64
    s_add_u32 s{t3}, s{t3}, 144
    s_cmp_ge_u32 s{t6}, 16
    s_cselect_b32 s{t1}, s{t4}, s{t1}
    s_cselect_b32 s{t2}, s{t3}, s{t2}
    s_cselect_b32 s{t3}, 0, 14
    v_mov_b32 v32, s{t3}
    s_mul_i32 s{t1}, s{t1}, 3456
    s_mul_i32 s{t2}, s{t2}, 3456
    s_lshl_b32 s{t6}, s{t0}, 7
    s_add_u32 s{sv+1}, s{t6}, {WS_FW1}
    s_mul_i32 s{t3}, s{t7}, 7
    s_mul_i32 s{t4}, s{t7}, 6
    s_add_u32 s{t4}, s{t4}, 12
    s_cmp_ge_u32 s{t7}, 12
    s_cselect_b32 s{t3}, s{t4}, s{t3}
    s_lshl_b32 s{t3}, s{t3}, 5
    s_add_u32 s{t1}, s{t1}, s{t3}
    s_add_u32 s{t2}, s{t2}, s{t3}
    s_mov_b32 s{t3}, 3456
    s_mov_b32 s{t4}, 14
    s_branch {E}""")
    p.label(Bq)
    p(f"""s_sub_u32 s{t0}, s{t0}, 40
    s_mov_b32 s{sv+3}, s{t0}
    s_min_u32 s{t0}, s{t0}, 53
    s_mul_i32 s{t1}, s{sJ}, 54
    s_add_u32 s{t0}, s{t0}, s{t1}
    s_and_b32 s{t7}, s{t0}, 7
    s_lshr_b32 s{t6}, s{t0}, 3
    s_mul_i32 s{t0}, s{t7}, 54
    s_add_u32 s{t0}, s{t0}, s{t6}
    s_mul_i32 s{sv}, s{t0}, 5120
    s_add_u32 s{sv}, s{sv}, {WS_W2F}
    s_mul_i32 s{t1}, s{t6}, 21846
    s_lshr_b32 s{t1}, s{t1}, 16
    s_mul_i32 s{t2}, s{t1}, 3
    s_sub_u32 s{t2}, s{t6}, s{t2}
    s_mul_i32 s{t3}, s{t1}, 7
    s_mul_i32 s{t4}, s{t1}, 6
    s_add_u32 s{t4}, s{t4}, 12
    s_cmp_ge_u32 s{t1}, 12
    s_cselect_b32 s{t1}, s{t4}, s{t3}
    s_lshl_b32 s{t2}, s{t2}, 1
    s_add_u32 s{t1}, s{t1}, s{t2}
    s_add_u32 s{t2}, s{t1}, 1
    s_sub_u32 s{t3}, s{t6}, 48
    s_mul_i32 s{t3}, s{t3}, 14
    s_add_u32 s{t4}, s{t3}, 6
    s_add_u32 s{t3}, s{t3}, 13
    s_cmp_ge_u32 s{t6}, 48
    s_cselect_b32 s{t1}, s{t4}, s{t1}
    s_cselect_b32 s{t2}, s{t3}, s{t2}
    s_mul_i32 s{t1}, s{t1}, 20480
    s_mul_i32 s{t2}, s{t2}, 20480
    s_lshl_b32 s{t6}, s{t0}, 7
    s_add_u32 s{sv+1}, s{t6}, {WS_FW2}
    s_mul_i32 s{t3}, s{t7}, 160
    s_add_u32 s{t1}, s{t1}, s{t3}
    s_add_u32 s{t2}, s{t2}, s{t3}
    s_mov_b32 s{t3}, 1280
    s_mov_b32 s{t4}, 10
    s_cmp_ge_u32 s{sv+3}, 54
    s_cselect_b32 s{t1}, 0x70000000, s{t1}
    s_cselect_b32 s{t2}, 0x70000000, s{t2}
    s_cselect_b32 s{sv}, 0x70000000, s{sv}
    s_cselect_b32 s{sv+1}, 0x70000000, s{sv+1}""")
    p.label(E)
    x = WX[rep]
    p(f"""s_lshl_b32 s{sv+2}, s{t4}, 4
    v_cvt_f32_u32 v30, v0
    v_cvt_f32_u32 v31, s{t4}
    v_add_f32 v30, 0.5, v30
    v_rcp_f32 v31, v31
    v_mul_f32 v30, v30, v31
    v_cvt_u32_f32 v30, v30
    v_mul_lo_u32 v31, v30, s{t4}
    v_sub_u32 v31, v0, v31
    v_lshlrev_b32 v31, 4, v31
    v_cmp_gt_u32 vcc, 4, v30
    v_lshrrev_b32 v33, 1, v30
    v_mad_u32_u24 v30, v33, v32, v30
    v_mul_lo_u32 v30, v30, s{t3}
    v_add_u32 v{WV[rep]}, v31, v30
    s_mov_b32 s{x[0]}, s{t1}
    s_mov_b32 s{x[1]}, s{t2}
    s_lshl_b32 s{x[2]}, s{t3}, 2
    s_mov_b32 s{x[3]}, vcc_hi
    v_lshrrev_b32 v32, 2, v0
    v_mul_lo_u32 v32, v32, s{sv+2}
    v_and_b32 v33, 3, v0
    v_lshl_add_u32 v32, v33, 3, v32
    s_mul_i32 s{t0}, s{sW}, {WSTG[rep][1]}
    s_add_u32 s{t0}, s{t0}, {WSTG[rep][0]}
    v_add_u32 v{WV[rep]+1}, s{t0}, v32
    s_lshl_b32 s{t1}, s{sv+2}, 4
    v_add_u32 v{WV[rep]+2}, s{t1}, v{WV[rep]+1}""")
WX = [(30, 31, 74, 75), (30, 31, 74, 75)]
PRIV = NW1A // 4 * 1024
WSTG = [(CONV_BASE, 7168), (PRIV - 10240, PRIV)]
WV = [84, 84]
def w_unit_dma(rep, tok):
    sv, x = WU[rep], WX[rep]
    p(f"""s_cmp_eq_u32 s{sv+2}, 224
    s_cselect_b32 s{R_W}, s{sW1}, s{sW2}
    s_cselect_b32 s{R_W+1}, s{sW1+1}, s{sW2+1}
    s_mul_i32 s{t7}, s{sW}, {WSTG[rep][1]}
    s_add_u32 m0, s{t7}, {WSTG[rep][0]}
    s_lshl_b32 s{t7}, s{sv+2}, 2
    s_mov_b32 exec_hi, s{x[3]}""")
    for q in range(8):
        so = x[0] if q < 4 else x[1]
        p(f"buffer_load_dwordx4 v{WV[rep]}, {srd(R_W)}, s{so} offen nt lds", tok_wr=(tok if q == 7 else None))
        if q < 7: p(f"s_add_u32 m0, m0, s{t7}\ns_add_u32 s{so}, s{so}, s{x[2]}")
    p("s_mov_b64 exec, -1")

def row_pattern(dst, tmp):
    p(f"""v_mul_u32_u24 v{tmp}, 205, v0
    v_lshrrev_b32 v{tmp}, 11, v{tmp}
    v_mul_u32_u24 v{dst}, 1120, v{tmp}
    v_lshl_add_u32 v{dst}, v0, 4, v{dst}""")

def dma(e, vaddr, rs, soff, add, m0base, m0add, ehi, elo=None, flags="", tok=None):
    def fn():
        p(f"s_add_u32 m0, s{m0base}, {m0add}\ns_add_u32 s{t2}, s{soff}, {add}\ns_mov_b32 exec_hi, {ehi}")
        if elo is not None: p(f"s_mov_b32 exec_lo, {elo}")
        p(f"buffer_load_dwordx4 v{vaddr}, {srd(rs)}, s{t2} offen{flags} lds", tok_wr=tok)
        p("s_mov_b64 exec, -1")
    e.group(fn, 20)
def bases():
    p(f"""s_and_b32 s{t0}, s{sW}, 1
    s_lshr_b32 s{t1}, s{sW}, 1
    s_lshl_b32 s{sP8}, s{t1}, 3
    s_lshl_b32 s{t2}, s{sA}, 2
    s_add_u32 s{t2}, s{t2}, s{t0}
    s_lshl_b32 s{t3}, s{sM}, 3
    s_add_u32 s{t3}, s{t3}, s{t0}
    s_lshl_b32 s{t4}, s{t1}, 2
    s_add_u32 s{t3}, s{t3}, s{t4}
    s_lshl_b32 s{t4}, s{sB}, 1
    s_add_u32 s{t4}, s{t4}, s{t1}
    s_mul_i32 s{sXR}, s{t3}, 20480
    s_add_u32 s{sXR}, s{sXR}, {WS_XF}
    s_mul_i32 s{t5}, s{t2}, 20480
    s_add_u32 s{t5}, s{t5}, {WS_XF}
    s_lshl_b32 s{sXW}, s{t4}, 10
    s_add_u32 s{sXW}, s{sXW}, s{t5}
    s_lshr_b32 s{sXS}, s{t4}, 2
    s_lshl_b32 s{sXS}, s{sXS}, 10
    s_and_b32 s{t6}, s{t4}, 3
    s_lshl_b32 s{t6}, s{t6}, 2
    s_add_u32 s{sXS}, s{sXS}, s{t6}
    s_add_u32 s{sXS}, s{sXS}, s{t5}
    s_add_u32 s{sXS}, s{sXS}, 16384
    s_mul_i32 s{t5}, s{t3}, 55296
    s_add_u32 s{t5}, s{t5}, {WS_HF}
    s_mul_i32 s{sHW}, s{sN}, 3072
    s_add_u32 s{sHW}, s{sHW}, s{t5}
    s_lshl_b32 s{sHS}, s{sN}, 9
    s_add_u32 s{sHS}, s{sHS}, s{t5}
    s_add_u32 s{sHS}, s{sHS}, 49152
    s_mul_i32 s{sHR}, s{t2}, 55296
    s_mul_i32 s{t5}, s{sW}, 12288
    s_add_u32 s{sHR}, s{sHR}, s{t5}
    s_add_u32 s{sHR}, s{sHR}, {WS_HF}
    s_lshl_b32 s{sFXR}, s{t3}, 6
    s_add_u32 s{sFXR}, s{sFXR}, {WS_FX}
    s_lshl_b32 s{sFXW}, s{t2}, 4
    s_add_u32 s{sFXW}, s{sFXW}, s{t4}
    s_lshl_b32 s{sFXW}, s{sFXW}, 2
    s_add_u32 s{sFXW}, s{sFXW}, {WS_FX}
    s_lshl_b32 s{sFHR}, s{sM}, 8
    s_lshl_b32 s{t5}, s{sW}, 6
    s_add_u32 s{sFHR}, s{sFHR}, s{t5}
    s_and_b32 s{t5}, s{sA}, 1
    s_lshl_b32 s{t5}, s{t5}, 3
    s_add_u32 s{sFHR}, s{sFHR}, s{t5}
    s_add_u32 s{sFHR}, s{sFHR}, {WS_FH}
    s_lshl_b32 s{sFHW}, s{sM}, 4
    s_add_u32 s{sFHW}, s{sFHW}, s{sN}
    s_lshl_b32 s{sFHW}, s{sFHW}, 2
    s_add_u32 s{sFHW}, s{sFHW}, s{sW}
    s_lshl_b32 s{sFHW}, s{sFHW}, 2
    s_add_u32 s{sFHW}, s{sFHW}, {WS_FH}
    s_lshl_b32 s{sSTO}, s{t2}, 12
    s_add_u32 s{sSTO}, s{sSTO}, {WS_ST}
    s_lshl_b32 s{sSTW}, s{t4}, 8
    s_add_u32 s{sSTW}, s{sSTW}, s{sSTO}
    s_lshl_b32 s{sSTR}, s{t3}, 12
    s_add_u32 s{sSTR}, s{sSTR}, {WS_ST}
    s_mul_i32 s{t0}, s{sB}, 54
    s_mul_i32 s{t5}, s{sW}, 12
    s_add_u32 s{t5}, s{t5}, s{t0}
    s_mul_i32 s{sW2B}, s{t5}, 5120
    s_add_u32 s{sW2B}, s{sW2B}, {WS_W2F}
    s_lshl_b32 s{t5}, s{sW}, 1
    s_min_u32 s{t5}, s{t5}, 4
    s_add_u32 s{t5}, s{t5}, s{t0}
    s_add_u32 s{t5}, s{t5}, 48
    s_mul_i32 s{sW2S}, s{t5}, 5120
    s_add_u32 s{sW2S}, s{sW2S}, {WS_W2F}
    s_cmp_eq_u32 s{sW}, 3
    s_cselect_b32 s{sW2S}, 0x70000000, s{sW2S}
    v_add_u32 v{vA1[1]}, 57344, v{vL16}
    v_add_u32 v{vA1[2]}, 114688, v{vL16}""")
CA, CB_, CACC, CAD = 92, 156, 220, 252
vA, vB = 36, 37
def conv_prep():
    p(f"""s_mul_i32 s{t3}, s{sW}, {CONV_PITCH}
    s_add_u32 s{t3}, s{t3}, {CONV_BASE}
    v_mov_b32 v30, 0
    v_mov_b32 v31, 0
    v_add_u32 v32, s{t3}, v{vL8}
    ds_write_b64 v32, v[30:31] offset:{LU_OFF+4096}
    v_add_u32 v32, 1, v{vN}
    v_and_b32 v33, 3, v32
    v_sub_u32 v32, v32, v33
    v_lshlrev_b32 v32, 1, v32
    v_mul_u32_u24 v33, {HC_PITCH}, v33
    v_add3_u32 v{vA}, v32, v33, s{t3}
    v_lshl_add_u32 v{vA}, v{vG}, 4, v{vA}
    v_lshlrev_b32 v32, 5, v{vN}
    v_sub_u32 v32, {LU_OFF + 4064 - 3584}, v32
    v_lshl_add_u32 v32, v{vG}, 4, v32
    v_add_u32 v{vB}, s{t3}, v32
    s_lshl_b32 s{t1}, s{sDVAL}, 16
    s_bitcmp1_b32 s{sW}, 0
    s_cselect_b32 s{t1}, s{sDVAL}, s{t1}
    s_and_b32 s{t1}, s{t1}, 0xffff0000
    s_lshr_b32 s{t2}, s{t1}, 16
    v_lshlrev_b32 v32, 3, v{vG}
    v_add_u32 v32, v32, v{vN}
    v_sub_u32 v32, 15, v32
    v_mov_b32 v33, s{t1}
    v_mov_b32 v34, s{t2}""")
    for r in range(4):
        p(f"""v_cmp_eq_u32 vcc, {2*r}, v32
        v_cndmask_b32 v{CAD+r}, 0, v34, vcc
        v_cmp_eq_u32 vcc, {2*r+1}, v32
        v_cndmask_b32 v{CAD+r}, v{CAD+r}, v33, vcc""")

KN = NAME + "_kernel"
p.raw(f"; @launch grid=(256,1,1) block=(256,1,1) lds={LDS_BYTES}")
p.raw('.amdgcn_target "amdgcn-amd-amdhsa--gfx950"')
p.raw(f".text\n.globl {KN}\n.p2align 8\n.type {KN},@function")
p.label(KN)
p(f"""s_cmp_ge_u32 s2, 256
s_cbranch_scc1 END
s_load_dwordx16 s[4:19], s[0:1], 0
s_load_dwordx8 s[20:27], s[0:1], 64
s_load_dwordx2 s[28:29], s[0:1], 96
s_getpc_b64 {pair(t6)}
s_lshr_b32 s{sSIG}, s2, 3
s_lshl_b32 s{t0}, s{sSIG}, 11
v_lshl_add_u32 v30, v0, 3, s{t0}
global_load_dword v{JUNK}, v30, {pair(t6)}""")
if STAMPS: p(f"v_mov_b32 v{vSTAMP}, 0")
stamp("start")
p(f"""v_lshrrev_b32 v30, 6, v0
v_and_b32 v0, 63, v0
v_readfirstlane_b32 s{sW}, v30
s_and_b32 s{sJ}, s2, 7
v_lshlrev_b32 v{vL8}, 3, v0
v_and_b32 v{vN}, 15, v0
v_lshrrev_b32 v{vG}, 4, v0
v_lshlrev_b32 v{vL16}, 4, v0
s_mov_b32 s{R_W+3}, 0x20000
s_mov_b64 s[{R_W}:{R_W+1}], s[0:1]
s_mov_b32 s{R_W+2}, 0""")
row_pattern(38, 30)
p(f"""s_lshl_b32 s{t4}, s{sJ}, 9
s_add_u32 s{t4}, s{t4}, {WS_FT}
v_add_u32 v35, s{t4}, v{vL8}
s_lshl_b32 s{t5}, s2, 2
s_add_u32 s{t5}, s{t5}, s{sW}
s_lshl_b32 s{t6}, s{t5}, 7
s_add_u32 s{t6}, s{t6}, {WS_FY}
v_writelane_b32 v35, s{t6}, 4
s_add_u32 s{t6}, s{t6}, {WS_FW1 - WS_FY}
v_writelane_b32 v35, s{t6}, 8
s_lshl_b32 s{t5}, s{t5}, 8
v_writelane_b32 v35, s{t5}, 2
s_add_u32 s{t5}, s{t5}, 128
v_writelane_b32 v35, s{t5}, 3
s_add_u32 s{t6}, s{t4}, {WS_FL - WS_FT}
v_writelane_b32 v35, s{t6}, 5
s_add_u32 s{t6}, s{t6}, 128
v_writelane_b32 v35, s{t6}, 6
s_add_u32 s{t6}, s{t6}, 128
v_writelane_b32 v35, s{t6}, 7
s_lshl_b32 s{t0}, s{sSIG}, 2
s_add_u32 s{t0}, s{t0}, s{sW}
s_mul_i32 s{t1}, s{t0}, 20480
s_mul_i32 s{t2}, s{sJ}, 160
s_add_u32 s{t1}, s{t1}, s{t2}
v_add_u32 v38, s{t1}, v38
v_subrev_u32 v39, 5120, v38
s_mov_b32 s{R_K+2}, 2621440
s_mov_b32 s{R_K+3}, 0x20000
s_mov_b32 s{R_V+2}, 2621440
s_mov_b32 s{R_V+3}, 0x20000
s_mul_i32 s{t2}, s{sJ}, 640
v_lshl_add_u32 v30, v{vN}, 3, s{t2}
s_mul_i32 s{sG}, s{sJ}, 20
s_min_u32 s{t1}, s{sSIG}, 19
s_add_u32 s{sG}, s{sG}, s{t1}
s_lshl_b32 s{t3}, s{sG}, 2
s_add_u32 s{t3}, s{t3}, s{sW}
s_lshl_b32 s{t1}, s{t3}, 1
s_and_b32 s{t2}, s{t1}, 0xfffc
s_waitcnt lgkmcnt(0)
s_load_dword s{sE}, {pair(sWS)}, {WS_EPOCH}
s_load_dword s{sDVAL}, {pair(sD)}, s{t2}
global_load_dword v{JUNK}, v35, {pair(sWS)} sc1""")
SKP = 40
for dt in range(5):
    p(f"global_load_dwordx2 {vr(SKP+2*dt,2)}, v30, {pair(sSK)} offset:{128*dt}")
tokW = [p.tok()]
tokT = p.tok()
def kv_dma():
    p(f"""s_mov_b32 s{R_K}, s{sK}
    s_mov_b32 s{R_K+1}, s{sK+1}
    s_mov_b32 s{R_V}, s{sV}
    s_mov_b32 s{R_V+1}, s{sV+1}
    s_mul_i32 m0, s{sW}, {TW_PITCH}
    s_mov_b32 exec_hi, 0x3ffff""")
    for q in range(4):
        p(f"buffer_load_dwordx4 v39, {srd(R_K)}, 0 offen{NT('kv', 1)} lds\ns_add_u32 m0, m0, 800")
        if q < 3: p(f"v_add_u32 v39, 6400, v39")
    for q in range(4):
        if q == 3: p("s_mov_b32 exec_hi, 0\ns_mov_b32 exec_lo, 0x3ff")
        p(f"buffer_load_dwordx4 v38, {srd(R_V)}, 0 offen{NT('kv', 1)} lds", tok_wr=tokT)
        if q < 3: p(f"s_add_u32 m0, m0, 800\nv_add_u32 v38, 6400, v38")
    p("s_mov_b64 exec, -1")
kv_dma()
tokW = [p.tok(), p.tok()]
stamp('iss0')
p(f"""s_mov_b32 s{R_WS+2}, 0x10000000
s_mov_b32 s{R_WS+3}, 0x20000
s_mov_b32 s{R_H+2}, 2621440
s_mov_b32 s{R_H+3}, 0x20000
s_lshl_b32 s{t3}, s{t3}, 12
s_sub_u32 s{t3}, s{t3}, 32
s_cmp_lt_u32 s{sSIG}, 20
s_cselect_b32 s{t3}, s{t3}, 0x70000000
v_add_u32 v{vHOFF}, s{t3}, v{vL16}
s_mov_b32 s{R_H}, s{sH}
s_mov_b32 s{R_H+1}, s{sH+1}""")
def common_setup(tagl):
    p(f"""s_mov_b32 s{R_WS}, s{sWS}
    s_mov_b32 s{R_WS+1}, s{sWS+1}
    s_lshr_b32 s{t0}, s{sSIG}, 3
    s_lshl_b32 s{sA}, s{sJ}, 2
    s_add_u32 s{sA}, s{sA}, s{t0}
    s_and_b32 s{sB}, s{sSIG}, 7
    s_lshr_b32 s{sM}, s{sA}, 1
    s_and_b32 s{sN}, s{sSIG}, 15
    s_getreg_b32 s{sXV}, hwreg(HW_REG_XCC_ID)
    s_lshl_b32 s{sXV}, s{sXV}, 28
    s_lshl_b32 s{t0}, s{sJ}, 5
    s_add_u32 s{t0}, s{t0}, s{sSIG}
    s_lshl_b32 s{t0}, s{t0}, 5
    s_add_u32 s{t0}, s{t0}, {WS_XC}
    v_mov_b32 v30, 0
    s_mul_i32 s{sTAG}, s{sE}, 0x9E3779B1
    s_add_u32 s{sTAG}, s{sTAG}, 0x7F4A7C15
    s_xor_b32 s{sTAG2}, s{sTAG}, 0x5bd1e995
    s_xor_b32 s{sXV}, s{sXV}, s{sTAG}
    v_mov_b32 v31, s{sXV}
    s_cmp_eq_u32 s{sW}, 0
    s_cselect_b32 s{t0}, s{t0}, 0x70000000
    buffer_store_dword v31, v30, {WSR}, s{t0} offen sc1""")
    stamp("xpub")
    bases()
common_setup(0)
SKC = 92
for dt in range(5):
    a_, c = SKP + 2 * dt, SKC + 5 * dt
    p(f"""v_alignbit_b32 v{c}, v{a_}, v{a_}, 16
    v_alignbit_b32 v{c+1}, v{a_+1}, v{a_+1}, 16
    v_and_b32 v{c+2}, 0xffff, v{a_}
    v_and_b32 v{c+4}, 0xffff0000, v{a_+1}
    v_and_b32 v{c+3}, 0xffff0000, v{a_}
    v_and_b32 v{a_+1}, 0xffff, v{a_+1}
    v_or_b32 v{c+3}, v{c+3}, v{a_+1}""")
p(f"s_cmp_ge_u32 s{sSIG}, 20\ns_cbranch_scc1 PREP_W")
conv_prep()
w_unit_params(1)
p.label("PREP_DONE")
def prep_w():
    p.label("PREP_W")
    w_unit_params(0)
    if opt("w0e", 0) == 2: w_unit_dma(0, tokW[0])
    p("s_branch PREP_DONE")
tail_code.append(prep_w)
p(f"""v_lshrrev_b32 v30, 2, v0
v_mul_u32_u24 v30, 160, v30
v_and_b32 v31, 3, v0
v_lshl_add_u32 v30, v31, 3, v30
s_mul_i32 s{t3}, s{sW}, {TW_PITCH}
v_add_u32 v56, s{t3}, v30
s_lshl_b32 s{t2}, s{sW}, 5
s_sub_u32 s{t2}, {UT_BASE + 120}, s{t2}
v_mul_u32_u24 v57, 144, v{vN}
v_lshlrev_b32 v32, 3, v{vG}
v_sub_u32 v57, v57, v32
v_add_u32 v57, s{t2}, v57
s_mul_i32 s{t0}, s{sJ}, {80*4096}
s_lshl_b32 s{t2}, s{sSIG}, 7
s_sub_u32 s{t0}, s{t0}, s{t2}
s_lshl_b32 s{t2}, s{sW}, 15
s_add_u32 s{t0}, s{t0}, s{t2}
s_add_u32 s{t0}, s{t0}, {WS_UR + 3968}
v_lshrrev_b32 v60, 3, v0
v_and_b32 v61, 7, v0
v_lshlrev_b32 v61, 4, v61
v_lshl_add_u32 v62, v60, 12, v61
v_mul_u32_u24 v60, 144, v60
s_mul_i32 s{t2}, s{sW}, 1152
s_add_u32 s{t2}, s{t2}, {UT_BASE}
v_add3_u32 v60, v60, v61, s{t2}
s_lshl_b32 s{t5}, s{sJ}, 5
s_add_u32 s{t5}, s{t5}, s{sSIG}
s_lshl_b32 s{t5}, s{t5}, 2
s_add_u32 s{t5}, s{t5}, s{sW}
s_lshl_b32 s{t5}, s{t5}, 2
s_add_u32 s{t5}, s{t5}, {WS_FT}
s_add_u32 s{t1}, s{t0}, {4*32768}
s_add_u32 s{t2}, s{t0}, {8*32768}
s_cmp_lt_u32 s{sW}, 2
s_cselect_b32 s{t2}, s{t2}, 0x70000000
""")
stamp("issued")
def w_process(rep, st):
    sv = WU[rep]
    SK = p.L("WSKIP")
    tk = p.tok()
    p.need(tokW[rep])
    st(f"W_in{rep}")
    for ft in range(7):
        p(f"ds_read_b64_tr_b16 {vr(200+4*ft,2)}, v{WV[rep]+1} offset:{32*ft}\nds_read_b64_tr_b16 {vr(202+4*ft,2)}, v{WV[rep]+2} offset:{32*ft}")
    for ft in range(7):
        if ft == 5: p(f"s_cmp_lt_u32 s{sv+2}, 224\ns_cbranch_scc1 {SK}")
        if ft == 4: p(f"s_add_u32 s{sv}, s{sv}, 4096")
        p(f"buffer_store_dwordx4 {vr(200+4*ft,4)}, v{vL16}, {WSR}, s{sv} offen offset:{1024*(ft%4)} sc1", tok_wr=tk)
    if rep == 0:
        p(f"v_mov_b32 v64, 0x3f803f80\nv_mov_b32 v65, 0x3f803f80\nv_mov_b32 v66, 0x3f803f80\nv_mov_b32 v67, 0x3f803f80\nv_lshlrev_b32 v68, 4, v{vG}")
        for ft in range(7):
            p(f"{MF} {vr(120+4*ft,4)}, {vr(200+4*ft,4)}, v[64:67], 0")
        p("s_nop 7\ns_mov_b32 exec_lo, 0x00010001\ns_mov_b32 exec_hi, 0x00010001")
        for ft in range(7):
            p(f"buffer_store_dwordx4 {vr(120+4*ft,4)}, v68, {WSR}, s{sv+3} offen offset:{64*ft} sc1", tok_wr=tk)
        p("s_mov_b64 exec, -1")
    p.label(SK)
    return tk
if opt("w0e", 0) == 2:
    p(f"s_cmp_ge_u32 s{sSIG}, 20\ns_cbranch_scc1 KVW\ns_waitcnt vmcnt(1)\ns_branch KVD")
    p.label("KVW")
    p("s_waitcnt vmcnt(9)")
    p.label("KVD")
else:
    p.need(tokT)
stamp("kv_in")
KB = [148 - 28 + 6 * dt + 0 for dt in range(5)]
KB = [120 + 6 * dt for dt in range(5)]
for dt in range(5):
    b = KB[dt]
    p(f"ds_read_b64_tr_b16 {vr(b,2)}, v56 offset:{32*dt}\nds_read_b64_tr_b16 {vr(b+2,2)}, v56 offset:{32*dt+640}\nds_read_b64_tr_b16 {vr(b+4,2)}, v56 offset:{32*dt+3200}")
W0E = opt("w0e", 0)
p(f"s_cmp_ge_u32 s{sSIG}, 20\ns_cbranch_scc1 ROLE_W")
h_loads()
p.label("ROLE_DONE")
def role_w():
    p.label("ROLE_W")
    if W0E == 1: w_unit_dma(0, tokW[0])
    p("s_branch ROLE_DONE")
tail_code.append(role_w)
tokU = p.tok()
for dt in range(5):
    b, c, o, vv, st = KB[dt], SKC + 5 * dt, 150, 154, 158 + 2 * (dt & 1)
    p(f"""v_dot2_f32_bf16 v{o}, v{b}, v{c+4}, 0
    v_dot2_f32_bf16 v{o+1}, v{b+1}, v{c+1}, 0
    v_dot2_f32_bf16 v{o+2}, v{b+1}, v{c+4}, 0
    v_dot2_f32_bf16 v{o+3}, v{b+2}, v{c+1}, 0
    v_lshlrev_b32 v{vv}, 16, v{b+4}
    v_and_b32 v{vv+1}, 0xffff0000, v{b+4}
    v_dot2_f32_bf16 v{o}, v{b+1}, v{c+3}, v{o}
    v_dot2_f32_bf16 v{o+1}, v{b+2}, v{c}, v{o+1}
    v_dot2_f32_bf16 v{o+2}, v{b+2}, v{c+3}, v{o+2}
    v_dot2_f32_bf16 v{o+3}, v{b+3}, v{c}, v{o+3}
    v_dot2_f32_bf16 v{o}, v{b+2}, v{c+2}, v{o}
    v_dot2_f32_bf16 v{o+2}, v{b+3}, v{c+2}, v{o+2}
    v_lshlrev_b32 v{vv+2}, 16, v{b+5}
    v_and_b32 v{vv+3}, 0xffff0000, v{b+5}
    s_nop 0
    v_pk_mul_f32 {vr(o,2)}, {vr(o,2)}, {vr(vv,2)}
    v_pk_mul_f32 {vr(o+2,2)}, {vr(o+2,2)}, {vr(vv+2,2)}
    v_cvt_pk_bf16_f32 v{st+1}, v{o+1}, v{o}
    v_cvt_pk_bf16_f32 v{st}, v{o+3}, v{o+2}
    ds_write_b64 v57, {vr(st,2)} offset:{2304*dt}""")
stamp("T_calc")
p("s_waitcnt lgkmcnt(0)\ns_barrier")
for q in range(3):
    p(f"ds_read_b128 {vr(92+4*q,4)}, v60 offset:{4608*q}")
for q in range(3):
    p(f"buffer_store_dwordx4 {vr(92+4*q,4)}, v62, {WSR}, s{(t0, t1, t2)[q]} offen sc1", tok_wr=tokU)
stamp("u_st")
p(f"""s_mul_i32 s{t3}, s{sW}, {CONV_PITCH}
s_add_u32 s{t3}, s{t3}, {CONV_BASE}
v_add_u32 v33, s{t3}, v{vL16}""")
p(f"s_cmp_ge_u32 s{sSIG}, 20\ns_cbranch_scc1 HB1")
h_build(opt("hb1", 2))
p.label("HB1")
p(f"""v_mov_b32 v30, s{sTAG}
v_mov_b32 v31, 0
s_waitcnt vmcnt(0)
buffer_store_dword v30, v31, {WSR}, s{t5} offen""")
stamp("T_pub")
p(f"""s_lshl_b32 s{t4}, s{sJ}, 10
s_add_u32 s{t4}, s{t4}, {WS_XC}
v_and_b32 v63, 31, v0
v_lshlrev_b32 v63, 5, v63
buffer_load_dword v62, v63, {WSR}, s{t4} offen sc1""")
p(f"s_cmp_ge_u32 s{sSIG}, 20\ns_cbranch_scc1 MID_W")
h_build(None)
def mid_w():
    p.label("MID_W")
    if not W0E: w_unit_dma(0, tokW[0])
    tk = w_process(0, stamp)
    p(f"v_mov_b32 v30, s{sTAG}\nv_mov_b32 v31, 0")
    p.need(tk)
    p(f"buffer_store_dword v30, v31, {WSR}, s{WU[0]+1} offen sc1")
    stamp("W_done")
    p("s_branch CHECK")
tail_code.append(mid_w)
p.label("CHECK")
p(f"s_mov_b32 s{sSPIN}, 0\ns_branch VER2")
p.label("VER")
p(f"""s_sleep 1
s_add_u32 s{sSPIN}, s{sSPIN}, 1
s_cmp_gt_u32 s{sSPIN}, {SPIN}
s_cbranch_scc1 SLOW
buffer_load_dword v62, v63, {WSR}, s{t4} offen sc1""")
p.label("VER2")
p(f"""v_xor_b32 v62, s{sXV}, v62
v_cmp_ne_u32 vcc, 0, v62
s_cbranch_vccz {'SLOW' if FORCE_SLOW else 'FAST'}
v_and_b32 v62, 0x0fffffff, v62
v_cmp_ne_u32 vcc, 0, v62
s_cbranch_vccnz VER
s_branch SLOW""")

def body(slow):
    PF = "S" if slow else "F"
    sc = " sc1" if slow else ""
    lab = lambda n: f"{PF}_{n}"
    st = (lambda n, e=None: None) if slow else stamp
    LX = lambda stride, layer: stride * layer if slow else 0
    TG = lambda layer: sTAG2 if layer else sTAG
    HPW = opt("hpw", 0)
    WT = lambda layer, s=0: " sc1" if (slow or (layer == 0 and not HPW) or opt("wt1", 1) in (1, 3 - s)) else ""
    p.label("SLOW" if slow else "FAST")
    st("verified")
    if slow:
        p(f"v_mov_b32 v30, s{sTAG}\nv_mov_b32 v31, 0\ns_add_u32 s{t0}, s{t5}, {WS_FTR - WS_FT}\nbuffer_store_dword v30, v31, {WSR}, s{t0} offen sc1")
    def xy_offset(dst):
        p(f"""s_and_b32 s{t1}, s{sW}, 1
        s_lshl_b32 s{t0}, s{sA}, 2
        s_add_u32 s{t0}, s{t0}, s{t1}
        s_mul_i32 s{t0}, s{t0}, 20480
        s_mul_i32 s{t1}, s{sB}, 160
        s_add_u32 s{t0}, s{t0}, s{t1}
        s_lshr_b32 s{t1}, s{sW}, 1
        s_lshl_b32 s{t1}, s{t1}, 2
        s_add_u32 s{t0}, s{t0}, s{t1}
        v_mul_u32_u24 v{dst}, 1280, v{vN}
        v_lshl_add_u32 v{dst}, v{vG}, 3, v{dst}
        v_add_u32 v{dst}, s{t0}, v{dst}
        v_add_u32 v{dst+1}, 40960, v{dst}""")
    def x0_dma(e, base, gap=0, pitch=PRIV):
        e.group(lambda: (row_pattern(83, 30), p(f"""s_lshl_b32 s{t0}, s{sA}, 2
        s_and_b32 s{t1}, s{sW}, 1
        s_add_u32 s{t0}, s{t0}, s{t1}
        s_mul_i32 s{t0}, s{t0}, 20480
        s_mul_i32 s{t1}, s{sB}, 160
        s_add_u32 s{t6}, s{t0}, s{t1}
        s_mov_b32 s{R_H}, s{sQ}
        s_mov_b32 s{R_H+1}, s{sQ+1}
        s_mul_i32 s{t7}, s{sW}, {pitch}""")), 60)
        tk = p.tok()
        for q in range(8):
            s_, r = q >> 2, q & 3
            dma(e, 83, R_H, t6, 40960 * s_ + 6400 * r, t7, base + 2560 * s_ + 800 * r, 0x3ffff if r < 3 else 0, None if r < 3 else 0x3ff, " nt", tk)
            if gap: e.skip(gap)
        return tk
    def x0_read(e, tk, base, pitch=PRIV):
        e(f"""s_mul_i32 s{t0}, s{sW}, {pitch}
        s_lshr_b32 s{t1}, s{sP8}, 1
        s_add_u32 s{t0}, s{t0}, s{t1}
        s_add_u32 s{t0}, s{t0}, {base}
        v_mul_u32_u24 v30, 160, v{vN}
        v_lshl_add_u32 v30, v{vG}, 3, v30
        v_add_u32 v30, s{t0}, v30""")
        e.need(tk)
        for s in range(2):
            for dt in range(5): e(f"ds_read_b32 v{XP[s]+dt}, v30 offset:{2560*s + 32*dt}")
        e.skip(6)
    def flag_prewarm(e):
        if not slow:
            e(f"""v_and_b32 v30, 1, v0
            v_lshlrev_b32 v31, 7, v30
            v_add_u32 v31, s{sFXW}, v31
            v_lshlrev_b32 v30, 12, v30
            v_add_u32 v30, s{sFHW}, v30
            v_cmp_gt_u32 vcc, 2, v0
            v_cndmask_b32 v30, v30, v31, vcc
            v_and_b32 v31, 7, v0
            v_lshlrev_b32 v31, 7, v31
            v_bfe_u32 v32, v0, 3, 1
            v_mul_u32_u24 v32, 40960, v32
            v_add3_u32 v31, v31, v32, s{sXS}
            v_cmp_gt_u32 vcc, 32, v0
            v_cndmask_b32 v30, v31, v30, vcc
            s_sub_u32 s{t0}, s{sXW}, s{sXS}
            v_add_u32 v31, s{t0}, v31
            v_cmp_gt_u32 vcc, 48, v0
            v_cndmask_b32 v30, v31, v30, vcc
            v_and_b32 v31, 1, v0
            v_lshlrev_b32 v31, 7, v31
            v_bfe_u32 v32, v0, 1, 1
            v_lshl_add_u32 v31, v32, 13, v31
            s_add_u32 s{t0}, s{sSTW}, {ST_K}
            v_add_u32 v31, s{t0}, v31
            v_bfe_u32 v32, v0, 2, 4
            v_cmp_eq_u32 vcc, 1, v32
            v_cndmask_b32 v30, v30, v31, vcc
            v_subrev_u32 v31, {ST_K}, v31
            v_cmp_eq_u32 vcc, 2, v32
            v_cndmask_b32 v30, v30, v31, vcc
            buffer_load_dword v{JUNK}, v30, {WSR}, 0 offen sc1""")
    X32, G0 = [38, 48], [58, 220 - 220 + 58]
    G0 = [58, 74]
    def x0_stats(e, unp=True):
        for s in range(2):
            if unp: unpack(e, X32[s], XP[s], 5)
            e(f"s_add_u32 s{t0}, s{sSTW}, {8192*s}")
            stats_publish(e, X32[s], G0[0], t0, 0, slow)
    def x0_norm(e):
        for s in range(2):
            late_check(e, stats_loads(G0[s], (t3, t4)[s]), stats_tags(G0[s]), 32, False)
            stats_finish(e, G0[s], 30)
            e(f"v_mul_f32 v32, -v30, v31")
            for i in range(10): e(f"v_fma_f32 v{G0[s]+i}, v{X32[s]+i}, v31, v32")
    XN0 = G0
    def w_flag_addr(e, dst):
        e.group(lambda: p(f"""v_and_b32 v33, 31, v0
        s_mul_i32 s{t1}, s{sW}, 12
        v_add_u32 v{dst}, s{t1}, v33
        s_lshl_b32 s{t2}, s{sW}, 1
        s_add_u32 s{t2}, s{t2}, 36
        v_add_u32 v{dst+1}, s{t2}, v33
        v_cmp_gt_u32 vcc, 12, v33
        v_cndmask_b32 v{dst}, v{dst+1}, v{dst}, vcc
        s_add_u32 s{t2}, s{t2}, 13
        s_min_u32 s{t2}, s{t2}, 53
        v_min_u32 v{dst}, s{t2}, v{dst}
        s_mul_i32 s{t1}, s{sB}, {54*128}
        s_add_u32 s{t1}, s{t1}, {WS_FW2}
        v_lshl_add_u32 v{dst}, v{dst}, 7, s{t1}
        v_min_u32 v{dst+1}, 19, v0
        s_mul_i32 s{t1}, s{sN}, {20*128}
        s_add_u32 s{t1}, s{t1}, {WS_FW1}
        v_lshl_add_u32 v{dst+1}, v{dst+1}, 7, s{t1}
        s_lshr_b32 s{t1}, s{sP8}, 2
        v_xor_b32 v{vW2}, s{t1}, v0
        v_lshlrev_b32 v{vW2}, 4, v{vW2}
        s_mul_i32 s{sGOTA}, s{sN}, 143360
        s_add_u32 s{sGOTA}, s{sGOTA}, {WS_W1F}"""), 100)
    def w1_one(e, base_reg, idx):
        if opt("now1", 0): return
        def fn():
            p(f"s_add_u32 m0, s{base_reg}, {1024*idx}\ns_add_u32 s{t2}, s{sGOTA}, m0")
            return p(f"buffer_load_dwordx4 v{vL16}, {WSR}, s{t2} offen{' sc1' if opt('w1sc', 1) else ''} lds")
        e.group(fn, 12)
    vW2 = 35
    NW2E = 0
    def w2_loads(e, q0, q1, vaddr):
        if opt("now2", 0): return
        for q in range(q0, q1):
            sb, qq = (sW2B, q) if q < 60 else (sW2S, q - 60)
            if qq % 4 == 0 and qq > 0: e(f"s_add_u32 s{sb}, s{sb}, 4096")
            e(f"buffer_load_dwordx4 {w2reg(q)}, v{vaddr}, {WSR}, s{sb} offen offset:{1024*(qq%4)}{' sc1' if opt('w2sc', 1) else ''}")
    p(f"s_cmp_ge_u32 s{sSIG}, 20\ns_cbranch_scc1 {lab('W_PHASE')}")
    p(f"""s_lshl_b32 s{t0}, s{sJ}, 9
    s_add_u32 s{t0}, s{t0}, {WS_FTR if slow else WS_FT}""")
    for t in range(8):
        p(f"ds_read_b64 {vr(CA+4*t,2)}, v{vA} offset:{512*t}\nds_read_b64 {vr(CA+4*t+2,2)}, v{vA} offset:{512*t+8}")
    w_flag_addr(D, 90)
    spin_wait(f"buffer_load_dwordx2 v[30:31], v{vL8}, {WSR}, s{t0} offen sc1", [30, 31], False, nap=(1 if not slow else 4))
    st("T_seen")
    tokUin = p.tok()
    p(f"""s_lshl_b32 s{t0}, s{sG}, 2
    s_add_u32 s{t0}, s{t0}, s{sW}
    s_lshl_b32 s{t0}, s{t0}, 12
    s_add_u32 s{t0}, s{t0}, {WS_UR}
    s_add_u32 m0, s{t3}, {LU_OFF}""")
    for q in range(4):
        p(f"buffer_load_dwordx4 v{vL16}, {WSR}, s{t0} offen offset:{1024*q} sc1 lds", tok_wr=(tokUin if q == 3 else None))
    p.need(tokUin)
    st("u_in")
    for m in range(8):
        p(f"ds_read_b128 {vr(CB_+4*m,4)}, v{vB} offset:{3584-512*m}")
    beats = [[f"{MF} {vr(CACC+4*j,4)}, {vr(CAD,4)}, {vr(CB_+4*j,4)}, 0"] for j in range(8)]
    for p0 in range(8):
        buf = p0 & 1
        reads = []
        if p0 < 7:
            for t in range(8):
                bb, ba = CB_ + 32 * (1 - buf) + 4 * t, CA + 32 * (1 - buf) + 4 * t
                reads += [f"ds_read_b128 {vr(bb,4)}, v{vB} offset:{3584-512*t+64*(p0+1)}",
                          f"ds_read_b64 {vr(ba,2)}, v{vA} offset:{64*(p0+1)+512*t}",
                          f"ds_read_b64 {vr(ba+2,2)}, v{vA} offset:{64*(p0+1)+512*t+8}"]
        prs = sorted([(t, m) for t in range(8) for m in range(8) if t + m <= 7], key=lambda x: (max(x), x[0] + x[1]))
        for i, (t, m) in enumerate(prs):
            b = [f"{MF} {vr(CACC+4*(t+m),4)}, {vr(CA+32*buf+4*t,4)}, {vr(CB_+32*buf+4*m,4)}, {vr(CACC+4*(t+m),4)}"]
            if i >= 8 and reads: b.append(reads.pop(0))
            beats.append(b)
    F = Fill()
    gap = opt("cgap", 1)
    wfl1 = f"buffer_load_dword v34, v91, {WSR}, 0 offen sc1"
    wfl2 = f"buffer_load_dword v34, v90, {WSR}, 0 offen sc1"
    na = NW1A // 4
    ar = lambda b, n: f"a[{b}:{b+n-1}]"
    tkw = p.tok()
    F(f"s_mov_b32 s{R_W}, s{sW2}\ns_mov_b32 s{R_W+1}, s{sW2+1}\ns_mul_i32 s{t5}, s{sW}, {PRIV}")
    for q in range(8):
        dma(F, WV[1], R_W, WX[1][q >> 2], 5120 * (q & 3), t5, PRIV - 10240 + 640 * q, 0xff, None, " nt", tkw)
        F.skip(1)
    tkx = x0_dma(F, PRIV - 5120, 1)
    flag_prewarm(F)
    F(f"v_mov_b32 v26, v{WV[1]+1}")
    F.until(opt("x0_at", 205))
    x0_read(F, tkx, PRIV - 5120)
    x0_stats(F)
    F(wfl1)
    YT = 156
    F3 = Fill()
    F3(f"""s_mul_i32 s{t3}, s{sW}, {CONV_PITCH}
    s_add_u32 s{t3}, s{t3}, {CONV_BASE}
    v_lshlrev_b32 v108, 5, v{vN}
    v_lshl_add_u32 v108, v{vG}, 3, v108
    v_add_u32 v108, s{t3}, v108
    v_bfe_u32 v109, v0, 2, 2
    v_mul_u32_u24 v109, {CONV_PITCH}, v109
    v_and_b32 v110, 3, v0
    v_lshl_add_u32 v109, v110, 3, v109
    v_lshl_add_u32 v109, v{vG}, 5, v109
    s_lshl_b32 s{t0}, s{sW}, 10
    s_add_u32 s{t0}, s{t0}, {CONV_BASE}
    v_add_u32 v109, s{t0}, v109
    v_mul_u32_u24 v110, 20480, v{vG}
    v_lshl_add_u32 v110, v{vN}, 3, v110
    s_mul_i32 s{t4}, s{sW}, {32*20480}
    s_lshl_b32 s{t1}, s{sG}, 7
    s_add_u32 s{t4}, s{t4}, s{t1}
    s_add_u32 s{t4}, s{t4}, {WS_YG}
    s_lshl_b32 s{t0}, s{sG}, 9
    s_lshl_b32 s{t1}, s{sW}, 7
    s_add_u32 s{t0}, s{t0}, s{t1}
    s_add_u32 s{t0}, s{t0}, {WS_FY}
    v_mov_b32 v111, s{t0}
    s_lshl_b32 s{t0}, s{sJ}, 5
    s_add_u32 s{t0}, s{t0}, s{sSIG}
    s_lshl_b32 s{t0}, s{t0}, 4
    s_lshr_b32 s{t1}, s{t1}, 5
    s_add_u32 s{t0}, s{t0}, s{t1}
    s_add_u32 s{t0}, s{t0}, {WS_FL}
    v_mov_b32 v112, s{t0}
    v_mov_b32 v113, s{sTAG}""")
    merge(beats[:266], F)
    st("conv_cut")
    merge(beats[266:], F3)
    st("conv_done")
    for j in range(8):
        p(f"v_cvt_pk_bf16_f32 v{92+2*j}, v{CACC+4*j}, v{CACC+4*j+1}\nv_cvt_pk_bf16_f32 v{93+2*j}, v{CACC+4*j+2}, v{CACC+4*j+3}")
        p(f"ds_write_b64 v108, {vr(92+2*j,2)} offset:{512*j}")
    p("s_waitcnt lgkmcnt(0)\ns_barrier")
    for q in range(8):
        p(f"ds_read_b64_tr_b16 {vr(YT+2*q,2)}, v109 offset:{128*q}")
    tky = p.tok()
    for q in range(8):
        p(f"buffer_store_dwordx2 {vr(YT+2*q,2)}, v110, {WSR}, s{t4} offen sc1", tok_wr=tky)
        if q < 7: p(f"s_add_u32 s{t4}, s{t4}, 81920")
    p(f"buffer_store_dword v113, v112, {WSR}, 0 offen{sc}")
    st("y_iss")
    p(f"s_mov_b32 s{t3}, s{sSTO}\ns_add_u32 s{t4}, s{sSTO}, 8192")
    p(stats_loads(G0[0], t3)); p(stats_loads(G0[1], t4))
    for ft in range(5):
        p(f"ds_read_b64_tr_b16 {vr(192+4*ft,2)}, v26 offset:{32*ft}\nds_read_b64_tr_b16 {vr(194+4*ft,2)}, v26 offset:{32*ft+2560}")
    p.need(tky)
    p(f"buffer_store_dword v113, v111, {WSR}, 0 offen sc1")
    st("y_st")
    for ft in range(5):
        if ft == 4: p(f"s_add_u32 s{WU[1]}, s{WU[1]}, 4096")
        p(f"buffer_store_dwordx4 {vr(192+4*ft,4)}, v{vL16}, {WSR}, s{WU[1]} offen offset:{1024*(ft%4)} sc1")
    NAC, NAI = opt("nac", 12), opt("nai", 12)
    late_check(D, wfl1, [34], 32, False)
    st("w_late")
    p(f"s_mul_i32 s{t5}, s{sW}, {PRIV}")
    for q in range(NAC): w1_one(D, t5, q)
    x0_norm(D)
    p(f"s_branch {lab('W1DONE')}")

    p.label(lab("W_PHASE"))
    w_flag_addr(D, 90)
    tkx = x0_dma(D, RED_BASE, pitch=5120)
    flag_prewarm(D)
    p(f"s_cmp_lg_u32 s{sW}, 0\ns_cbranch_scc1 {lab('NOWP')}")
    spin_wait(wfl1, [34], False, nap=opt("wnap", 6))
    p.label(lab("NOWP"))
    p("s_barrier")
    st("w_flags")
    nb_ = (140 - NW1A) // 4
    def w1_range(q0, q1):
        if q0 < na: p(f"s_mul_i32 s{t5}, s{sW}, {PRIV}")
        for q in range(q0, q1):
            if q >= na and (q == na or q == q0): p(f"s_mul_i32 s{t5}, s{sW}, {nb_*1024}\ns_add_u32 s{t5}, s{t5}, {NW1A*1024}")
            w1_one(D, t5, q if q < na else q - na)
    x0_read(D, tkx, RED_BASE, pitch=5120)
    x0_stats(D)
    w1_range(0, NAI)
    p(f"""s_sub_u32 s{t0}, s{sSIG}, 20
    s_lshl_b32 s{t0}, s{t0}, 2
    s_add_u32 s{t0}, s{t0}, s{sW}
    s_mul_i32 s{t0}, s{t0}, {2*8192}
    s_add_u32 s{t0}, s{t0}, {WS_W1F}
    s_cmp_lt_u32 s{t0}, {WS_W1F + 4*143360}
    s_cselect_b32 s{t0}, s{t0}, 0x70000000
    s_add_u32 s{t1}, s{t0}, 8192
    v_lshlrev_b32 v30, 7, v0
    v_min_u32 v31, 79, v0
    v_lshlrev_b32 v31, 7, v31
    s_mov_b32 s{t2}, {WS_FW1}""")
    if not slow:
        p("s_waitcnt vmcnt(8)")
        p(f"buffer_load_dword v{JUNK}, v30, {WSR}, s{t0} offen sc1\nbuffer_load_dword v{JUNK}, v30, {WSR}, s{t1} offen sc1")
    p(f"""s_cmp_lg_u32 s{sSIG}, 31
    s_cbranch_scc1 {lab('NOCB')}
    s_cmp_gt_u32 s{sW}, 1
    s_cbranch_scc1 {lab('NOCB')}
    s_lshl_b32 s{t5}, s{sJ}, 1
    s_add_u32 s{t5}, s{t5}, s{sW}
    v_min_u32 v30, 19, v0
    s_mul_i32 s{t1}, s{t5}, {20*128}
    v_lshl_add_u32 v30, v30, 7, s{t1}
    s_mov_b32 s{t0}, {WS_FW1}
    s_mul_i32 s{t2}, s{t5}, 7
    s_mul_i32 s{t3}, s{t5}, 6
    s_add_u32 s{t3}, s{t3}, 12
    s_cmp_ge_u32 s{t5}, 12
    s_cselect_b32 s{t2}, s{t3}, s{t2}
    s_lshl_b32 s{t2}, s{t2}, 5
    v_min_u32 v32, 27, v0
    v_lshl_add_u32 v33, v32, 3, s{t2}
    v_min_u32 v33, 3448, v33
    global_load_dwordx2 v[92:93], v33, {pair(sB1)}
    v_lshlrev_b32 v32, 4, v32""")
    spin_wait(f"buffer_load_dword v31, v30, {WSR}, s{t0} offen sc1", [31], False, nap=6)
    p(f"s_mul_i32 s{t0}, s{t5}, 8960\ns_add_u32 s{t0}, s{t0}, {WS_PS}")
    for ks in range(20):
        if ks % 9 == 0 and ks: p(f"s_add_u32 s{t0}, s{t0}, {448*9}")
        p(f"buffer_load_dwordx4 {vr(100+4*ks,4)}, v32, {WSR}, s{t0} offen offset:{448*(ks%9)} sc1")
    for ks in range(1, 20):
        p(f"v_pk_add_f32 v[100:101], v[100:101], {vr(100+4*ks,2)}\nv_pk_add_f32 v[102:103], v[102:103], {vr(102+4*ks,2)}")
    for i in range(4):
        c, o = 100 + i, 104 + 2 * i
        p(f"""v_cvt_pk_bf16_f32 v{o}, v{c}, v{c}
        v_and_b32 v112, 0xffff0000, v{o}
        v_sub_f32 v{c}, v{c}, v112
        v_cvt_pk_bf16_f32 v113, v{c}, v{c}
        v_and_b32 v112, 0xffff0000, v113
        v_sub_f32 v{c}, v{c}, v112
        v_cvt_pk_bf16_f32 v113, v{c}, v{c}
        v_and_b32 v{o}, 0xffff, v{o}
        v_or_b32 v{o}, v{o}, v112
        v_and_b32 v113, 0xffff, v113
        {'v_lshlrev_b32 v112, 16, v%d' % (92 + i // 2) if i % 2 == 0 else 'v_and_b32 v112, 0xffff0000, v%d' % (92 + i // 2)}
        v_or_b32 v{o+1}, v113, v112""")
    p(f"""s_mul_i32 s{t0}, s{t5}, 896
    s_add_u32 s{t0}, s{t0}, {WS_CB}
    v_lshlrev_b32 v32, 1, v32
    buffer_store_dwordx4 v[104:107], v32, {WSR}, s{t0} offen sc1
    buffer_store_dwordx4 v[108:111], v32, {WSR}, s{t0} offen offset:16 sc1
    s_lshl_b32 s{t0}, s{t5}, 7
    s_add_u32 s{t0}, s{t0}, {WS_FC}
    v_mov_b32 v30, s{sTAG}
    v_mov_b32 v31, 0
    s_waitcnt vmcnt(0)
    buffer_store_dword v30, v31, {WSR}, s{t0} offen sc1""")
    p.label(lab("NOCB"))
    p(f"s_mov_b32 s{t3}, s{sSTO}\ns_add_u32 s{t4}, s{sSTO}, 8192")
    p(stats_loads(G0[0], t3)); p(stats_loads(G0[1], t4))
    x0_norm(D)
    st("xn_i")
    p(f"""s_lshl_b32 s{t0}, s{sJ}, 9
    s_add_u32 s{t0}, s{t0}, {WS_FL}
    v_lshlrev_b32 v31, 2, v0""")
    spin_wait(f"buffer_load_dword v30, v31, {WSR}, s{t0} offen sc1", [30], False, nap=4)
    st("hint")
    p.label(lab("W1DONE"))
    st("xn")

    def gate(e, s, layer, X2, G, YF, XN=None, defer=False, pk=False, later=None):
        if XN is None:
            stats_finish(e, G, 30)
            e(f"v_mul_f32 v32, -v30, v31")
        unpack(e, YF, YP[s], 5)
        if XN is None:
            XN = G
            if pk:
                for i in range(0, 10, 2): e(f"v_pk_fma_f32 {vr(G+i,2)}, {vr(X2+i,2)}, v[30:31], v[32:33] op_sel:[0,1,0] op_sel_hi:[1,1,0]")
            else:
                for i in range(10): e(f"v_fma_f32 v{G+i}, v{X2+i}, v31, v32")
        if pk:
            for i in range(0, 10, 2): e(f"v_pk_fma_f32 {vr(X2+i,2)}, {vr(XN+i,2)}, {vr(YF+i,2)}, {vr(X2+i,2)}")
        else:
            for i in range(10): e(f"v_fmac_f32 v{X2+i}, v{XN+i}, v{YF+i}")
        pack(e, XP[s], X2, 5)
        off = 40960 * s + LX(XF_LAYER, layer)
        wt = sc
        e(f"s_add_u32 s{t0}, s{sXW}, {off}\ns_add_u32 s{t1}, s{sXS}, {off}")
        e(f"buffer_store_dwordx4 {vr(XP[s],4)}, v{vL16}, {WSR}, s{t0} offen{wt}\nbuffer_store_dword v{XP[s]+4}, v{vL16}, {WSR}, s{t1} offen{sc}")
        tok = p.tok()
        if isinstance(e, Fill):
            c, fn = e.items[-1]
            e.items[-1] = (c, lambda fn=fn: setattr(fn(), "token_wr", tok))
        else:
            p.items[-1].token_wr = tok
        def stats():
            e2 = later or e
            e2(f"s_add_u32 s{t1}, s{sSTW}, {ST_K + LX(2*ST_K, layer) + 8192*s}")
            stats_publish(e2, X2, G, t1, 0, slow, TG(layer))
        if defer: return tok, stats
        n0 = len(e.items) if isinstance(e, Fill) else None
        stats()
        last = e.items.pop()
        e.skip(opt("gs", 0))
        e(f"s_add_u32 s{t0}, s{sFXW}, {LX(8192, layer) + 128*s}")
        publish(e, tok, t0, 0, 30, slow, TG(layer), wb=False)
        e.items.append(last)

    AR, BR, NA, NB, AG = 160, 208, 12, 6, 4
    def a1_read(fi):
        fi0 = fi % 140
        return f"ds_read_b128 {vr(AR+4*(fi%NA),4)}, v{vA1[fi0//56]} offset:{1024*(fi0%56)}"
    def a_wait(fi):
        last = AR + 4 * ((fi + AG - 1) % NA)
        p.need(("v", last))
    def b_load(ks):
        l = []
        if ks % 4 == 0 and ks: l.append(f"s_add_u32 s{sB0}, s{sB0}, 4096")
        l.append(f"buffer_load_dwordx4 {vr(BR+4*(ks%NB),4)}, v{vL16}, {WSR}, s{sB0} offen offset:{1024*(ks%4)} sc1")
        return l
    def fx_load(s, layer, dst):
        return f"buffer_load_dword v{dst}, v{dst+1}, {WSR}, s{t2} offen sc1"
    def fx_prep(e, s, layer, dst):
        e(f"v_lshlrev_b32 v{dst+1}, 2, v{vN}\ns_add_u32 s{t2}, s{sFXR}, {LX(8192, layer) + 128*s}")
    def b_start(s, layer):
        p(f"s_add_u32 s{sB0}, s{sXR}, {40960*s + LX(XF_LAYER, layer)}")
        for ks in range(NB):
            for l in b_load(ks): p(l)
    def a_seq_read(seq, i, NA):
        fi0 = seq[i]
        return f"ds_read_b128 {vr(AR+4*(i%NA),4)}, v{vA1[fi0//56]} offset:{1024*(fi0%56)}"
    def a_seq_wait(i, NA):
        p.need(("v", AR + 4 * (i % NA)))
    def row_finish(e, s, G):
        stats_finish(e, G, G + 4, rcp=False)
        m, d, b = G + 4, G + 5, SCB[s]
        e(f"""v_rcp_f32 v{G+6}, v{d}
        v_xor_b32 v{m}, 0x80000000, v{m}
        v_lshrrev_b32 v{G+7}, 16, v{m}
        v_or_b32 v{m}, v{m}, v{G+7}
        v_or_b32 v{d}, v{d}, v{G+7}
        v_mul_f32 v{SCR+s}, 0x3fb8aa3b, v{G+6}
        v_cndmask_b32 v{b}, 0, v{m}, s[{sG0}:{sG0+1}]
        v_cndmask_b32 v{b+1}, 0, v{d}, s[{sG0}:{sG0+1}]""")
    def row_scalars(e, s, layer, G):
        e(f"s_add_u32 s{t5}, s{sSTR}, {ST_K + LX(2*ST_K, layer) + 8192*s}")
        e(stats_loads(G, t5))
        e.skip(30)
        late_check(e, stats_loads(G, t5), stats_tags(G), 32, False, TG(layer))
        row_finish(e, s, G)
    def fix_beats(s, ACC):
        return [[f"v_mfma_f32_16x16x16_bf16 {vr(ACC+4*ft,4)}, {vr(AP+2*ft,2)}, {vr(SCB[s],2)}, {vr(ACC+4*ft,4)}"] for ft in range(7)]
    def act(s, layer, ACC, T, O, mid=None, extra=None, extra_from=0, every=5, K=(32, 34), extra0=None):
        LN2, M2 = K
        off = 110592 * s + LX(HF_LAYER, layer)
        p(f"v_mov_b32 v{LN2}, 0x3f317218\nv_mov_b32 v{M2}, 0xbfb17218\ns_add_u32 s{t0}, s{sHW}, {off}\ns_add_u32 s{t1}, s{sHS}, {off}")
        tok = p.tok()
        extra = list(extra or [])
        cnt = [0]
        def q(l, on):
            p(l)
            cnt[0] += 1
            if on and extra and cnt[0] % every == 0:
                for x in extra.pop(0): p(x)
            elif not on and extra0 and cnt[0] > 20 and cnt[0] % 5 == 0:
                for x in extra0.pop(0): p(x)
        for pr in range(4):
            n = 4 if pr < 3 else 2
            on = pr >= extra_from
            acc, o = ACC + 8 * pr, O + 4 * (pr % 2)
            for i in range(n): q(f"v_pk_mul_f32 {vr(acc+2*i,2)}, {vr(acc+2*i,2)}, {vr(SCR,2)} op_sel:[0,{s}] op_sel_hi:[1,{s}]", on)
            for i in range(2*n): q(f"v_exp_f32 v{T+i}, v{acc+i}", on)
            if pr == 0 and mid and "start" in mid: mid["start"]()
            for i in range(n): q(f"v_pk_add_f32 {vr(T+2*i,2)}, {vr(T+2*i,2)}, 1.0 op_sel_hi:[1,0]", on)
            for i in range(n): q(f"v_pk_fma_f32 {vr(T+2*i,2)}, {vr(T+2*i,2)}, {vr(T+2*i,2)}, 1.0 op_sel_hi:[1,1,0]", on)
            for i in range(2*n): q(f"v_rcp_f32 v{T+i}, v{T+i}", on)
            for i in range(n): q(f"v_pk_fma_f32 {vr(T+2*i,2)}, {vr(T+2*i,2)}, {vr(M2,2)}, {vr(LN2,2)} op_sel_hi:[1,0,0]", on)
            for i in range(n): q(f"v_pk_mul_f32 {vr(acc+2*i,2)}, {vr(acc+2*i,2)}, {vr(T+2*i,2)}", on)
            pack(D, o, acc, n)
            if pr < 3:
                p(f"buffer_store_dwordx4 {vr(o,4)}, v{vL16}, {WSR}, s{t0} offen offset:{1024*pr}{WT(layer, s)}", tok_wr=tok)
            else:
                if s == 0 and layer == 0:
                    p(f"s_cmp_ge_u32 s{sN}, 12\ns_cselect_b32 s{sHS}, 0x70000000, s{sHS}\ns_cselect_b32 s{t1}, 0x70000000, s{t1}")
                p(f"buffer_store_dwordx2 {vr(o,2)}, v{vL8}, {WSR}, s{t1} offen{WT(layer, s)}", tok_wr=tok)
            if pr == extra_from - 1 and extra0:
                for g in extra0:
                    for x in g: p(x)
                extra0.clear()
            if mid and pr in mid: mid[pr]()
        for g in extra:
            for x in g: p(x)
        return tok
    def w2_groups(q0, q1):
        out = []
        if opt("now2", 0): return out
        for qq_ in range(q0, q1):
            sb, qq = (sW2B, qq_) if qq_ < 60 else (sW2S, qq_ - 60)
            g = []
            if qq % 4 == 0 and qq > 0: g.append(f"s_add_u32 s{sb}, s{sb}, 4096")
            g.append(f"buffer_load_dwordx4 {w2reg(qq_)}, v{vW2}, {WSR}, s{sb} offen offset:{1024*(qq%4)}{' sc1' if opt('w2sc', 1) else ''}")
            out.append(g)
        return out
    HR, NH = 132, 15
    def fh_prep(e, s, layer, dst):
        e(f"v_bfe_u32 v{dst+1}, v0, 1, 2\nv_lshlrev_b32 v{dst+1}, 4, v{dst+1}\nv_and_b32 v{dst}, 1, v0\nv_lshl_add_u32 v{dst+1}, v{dst}, 2, v{dst+1}")
        e(f"s_add_u32 s{t3}, s{sFHR}, {LX(8192, layer) + 4096*s}")
    def fh_load(dst): return f"buffer_load_dword v{dst}, v{dst+1}, {WSR}, s{t3} offen sc1"
    def h_load(idx, layer, b):
        s, r = divmod(idx, 28)
        second, kl = divmod(r, 14)
        ro = (sH0, sH2)[second]
        l = []
        if kl == 0:
            off = 110592 * s + LX(HF_LAYER, layer)
            l.append(f"s_add_u32 s{ro}, s{sHR if second else sH1}, {off}")
        elif kl < 12 and kl % 4 == 0: l.append(f"s_add_u32 s{ro}, s{ro}, 4096")
        if kl < 12:
            l.append(f"buffer_load_dwordx4 {vr(b,4)}, v{vL16}, {WSR}, s{ro} offen offset:{1024*(kl%4)} sc1")
        else:
            if kl == 12: l.append(f"s_add_u32 s{ro}, s{ro}, s{sB1_}")
            o = (kl - 12) * 1024
            l += [f"buffer_load_dwordx2 {vr(b,2)}, v{vL8}, {WSR}, s{ro} offen offset:{o} sc1",
                  f"buffer_load_dwordx2 {vr(b+2,2)}, v{vL8}, {WSR}, s{ro} offen offset:{o+512} sc1"]
        return l
    def emit_tail(F, rest):
        items = F.items
        nb = sum(1 for c, _ in items if c == "skip")
        paced = [b_[1:] for b_ in rest]
        head = [[b_[0]] for b_ in rest]
        merge(head[:nb * 2], F)
        late = [x for pc in paced[:nb * 2] for x in pc]
        for l in late: p(l)
        merge([h_ + pc for h_, pc in zip(head[nb * 2:], paced[nb * 2:])])
    def red_addr(e, dst, x, extra=0, sh=4):
        e(f"s_xor_b32 s{t4}, s{sW}, {x}\ns_mul_i32 s{t4}, s{t4}, 5120\ns_add_u32 s{t4}, s{t4}, {RED_BASE + extra}\nv_add_u32 v{dst}, s{t4}, v{vL16 if sh == 4 else vL8}")
    def bar(e, tok=None):
        if opt("x_nobar", 0): return
        if tok is not None: e.need(tok)
        e.group(lambda: p("s_barrier"), 4)
    def roundA(e, s, A):
        if opt("x_nored", 0): return
        red_addr(e, 33, 0)
        tk = p.tok()
        for dt in range(5): e(f"ds_write_b128 v33, {vr(A+4*dt,4)} offset:{1024*dt}", tok_wr=tk)
        red_addr(e, 33, 1); red_addr(e, 34, 3, 8)
        e.skip(opt("bs1", 6))
        bar(e, tk)
        for dt in range(5): e(f"ds_read_b64 {vr(A+2*dt,2)}, v33 offset:{1024*dt}")
        for dt in range(5): e(f"ds_read_b64 {vr(A+10+2*dt,2)}, v34 offset:{1024*dt}")
        e.skip(opt("bs2", 8))
        for i in range(10): e(f"v_add_f32 v{A+i}, v{A+i}, v{A+10+i}")
        unpack(e, A + 10, XP[s], 5)
        for i in range(10): e(f"v_add_f32 v{A+i}, v{A+i}, v{A+10+i}")
    def roundB(e, s, A, OWN, last=False, mid=None):
        if opt("x_nored", 0): return
        tk = p.tok()
        pk = e is D
        for dt in range(5): e(f"ds_write_b64 v{vRB}, {vr(OWN+4*dt+2,2)} offset:{1024*dt}", tok_wr=tk)
        for dt in range(5):
            if pk: e(f"v_pk_add_f32 {vr(A+2*dt,2)}, {vr(A+2*dt,2)}, {vr(OWN+4*dt,2)}")
            else: e(f"v_add_f32 v{A+2*dt}, v{A+2*dt}, v{OWN+4*dt}\nv_add_f32 v{A+2*dt+1}, v{A+2*dt+1}, v{OWN+4*dt+1}")
        if mid: mid()
        e.skip(opt("bs3", 2))
        bar(e, tk)
        for dt in range(5): e(f"ds_read_b64 {vr(A+10+2*dt,2)}, v{vRB+1} offset:{1024*dt}")
        e.skip(opt("bs4", 5))
        for i in range(0, 10, 2):
            if pk: e(f"v_pk_add_f32 {vr(A+i,2)}, {vr(A+i,2)}, {vr(A+10+i,2)}")
            else: e(f"v_add_f32 v{A+i}, v{A+i}, v{A+10+i}\nv_add_f32 v{A+i+1}, v{A+i+1}, v{A+11+i}")
    def roundB_addr(e):
        e(f"v_subrev_u32 v{vRB+1}, 8, v34\nv_mov_b32 v{vRB}, v33")
    vRB = 34
    def epi_stats(e, s, A, OWN):
        e(f"s_add_u32 s{t0}, s{sSTW}, {LX(2*ST_K, 1) + 8192*s}")
        stats_publish(e, A, OWN, t0, 0, slow, sTAG2)
    def epi_gate(e, s, A, OWN, w1=20, w2=20):
        e.skip(w1)
        e(f"s_add_u32 s{t5}, s{sSTO}, {LX(2*ST_K, 1) + 8192*s}")
        e(stats_loads(OWN, t5))
        e.skip(w2)
        st(f"eg{s}_chk", e)
        late_check(e, stats_loads(OWN, t5), stats_tags(OWN), 32, False, sTAG2)
        st(f"eg{s}_ok", e)
        gate(e, s, 1, A, OWN, A + 10)
    def out_store(e, s, A):
        pack(e, A + 10, A, 5)
        for dt in range(5): e(f"global_store_dword v{30+s}, v{A+10+dt}, {pair(sOUT)} offset:{32*dt}{(' ' + opt('outf', '')) if opt('outf', '') else ''}")

    p(f"""s_xor_b32 s{t0}, s{sW}, 1
    s_and_b32 s{t0}, s{t0}, 1
    s_sub_u32 s{sH1}, s{sHR}, 55296
    s_add_u32 s{t1}, s{sHR}, 55296
    s_cmp_eq_u32 s{t0}, 1
    s_cselect_b32 s{sH1}, s{t1}, s{sH1}
    s_mul_i32 s{sB1_}, s{sW}, 10240
    s_sub_u32 s{sB1_}, {49152 - 8192}, s{sB1_}
    s_cmp_eq_u32 s{sW}, 3
    s_cselect_b32 s{sB1_}, -8192, s{sB1_}
    s_lshl_b32 s{t0}, s{sA}, 2
    s_and_b32 s{t1}, s{sW}, 1
    s_add_u32 s{t0}, s{t0}, s{t1}
    s_lshl_b32 s{t0}, s{t0}, 3
    s_add_u32 s{t0}, s{t0}, s{sB}
    s_mul_i32 s{t4}, s{t0}, 2560
    s_lshr_b32 s{t1}, s{sP8}, 1
    s_add_u32 s{t4}, s{t4}, s{t1}
    s_add_u32 s{t4}, s{t4}, {WS_YG}
    s_add_u32 s{t5}, s{t4}, 40960
    v_min_u32 v31, 19, v0
    v_lshlrev_b32 v31, 9, v31
    s_mul_i32 s{t0}, s{sB}, 10240
    s_lshr_b32 s{t1}, s{sA}, 3
    s_lshl_b32 s{t1}, s{t1}, 7
    s_add_u32 s{t0}, s{t0}, s{t1}
    s_add_u32 s{t0}, s{t0}, {WS_FY}""")
    spin_wait(f"buffer_load_dword v30, v31, {WSR}, s{t0} offen sc1", [30], False, nap=opt("ynap", 2))
    st("y_flag")
    for s in range(2):
        for t in range(5):
            p(f"buffer_load_dword v{YP[s]+t}, v{vL8}, {WSR}, s{(t4, t5)[s]} offen offset:{512*t} sc1")
    tka, sta = gate(D, 0, 0, X32[0], 112, 102, XN0[0], defer=True, pk=True)
    tkb, stb = gate(D, 1, 0, X32[1], 152, 142, XN0[1], defer=True, pk=True)
    sta()
    publish(D, tka, sFXW, 0, 32, slow, wb=False)
    publish(D, tkb, sFXW, 128, 32, slow, wb=False)
    stb()
    st('x_pub1')
    if not slow and HPW:
        p(f"""s_sub_u32 s{t2}, s{sHS}, 3072
        s_sub_u32 s{t3}, s{sHW}, 3072
        s_cmp_ge_u32 s{sN}, 12
        s_cselect_b32 s{t2}, s{t3}, s{t2}
        v_and_b32 v33, 31, v0
        v_min_u32 v33, 27, v33
        v_lshlrev_b32 v30, 7, v33
        v_add_u32 v31, s{sHW}, v30
        v_add_u32 v32, s{t2}, v30
        v_cmp_gt_u32 vcc, 24, v33
        v_cndmask_b32 v31, v32, v31, vcc
        v_lshrrev_b32 v32, 5, v0
        v_mul_u32_u24 v32, 110592, v32
        v_add_u32 v126, v31, v32""")
        if HPW == 1: p(f"buffer_load_dword v{JUNK}, v126, {WSR}, 0 offen sc1")
    p(f"s_cmp_ge_u32 s{sSIG}, 20\ns_cbranch_scc1 {lab('RESTI')}")
    p(f"v_mov_b32 v30, s{sTAG}\nv_mov_b32 v31, 0\nbuffer_store_dword v30, v31, {WSR}, s{WU[1]+1} offen sc1")
    w1_range(NAC, na)
    p("s_barrier")
    w1_range(na, 35)
    p(f"s_branch {lab('HAVEB')}")
    p.label(lab("RESTI"))
    w1_range(NAI, 35)
    p.label(lab("HAVEB"))
    p("s_waitcnt vmcnt(0)")
    st("w1_in")
    p("s_barrier")
    p(f"v_mov_b32 v121, v90\ns_mov_b64 s[{sG0}:{sG0+1}], 0xffff")
    EX, EY = (192, 212), (92, 112)
    ACCX, ACCY = 132, 92
    class Ring:
        def __init__(self, slots): self.free, self.q, self.at = list(slots), [], {}
        def push(self, key, fn): self.q.append((key, fn))
        def issue(self, n=1):
            out = []
            while n and self.q and self.free:
                key, fn = self.q.pop(0)
                self.at[key] = self.free.pop(0)
                ls = fn(self.at[key]); n -= 1
                if not opt("x_nold", 0): out += ls
            return out
        def release(self, key): self.free.append(self.at[key])
    def x_load(s_, ks, base):
        sb = (sB0, sXY)[s_]
        def fn(r):
            l = []
            if ks == 0: l.append(f"s_add_u32 s{sb}, s{sXR}, {base + 40960*s_}")
            elif ks % 4 == 0: l.append(f"s_add_u32 s{sb}, s{sb}, 4096")
            return l + [f"buffer_load_dwordx4 {vr(r,4)}, v{vL16}, {WSR}, s{sb} offen offset:{1024*(ks%4)} sc1"]
        return fn
    def hq_load(idx, layer): return lambda r: h_load(idx, layer, r)
    carry = None
    for layer in range(2):
        L = f"L{layer}_"
        if layer == 1 and opt("rerun", 0) and not slow:
            p(f"s_mov_b32 s{sE}, 0")
            p.label("RERUN")
            st("L1_head")
        seq = list(range(140)) * (1 + layer)
        NA, AG = (opt("na0", 6), opt("ag0", 2)) if layer == 0 else (12, opt("ag1", 4))
        for i in range(NA): p(a_seq_read(seq, i, NA))
        def attach(b, i, NA=NA, AG=AG):
            if i + NA < len(seq): b.append(a_seq_read(seq, i + NA, NA))
            if i % AG == AG - 1 and i + 1 < len(seq): b.append(lambda i=i: a_seq_wait(min(i + AG, len(seq) - 1), NA))
        xoff = LX(XF_LAYER, layer)
        H = Ring(list(range(XR0, XR0 + 4 * opt('hx', 0), 4)) + list(range(HR, HR + 4 * NH, 4)))
        KH = opt("kh", 0) if layer == 0 else 0
        ORDX = [(second, kl) for kl in range(KH) for second in range(2)] + [(second, kl) for second in range(2) for kl in range(KH, 14)]
        for second, kl in ORDX: H.push(14 * second + kl, hq_load(14 * second + kl, layer))
        if layer == 0:
            R = Ring(list(range(AR + 4 * NA, 232, 4)) + list(range(XR0, 76, 4)))
            p(f"v_and_b32 v31, 16, v0\nv_lshlrev_b32 v31, 3, v31\nv_lshl_add_u32 v31, v{vN}, 2, v31\ns_mov_b32 s{t2}, s{sFXR}")
            p(f"s_lshl_b32 s{t3}, s{sN}, 7\ns_add_u32 s{t3}, s{t3}, {WS_FC}\nv_writelane_b32 v121, s{t3}, 63\ns_mov_b32 s{t3}, 0")
            p(fh_load(120))
            spin_wait(fx_load(0, layer, 30), [30], False)
            st(L + "x_seen")
            for ks in range(20):
                for s_ in (1, 0): R.push((s_, ks), x_load(s_, ks, xoff))
            for l in R.issue(opt("x_first", 6)): p(l)
            late_check(D, fh_load(120), [120], 124, False)
            p(f"""s_or_b32 s{t0}, s2, s{sW}
            s_cmp_eq_u32 s{t0}, 0
            s_cselect_b32 s{t0}, 0, 0x70000000
            v_mov_b32 v33, s{sTAG}
            v_mov_b32 v34, 0
            buffer_store_dword v33, v34, {WSR}, s{t0} offen sc1""")
            beats = []
            for ks in range(20):
                for ft in range(7):
                    i = ks * 7 + ft
                    for s_ in (1, 0):
                        acc = (ACCX, ACCY)[s_] + 4 * ft
                        b = [f"{MF} {vr(acc,4)}, {vr(AR+4*(i%NA),4)}, {vr(R.at[(s_, ks)],4)}, {'0' if ks == 0 else vr(acc,4)}"]
                        if s_ == 0: attach(b, i)
                        if ft == 6: R.release((s_, ks))
                        if len(beats) % 3 == 0 or ft == 6: b += R.issue(1)
                        beats.append(b)
            F = Fill()
            F.until(opt("rs_at", 40))
            row_scalars(F, 0, layer, 76)
            row_scalars(F, 1, layer, 76)
            tkt = p.tok()
            F(f"s_mul_i32 s{t0}, s{sN}, 896\ns_add_u32 s{t0}, s{t0}, {WS_CB}\ns_mul_i32 s{t1}, s{sW}, 5120\ns_add_u32 s{t1}, s{t1}, {RED_BASE}\nv_lshl_add_u32 v124, v{vN}, 3, s{t1}")
            F.group(lambda: (p(f"s_mov_b32 m0, s{t1}\ns_mov_b32 exec_hi, 0xffffff"), p(f"buffer_load_dwordx4 v{vL16}, {WSR}, s{t0} offen sc1 lds", tok_wr=tkt), p("s_mov_b64 exec, -1")), 16)
            Ft = Fill()
            Ft.need(tkt)
            for i in range(7): Ft(f"ds_read_b64 {vr(AP+2*i,2)}, v124 offset:{128*i}")
            F.skip(30)
            F.items += Ft.items
            N12 = opt("n12", 44)
            W0, WG = opt("w2_from", 16), opt("w2gap", 6)
            for q, g_ in enumerate(w2_groups(0, N12)): beats[min(W0 + WG * q, len(beats) - 1)] += g_
            merge(beats, F)
            merge(fix_beats(1, ACCY) + fix_beats(0, ACCX))
            st(L + "S12")
            NA1 = max(N12, opt("na1", 60))
            NA2 = max(NA1, opt("na2", 70))
            tokx = act(0, layer, ACCX, 192, 200, extra=w2_groups(N12, NA1), every=opt("ev1", 7), K=(208, 210))
            p(f"s_add_u32 s{t4}, s{sFHW}, {LX(8192, layer)}")
            fh_prep(D, 0, layer, 120)
            st(L + "A1")
            tokh = act(1, layer, ACCY, 192, 200, K=(208, 210),
                       mid={"start": lambda: publish(D, tokx, t4, 0, 124, slow, TG(layer), wb=False), 1: lambda: p(fh_load(120)),
                            2: lambda: late_check(D, fh_load(120), [120], 124, False, TG(layer))},
                       extra=[H.issue(1) for _ in range(opt("hpre", 6))], extra_from=3, every=3, extra0=w2_groups(NA1, NA2))
        else:
            R = carry
            HEAD_LOADS = R.issue(NB)
            def g1_pass(s_, acc0):
                beats = []
                for ks in range(20):
                    for ft in range(7):
                        i = 140 * s_ + ks * 7 + ft
                        b = [f"{MF} {vr(acc0+4*ft,4)}, {vr(AR+4*(i%NA),4)}, {vr(R.at[(s_, ks)],4)}, {'0' if ks == 0 else vr(acc0+4*ft,4)}"]
                        attach(b, i)
                        if ft == 6:
                            R.release((s_, ks)); b += R.issue(1)
                        beats.append(b)
                return beats + fix_beats(s_, acc0)
            g1x = g1_pass(0, ACCX)
            GX = EY[1] + 4
            def head_mid():
                late_check(D, fx_load(0, 1, 30), [30], 32, False, TG(1))
                st("L1_xX_seen")
                for l in HEAD_LOADS: p(l)
            roundB(D, 1, *EY, mid=head_mid)
            p(f"s_add_u32 s{t3}, s{sSTR}, {ST_K + LX(2*ST_K, layer)}")
            p(stats_loads(GX, t3))
            epi_stats(D, 1, *EY)
            st(L + "st_pub")
            F = Fill()
            bar(F)
            F.skip(opt("e1x", 4))
            late_check(F, stats_loads(GX, t3), stats_tags(GX), 32, False, TG(layer))
            row_finish(F, 0, GX)
            F(f"s_add_u32 s{t5}, s{sSTO}, {LX(2*ST_K, 1) + 8192}")
            F(stats_loads(EY[1], t5))
            c1 = opt("c1", 40)
            merge(g1x[:c1], F, rate=12)
            late_check(D, stats_loads(EY[1], t5), stats_tags(EY[1]), 32, False, sTAG2)
            st(L + "st_ok")
            F = Fill()
            tk, sts = gate(D, 1, 1, EY[0], EY[1], EY[0] + 10, defer=True, pk=True, later=F)
            F.skip(opt("e1p", 6))
            F(f"s_add_u32 s{t0}, s{sFXW}, {LX(8192, layer) + 128}")
            publish(F, tk, t0, 0, 30, slow, TG(layer), wb=False)
            st(L + "yY_pub", F)
            sts()
            merge(g1x[c1:], F, rate=opt("r1", 8))
            st(L + "S1")
            fx_prep(D, 1, layer, 120)
            p(fx_load(1, layer, 120))
            for ks in range(20): R.push((1, ks), x_load(1, ks, xoff))
            tokx = act(0, layer, ACCX, 92, 100, K=(108, 110), mid={opt("a1c", 1): lambda: late_check(D, fx_load(1, layer, 120), [120], 122, False, TG(layer))},
                       extra=[R.issue(1) for _ in range(NB)], extra_from=opt("a1c", 1) + 1, every=5)
            st(L + "A1")
            F = Fill()
            F.skip(opt("p2", 20))
            F(f"s_add_u32 s{t4}, s{sFHW}, {LX(8192, layer)}")
            publish(F, tokx, t4, 0, 32, slow, TG(layer), wb=False)
            row_scalars(F, 1, layer, 120)
            fh_prep(F, 0, layer, 120)
            F(fh_load(120))
            merge(g1_pass(1, ACCY), F)
            st(L + "S2")
            late_check(D, fh_load(120), [120], 124, False, TG(layer))
            tokh = act(1, layer, ACCY, 192, 200, K=(208, 210), extra=[H.issue(1) for _ in range(opt('hp1', 15))], every=opt('hev', 7))
        st(L + "A2")
        c3 = opt("c3", 80)
        bts = []
        KOUT = layer == 0 and opt("kout", 0)
        late_w2 = w2_groups(NA2, 70) if layer == 0 else []
        for s_ in range(2):
            A_, OWN_ = (EX, EY)[s_]
            order = [(second, kl) for second in range(2) for kl in range(14)]
            if s_ == 0: order = ORDX
            for second, kl in order:
                acc = OWN_ if second else A_
                idx = 28 * s_ + 14 * second + kl
                for dt in range(5):
                    nb_i = len(bts)
                    b = [f"{MF} {vr(acc+4*dt,4)}, {w2reg(kl*5+dt)}, {vr(H.at[idx],4)}, {'0' if kl == 0 else vr(acc+4*dt,4)}"]
                    if nb_i == c3:
                        b.append(lambda: late_check(D, fh_load(120), [120], 122, False, TG(layer)))
                        for i2 in range(28, 56): H.push(i2, hq_load(i2, layer))
                    if dt == 4: H.release(idx)
                    if nb_i % 3 == 0 or dt == 4: b += H.issue(1)
                    if late_w2 and nb_i % opt("lw", 2) == 1 % opt("lw", 2): b += late_w2.pop(0)
                    bts.append(b)
        F = Fill()
        F.skip(opt("p3", 10))
        F(f"s_add_u32 s{t4}, s{sFHW}, {LX(8192, layer) + 4096}")
        if not (opt("x_nopub", 0) and False): publish(F, tokh, t4, 0, 32, slow, TG(layer), wb=False)
        fh_prep(F, 1, layer, 120)
        F.skip(max(0, c3 - opt("p3", 10) - 28))
        F(fh_load(120))
        cA = 72 + 5 * KH
        merge(bts[:cA], F)
        st(L + "S3a")
        F = Fill()
        roundA(F, 0, EX[0])
        roundB_addr(F)
        merge(bts[cA:142], F, rate=(opt("ra", 8) if not KH else 12))
        st(L + "S3")
        F = Fill()
        roundB(F, 0, *EX)
        if layer == 0:
            epi_stats(F, 0, *EX)
            bar(F)
            F.until(opt("u4a", 40))
            F(f"s_add_u32 s{t5}, s{sSTO}, {LX(2*ST_K, 1)}")
            F(stats_loads(EX[1], t5))
            F.until(opt("u4b", 58))
            st("eg0_chk", F)
            late_check(F, stats_loads(EX[1], t5), stats_tags(EX[1]), 32, False, sTAG2)
            st("eg0_ok", F)
            tk, sts = gate(F, 0, 1, EX[0], EX[1], EX[0] + 10, defer=True)
            sts()
            lastst = F.items.pop()
            F(f"s_add_u32 s{t0}, s{sFXW}, {LX(8192, 1)}")
            publish(F, tk, t0, 0, 30, slow, TG(1), wb=False)
            F.items.append(lastst)
            st(L + "xX_pub", F)
            F.until(70)
            roundA(F, 1, EY[0])
            roundB_addr(F)
            carry = Ring(range(BR, BR + 4 * NB, 4))
            for ks in range(20): carry.push((0, ks), x_load(0, ks, LX(XF_LAYER, 1)))
            APRE = 0
            fx_prep(F, 0, 1, 30)
            F(fx_load(0, 1, 30))
            merge(bts[142:], F, rate=opt("r4", 10))
        else:
            bar(F)
            F.group(lambda: xy_offset(30), 40)
            if opt("wb", 60) and not slow:
                def wb():
                    X = p.L("NOWB")
                    p(f"s_lshl_b32 s{t0}, s{sW}, 8\ns_or_b32 s{t0}, s{t0}, s{sSIG}\ns_cmp_lg_u32 s{t0}, 31\ns_cbranch_scc1 {X}\nbuffer_wbl2 sc1")
                    p.label(X)
                F.until(opt("wb", 60))
                F.group(wb, 20)
            if opt("xo", 0):
                F.until(opt("xo", 0))
                out_store(F, 0, EX[0])
            F.until(70)
            roundA(F, 1, EY[0])
            roundB_addr(F)
            if not opt("xo", 0): out_store(F, 0, EX[0])
            merge(bts[142:], F, rate=opt("ra", 8))
        st(L + "S4")
    if opt("rerun", 0) and not slow:
        p(f"s_cmp_lg_u32 s{sE}, 0\ns_cbranch_scc1 RERUN_DONE\ns_mov_b32 s{sE}, 1\nv_mov_b32 v{JUNK}, v{vSTAMP}\ns_branch RERUN")
        p.label("RERUN_DONE")
    if opt("wb2", 0) and not slow:
        X = p.L("NOWB")
        p(f"s_lshl_b32 s{t0}, s{sW}, 8\ns_or_b32 s{t0}, s{t0}, s{sSIG}\ns_cmp_lg_u32 s{t0}, 30\ns_cbranch_scc1 {X}\nbuffer_wbl2 sc1")
        p.label(X)
    roundB(D, 1, *EY)
    out_store(D, 1, EY[0])
    if STAMPS and not slow:
        stamp("end")
        if DBG is not None:
            p(f"""v_readlane_b32 s{t0}, v{vSTAMP}, 0
            s_not_b32 s{t0}, s{t0}
            v_writelane_b32 v{vSTAMP}, s{t0}, 15
            v_lshlrev_b32 v30, 2, v0
            s_mov_b64 exec, 0xffff
            global_atomic_umax v30, v{vSTAMP}, {pair(sDBG)}
            s_mov_b64 exec, -1""")
        p(f"""s_lshl_b32 s{t0}, s2, 2
        s_add_u32 s{t0}, s{t0}, s{sW}
        s_lshl_b32 s{t0}, s{t0}, 8
        s_add_u32 s{t0}, s{t0}, {WS_STAMP}
        v_lshlrev_b32 v30, 2, v0
        buffer_store_dword v{vSTAMP if opt("rerun", 0) != 2 else JUNK}, v30, {WSR}, s{t0} offen""")
    p("s_endpgm")
    while tail_code: tail_code.pop(0)()

body(False)
body(True)
p.label("END")
p("s_endpgm")
p.raw('.section .rodata,"a"\n.p2align 6')
p.raw(f".amdhsa_kernel {KN}")
for l in ["next_free_vgpr 512", "next_free_sgpr 102", "accum_offset 256", "group_segment_fixed_size 0", "kernarg_size 104",
          "user_sgpr_count 2", "user_sgpr_kernarg_segment_ptr 1", "system_sgpr_workgroup_id_x 1", "float_denorm_mode_32 3"]:
    p.raw("  .amdhsa_" + l)
p.raw(".end_amdhsa_kernel")
out = [a for a in ARGS if not a.startswith("--")][0]
open(out, "w").write(p.finalize())
if STAMPS: open(out + ".stamps", "w").write("\n".join(stamp_names))
```

```python
import sys
from gasm import Prog, Ins

NAME = "interleave_layers__ssm_conv_h3__dense_activation_mish__prompt"
ARGS = sys.argv[1:]
STAMPS = "--stamps" in ARGS or "--cstamps" in ARGS
STAMP_INS = "s_memtime" if "--cstamps" in ARGS else "s_memrealtime"
FORCE_SLOW = "--slow" in ARGS
def opt(name, default):
    for a in ARGS:
        if a.startswith(f"--{name}="): return type(default)(a.split("=", 1)[1])
    return default
SPIN = 400000
NT = lambda n, d: ' nt' if opt('nt_' + n, d) else ''

WS_EPOCH, WS_FT, WS_FC = 0, 0x1000, 0x2000
WS_FW1, WS_FW2 = 0x60000, 0x6A000
WS_FTR = 0x11000
WS_XC = 0x36000
WS_FL = 0x10000
WS_FY, WS_FX, WS_FH, WS_CB, WS_PS = 0x40000, 0x4000, 0x8000, 0xC000, 0x12000
WS_ST, WS_UR, WS_YG, WS_XF, WS_HF, WS_W1F, WS_W2F, WS_STAMP = 0x100000, 0x300000, 0x600000, 0xB00000, 0x1000000, 0x1E00000, 0x2100000, 0x3000000
XF_LAYER, HF_LAYER, ST_K = 128 * 20 * 1024, 128 * 54 * 1024, 128 * 4096

LDS_BYTES = 163840
CONV_PITCH, HC_PITCH = 21312, 4160
LU_OFF = 4 * HC_PITCH
CONV_BASE = LDS_BYTES - 4 * CONV_PITCH
T_BASE = 0
TW_PITCH = 6400
UT_BASE = 4 * TW_PITCH
WST_BASE = CONV_BASE
RED_BASE = 143360
NW1A = 76

sQ, sK, sV, sSK, sH, sD, sBX, sW1, sB1, sW2, sOUT, sDBG, sWS = [4 + 2 * i for i in range(13)]
R_WS, R_K, R_V, R_H, R_W = 32, 36, 40, 44, 48
sJ, sSIG, sW, sA, sB, sM, sN, sTAG, sE, sDVAL, sXV, sSPIN = range(52, 64)
t0, t1, t2, t3, t4, t5, t6, t7 = range(64, 72)
sSTAMP = 72
WU = [98, 98]
sXR, sXW, sXS, sHW, sHS, sHR, sFXR, sFXW, sFHR, sFHW, sSTW, sSTO, sSTR, sP8, sW2B, sW2S, sGOTA = range(76, 93)
sB0, sB1_, sH0, sH1 = 93, 94, 95, 96
sTAG2 = 97
sH2 = 99
sG0 = 100
sXY = 98
sG = 3
srd = lambda r: f"s[{r}:{r+3}]"
pair = lambda r: f"s[{r}:{r+1}]"
WSR = srd(R_WS)

vL16, vN, vG, vL8, vSTAMP = 1, 2, 3, 4, 5
XP = [6, 12]
YP = [17, 22]
JUNK = 27
vA1 = [vL16, 28, 29]
AP, SCB, SCR, XR0 = 36, (50, 52), 54, 56
vr = lambda b, n: f"v[{b}:{b+n-1}]" if n > 1 else f"v{b}"
def w2reg(q):
    return f"a[{4*q}:{4*q+3}]" if q < 64 else f"v[{232+4*(q-64)}:{232+4*(q-64)+3}]"
MF = "v_mfma_f32_16x16x32_bf16"

p = Prog()
p.junk = {('v', JUNK)}
stamp_names = []
tail_code = []

class Fill:
    def __init__(self): self.items = []
    def __call__(self, s, tok_wr=None):
        ls = [l.strip() for l in s.strip("\n").split("\n") if l.strip() and not l.strip().startswith(";")]
        for i, l in enumerate(ls):
            c = 8 if l.split()[0] in ("v_exp_f32", "v_rcp_f32", "v_sqrt_f32", "v_rsq_f32") else 4
            self.items.append((c, (lambda l=l, t=(tok_wr if i == len(ls) - 1 else None): p(l, tok_wr=t))))
    def group(self, fn, cost): self.items.append((cost, fn))
    def skip(self, n): self.items.append(("skip", n))
    def until(self, n): self.items.append(("until", n))
    def need(self, *t): self.items.append((4, lambda: p.need(*t)))
    def L(self, x): return p.L(x)

class Direct:
    def __call__(self, s, tok_wr=None): p(s, tok_wr=tok_wr)
    def group(self, fn, cost): fn()
    def skip(self, n): pass
    def until(self, n): pass
    def need(self, *t): p.need(*t)
D = Direct()

def merge(beats, fill=None, rate=8, flush=True):
    items = list(fill.items) if fill else []
    credit = 0
    hold = 0
    for bi, b in enumerate(beats):
        for x in b:
            if callable(x): x()
            else: p(x)
        credit = min(credit, 0) + rate - 4 * (len(b) - 1)
        if hold > 0:
            hold -= 1; continue
        while items and credit > 0:
            c, fn = items[0]
            if c == "skip":
                items.pop(0); hold = fn; break
            if c == "until":
                if bi < fn: break
                items.pop(0); continue
            if c > credit and credit < 4: break
            items.pop(0); fn(); credit -= c
    if not flush: return items
    for c, fn in items:
        if c not in ("skip", "until"): fn()

def merge2(beats, F, F2, at, rate):
    n = len(F.items)
    items = list(F.items)
    class R: pass
    r = R(); r.items = items
    left = merge(beats[:at], r, rate, flush=False)
    r2 = R(); r2.items = left + list(F2.items)
    merge(beats[at:], r2, rate if left else opt('ra', 8))

DBG = opt("dbg", "").split(",") if opt("dbg", "") else None
ONLY = opt("only", "").split(",") if opt("only", "") else None
def stamp(name, e=None):
    if not STAMPS: return
    if ONLY is not None and name not in ONLY and name not in ("start", "end"): return
    if DBG is not None:
        if name not in DBG: return
        i = DBG.index(name)
        fn = lambda: p(f"{STAMP_INS} {pair(sSTAMP)}\ns_waitcnt lgkmcnt(0)\nv_writelane_b32 v{vSTAMP}, s{sSTAMP}, {i}")
        (e or D).group(fn, 12)
        return
    if name not in stamp_names: stamp_names.append(name)
    i = stamp_names.index(name)
    assert i < 64
    fn = lambda: p(f"{STAMP_INS} {pair(sSTAMP)}\ns_waitcnt lgkmcnt(0)\nv_writelane_b32 v{vSTAMP}, s{sSTAMP}, {i}")
    (e or D).group(fn, 12)

def spin_wait(load_lines, checks, slow_inv, tag=None, nap=None):
    L, L2, X = p.L("POLL"), p.L("POLLB"), p.L("POLLX")
    nap = opt("nap", 2) if nap is None else nap
    p(f"s_mov_b32 s{sSPIN}, 0\ns_branch {L2}")
    p.label(L)
    if nap: p(f"s_sleep {nap}")
    p(f"s_add_u32 s{sSPIN}, s{sSPIN}, 1\ns_cmp_gt_u32 s{sSPIN}, {SPIN}\ns_cbranch_scc1 {X}")
    p.label(L2)
    p(load_lines)
    p("s_waitcnt vmcnt(0)")
    for r in checks:
        p(f"v_cmp_ne_u32 vcc, s{tag or sTAG}, v{r}\ns_cbranch_vccnz {L}")
    p.label(X)
    if slow_inv: p("buffer_inv sc1\ns_waitcnt vmcnt(0)")

def late_check(e, load_lines, checks, tmp, slow_inv, tag=None):
    TG = tag or sTAG
    def fn():
        S, B = p.L("SPIN"), p.L("BACK")
        if len(checks) == 1:
            p(f"v_cmp_ne_u32 vcc, s{TG}, v{checks[0]}")
        else:
            assert len(checks) == 4
            a_, b_, c_, d_ = checks
            p(f"""v_xor_b32 v{a_}, v{a_}, v{b_}
            v_xor_b32 v{c_}, v{c_}, v{d_}
            v_xor_b32 v{b_}, v{b_}, v{d_}
            v_xor_b32 v{d_}, s{TG}, v{d_}
            v_or3_b32 v{a_}, v{a_}, v{b_}, v{c_}
            v_or_b32 v{a_}, v{a_}, v{d_}
            v_cmp_ne_u32 vcc, 0, v{a_}""")
        p(f"s_cbranch_vccnz {S}")
        p.label(B)
        if slow_inv: p("buffer_inv sc1\ns_waitcnt vmcnt(0)")
        def tail():
            p.label(S)
            spin_wait(load_lines, checks, False, TG)
            p(f"s_branch {B}")
        tail_code.append(tail)
    e.group(fn, 8 if len(checks) == 1 else 32)

def unpack(e, dst, src, n):
    for i in range(n):
        e(f"v_lshlrev_b32 v{dst+2*i}, 16, v{src+i}\nv_and_b32 v{dst+2*i+1}, 0xffff0000, v{src+i}")
def pack(e, dst, src, n):
    for i in range(n):
        e(f"v_cvt_pk_bf16_f32 v{dst+i}, v{src+2*i}, v{src+2*i+1}")
def bf16r(e, r):
    e(f"v_cvt_pk_bf16_f32 v{r}, v{r}, v{r}\nv_lshlrev_b32 v{r}, 16, v{r}")

def stats_publish(e, x, g, soff, imm, slow, tag=None):
    e(f"v_add_f32 v{g}, v{x}, v{x+1}\nv_mul_f32 v{g+1}, v{x}, v{x}\nv_mul_f32 v{g+3}, v{x+1}, v{x+1}\nv_add_f32 v{g+2}, v{x+2}, v{x+3}")
    for i in range(2, 10, 2):
        e(f"v_fmac_f32 v{g+1}, v{x+i}, v{x+i}\nv_fmac_f32 v{g+3}, v{x+i+1}, v{x+i+1}")
        if i >= 4: e(f"v_add_f32 v{g}, v{g}, v{x+i}\nv_add_f32 v{g+2}, v{g+2}, v{x+i+1}")
    e(f"v_add_f32 v{g}, v{g}, v{g+2}\nv_add_f32 v{g+1}, v{g+1}, v{g+3}\nv_lshlrev_b32 v{g+3}, 4, v{vN}\nv_mov_b32 v{g+2}, s{tag or sTAG}")
    e(f"v_permlane16_swap_b32 v{g}, v{g+1}\nv_add_f32 v{g}, v{g}, v{g+1}\nv_mov_b32 v{g+1}, v{g}")
    e(f"v_permlane32_swap_b32 v{g}, v{g+1}\nv_add_f32 v{g}, v{g}, v{g+1}\nv_mov_b32 v{g+1}, v{g}")
    e(f"v_permlane16_swap_b32 v{g}, v{g+1}")
    e(f"buffer_store_dwordx3 {vr(g,3)}, v{g+3}, {WSR}, s{soff} offen offset:{imm}{' sc1' if slow else ''}")

def stats_loads(G, soff):
    return "\n".join(f"buffer_load_dwordx3 {vr(G+4*i,3)}, v{vL16}, {WSR}, s{soff} offen offset:{1024*i} sc1" for i in range(4))
def stats_tags(G): return [G + 2, G + 6, G + 10, G + 14]

def stats_finish(e, G, o, three=False, rcp=True):
    e(f"v_add_f32 v{G}, v{G}, v{G+4}\nv_add_f32 v{G+1}, v{G+1}, v{G+5}")
    if not three: e(f"v_add_f32 v{G+8}, v{G+8}, v{G+12}\nv_add_f32 v{G+9}, v{G+9}, v{G+13}")
    e(f"v_add_f32 v{G}, v{G}, v{G+8}\nv_add_f32 v{G+1}, v{G+1}, v{G+9}")
    e(f"v_permlane16_swap_b32 v{G}, v{G+1}\nv_add_f32 v{G}, v{G}, v{G+1}\nv_mov_b32 v{G+1}, v{G}")
    e(f"v_permlane32_swap_b32 v{G}, v{G+1}\nv_add_f32 v{G}, v{G}, v{G+1}\nv_mul_f32 v{o}, 0x3acccccd, v{G}\nv_mul_f32 v{o+1}, 0x3acccccd, v{G}")
    e(f"v_permlane16_swap_b32 v{o}, v{o+1}")
    s, q = o, o + 1
    e(f"v_fma_f32 v{q}, -v{s}, v{s}, v{q}\nv_max_f32 v{q}, 0, v{q}")
    e(f"v_cvt_pk_bf16_f32 v{q}, v{q}, v{s}\nv_and_b32 v{s}, 0xffff0000, v{q}\nv_lshlrev_b32 v{q}, 16, v{q}")
    e(f"v_add_f32 v{q}, 0x3727c5ac, v{q}")
    bf16r(e, q)
    e(f"v_sqrt_f32 v{q}, v{q}")
    bf16r(e, q)
    if rcp: e(f"v_rcp_f32 v{q}, v{q}")

def publish(e, tok, soff, imm, tmp, slow, tag=None, wb=True):
    e(f"v_mov_b32 v{tmp}, s{tag or sTAG}\nv_mov_b32 v{tmp+1}, 0")
    e.need(tok)
    if slow and wb:
        e.group(lambda: p(f"s_waitcnt vmcnt(0)\nbuffer_wbl2 sc1\ns_waitcnt vmcnt(0)"), 8)
    e(f"buffer_store_dword v{tmp}, v{tmp+1}, {WSR}, s{soff} offen offset:{imm}{' sc1' if slow else ''}")

vHOFF = 35
HD = 170
def h_loads():
    for q in range(5):
        if q == 4: p("s_mov_b64 exec, 15")
        p(f"buffer_load_dwordx4 {vr(HD+6*q,4)}, v{vHOFF}, {srd(R_H)}, 0 offen nt")
        if q < 4: p(f"v_add_u32 v{vHOFF}, 1024, v{vHOFF}")
    p("s_mov_b64 exec, -1")
def h_build(first):
    if first is None: return h_rows(range(HB_DONE[0], 5))
    HB_DONE[0] = first
    p(f"v_cmp_lt_u32 vcc, 1, v0")
    for i in range(4): p(f"v_cndmask_b32 v{HD+i}, 0, v{HD+i}, vcc")
    for q in range(5):
        d = HD + 6 * q
        for i in range(2):
            p(f"v_mov_b32_dpp v{d+4+i}, v{d+i} wave_shl:1 row_mask:0xf bank_mask:0xf")
        if q < 4:
            for i in range(2): p(f"v_readfirstlane_b32 s{t6+i}, v{d+6+i}")
            for i in range(2): p(f"v_writelane_b32 v{d+4+i}, s{t6+i}, 63")
    h_rows(range(first))
HB_DONE = [0]
def h_rows(rows):
    for q in rows:
        d, S = HD + 6 * q, 200 + 12 * (q % 2)
        if q == 4: p("s_mov_b64 exec, 7")
        p(f"ds_write_b128 v33, {vr(d,4)} offset:{1024*q}")
        for i in range(4): p(f"v_alignbit_b32 v{S+i}, v{d+i+1}, v{d+i}, 16")
        p(f"ds_write_b128 v33, {vr(S,4)} offset:{1024*q + HC_PITCH}")
        for i in range(4): p(f"v_mov_b32 v{S+4+i}, v{d+i+1}")
        p(f"ds_write_b128 v33, {vr(S+4,4)} offset:{1024*q + 2*HC_PITCH}")
        for i in range(4): p(f"v_alignbit_b32 v{S+8+i}, v{d+i+2}, v{d+i+1}, 16")
        p(f"ds_write_b128 v33, {vr(S+8,4)} offset:{1024*q + 3*HC_PITCH}")
    p("s_mov_b64 exec, -1")

def w_unit_params(rep):
    Bq, E = p.L("WU2"), p.L("WUE")
    sv = WU[rep]
    p(f"""s_sub_u32 s{t0}, s{sSIG}, {20 if rep == 0 else -12}
    s_lshl_b32 s{t0}, s{t0}, 2
    s_add_u32 s{t0}, s{t0}, s{sW}
    s_mov_b32 s{R_W+2}, 2211840
    v_mov_b32 v32, 0
    s_cmp_ge_u32 s{t0}, 40
    s_cbranch_scc1 {Bq}
    s_mul_i32 s{t1}, s{sJ}, 40
    s_add_u32 s{t0}, s{t0}, s{t1}
    s_and_b32 s{t7}, s{t0}, 15
    s_lshr_b32 s{t6}, s{t0}, 4
    s_mul_i32 s{t0}, s{t7}, 20
    s_add_u32 s{t0}, s{t0}, s{t6}
    s_mul_i32 s{sv}, s{t0}, 7168
    s_add_u32 s{sv}, s{sv}, {WS_W1F}
    s_mul_i32 s{sv+3}, s{t0}, 448
    s_add_u32 s{sv+3}, s{sv+3}, {WS_PS}
    s_lshr_b32 s{t1}, s{t6}, 1
    s_mul_i32 s{t1}, s{t1}, 80
    s_and_b32 s{t2}, s{t6}, 1
    s_lshl_b32 s{t2}, s{t2}, 1
    s_add_u32 s{t1}, s{t1}, s{t2}
    s_add_u32 s{t2}, s{t1}, 32
    s_sub_u32 s{t3}, s{t6}, 16
    s_mul_i32 s{t3}, s{t3}, 160
    s_add_u32 s{t4}, s{t3}, 64
    s_add_u32 s{t3}, s{t3}, 144
    s_cmp_ge_u32 s{t6}, 16
    s_cselect_b32 s{t1}, s{t4}, s{t1}
    s_cselect_b32 s{t2}, s{t3}, s{t2}
    s_cselect_b32 s{t3}, 0, 14
    v_mov_b32 v32, s{t3}
    s_mul_i32 s{t1}, s{t1}, 3456
    s_mul_i32 s{t2}, s{t2}, 3456
    s_lshl_b32 s{t6}, s{t0}, 7
    s_add_u32 s{sv+1}, s{t6}, {WS_FW1}
    s_mul_i32 s{t3}, s{t7}, 7
    s_mul_i32 s{t4}, s{t7}, 6
    s_add_u32 s{t4}, s{t4}, 12
    s_cmp_ge_u32 s{t7}, 12
    s_cselect_b32 s{t3}, s{t4}, s{t3}
    s_lshl_b32 s{t3}, s{t3}, 5
    s_add_u32 s{t1}, s{t1}, s{t3}
    s_add_u32 s{t2}, s{t2}, s{t3}
    s_mov_b32 s{t3}, 3456
    s_mov_b32 s{t4}, 14
    s_branch {E}""")
    p.label(Bq)
    p(f"""s_sub_u32 s{t0}, s{t0}, 40
    s_mov_b32 s{sv+3}, s{t0}
    s_min_u32 s{t0}, s{t0}, 53
    s_mul_i32 s{t1}, s{sJ}, 54
    s_add_u32 s{t0}, s{t0}, s{t1}
    s_and_b32 s{t7}, s{t0}, 7
    s_lshr_b32 s{t6}, s{t0}, 3
    s_mul_i32 s{t0}, s{t7}, 54
    s_add_u32 s{t0}, s{t0}, s{t6}
    s_mul_i32 s{sv}, s{t0}, 5120
    s_add_u32 s{sv}, s{sv}, {WS_W2F}
    s_mul_i32 s{t1}, s{t6}, 21846
    s_lshr_b32 s{t1}, s{t1}, 16
    s_mul_i32 s{t2}, s{t1}, 3
    s_sub_u32 s{t2}, s{t6}, s{t2}
    s_mul_i32 s{t3}, s{t1}, 7
    s_mul_i32 s{t4}, s{t1}, 6
    s_add_u32 s{t4}, s{t4}, 12
    s_cmp_ge_u32 s{t1}, 12
    s_cselect_b32 s{t1}, s{t4}, s{t3}
    s_lshl_b32 s{t2}, s{t2}, 1
    s_add_u32 s{t1}, s{t1}, s{t2}
    s_add_u32 s{t2}, s{t1}, 1
    s_sub_u32 s{t3}, s{t6}, 48
    s_mul_i32 s{t3}, s{t3}, 14
    s_add_u32 s{t4}, s{t3}, 6
    s_add_u32 s{t3}, s{t3}, 13
    s_cmp_ge_u32 s{t6}, 48
    s_cselect_b32 s{t1}, s{t4}, s{t1}
    s_cselect_b32 s{t2}, s{t3}, s{t2}
    s_mul_i32 s{t1}, s{t1}, 20480
    s_mul_i32 s{t2}, s{t2}, 20480
    s_lshl_b32 s{t6}, s{t0}, 7
    s_add_u32 s{sv+1}, s{t6}, {WS_FW2}
    s_mul_i32 s{t3}, s{t7}, 160
    s_add_u32 s{t1}, s{t1}, s{t3}
    s_add_u32 s{t2}, s{t2}, s{t3}
    s_mov_b32 s{t3}, 1280
    s_mov_b32 s{t4}, 10
    s_cmp_ge_u32 s{sv+3}, 54
    s_cselect_b32 s{t1}, 0x70000000, s{t1}
    s_cselect_b32 s{t2}, 0x70000000, s{t2}
    s_cselect_b32 s{sv}, 0x70000000, s{sv}
    s_cselect_b32 s{sv+1}, 0x70000000, s{sv+1}""")
    p.label(E)
    x = WX[rep]
    p(f"""s_lshl_b32 s{sv+2}, s{t4}, 4
    v_cvt_f32_u32 v30, v0
    v_cvt_f32_u32 v31, s{t4}
    v_add_f32 v30, 0.5, v30
    v_rcp_f32 v31, v31
    v_mul_f32 v30, v30, v31
    v_cvt_u32_f32 v30, v30
    v_mul_lo_u32 v31, v30, s{t4}
    v_sub_u32 v31, v0, v31
    v_lshlrev_b32 v31, 4, v31
    v_cmp_gt_u32 vcc, 4, v30
    v_lshrrev_b32 v33, 1, v30
    v_mad_u32_u24 v30, v33, v32, v30
    v_mul_lo_u32 v30, v30, s{t3}
    v_add_u32 v{WV[rep]}, v31, v30
    s_mov_b32 s{x[0]}, s{t1}
    s_mov_b32 s{x[1]}, s{t2}
    s_lshl_b32 s{x[2]}, s{t3}, 2
    s_mov_b32 s{x[3]}, vcc_hi
    v_lshrrev_b32 v32, 2, v0
    v_mul_lo_u32 v32, v32, s{sv+2}
    v_and_b32 v33, 3, v0
    v_lshl_add_u32 v32, v33, 3, v32
    s_mul_i32 s{t0}, s{sW}, {WSTG[rep][1]}
    s_add_u32 s{t0}, s{t0}, {WSTG[rep][0]}
    v_add_u32 v{WV[rep]+1}, s{t0}, v32
    s_lshl_b32 s{t1}, s{sv+2}, 4
    v_add_u32 v{WV[rep]+2}, s{t1}, v{WV[rep]+1}""")
WX = [(30, 31, 74, 75), (30, 31, 74, 75)]
PRIV = NW1A // 4 * 1024
WSTG = [(CONV_BASE, 7168), (PRIV - 10240, PRIV)]
WV = [84, 84]
def w_unit_dma(rep, tok):
    sv, x = WU[rep], WX[rep]
    p(f"""s_cmp_eq_u32 s{sv+2}, 224
    s_cselect_b32 s{R_W}, s{sW1}, s{sW2}
    s_cselect_b32 s{R_W+1}, s{sW1+1}, s{sW2+1}
    s_mul_i32 s{t7}, s{sW}, {WSTG[rep][1]}
    s_add_u32 m0, s{t7}, {WSTG[rep][0]}
    s_lshl_b32 s{t7}, s{sv+2}, 2
    s_mov_b32 exec_hi, s{x[3]}""")
    for q in range(8):
        so = x[0] if q < 4 else x[1]
        p(f"buffer_load_dwordx4 v{WV[rep]}, {srd(R_W)}, s{so} offen nt lds", tok_wr=(tok if q == 7 else None))
        if q < 7: p(f"s_add_u32 m0, m0, s{t7}\ns_add_u32 s{so}, s{so}, s{x[2]}")
    p("s_mov_b64 exec, -1")

def row_pattern(dst, tmp):
    p(f"""v_mul_u32_u24 v{tmp}, 205, v0
    v_lshrrev_b32 v{tmp}, 11, v{tmp}
    v_mul_u32_u24 v{dst}, 1120, v{tmp}
    v_lshl_add_u32 v{dst}, v0, 4, v{dst}""")

def dma(e, vaddr, rs, soff, add, m0base, m0add, ehi, elo=None, flags="", tok=None):
    def fn():
        p(f"s_add_u32 m0, s{m0base}, {m0add}\ns_add_u32 s{t2}, s{soff}, {add}\ns_mov_b32 exec_hi, {ehi}")
        if elo is not None: p(f"s_mov_b32 exec_lo, {elo}")
        p(f"buffer_load_dwordx4 v{vaddr}, {srd(rs)}, s{t2} offen{flags} lds", tok_wr=tok)
        p("s_mov_b64 exec, -1")
    e.group(fn, 20)
def bases():
    p(f"""s_and_b32 s{t0}, s{sW}, 1
    s_lshr_b32 s{t1}, s{sW}, 1
    s_lshl_b32 s{sP8}, s{t1}, 3
    s_lshl_b32 s{t2}, s{sA}, 2
    s_add_u32 s{t2}, s{t2}, s{t0}
    s_lshl_b32 s{t3}, s{sM}, 3
    s_add_u32 s{t3}, s{t3}, s{t0}
    s_lshl_b32 s{t4}, s{t1}, 2
    s_add_u32 s{t3}, s{t3}, s{t4}
    s_lshl_b32 s{t4}, s{sB}, 1
    s_add_u32 s{t4}, s{t4}, s{t1}
    s_mul_i32 s{sXR}, s{t3}, 20480
    s_add_u32 s{sXR}, s{sXR}, {WS_XF}
    s_mul_i32 s{t5}, s{t2}, 20480
    s_add_u32 s{t5}, s{t5}, {WS_XF}
    s_lshl_b32 s{sXW}, s{t4}, 10
    s_add_u32 s{sXW}, s{sXW}, s{t5}
    s_lshr_b32 s{sXS}, s{t4}, 2
    s_lshl_b32 s{sXS}, s{sXS}, 10
    s_and_b32 s{t6}, s{t4}, 3
    s_lshl_b32 s{t6}, s{t6}, 2
    s_add_u32 s{sXS}, s{sXS}, s{t6}
    s_add_u32 s{sXS}, s{sXS}, s{t5}
    s_add_u32 s{sXS}, s{sXS}, 16384
    s_mul_i32 s{t5}, s{t3}, 55296
    s_add_u32 s{t5}, s{t5}, {WS_HF}
    s_mul_i32 s{sHW}, s{sN}, 3072
    s_add_u32 s{sHW}, s{sHW}, s{t5}
    s_lshl_b32 s{sHS}, s{sN}, 9
    s_add_u32 s{sHS}, s{sHS}, s{t5}
    s_add_u32 s{sHS}, s{sHS}, 49152
    s_mul_i32 s{sHR}, s{t2}, 55296
    s_mul_i32 s{t5}, s{sW}, 12288
    s_add_u32 s{sHR}, s{sHR}, s{t5}
    s_add_u32 s{sHR}, s{sHR}, {WS_HF}
    s_lshl_b32 s{sFXR}, s{t3}, 6
    s_add_u32 s{sFXR}, s{sFXR}, {WS_FX}
    s_lshl_b32 s{sFXW}, s{t2}, 4
    s_add_u32 s{sFXW}, s{sFXW}, s{t4}
    s_lshl_b32 s{sFXW}, s{sFXW}, 2
    s_add_u32 s{sFXW}, s{sFXW}, {WS_FX}
    s_lshl_b32 s{sFHR}, s{sM}, 8
    s_lshl_b32 s{t5}, s{sW}, 6
    s_add_u32 s{sFHR}, s{sFHR}, s{t5}
    s_and_b32 s{t5}, s{sA}, 1
    s_lshl_b32 s{t5}, s{t5}, 3
    s_add_u32 s{sFHR}, s{sFHR}, s{t5}
    s_add_u32 s{sFHR}, s{sFHR}, {WS_FH}
    s_lshl_b32 s{sFHW}, s{sM}, 4
    s_add_u32 s{sFHW}, s{sFHW}, s{sN}
    s_lshl_b32 s{sFHW}, s{sFHW}, 2
    s_add_u32 s{sFHW}, s{sFHW}, s{sW}
    s_lshl_b32 s{sFHW}, s{sFHW}, 2
    s_add_u32 s{sFHW}, s{sFHW}, {WS_FH}
    s_lshl_b32 s{sSTO}, s{t2}, 12
    s_add_u32 s{sSTO}, s{sSTO}, {WS_ST}
    s_lshl_b32 s{sSTW}, s{t4}, 8
    s_add_u32 s{sSTW}, s{sSTW}, s{sSTO}
    s_lshl_b32 s{sSTR}, s{t3}, 12
    s_add_u32 s{sSTR}, s{sSTR}, {WS_ST}
    s_mul_i32 s{t0}, s{sB}, 54
    s_mul_i32 s{t5}, s{sW}, 12
    s_add_u32 s{t5}, s{t5}, s{t0}
    s_mul_i32 s{sW2B}, s{t5}, 5120
    s_add_u32 s{sW2B}, s{sW2B}, {WS_W2F}
    s_lshl_b32 s{t5}, s{sW}, 1
    s_min_u32 s{t5}, s{t5}, 4
    s_add_u32 s{t5}, s{t5}, s{t0}
    s_add_u32 s{t5}, s{t5}, 48
    s_mul_i32 s{sW2S}, s{t5}, 5120
    s_add_u32 s{sW2S}, s{sW2S}, {WS_W2F}
    s_cmp_eq_u32 s{sW}, 3
    s_cselect_b32 s{sW2S}, 0x70000000, s{sW2S}
    v_add_u32 v{vA1[1]}, 57344, v{vL16}
    v_add_u32 v{vA1[2]}, 114688, v{vL16}""")
CA, CB_, CACC, CAD = 92, 156, 220, 252
vA, vB = 36, 37
def conv_prep():
    p(f"""s_mul_i32 s{t3}, s{sW}, {CONV_PITCH}
    s_add_u32 s{t3}, s{t3}, {CONV_BASE}
    v_mov_b32 v30, 0
    v_mov_b32 v31, 0
    v_add_u32 v32, s{t3}, v{vL8}
    ds_write_b64 v32, v[30:31] offset:{LU_OFF+4096}
    v_add_u32 v32, 1, v{vN}
    v_and_b32 v33, 3, v32
    v_sub_u32 v32, v32, v33
    v_lshlrev_b32 v32, 1, v32
    v_mul_u32_u24 v33, {HC_PITCH}, v33
    v_add3_u32 v{vA}, v32, v33, s{t3}
    v_lshl_add_u32 v{vA}, v{vG}, 4, v{vA}
    v_lshlrev_b32 v32, 5, v{vN}
    v_sub_u32 v32, {LU_OFF + 4064 - 3584}, v32
    v_lshl_add_u32 v32, v{vG}, 4, v32
    v_add_u32 v{vB}, s{t3}, v32
    s_lshl_b32 s{t1}, s{sDVAL}, 16
    s_bitcmp1_b32 s{sW}, 0
    s_cselect_b32 s{t1}, s{sDVAL}, s{t1}
    s_and_b32 s{t1}, s{t1}, 0xffff0000
    s_lshr_b32 s{t2}, s{t1}, 16
    v_lshlrev_b32 v32, 3, v{vG}
    v_add_u32 v32, v32, v{vN}
    v_sub_u32 v32, 15, v32
    v_mov_b32 v33, s{t1}
    v_mov_b32 v34, s{t2}""")
    for r in range(4):
        p(f"""v_cmp_eq_u32 vcc, {2*r}, v32
        v_cndmask_b32 v{CAD+r}, 0, v34, vcc
        v_cmp_eq_u32 vcc, {2*r+1}, v32
        v_cndmask_b32 v{CAD+r}, v{CAD+r}, v33, vcc""")

HEADER = """; Kernarg layout (104 bytes, ptrs only, base s[0:1]): A_q A_k A_v A_shift_k A_ssm_k A_ssm_D B_x B_w1 B_b1 B_w2 d_out d_debug d_ws
;   T     every CU: short causal filter on k, times v, transposed to [channel][time]                       (group = workgroup id % 8)
; FAST copy: every workgroup of an id%8 group has been seen on one XCD, hand-overs inside the group go through that L2;
; SLOW copy: anything else, every hand-over is written through and read with sc1."""
KN = NAME + "_kernel"
p.raw(HEADER)
p.raw(f"; @launch grid=(256,1,1) block=(256,1,1) lds={LDS_BYTES}")
p.raw('.amdgcn_target "amdgcn-amd-amdhsa--gfx950"')
p.raw(f".text\n.globl {KN}\n.p2align 8\n.type {KN},@function")
p.label(KN)
p(f"""s_cmp_ge_u32 s2, 256
s_cbranch_scc1 END
s_load_dwordx16 s[4:19], s[0:1], 0
s_load_dwordx8 s[20:27], s[0:1], 64
s_load_dwordx2 s[28:29], s[0:1], 96
s_getpc_b64 {pair(t6)}
s_lshr_b32 s{sSIG}, s2, 3
s_lshl_b32 s{t0}, s{sSIG}, 11
v_lshl_add_u32 v30, v0, 3, s{t0}
global_load_dword v{JUNK}, v30, {pair(t6)}""")
if STAMPS: p(f"v_mov_b32 v{vSTAMP}, 0")
stamp("start")
p(f"""v_lshrrev_b32 v30, 6, v0
v_and_b32 v0, 63, v0
v_readfirstlane_b32 s{sW}, v30
s_and_b32 s{sJ}, s2, 7
v_lshlrev_b32 v{vL8}, 3, v0
v_and_b32 v{vN}, 15, v0
v_lshrrev_b32 v{vG}, 4, v0
v_lshlrev_b32 v{vL16}, 4, v0
s_mov_b32 s{R_W+3}, 0x20000
s_mov_b64 s[{R_W}:{R_W+1}], s[0:1]
s_mov_b32 s{R_W+2}, 0""")
row_pattern(38, 30)
p(f"""s_lshl_b32 s{t4}, s{sJ}, 9
s_add_u32 s{t4}, s{t4}, {WS_FT}
v_add_u32 v35, s{t4}, v{vL8}
s_lshl_b32 s{t5}, s2, 2
s_add_u32 s{t5}, s{t5}, s{sW}
s_lshl_b32 s{t6}, s{t5}, 7
s_add_u32 s{t6}, s{t6}, {WS_FY}
v_writelane_b32 v35, s{t6}, 4
s_add_u32 s{t6}, s{t6}, {WS_FW1 - WS_FY}
v_writelane_b32 v35, s{t6}, 8
s_lshl_b32 s{t5}, s{t5}, 8
v_writelane_b32 v35, s{t5}, 2
s_add_u32 s{t5}, s{t5}, 128
v_writelane_b32 v35, s{t5}, 3
s_add_u32 s{t6}, s{t4}, {WS_FL - WS_FT}
v_writelane_b32 v35, s{t6}, 5
s_add_u32 s{t6}, s{t6}, 128
v_writelane_b32 v35, s{t6}, 6
s_add_u32 s{t6}, s{t6}, 128
v_writelane_b32 v35, s{t6}, 7
s_lshl_b32 s{t0}, s{sSIG}, 2
s_add_u32 s{t0}, s{t0}, s{sW}
s_mul_i32 s{t1}, s{t0}, 20480
s_mul_i32 s{t2}, s{sJ}, 160
s_add_u32 s{t1}, s{t1}, s{t2}
v_add_u32 v38, s{t1}, v38
v_subrev_u32 v39, 5120, v38
s_mov_b32 s{R_K+2}, 2621440
s_mov_b32 s{R_K+3}, 0x20000
s_mov_b32 s{R_V+2}, 2621440
s_mov_b32 s{R_V+3}, 0x20000
s_mul_i32 s{t2}, s{sJ}, 640
v_lshl_add_u32 v30, v{vN}, 3, s{t2}
s_mul_i32 s{sG}, s{sJ}, 20
s_min_u32 s{t1}, s{sSIG}, 19
s_add_u32 s{sG}, s{sG}, s{t1}
s_lshl_b32 s{t3}, s{sG}, 2
s_add_u32 s{t3}, s{t3}, s{sW}
s_lshl_b32 s{t1}, s{t3}, 1
s_and_b32 s{t2}, s{t1}, 0xfffc
s_waitcnt lgkmcnt(0)
s_load_dword s{sE}, {pair(sWS)}, {WS_EPOCH}
s_load_dword s{sDVAL}, {pair(sD)}, s{t2}
global_load_dword v{JUNK}, v35, {pair(sWS)} sc1""")
SKP = 40
for dt in range(5):
    p(f"global_load_dwordx2 {vr(SKP+2*dt,2)}, v30, {pair(sSK)} offset:{128*dt}")
tokW = [p.tok()]
tokT = p.tok()
def kv_dma():
    p(f"""s_mov_b32 s{R_K}, s{sK}
    s_mov_b32 s{R_K+1}, s{sK+1}
    s_mov_b32 s{R_V}, s{sV}
    s_mov_b32 s{R_V+1}, s{sV+1}
    s_mul_i32 m0, s{sW}, {TW_PITCH}
    s_mov_b32 exec_hi, 0x3ffff""")
    for q in range(4):
        p(f"buffer_load_dwordx4 v39, {srd(R_K)}, 0 offen{NT('kv', 1)} lds\ns_add_u32 m0, m0, 800")
        if q < 3: p(f"v_add_u32 v39, 6400, v39")
    for q in range(4):
        if q == 3: p("s_mov_b32 exec_hi, 0\ns_mov_b32 exec_lo, 0x3ff")
        p(f"buffer_load_dwordx4 v38, {srd(R_V)}, 0 offen{NT('kv', 1)} lds", tok_wr=tokT)
        if q < 3: p(f"s_add_u32 m0, m0, 800\nv_add_u32 v38, 6400, v38")
    p("s_mov_b64 exec, -1")
kv_dma()
tokW = [p.tok(), p.tok()]
stamp('iss0')
p(f"""s_mov_b32 s{R_WS+2}, 0x10000000
s_mov_b32 s{R_WS+3}, 0x20000
s_mov_b32 s{R_H+2}, 2621440
s_mov_b32 s{R_H+3}, 0x20000
s_lshl_b32 s{t3}, s{t3}, 12
s_sub_u32 s{t3}, s{t3}, 32
s_cmp_lt_u32 s{sSIG}, 20
s_cselect_b32 s{t3}, s{t3}, 0x70000000
v_add_u32 v{vHOFF}, s{t3}, v{vL16}
s_mov_b32 s{R_H}, s{sH}
s_mov_b32 s{R_H+1}, s{sH+1}""")
def common_setup(tagl):
    p(f"""s_mov_b32 s{R_WS}, s{sWS}
    s_mov_b32 s{R_WS+1}, s{sWS+1}
    s_lshr_b32 s{t0}, s{sSIG}, 3
    s_lshl_b32 s{sA}, s{sJ}, 2
    s_add_u32 s{sA}, s{sA}, s{t0}
    s_and_b32 s{sB}, s{sSIG}, 7
    s_lshr_b32 s{sM}, s{sA}, 1
    s_and_b32 s{sN}, s{sSIG}, 15
    s_getreg_b32 s{sXV}, hwreg(HW_REG_XCC_ID)
    s_lshl_b32 s{sXV}, s{sXV}, 28
    s_lshl_b32 s{t0}, s{sJ}, 5
    s_add_u32 s{t0}, s{t0}, s{sSIG}
    s_lshl_b32 s{t0}, s{t0}, 5
    s_add_u32 s{t0}, s{t0}, {WS_XC}
    v_mov_b32 v30, 0
    s_mul_i32 s{sTAG}, s{sE}, 0x9E3779B1
    s_add_u32 s{sTAG}, s{sTAG}, 0x7F4A7C15
    s_xor_b32 s{sTAG2}, s{sTAG}, 0x5bd1e995
    s_xor_b32 s{sXV}, s{sXV}, s{sTAG}
    v_mov_b32 v31, s{sXV}
    s_cmp_eq_u32 s{sW}, 0
    s_cselect_b32 s{t0}, s{t0}, 0x70000000
    buffer_store_dword v31, v30, {WSR}, s{t0} offen sc1""")
    stamp("xpub")
    bases()
common_setup(0)
SKC = 92
for dt in range(5):
    a_, c = SKP + 2 * dt, SKC + 5 * dt
    p(f"""v_alignbit_b32 v{c}, v{a_}, v{a_}, 16
    v_alignbit_b32 v{c+1}, v{a_+1}, v{a_+1}, 16
    v_and_b32 v{c+2}, 0xffff, v{a_}
    v_and_b32 v{c+4}, 0xffff0000, v{a_+1}
    v_and_b32 v{c+3}, 0xffff0000, v{a_}
    v_and_b32 v{a_+1}, 0xffff, v{a_+1}
    v_or_b32 v{c+3}, v{c+3}, v{a_+1}""")
p(f"s_cmp_ge_u32 s{sSIG}, 20\ns_cbranch_scc1 PREP_W")
conv_prep()
w_unit_params(1)
p.label("PREP_DONE")
def prep_w():
    p.label("PREP_W")
    w_unit_params(0)
    if opt("w0e", 0) == 2: w_unit_dma(0, tokW[0])
    p("s_branch PREP_DONE")
tail_code.append(prep_w)
p(f"""v_lshrrev_b32 v30, 2, v0
v_mul_u32_u24 v30, 160, v30
v_and_b32 v31, 3, v0
v_lshl_add_u32 v30, v31, 3, v30
s_mul_i32 s{t3}, s{sW}, {TW_PITCH}
v_add_u32 v56, s{t3}, v30
s_lshl_b32 s{t2}, s{sW}, 5
s_sub_u32 s{t2}, {UT_BASE + 120}, s{t2}
v_mul_u32_u24 v57, 144, v{vN}
v_lshlrev_b32 v32, 3, v{vG}
v_sub_u32 v57, v57, v32
v_add_u32 v57, s{t2}, v57
s_mul_i32 s{t0}, s{sJ}, {80*4096}
s_lshl_b32 s{t2}, s{sSIG}, 7
s_sub_u32 s{t0}, s{t0}, s{t2}
s_lshl_b32 s{t2}, s{sW}, 15
s_add_u32 s{t0}, s{t0}, s{t2}
s_add_u32 s{t0}, s{t0}, {WS_UR + 3968}
v_lshrrev_b32 v60, 3, v0
v_and_b32 v61, 7, v0
v_lshlrev_b32 v61, 4, v61
v_lshl_add_u32 v62, v60, 12, v61
v_mul_u32_u24 v60, 144, v60
s_mul_i32 s{t2}, s{sW}, 1152
s_add_u32 s{t2}, s{t2}, {UT_BASE}
v_add3_u32 v60, v60, v61, s{t2}
s_lshl_b32 s{t5}, s{sJ}, 5
s_add_u32 s{t5}, s{t5}, s{sSIG}
s_lshl_b32 s{t5}, s{t5}, 2
s_add_u32 s{t5}, s{t5}, s{sW}
s_lshl_b32 s{t5}, s{t5}, 2
s_add_u32 s{t5}, s{t5}, {WS_FT}
s_add_u32 s{t1}, s{t0}, {4*32768}
s_add_u32 s{t2}, s{t0}, {8*32768}
s_cmp_lt_u32 s{sW}, 2
s_cselect_b32 s{t2}, s{t2}, 0x70000000
""")
stamp("issued")
def w_process(rep, st):
    sv = WU[rep]
    SK = p.L("WSKIP")
    tk = p.tok()
    p.need(tokW[rep])
    st(f"W_in{rep}")
    for ft in range(7):
        p(f"ds_read_b64_tr_b16 {vr(200+4*ft,2)}, v{WV[rep]+1} offset:{32*ft}\nds_read_b64_tr_b16 {vr(202+4*ft,2)}, v{WV[rep]+2} offset:{32*ft}")
    for ft in range(7):
        if ft == 5: p(f"s_cmp_lt_u32 s{sv+2}, 224\ns_cbranch_scc1 {SK}")
        if ft == 4: p(f"s_add_u32 s{sv}, s{sv}, 4096")
        p(f"buffer_store_dwordx4 {vr(200+4*ft,4)}, v{vL16}, {WSR}, s{sv} offen offset:{1024*(ft%4)} sc1", tok_wr=tk)
    if rep == 0:
        p(f"v_mov_b32 v64, 0x3f803f80\nv_mov_b32 v65, 0x3f803f80\nv_mov_b32 v66, 0x3f803f80\nv_mov_b32 v67, 0x3f803f80\nv_lshlrev_b32 v68, 4, v{vG}")
        for ft in range(7):
            p(f"{MF} {vr(120+4*ft,4)}, {vr(200+4*ft,4)}, v[64:67], 0")
        p("s_nop 7\ns_mov_b32 exec_lo, 0x00010001\ns_mov_b32 exec_hi, 0x00010001")
        for ft in range(7):
            p(f"buffer_store_dwordx4 {vr(120+4*ft,4)}, v68, {WSR}, s{sv+3} offen offset:{64*ft} sc1", tok_wr=tk)
        p("s_mov_b64 exec, -1")
    p.label(SK)
    return tk
if opt("w0e", 0) == 2:
    p(f"s_cmp_ge_u32 s{sSIG}, 20\ns_cbranch_scc1 KVW\ns_waitcnt vmcnt(1)\ns_branch KVD")
    p.label("KVW")
    p("s_waitcnt vmcnt(9)")
    p.label("KVD")
else:
    p.need(tokT)
stamp("kv_in")
KB = [148 - 28 + 6 * dt + 0 for dt in range(5)]
KB = [120 + 6 * dt for dt in range(5)]
for dt in range(5):
    b = KB[dt]
    p(f"ds_read_b64_tr_b16 {vr(b,2)}, v56 offset:{32*dt}\nds_read_b64_tr_b16 {vr(b+2,2)}, v56 offset:{32*dt+640}\nds_read_b64_tr_b16 {vr(b+4,2)}, v56 offset:{32*dt+3200}")
W0E = opt("w0e", 0)
p(f"s_cmp_ge_u32 s{sSIG}, 20\ns_cbranch_scc1 ROLE_W")
h_loads()
p.label("ROLE_DONE")
def role_w():
    p.label("ROLE_W")
    if W0E == 1: w_unit_dma(0, tokW[0])
    p("s_branch ROLE_DONE")
tail_code.append(role_w)
tokU = p.tok()
for dt in range(5):
    b, c, o, vv, st = KB[dt], SKC + 5 * dt, 150, 154, 158 + 2 * (dt & 1)
    p(f"""v_dot2_f32_bf16 v{o}, v{b}, v{c+4}, 0
    v_dot2_f32_bf16 v{o+1}, v{b+1}, v{c+1}, 0
    v_dot2_f32_bf16 v{o+2}, v{b+1}, v{c+4}, 0
    v_dot2_f32_bf16 v{o+3}, v{b+2}, v{c+1}, 0
    v_lshlrev_b32 v{vv}, 16, v{b+4}
    v_and_b32 v{vv+1}, 0xffff0000, v{b+4}
    v_dot2_f32_bf16 v{o}, v{b+1}, v{c+3}, v{o}
    v_dot2_f32_bf16 v{o+1}, v{b+2}, v{c}, v{o+1}
    v_dot2_f32_bf16 v{o+2}, v{b+2}, v{c+3}, v{o+2}
    v_dot2_f32_bf16 v{o+3}, v{b+3}, v{c}, v{o+3}
    v_dot2_f32_bf16 v{o}, v{b+2}, v{c+2}, v{o}
    v_dot2_f32_bf16 v{o+2}, v{b+3}, v{c+2}, v{o+2}
    v_lshlrev_b32 v{vv+2}, 16, v{b+5}
    v_and_b32 v{vv+3}, 0xffff0000, v{b+5}
    s_nop 0
    v_pk_mul_f32 {vr(o,2)}, {vr(o,2)}, {vr(vv,2)}
    v_pk_mul_f32 {vr(o+2,2)}, {vr(o+2,2)}, {vr(vv+2,2)}
    v_cvt_pk_bf16_f32 v{st+1}, v{o+1}, v{o}
    v_cvt_pk_bf16_f32 v{st}, v{o+3}, v{o+2}
    ds_write_b64 v57, {vr(st,2)} offset:{2304*dt}""")
stamp("T_calc")
p("s_waitcnt lgkmcnt(0)\ns_barrier")
for q in range(3):
    p(f"ds_read_b128 {vr(92+4*q,4)}, v60 offset:{4608*q}")
for q in range(3):
    p(f"buffer_store_dwordx4 {vr(92+4*q,4)}, v62, {WSR}, s{(t0, t1, t2)[q]} offen sc1", tok_wr=tokU)
stamp("u_st")
p(f"""s_mul_i32 s{t3}, s{sW}, {CONV_PITCH}
s_add_u32 s{t3}, s{t3}, {CONV_BASE}
v_add_u32 v33, s{t3}, v{vL16}""")
p(f"s_cmp_ge_u32 s{sSIG}, 20\ns_cbranch_scc1 HB1")
h_build(opt("hb1", 2))
p.label("HB1")
p(f"""v_mov_b32 v30, s{sTAG}
v_mov_b32 v31, 0
s_waitcnt vmcnt(0)
buffer_store_dword v30, v31, {WSR}, s{t5} offen""")
stamp("T_pub")
p(f"""s_lshl_b32 s{t4}, s{sJ}, 10
s_add_u32 s{t4}, s{t4}, {WS_XC}
v_and_b32 v63, 31, v0
v_lshlrev_b32 v63, 5, v63
buffer_load_dword v62, v63, {WSR}, s{t4} offen sc1""")
p(f"s_cmp_ge_u32 s{sSIG}, 20\ns_cbranch_scc1 MID_W")
h_build(None)
def mid_w():
    p.label("MID_W")
    if not W0E: w_unit_dma(0, tokW[0])
    tk = w_process(0, stamp)
    p(f"v_mov_b32 v30, s{sTAG}\nv_mov_b32 v31, 0")
    p.need(tk)
    p(f"buffer_store_dword v30, v31, {WSR}, s{WU[0]+1} offen sc1")
    stamp("W_done")
    p("s_branch CHECK")
tail_code.append(mid_w)
p.label("CHECK")
p(f"s_mov_b32 s{sSPIN}, 0\ns_branch VER2")
p.label("VER")
p(f"""s_sleep 1
s_add_u32 s{sSPIN}, s{sSPIN}, 1
s_cmp_gt_u32 s{sSPIN}, {SPIN}
s_cbranch_scc1 SLOW
buffer_load_dword v62, v63, {WSR}, s{t4} offen sc1""")
p.label("VER2")
p(f"""v_xor_b32 v62, s{sXV}, v62
v_cmp_ne_u32 vcc, 0, v62
s_cbranch_vccz {'SLOW' if FORCE_SLOW else 'FAST'}
v_and_b32 v62, 0x0fffffff, v62
v_cmp_ne_u32 vcc, 0, v62
s_cbranch_vccnz VER
s_branch SLOW""")

def body(slow):
    PF = "S" if slow else "F"
    sc = " sc1" if slow else ""
    lab = lambda n: f"{PF}_{n}"
    st = (lambda n, e=None: None) if slow else stamp
    LX = lambda stride, layer: stride * layer if slow else 0
    TG = lambda layer: sTAG2 if layer else sTAG
    HPW = opt("hpw", 0)
    WT = lambda layer, s=0: " sc1" if (slow or (layer == 0 and not HPW) or opt("wt1", 1) in (1, 3 - s)) else ""
    p.label("SLOW" if slow else "FAST")
    st("verified")
    if slow:
        p(f"v_mov_b32 v30, s{sTAG}\nv_mov_b32 v31, 0\ns_add_u32 s{t0}, s{t5}, {WS_FTR - WS_FT}\nbuffer_store_dword v30, v31, {WSR}, s{t0} offen sc1")
    def xy_offset(dst):
        p(f"""s_and_b32 s{t1}, s{sW}, 1
        s_lshl_b32 s{t0}, s{sA}, 2
        s_add_u32 s{t0}, s{t0}, s{t1}
        s_mul_i32 s{t0}, s{t0}, 20480
        s_mul_i32 s{t1}, s{sB}, 160
        s_add_u32 s{t0}, s{t0}, s{t1}
        s_lshr_b32 s{t1}, s{sW}, 1
        s_lshl_b32 s{t1}, s{t1}, 2
        s_add_u32 s{t0}, s{t0}, s{t1}
        v_mul_u32_u24 v{dst}, 1280, v{vN}
        v_lshl_add_u32 v{dst}, v{vG}, 3, v{dst}
        v_add_u32 v{dst}, s{t0}, v{dst}
        v_add_u32 v{dst+1}, 40960, v{dst}""")
    def x0_dma(e, base, gap=0, pitch=PRIV):
        e.group(lambda: (row_pattern(83, 30), p(f"""s_lshl_b32 s{t0}, s{sA}, 2
        s_and_b32 s{t1}, s{sW}, 1
        s_add_u32 s{t0}, s{t0}, s{t1}
        s_mul_i32 s{t0}, s{t0}, 20480
        s_mul_i32 s{t1}, s{sB}, 160
        s_add_u32 s{t6}, s{t0}, s{t1}
        s_mov_b32 s{R_H}, s{sQ}
        s_mov_b32 s{R_H+1}, s{sQ+1}
        s_mul_i32 s{t7}, s{sW}, {pitch}""")), 60)
        tk = p.tok()
        for q in range(8):
            s_, r = q >> 2, q & 3
            dma(e, 83, R_H, t6, 40960 * s_ + 6400 * r, t7, base + 2560 * s_ + 800 * r, 0x3ffff if r < 3 else 0, None if r < 3 else 0x3ff, " nt", tk)
            if gap: e.skip(gap)
        return tk
    def x0_read(e, tk, base, pitch=PRIV):
        e(f"""s_mul_i32 s{t0}, s{sW}, {pitch}
        s_lshr_b32 s{t1}, s{sP8}, 1
        s_add_u32 s{t0}, s{t0}, s{t1}
        s_add_u32 s{t0}, s{t0}, {base}
        v_mul_u32_u24 v30, 160, v{vN}
        v_lshl_add_u32 v30, v{vG}, 3, v30
        v_add_u32 v30, s{t0}, v30""")
        e.need(tk)
        for s in range(2):
            for dt in range(5): e(f"ds_read_b32 v{XP[s]+dt}, v30 offset:{2560*s + 32*dt}")
        e.skip(6)
    def flag_prewarm(e):
        if not slow:
            e(f"""v_and_b32 v30, 1, v0
            v_lshlrev_b32 v31, 7, v30
            v_add_u32 v31, s{sFXW}, v31
            v_lshlrev_b32 v30, 12, v30
            v_add_u32 v30, s{sFHW}, v30
            v_cmp_gt_u32 vcc, 2, v0
            v_cndmask_b32 v30, v30, v31, vcc
            v_and_b32 v31, 7, v0
            v_lshlrev_b32 v31, 7, v31
            v_bfe_u32 v32, v0, 3, 1
            v_mul_u32_u24 v32, 40960, v32
            v_add3_u32 v31, v31, v32, s{sXS}
            v_cmp_gt_u32 vcc, 32, v0
            v_cndmask_b32 v30, v31, v30, vcc
            s_sub_u32 s{t0}, s{sXW}, s{sXS}
            v_add_u32 v31, s{t0}, v31
            v_cmp_gt_u32 vcc, 48, v0
            v_cndmask_b32 v30, v31, v30, vcc
            v_and_b32 v31, 1, v0
            v_lshlrev_b32 v31, 7, v31
            v_bfe_u32 v32, v0, 1, 1
            v_lshl_add_u32 v31, v32, 13, v31
            s_add_u32 s{t0}, s{sSTW}, {ST_K}
            v_add_u32 v31, s{t0}, v31
            v_bfe_u32 v32, v0, 2, 4
            v_cmp_eq_u32 vcc, 1, v32
            v_cndmask_b32 v30, v30, v31, vcc
            v_subrev_u32 v31, {ST_K}, v31
            v_cmp_eq_u32 vcc, 2, v32
            v_cndmask_b32 v30, v30, v31, vcc
            buffer_load_dword v{JUNK}, v30, {WSR}, 0 offen sc1""")
    X32, G0 = [38, 48], [58, 220 - 220 + 58]
    G0 = [58, 74]
    def x0_stats(e, unp=True):
        for s in range(2):
            if unp: unpack(e, X32[s], XP[s], 5)
            e(f"s_add_u32 s{t0}, s{sSTW}, {8192*s}")
            stats_publish(e, X32[s], G0[0], t0, 0, slow)
    def x0_norm(e):
        for s in range(2):
            late_check(e, stats_loads(G0[s], (t3, t4)[s]), stats_tags(G0[s]), 32, False)
            stats_finish(e, G0[s], 30)
            e(f"v_mul_f32 v32, -v30, v31")
            for i in range(10): e(f"v_fma_f32 v{G0[s]+i}, v{X32[s]+i}, v31, v32")
    XN0 = G0
    def w_flag_addr(e, dst):
        e.group(lambda: p(f"""v_and_b32 v33, 31, v0
        s_mul_i32 s{t1}, s{sW}, 12
        v_add_u32 v{dst}, s{t1}, v33
        s_lshl_b32 s{t2}, s{sW}, 1
        s_add_u32 s{t2}, s{t2}, 36
        v_add_u32 v{dst+1}, s{t2}, v33
        v_cmp_gt_u32 vcc, 12, v33
        v_cndmask_b32 v{dst}, v{dst+1}, v{dst}, vcc
        s_add_u32 s{t2}, s{t2}, 13
        s_min_u32 s{t2}, s{t2}, 53
        v_min_u32 v{dst}, s{t2}, v{dst}
        s_mul_i32 s{t1}, s{sB}, {54*128}
        s_add_u32 s{t1}, s{t1}, {WS_FW2}
        v_lshl_add_u32 v{dst}, v{dst}, 7, s{t1}
        v_min_u32 v{dst+1}, 19, v0
        s_mul_i32 s{t1}, s{sN}, {20*128}
        s_add_u32 s{t1}, s{t1}, {WS_FW1}
        v_lshl_add_u32 v{dst+1}, v{dst+1}, 7, s{t1}
        s_lshr_b32 s{t1}, s{sP8}, 2
        v_xor_b32 v{vW2}, s{t1}, v0
        v_lshlrev_b32 v{vW2}, 4, v{vW2}
        s_mul_i32 s{sGOTA}, s{sN}, 143360
        s_add_u32 s{sGOTA}, s{sGOTA}, {WS_W1F}"""), 100)
    def w1_one(e, base_reg, idx):
        if opt("now1", 0): return
        def fn():
            p(f"s_add_u32 m0, s{base_reg}, {1024*idx}\ns_add_u32 s{t2}, s{sGOTA}, m0")
            return p(f"buffer_load_dwordx4 v{vL16}, {WSR}, s{t2} offen{' sc1' if opt('w1sc', 1) else ''} lds")
        e.group(fn, 12)
    vW2 = 35
    NW2E = 0
    def w2_loads(e, q0, q1, vaddr):
        if opt("now2", 0): return
        for q in range(q0, q1):
            sb, qq = (sW2B, q) if q < 60 else (sW2S, q - 60)
            if qq % 4 == 0 and qq > 0: e(f"s_add_u32 s{sb}, s{sb}, 4096")
            e(f"buffer_load_dwordx4 {w2reg(q)}, v{vaddr}, {WSR}, s{sb} offen offset:{1024*(qq%4)}{' sc1' if opt('w2sc', 1) else ''}")
    p(f"s_cmp_ge_u32 s{sSIG}, 20\ns_cbranch_scc1 {lab('W_PHASE')}")
    p(f"""s_lshl_b32 s{t0}, s{sJ}, 9
    s_add_u32 s{t0}, s{t0}, {WS_FTR if slow else WS_FT}""")
    for t in range(8):
        p(f"ds_read_b64 {vr(CA+4*t,2)}, v{vA} offset:{512*t}\nds_read_b64 {vr(CA+4*t+2,2)}, v{vA} offset:{512*t+8}")
    w_flag_addr(D, 90)
    spin_wait(f"buffer_load_dwordx2 v[30:31], v{vL8}, {WSR}, s{t0} offen sc1", [30, 31], False, nap=(1 if not slow else 4))
    st("T_seen")
    tokUin = p.tok()
    p(f"""s_lshl_b32 s{t0}, s{sG}, 2
    s_add_u32 s{t0}, s{t0}, s{sW}
    s_lshl_b32 s{t0}, s{t0}, 12
    s_add_u32 s{t0}, s{t0}, {WS_UR}
    s_add_u32 m0, s{t3}, {LU_OFF}""")
    for q in range(4):
        p(f"buffer_load_dwordx4 v{vL16}, {WSR}, s{t0} offen offset:{1024*q} sc1 lds", tok_wr=(tokUin if q == 3 else None))
    p.need(tokUin)
    st("u_in")
    for m in range(8):
        p(f"ds_read_b128 {vr(CB_+4*m,4)}, v{vB} offset:{3584-512*m}")
    beats = [[f"{MF} {vr(CACC+4*j,4)}, {vr(CAD,4)}, {vr(CB_+4*j,4)}, 0"] for j in range(8)]
    for p0 in range(8):
        buf = p0 & 1
        reads = []
        if p0 < 7:
            for t in range(8):
                bb, ba = CB_ + 32 * (1 - buf) + 4 * t, CA + 32 * (1 - buf) + 4 * t
                reads += [f"ds_read_b128 {vr(bb,4)}, v{vB} offset:{3584-512*t+64*(p0+1)}",
                          f"ds_read_b64 {vr(ba,2)}, v{vA} offset:{64*(p0+1)+512*t}",
                          f"ds_read_b64 {vr(ba+2,2)}, v{vA} offset:{64*(p0+1)+512*t+8}"]
        prs = sorted([(t, m) for t in range(8) for m in range(8) if t + m <= 7], key=lambda x: (max(x), x[0] + x[1]))
        for i, (t, m) in enumerate(prs):
            b = [f"{MF} {vr(CACC+4*(t+m),4)}, {vr(CA+32*buf+4*t,4)}, {vr(CB_+32*buf+4*m,4)}, {vr(CACC+4*(t+m),4)}"]
            if i >= 8 and reads: b.append(reads.pop(0))
            beats.append(b)
    F = Fill()
    gap = opt("cgap", 1)
    wfl1 = f"buffer_load_dword v34, v91, {WSR}, 0 offen sc1"
    wfl2 = f"buffer_load_dword v34, v90, {WSR}, 0 offen sc1"
    na = NW1A // 4
    ar = lambda b, n: f"a[{b}:{b+n-1}]"
    tkw = p.tok()
    F(f"s_mov_b32 s{R_W}, s{sW2}\ns_mov_b32 s{R_W+1}, s{sW2+1}\ns_mul_i32 s{t5}, s{sW}, {PRIV}")
    for q in range(8):
        dma(F, WV[1], R_W, WX[1][q >> 2], 5120 * (q & 3), t5, PRIV - 10240 + 640 * q, 0xff, None, " nt", tkw)
        F.skip(1)
    tkx = x0_dma(F, PRIV - 5120, 1)
    flag_prewarm(F)
    F(f"v_mov_b32 v26, v{WV[1]+1}")
    F.until(opt("x0_at", 205))
    x0_read(F, tkx, PRIV - 5120)
    x0_stats(F)
    F(wfl1)
    YT = 156
    F3 = Fill()
    F3(f"""s_mul_i32 s{t3}, s{sW}, {CONV_PITCH}
    s_add_u32 s{t3}, s{t3}, {CONV_BASE}
    v_lshlrev_b32 v108, 5, v{vN}
    v_lshl_add_u32 v108, v{vG}, 3, v108
    v_add_u32 v108, s{t3}, v108
    v_bfe_u32 v109, v0, 2, 2
    v_mul_u32_u24 v109, {CONV_PITCH}, v109
    v_and_b32 v110, 3, v0
    v_lshl_add_u32 v109, v110, 3, v109
    v_lshl_add_u32 v109, v{vG}, 5, v109
    s_lshl_b32 s{t0}, s{sW}, 10
    s_add_u32 s{t0}, s{t0}, {CONV_BASE}
    v_add_u32 v109, s{t0}, v109
    v_mul_u32_u24 v110, 20480, v{vG}
    v_lshl_add_u32 v110, v{vN}, 3, v110
    s_mul_i32 s{t4}, s{sW}, {32*20480}
    s_lshl_b32 s{t1}, s{sG}, 7
    s_add_u32 s{t4}, s{t4}, s{t1}
    s_add_u32 s{t4}, s{t4}, {WS_YG}
    s_lshl_b32 s{t0}, s{sG}, 9
    s_lshl_b32 s{t1}, s{sW}, 7
    s_add_u32 s{t0}, s{t0}, s{t1}
    s_add_u32 s{t0}, s{t0}, {WS_FY}
    v_mov_b32 v111, s{t0}
    s_lshl_b32 s{t0}, s{sJ}, 5
    s_add_u32 s{t0}, s{t0}, s{sSIG}
    s_lshl_b32 s{t0}, s{t0}, 4
    s_lshr_b32 s{t1}, s{t1}, 5
    s_add_u32 s{t0}, s{t0}, s{t1}
    s_add_u32 s{t0}, s{t0}, {WS_FL}
    v_mov_b32 v112, s{t0}
    v_mov_b32 v113, s{sTAG}""")
    merge(beats[:266], F)
    st("conv_cut")
    merge(beats[266:], F3)
    st("conv_done")
    for j in range(8):
        p(f"v_cvt_pk_bf16_f32 v{92+2*j}, v{CACC+4*j}, v{CACC+4*j+1}\nv_cvt_pk_bf16_f32 v{93+2*j}, v{CACC+4*j+2}, v{CACC+4*j+3}")
        p(f"ds_write_b64 v108, {vr(92+2*j,2)} offset:{512*j}")
    p("s_waitcnt lgkmcnt(0)\ns_barrier")
    for q in range(8):
        p(f"ds_read_b64_tr_b16 {vr(YT+2*q,2)}, v109 offset:{128*q}")
    tky = p.tok()
    for q in range(8):
        p(f"buffer_store_dwordx2 {vr(YT+2*q,2)}, v110, {WSR}, s{t4} offen sc1", tok_wr=tky)
        if q < 7: p(f"s_add_u32 s{t4}, s{t4}, 81920")
    p(f"buffer_store_dword v113, v112, {WSR}, 0 offen{sc}")
    st("y_iss")
    p(f"s_mov_b32 s{t3}, s{sSTO}\ns_add_u32 s{t4}, s{sSTO}, 8192")
    p(stats_loads(G0[0], t3)); p(stats_loads(G0[1], t4))
    for ft in range(5):
        p(f"ds_read_b64_tr_b16 {vr(192+4*ft,2)}, v26 offset:{32*ft}\nds_read_b64_tr_b16 {vr(194+4*ft,2)}, v26 offset:{32*ft+2560}")
    p.need(tky)
    p(f"buffer_store_dword v113, v111, {WSR}, 0 offen sc1")
    st("y_st")
    for ft in range(5):
        if ft == 4: p(f"s_add_u32 s{WU[1]}, s{WU[1]}, 4096")
        p(f"buffer_store_dwordx4 {vr(192+4*ft,4)}, v{vL16}, {WSR}, s{WU[1]} offen offset:{1024*(ft%4)} sc1")
    NAC, NAI = opt("nac", 12), opt("nai", 12)
    late_check(D, wfl1, [34], 32, False)
    st("w_late")
    p(f"s_mul_i32 s{t5}, s{sW}, {PRIV}")
    for q in range(NAC): w1_one(D, t5, q)
    x0_norm(D)
    p(f"s_branch {lab('W1DONE')}")

    p.label(lab("W_PHASE"))
    w_flag_addr(D, 90)
    tkx = x0_dma(D, RED_BASE, pitch=5120)
    flag_prewarm(D)
    p(f"s_cmp_lg_u32 s{sW}, 0\ns_cbranch_scc1 {lab('NOWP')}")
    spin_wait(wfl1, [34], False, nap=opt("wnap", 6))
    p.label(lab("NOWP"))
    p("s_barrier")
    st("w_flags")
    nb_ = (140 - NW1A) // 4
    def w1_range(q0, q1):
        if q0 < na: p(f"s_mul_i32 s{t5}, s{sW}, {PRIV}")
        for q in range(q0, q1):
            if q >= na and (q == na or q == q0): p(f"s_mul_i32 s{t5}, s{sW}, {nb_*1024}\ns_add_u32 s{t5}, s{t5}, {NW1A*1024}")
            w1_one(D, t5, q if q < na else q - na)
    x0_read(D, tkx, RED_BASE, pitch=5120)
    x0_stats(D)
    w1_range(0, NAI)
    p(f"""s_sub_u32 s{t0}, s{sSIG}, 20
    s_lshl_b32 s{t0}, s{t0}, 2
    s_add_u32 s{t0}, s{t0}, s{sW}
    s_mul_i32 s{t0}, s{t0}, {2*8192}
    s_add_u32 s{t0}, s{t0}, {WS_W1F}
    s_cmp_lt_u32 s{t0}, {WS_W1F + 4*143360}
    s_cselect_b32 s{t0}, s{t0}, 0x70000000
    s_add_u32 s{t1}, s{t0}, 8192
    v_lshlrev_b32 v30, 7, v0
    v_min_u32 v31, 79, v0
    v_lshlrev_b32 v31, 7, v31
    s_mov_b32 s{t2}, {WS_FW1}""")
    if not slow:
        p("s_waitcnt vmcnt(8)")
        p(f"buffer_load_dword v{JUNK}, v30, {WSR}, s{t0} offen sc1\nbuffer_load_dword v{JUNK}, v30, {WSR}, s{t1} offen sc1")
    p(f"""s_cmp_lg_u32 s{sSIG}, 31
    s_cbranch_scc1 {lab('NOCB')}
    s_cmp_gt_u32 s{sW}, 1
    s_cbranch_scc1 {lab('NOCB')}
    s_lshl_b32 s{t5}, s{sJ}, 1
    s_add_u32 s{t5}, s{t5}, s{sW}
    v_min_u32 v30, 19, v0
    s_mul_i32 s{t1}, s{t5}, {20*128}
    v_lshl_add_u32 v30, v30, 7, s{t1}
    s_mov_b32 s{t0}, {WS_FW1}
    s_mul_i32 s{t2}, s{t5}, 7
    s_mul_i32 s{t3}, s{t5}, 6
    s_add_u32 s{t3}, s{t3}, 12
    s_cmp_ge_u32 s{t5}, 12
    s_cselect_b32 s{t2}, s{t3}, s{t2}
    s_lshl_b32 s{t2}, s{t2}, 5
    v_min_u32 v32, 27, v0
    v_lshl_add_u32 v33, v32, 3, s{t2}
    v_min_u32 v33, 3448, v33
    global_load_dwordx2 v[92:93], v33, {pair(sB1)}
    v_lshlrev_b32 v32, 4, v32""")
    spin_wait(f"buffer_load_dword v31, v30, {WSR}, s{t0} offen sc1", [31], False, nap=6)
    p(f"s_mul_i32 s{t0}, s{t5}, 8960\ns_add_u32 s{t0}, s{t0}, {WS_PS}")
    for ks in range(20):
        if ks % 9 == 0 and ks: p(f"s_add_u32 s{t0}, s{t0}, {448*9}")
        p(f"buffer_load_dwordx4 {vr(100+4*ks,4)}, v32, {WSR}, s{t0} offen offset:{448*(ks%9)} sc1")
    for ks in range(1, 20):
        p(f"v_pk_add_f32 v[100:101], v[100:101], {vr(100+4*ks,2)}\nv_pk_add_f32 v[102:103], v[102:103], {vr(102+4*ks,2)}")
    for i in range(4):
        c, o = 100 + i, 104 + 2 * i
        p(f"""v_cvt_pk_bf16_f32 v{o}, v{c}, v{c}
        v_and_b32 v112, 0xffff0000, v{o}
        v_sub_f32 v{c}, v{c}, v112
        v_cvt_pk_bf16_f32 v113, v{c}, v{c}
        v_and_b32 v112, 0xffff0000, v113
        v_sub_f32 v{c}, v{c}, v112
        v_cvt_pk_bf16_f32 v113, v{c}, v{c}
        v_and_b32 v{o}, 0xffff, v{o}
        v_or_b32 v{o}, v{o}, v112
        v_and_b32 v113, 0xffff, v113
        {'v_lshlrev_b32 v112, 16, v%d' % (92 + i // 2) if i % 2 == 0 else 'v_and_b32 v112, 0xffff0000, v%d' % (92 + i // 2)}
        v_or_b32 v{o+1}, v113, v112""")
    p(f"""s_mul_i32 s{t0}, s{t5}, 896
    s_add_u32 s{t0}, s{t0}, {WS_CB}
    v_lshlrev_b32 v32, 1, v32
    buffer_store_dwordx4 v[104:107], v32, {WSR}, s{t0} offen sc1
    buffer_store_dwordx4 v[108:111], v32, {WSR}, s{t0} offen offset:16 sc1
    s_lshl_b32 s{t0}, s{t5}, 7
    s_add_u32 s{t0}, s{t0}, {WS_FC}
    v_mov_b32 v30, s{sTAG}
    v_mov_b32 v31, 0
    s_waitcnt vmcnt(0)
    buffer_store_dword v30, v31, {WSR}, s{t0} offen sc1""")
    p.label(lab("NOCB"))
    p(f"s_mov_b32 s{t3}, s{sSTO}\ns_add_u32 s{t4}, s{sSTO}, 8192")
    p(stats_loads(G0[0], t3)); p(stats_loads(G0[1], t4))
    x0_norm(D)
    st("xn_i")
    p(f"""s_lshl_b32 s{t0}, s{sJ}, 9
    s_add_u32 s{t0}, s{t0}, {WS_FL}
    v_lshlrev_b32 v31, 2, v0""")
    spin_wait(f"buffer_load_dword v30, v31, {WSR}, s{t0} offen sc1", [30], False, nap=4)
    st("hint")
    p.label(lab("W1DONE"))
    st("xn")

    def gate(e, s, layer, X2, G, YF, XN=None, defer=False, pk=False, later=None):
        if XN is None:
            stats_finish(e, G, 30)
            e(f"v_mul_f32 v32, -v30, v31")
        unpack(e, YF, YP[s], 5)
        if XN is None:
            XN = G
            if pk:
                for i in range(0, 10, 2): e(f"v_pk_fma_f32 {vr(G+i,2)}, {vr(X2+i,2)}, v[30:31], v[32:33] op_sel:[0,1,0] op_sel_hi:[1,1,0]")
            else:
                for i in range(10): e(f"v_fma_f32 v{G+i}, v{X2+i}, v31, v32")
        if pk:
            for i in range(0, 10, 2): e(f"v_pk_fma_f32 {vr(X2+i,2)}, {vr(XN+i,2)}, {vr(YF+i,2)}, {vr(X2+i,2)}")
        else:
            for i in range(10): e(f"v_fmac_f32 v{X2+i}, v{XN+i}, v{YF+i}")
        pack(e, XP[s], X2, 5)
        off = 40960 * s + LX(XF_LAYER, layer)
        wt = sc
        e(f"s_add_u32 s{t0}, s{sXW}, {off}\ns_add_u32 s{t1}, s{sXS}, {off}")
        e(f"buffer_store_dwordx4 {vr(XP[s],4)}, v{vL16}, {WSR}, s{t0} offen{wt}\nbuffer_store_dword v{XP[s]+4}, v{vL16}, {WSR}, s{t1} offen{sc}")
        tok = p.tok()
        if isinstance(e, Fill):
            c, fn = e.items[-1]
            e.items[-1] = (c, lambda fn=fn: setattr(fn(), "token_wr", tok))
        else:
            p.items[-1].token_wr = tok
        def stats():
            e2 = later or e
            e2(f"s_add_u32 s{t1}, s{sSTW}, {ST_K + LX(2*ST_K, layer) + 8192*s}")
            stats_publish(e2, X2, G, t1, 0, slow, TG(layer))
        if defer: return tok, stats
        n0 = len(e.items) if isinstance(e, Fill) else None
        stats()
        last = e.items.pop()
        e.skip(opt("gs", 0))
        e(f"s_add_u32 s{t0}, s{sFXW}, {LX(8192, layer) + 128*s}")
        publish(e, tok, t0, 0, 30, slow, TG(layer), wb=False)
        e.items.append(last)

    AR, BR, NA, NB, AG = 160, 208, 12, 6, 4
    def a1_read(fi):
        fi0 = fi % 140
        return f"ds_read_b128 {vr(AR+4*(fi%NA),4)}, v{vA1[fi0//56]} offset:{1024*(fi0%56)}"
    def a_wait(fi):
        last = AR + 4 * ((fi + AG - 1) % NA)
        p.need(("v", last))
    def b_load(ks):
        l = []
        if ks % 4 == 0 and ks: l.append(f"s_add_u32 s{sB0}, s{sB0}, 4096")
        l.append(f"buffer_load_dwordx4 {vr(BR+4*(ks%NB),4)}, v{vL16}, {WSR}, s{sB0} offen offset:{1024*(ks%4)} sc1")
        return l
    def fx_load(s, layer, dst):
        return f"buffer_load_dword v{dst}, v{dst+1}, {WSR}, s{t2} offen sc1"
    def fx_prep(e, s, layer, dst):
        e(f"v_lshlrev_b32 v{dst+1}, 2, v{vN}\ns_add_u32 s{t2}, s{sFXR}, {LX(8192, layer) + 128*s}")
    def b_start(s, layer):
        p(f"s_add_u32 s{sB0}, s{sXR}, {40960*s + LX(XF_LAYER, layer)}")
        for ks in range(NB):
            for l in b_load(ks): p(l)
    def a_seq_read(seq, i, NA):
        fi0 = seq[i]
        return f"ds_read_b128 {vr(AR+4*(i%NA),4)}, v{vA1[fi0//56]} offset:{1024*(fi0%56)}"
    def a_seq_wait(i, NA):
        p.need(("v", AR + 4 * (i % NA)))
    def row_finish(e, s, G):
        stats_finish(e, G, G + 4, rcp=False)
        m, d, b = G + 4, G + 5, SCB[s]
        e(f"""v_rcp_f32 v{G+6}, v{d}
        v_xor_b32 v{m}, 0x80000000, v{m}
        v_lshrrev_b32 v{G+7}, 16, v{m}
        v_or_b32 v{m}, v{m}, v{G+7}
        v_or_b32 v{d}, v{d}, v{G+7}
        v_mul_f32 v{SCR+s}, 0x3fb8aa3b, v{G+6}
        v_cndmask_b32 v{b}, 0, v{m}, s[{sG0}:{sG0+1}]
        v_cndmask_b32 v{b+1}, 0, v{d}, s[{sG0}:{sG0+1}]""")
    def row_scalars(e, s, layer, G):
        e(f"s_add_u32 s{t5}, s{sSTR}, {ST_K + LX(2*ST_K, layer) + 8192*s}")
        e(stats_loads(G, t5))
        e.skip(30)
        late_check(e, stats_loads(G, t5), stats_tags(G), 32, False, TG(layer))
        row_finish(e, s, G)
    def fix_beats(s, ACC):
        return [[f"v_mfma_f32_16x16x16_bf16 {vr(ACC+4*ft,4)}, {vr(AP+2*ft,2)}, {vr(SCB[s],2)}, {vr(ACC+4*ft,4)}"] for ft in range(7)]
    def act(s, layer, ACC, T, O, mid=None, extra=None, extra_from=0, every=5, K=(32, 34), extra0=None):
        LN2, M2 = K
        off = 110592 * s + LX(HF_LAYER, layer)
        p(f"v_mov_b32 v{LN2}, 0x3f317218\nv_mov_b32 v{M2}, 0xbfb17218\ns_add_u32 s{t0}, s{sHW}, {off}\ns_add_u32 s{t1}, s{sHS}, {off}")
        tok = p.tok()
        extra = list(extra or [])
        cnt = [0]
        def q(l, on):
            p(l)
            cnt[0] += 1
            if on and extra and cnt[0] % every == 0:
                for x in extra.pop(0): p(x)
            elif not on and extra0 and cnt[0] > 20 and cnt[0] % 5 == 0:
                for x in extra0.pop(0): p(x)
        for pr in range(4):
            n = 4 if pr < 3 else 2
            on = pr >= extra_from
            acc, o = ACC + 8 * pr, O + 4 * (pr % 2)
            for i in range(n): q(f"v_pk_mul_f32 {vr(acc+2*i,2)}, {vr(acc+2*i,2)}, {vr(SCR,2)} op_sel:[0,{s}] op_sel_hi:[1,{s}]", on)
            for i in range(2*n): q(f"v_exp_f32 v{T+i}, v{acc+i}", on)
            if pr == 0 and mid and "start" in mid: mid["start"]()
            for i in range(n): q(f"v_pk_add_f32 {vr(T+2*i,2)}, {vr(T+2*i,2)}, 1.0 op_sel_hi:[1,0]", on)
            for i in range(n): q(f"v_pk_fma_f32 {vr(T+2*i,2)}, {vr(T+2*i,2)}, {vr(T+2*i,2)}, 1.0 op_sel_hi:[1,1,0]", on)
            for i in range(2*n): q(f"v_rcp_f32 v{T+i}, v{T+i}", on)
            for i in range(n): q(f"v_pk_fma_f32 {vr(T+2*i,2)}, {vr(T+2*i,2)}, {vr(M2,2)}, {vr(LN2,2)} op_sel_hi:[1,0,0]", on)
            for i in range(n): q(f"v_pk_mul_f32 {vr(acc+2*i,2)}, {vr(acc+2*i,2)}, {vr(T+2*i,2)}", on)
            pack(D, o, acc, n)
            if pr < 3:
                p(f"buffer_store_dwordx4 {vr(o,4)}, v{vL16}, {WSR}, s{t0} offen offset:{1024*pr}{WT(layer, s)}", tok_wr=tok)
            else:
                if s == 0 and layer == 0:
                    p(f"s_cmp_ge_u32 s{sN}, 12\ns_cselect_b32 s{sHS}, 0x70000000, s{sHS}\ns_cselect_b32 s{t1}, 0x70000000, s{t1}")
                p(f"buffer_store_dwordx2 {vr(o,2)}, v{vL8}, {WSR}, s{t1} offen{WT(layer, s)}", tok_wr=tok)
            if pr == extra_from - 1 and extra0:
                for g in extra0:
                    for x in g: p(x)
                extra0.clear()
            if mid and pr in mid: mid[pr]()
        for g in extra:
            for x in g: p(x)
        return tok
    def w2_groups(q0, q1):
        out = []
        if opt("now2", 0): return out
        for qq_ in range(q0, q1):
            sb, qq = (sW2B, qq_) if qq_ < 60 else (sW2S, qq_ - 60)
            g = []
            if qq % 4 == 0 and qq > 0: g.append(f"s_add_u32 s{sb}, s{sb}, 4096")
            g.append(f"buffer_load_dwordx4 {w2reg(qq_)}, v{vW2}, {WSR}, s{sb} offen offset:{1024*(qq%4)}{' sc1' if opt('w2sc', 1) else ''}")
            out.append(g)
        return out
    HR, NH = 132, 15
    def fh_prep(e, s, layer, dst):
        e(f"v_bfe_u32 v{dst+1}, v0, 1, 2\nv_lshlrev_b32 v{dst+1}, 4, v{dst+1}\nv_and_b32 v{dst}, 1, v0\nv_lshl_add_u32 v{dst+1}, v{dst}, 2, v{dst+1}")
        e(f"s_add_u32 s{t3}, s{sFHR}, {LX(8192, layer) + 4096*s}")
    def fh_load(dst): return f"buffer_load_dword v{dst}, v{dst+1}, {WSR}, s{t3} offen sc1"
    def h_load(idx, layer, b):
        s, r = divmod(idx, 28)
        second, kl = divmod(r, 14)
        ro = (sH0, sH2)[second]
        l = []
        if kl == 0:
            off = 110592 * s + LX(HF_LAYER, layer)
            l.append(f"s_add_u32 s{ro}, s{sHR if second else sH1}, {off}")
        elif kl < 12 and kl % 4 == 0: l.append(f"s_add_u32 s{ro}, s{ro}, 4096")
        if kl < 12:
            l.append(f"buffer_load_dwordx4 {vr(b,4)}, v{vL16}, {WSR}, s{ro} offen offset:{1024*(kl%4)} sc1")
        else:
            if kl == 12: l.append(f"s_add_u32 s{ro}, s{ro}, s{sB1_}")
            o = (kl - 12) * 1024
            l += [f"buffer_load_dwordx2 {vr(b,2)}, v{vL8}, {WSR}, s{ro} offen offset:{o} sc1",
                  f"buffer_load_dwordx2 {vr(b+2,2)}, v{vL8}, {WSR}, s{ro} offen offset:{o+512} sc1"]
        return l
    def emit_tail(F, rest):
        items = F.items
        nb = sum(1 for c, _ in items if c == "skip")
        paced = [b_[1:] for b_ in rest]
        head = [[b_[0]] for b_ in rest]
        merge(head[:nb * 2], F)
        late = [x for pc in paced[:nb * 2] for x in pc]
        for l in late: p(l)
        merge([h_ + pc for h_, pc in zip(head[nb * 2:], paced[nb * 2:])])
    def red_addr(e, dst, x, extra=0, sh=4):
        e(f"s_xor_b32 s{t4}, s{sW}, {x}\ns_mul_i32 s{t4}, s{t4}, 5120\ns_add_u32 s{t4}, s{t4}, {RED_BASE + extra}\nv_add_u32 v{dst}, s{t4}, v{vL16 if sh == 4 else vL8}")
    def bar(e, tok=None):
        if opt("x_nobar", 0): return
        if tok is not None: e.need(tok)
        e.group(lambda: p("s_barrier"), 4)
    def roundA(e, s, A):
        if opt("x_nored", 0): return
        red_addr(e, 33, 0)
        tk = p.tok()
        for dt in range(5): e(f"ds_write_b128 v33, {vr(A+4*dt,4)} offset:{1024*dt}", tok_wr=tk)
        red_addr(e, 33, 1); red_addr(e, 34, 3, 8)
        e.skip(opt("bs1", 6))
        bar(e, tk)
        for dt in range(5): e(f"ds_read_b64 {vr(A+2*dt,2)}, v33 offset:{1024*dt}")
        for dt in range(5): e(f"ds_read_b64 {vr(A+10+2*dt,2)}, v34 offset:{1024*dt}")
        e.skip(opt("bs2", 8))
        for i in range(10): e(f"v_add_f32 v{A+i}, v{A+i}, v{A+10+i}")
        unpack(e, A + 10, XP[s], 5)
        for i in range(10): e(f"v_add_f32 v{A+i}, v{A+i}, v{A+10+i}")
    def roundB(e, s, A, OWN, last=False, mid=None):
        if opt("x_nored", 0): return
        tk = p.tok()
        pk = e is D
        for dt in range(5): e(f"ds_write_b64 v{vRB}, {vr(OWN+4*dt+2,2)} offset:{1024*dt}", tok_wr=tk)
        for dt in range(5):
            if pk: e(f"v_pk_add_f32 {vr(A+2*dt,2)}, {vr(A+2*dt,2)}, {vr(OWN+4*dt,2)}")
            else: e(f"v_add_f32 v{A+2*dt}, v{A+2*dt}, v{OWN+4*dt}\nv_add_f32 v{A+2*dt+1}, v{A+2*dt+1}, v{OWN+4*dt+1}")
        if mid: mid()
        e.skip(opt("bs3", 2))
        bar(e, tk)
        for dt in range(5): e(f"ds_read_b64 {vr(A+10+2*dt,2)}, v{vRB+1} offset:{1024*dt}")
        e.skip(opt("bs4", 5))
        for i in range(0, 10, 2):
            if pk: e(f"v_pk_add_f32 {vr(A+i,2)}, {vr(A+i,2)}, {vr(A+10+i,2)}")
            else: e(f"v_add_f32 v{A+i}, v{A+i}, v{A+10+i}\nv_add_f32 v{A+i+1}, v{A+i+1}, v{A+11+i}")
    def roundB_addr(e):
        e(f"v_subrev_u32 v{vRB+1}, 8, v34\nv_mov_b32 v{vRB}, v33")
    vRB = 34
    def epi_stats(e, s, A, OWN):
        e(f"s_add_u32 s{t0}, s{sSTW}, {LX(2*ST_K, 1) + 8192*s}")
        stats_publish(e, A, OWN, t0, 0, slow, sTAG2)
    def epi_gate(e, s, A, OWN, w1=20, w2=20):
        e.skip(w1)
        e(f"s_add_u32 s{t5}, s{sSTO}, {LX(2*ST_K, 1) + 8192*s}")
        e(stats_loads(OWN, t5))
        e.skip(w2)
        st(f"eg{s}_chk", e)
        late_check(e, stats_loads(OWN, t5), stats_tags(OWN), 32, False, sTAG2)
        st(f"eg{s}_ok", e)
        gate(e, s, 1, A, OWN, A + 10)
    def out_store(e, s, A):
        pack(e, A + 10, A, 5)
        for dt in range(5): e(f"global_store_dword v{30+s}, v{A+10+dt}, {pair(sOUT)} offset:{32*dt}{(' ' + opt('outf', '')) if opt('outf', '') else ''}")

    p(f"""s_xor_b32 s{t0}, s{sW}, 1
    s_and_b32 s{t0}, s{t0}, 1
    s_sub_u32 s{sH1}, s{sHR}, 55296
    s_add_u32 s{t1}, s{sHR}, 55296
    s_cmp_eq_u32 s{t0}, 1
    s_cselect_b32 s{sH1}, s{t1}, s{sH1}
    s_mul_i32 s{sB1_}, s{sW}, 10240
    s_sub_u32 s{sB1_}, {49152 - 8192}, s{sB1_}
    s_cmp_eq_u32 s{sW}, 3
    s_cselect_b32 s{sB1_}, -8192, s{sB1_}
    s_lshl_b32 s{t0}, s{sA}, 2
    s_and_b32 s{t1}, s{sW}, 1
    s_add_u32 s{t0}, s{t0}, s{t1}
    s_lshl_b32 s{t0}, s{t0}, 3
    s_add_u32 s{t0}, s{t0}, s{sB}
    s_mul_i32 s{t4}, s{t0}, 2560
    s_lshr_b32 s{t1}, s{sP8}, 1
    s_add_u32 s{t4}, s{t4}, s{t1}
    s_add_u32 s{t4}, s{t4}, {WS_YG}
    s_add_u32 s{t5}, s{t4}, 40960
    v_min_u32 v31, 19, v0
    v_lshlrev_b32 v31, 9, v31
    s_mul_i32 s{t0}, s{sB}, 10240
    s_lshr_b32 s{t1}, s{sA}, 3
    s_lshl_b32 s{t1}, s{t1}, 7
    s_add_u32 s{t0}, s{t0}, s{t1}
    s_add_u32 s{t0}, s{t0}, {WS_FY}""")
    spin_wait(f"buffer_load_dword v30, v31, {WSR}, s{t0} offen sc1", [30], False, nap=opt("ynap", 2))
    st("y_flag")
    for s in range(2):
        for t in range(5):
            p(f"buffer_load_dword v{YP[s]+t}, v{vL8}, {WSR}, s{(t4, t5)[s]} offen offset:{512*t} sc1")
    tka, sta = gate(D, 0, 0, X32[0], 112, 102, XN0[0], defer=True, pk=True)
    tkb, stb = gate(D, 1, 0, X32[1], 152, 142, XN0[1], defer=True, pk=True)
    sta()
    publish(D, tka, sFXW, 0, 32, slow, wb=False)
    publish(D, tkb, sFXW, 128, 32, slow, wb=False)
    stb()
    st('x_pub1')
    if not slow and HPW:
        p(f"""s_sub_u32 s{t2}, s{sHS}, 3072
        s_sub_u32 s{t3}, s{sHW}, 3072
        s_cmp_ge_u32 s{sN}, 12
        s_cselect_b32 s{t2}, s{t3}, s{t2}
        v_and_b32 v33, 31, v0
        v_min_u32 v33, 27, v33
        v_lshlrev_b32 v30, 7, v33
        v_add_u32 v31, s{sHW}, v30
        v_add_u32 v32, s{t2}, v30
        v_cmp_gt_u32 vcc, 24, v33
        v_cndmask_b32 v31, v32, v31, vcc
        v_lshrrev_b32 v32, 5, v0
        v_mul_u32_u24 v32, 110592, v32
        v_add_u32 v126, v31, v32""")
        if HPW == 1: p(f"buffer_load_dword v{JUNK}, v126, {WSR}, 0 offen sc1")
    p(f"s_cmp_ge_u32 s{sSIG}, 20\ns_cbranch_scc1 {lab('RESTI')}")
    p(f"v_mov_b32 v30, s{sTAG}\nv_mov_b32 v31, 0\nbuffer_store_dword v30, v31, {WSR}, s{WU[1]+1} offen sc1")
    w1_range(NAC, na)
    p("s_barrier")
    w1_range(na, 35)
    p(f"s_branch {lab('HAVEB')}")
    p.label(lab("RESTI"))
    w1_range(NAI, 35)
    p.label(lab("HAVEB"))
    p("s_waitcnt vmcnt(0)")
    st("w1_in")
    p("s_barrier")
    p(f"v_mov_b32 v121, v90\ns_mov_b64 s[{sG0}:{sG0+1}], 0xffff")
    EX, EY = (192, 212), (92, 112)
    ACCX, ACCY = 132, 92
    class Ring:
        def __init__(self, slots): self.free, self.q, self.at = list(slots), [], {}
        def push(self, key, fn): self.q.append((key, fn))
        def issue(self, n=1):
            out = []
            while n and self.q and self.free:
                key, fn = self.q.pop(0)
                self.at[key] = self.free.pop(0)
                ls = fn(self.at[key]); n -= 1
                if not opt("x_nold", 0): out += ls
            return out
        def release(self, key): self.free.append(self.at[key])
    def x_load(s_, ks, base):
        sb = (sB0, sXY)[s_]
        def fn(r):
            l = []
            if ks == 0: l.append(f"s_add_u32 s{sb}, s{sXR}, {base + 40960*s_}")
            elif ks % 4 == 0: l.append(f"s_add_u32 s{sb}, s{sb}, 4096")
            return l + [f"buffer_load_dwordx4 {vr(r,4)}, v{vL16}, {WSR}, s{sb} offen offset:{1024*(ks%4)} sc1"]
        return fn
    def hq_load(idx, layer): return lambda r: h_load(idx, layer, r)
    carry = None
    for layer in range(2):
        L = f"L{layer}_"
        if layer == 1 and opt("rerun", 0) and not slow:
            p(f"s_mov_b32 s{sE}, 0")
            p.label("RERUN")
            st("L1_head")
        seq = list(range(140)) * (1 + layer)
        NA, AG = (opt("na0", 6), opt("ag0", 2)) if layer == 0 else (12, opt("ag1", 4))
        for i in range(NA): p(a_seq_read(seq, i, NA))
        def attach(b, i, NA=NA, AG=AG):
            if i + NA < len(seq): b.append(a_seq_read(seq, i + NA, NA))
            if i % AG == AG - 1 and i + 1 < len(seq): b.append(lambda i=i: a_seq_wait(min(i + AG, len(seq) - 1), NA))
        xoff = LX(XF_LAYER, layer)
        H = Ring(list(range(XR0, XR0 + 4 * opt('hx', 0), 4)) + list(range(HR, HR + 4 * NH, 4)))
        KH = opt("kh", 0) if layer == 0 else 0
        ORDX = [(second, kl) for kl in range(KH) for second in range(2)] + [(second, kl) for second in range(2) for kl in range(KH, 14)]
        for second, kl in ORDX: H.push(14 * second + kl, hq_load(14 * second + kl, layer))
        if layer == 0:
            R = Ring(list(range(AR + 4 * NA, 232, 4)) + list(range(XR0, 76, 4)))
            p(f"v_and_b32 v31, 16, v0\nv_lshlrev_b32 v31, 3, v31\nv_lshl_add_u32 v31, v{vN}, 2, v31\ns_mov_b32 s{t2}, s{sFXR}")
            p(f"s_lshl_b32 s{t3}, s{sN}, 7\ns_add_u32 s{t3}, s{t3}, {WS_FC}\nv_writelane_b32 v121, s{t3}, 63\ns_mov_b32 s{t3}, 0")
            p(fh_load(120))
            spin_wait(fx_load(0, layer, 30), [30], False)
            st(L + "x_seen")
            for ks in range(20):
                for s_ in (1, 0): R.push((s_, ks), x_load(s_, ks, xoff))
            for l in R.issue(opt("x_first", 6)): p(l)
            late_check(D, fh_load(120), [120], 124, False)
            p(f"""s_or_b32 s{t0}, s2, s{sW}
            s_cmp_eq_u32 s{t0}, 0
            s_cselect_b32 s{t0}, 0, 0x70000000
            v_mov_b32 v33, s{sTAG}
            v_mov_b32 v34, 0
            buffer_store_dword v33, v34, {WSR}, s{t0} offen sc1""")
            beats = []
            for ks in range(20):
                for ft in range(7):
                    i = ks * 7 + ft
                    for s_ in (1, 0):
                        acc = (ACCX, ACCY)[s_] + 4 * ft
                        b = [f"{MF} {vr(acc,4)}, {vr(AR+4*(i%NA),4)}, {vr(R.at[(s_, ks)],4)}, {'0' if ks == 0 else vr(acc,4)}"]
                        if s_ == 0: attach(b, i)
                        if ft == 6: R.release((s_, ks))
                        if len(beats) % 3 == 0 or ft == 6: b += R.issue(1)
                        beats.append(b)
            F = Fill()
            F.until(opt("rs_at", 40))
            row_scalars(F, 0, layer, 76)
            row_scalars(F, 1, layer, 76)
            tkt = p.tok()
            F(f"s_mul_i32 s{t0}, s{sN}, 896\ns_add_u32 s{t0}, s{t0}, {WS_CB}\ns_mul_i32 s{t1}, s{sW}, 5120\ns_add_u32 s{t1}, s{t1}, {RED_BASE}\nv_lshl_add_u32 v124, v{vN}, 3, s{t1}")
            F.group(lambda: (p(f"s_mov_b32 m0, s{t1}\ns_mov_b32 exec_hi, 0xffffff"), p(f"buffer_load_dwordx4 v{vL16}, {WSR}, s{t0} offen sc1 lds", tok_wr=tkt), p("s_mov_b64 exec, -1")), 16)
            Ft = Fill()
            Ft.need(tkt)
            for i in range(7): Ft(f"ds_read_b64 {vr(AP+2*i,2)}, v124 offset:{128*i}")
            F.skip(30)
            F.items += Ft.items
            N12 = opt("n12", 44)
            W0, WG = opt("w2_from", 16), opt("w2gap", 6)
            for q, g_ in enumerate(w2_groups(0, N12)): beats[min(W0 + WG * q, len(beats) - 1)] += g_
            merge(beats, F)
            merge(fix_beats(1, ACCY) + fix_beats(0, ACCX))
            st(L + "S12")
            NA1 = max(N12, opt("na1", 60))
            NA2 = max(NA1, opt("na2", 70))
            tokx = act(0, layer, ACCX, 192, 200, extra=w2_groups(N12, NA1), every=opt("ev1", 7), K=(208, 210))
            p(f"s_add_u32 s{t4}, s{sFHW}, {LX(8192, layer)}")
            fh_prep(D, 0, layer, 120)
            st(L + "A1")
            tokh = act(1, layer, ACCY, 192, 200, K=(208, 210),
                       mid={"start": lambda: publish(D, tokx, t4, 0, 124, slow, TG(layer), wb=False), 1: lambda: p(fh_load(120)),
                            2: lambda: late_check(D, fh_load(120), [120], 124, False, TG(layer))},
                       extra=[H.issue(1) for _ in range(opt("hpre", 6))], extra_from=3, every=3, extra0=w2_groups(NA1, NA2))
        else:
            R = carry
            HEAD_LOADS = R.issue(NB)
            def g1_pass(s_, acc0):
                beats = []
                for ks in range(20):
                    for ft in range(7):
                        i = 140 * s_ + ks * 7 + ft
                        b = [f"{MF} {vr(acc0+4*ft,4)}, {vr(AR+4*(i%NA),4)}, {vr(R.at[(s_, ks)],4)}, {'0' if ks == 0 else vr(acc0+4*ft,4)}"]
                        attach(b, i)
                        if ft == 6:
                            R.release((s_, ks)); b += R.issue(1)
                        beats.append(b)
                return beats + fix_beats(s_, acc0)
            g1x = g1_pass(0, ACCX)
            GX = EY[1] + 4
            def head_mid():
                late_check(D, fx_load(0, 1, 30), [30], 32, False, TG(1))
                st("L1_xX_seen")
                for l in HEAD_LOADS: p(l)
            roundB(D, 1, *EY, mid=head_mid)
            p(f"s_add_u32 s{t3}, s{sSTR}, {ST_K + LX(2*ST_K, layer)}")
            p(stats_loads(GX, t3))
            epi_stats(D, 1, *EY)
            st(L + "st_pub")
            F = Fill()
            bar(F)
            F.skip(opt("e1x", 4))
            late_check(F, stats_loads(GX, t3), stats_tags(GX), 32, False, TG(layer))
            row_finish(F, 0, GX)
            F(f"s_add_u32 s{t5}, s{sSTO}, {LX(2*ST_K, 1) + 8192}")
            F(stats_loads(EY[1], t5))
            c1 = opt("c1", 40)
            merge(g1x[:c1], F, rate=12)
            late_check(D, stats_loads(EY[1], t5), stats_tags(EY[1]), 32, False, sTAG2)
            st(L + "st_ok")
            F = Fill()
            tk, sts = gate(D, 1, 1, EY[0], EY[1], EY[0] + 10, defer=True, pk=True, later=F)
            F.skip(opt("e1p", 6))
            F(f"s_add_u32 s{t0}, s{sFXW}, {LX(8192, layer) + 128}")
            publish(F, tk, t0, 0, 30, slow, TG(layer), wb=False)
            st(L + "yY_pub", F)
            sts()
            merge(g1x[c1:], F, rate=opt("r1", 8))
            st(L + "S1")
            fx_prep(D, 1, layer, 120)
            p(fx_load(1, layer, 120))
            for ks in range(20): R.push((1, ks), x_load(1, ks, xoff))
            tokx = act(0, layer, ACCX, 92, 100, K=(108, 110), mid={opt("a1c", 1): lambda: late_check(D, fx_load(1, layer, 120), [120], 122, False, TG(layer))},
                       extra=[R.issue(1) for _ in range(NB)], extra_from=opt("a1c", 1) + 1, every=5)
            st(L + "A1")
            F = Fill()
            F.skip(opt("p2", 20))
            F(f"s_add_u32 s{t4}, s{sFHW}, {LX(8192, layer)}")
            publish(F, tokx, t4, 0, 32, slow, TG(layer), wb=False)
            row_scalars(F, 1, layer, 120)
            fh_prep(F, 0, layer, 120)
            F(fh_load(120))
            merge(g1_pass(1, ACCY), F)
            st(L + "S2")
            late_check(D, fh_load(120), [120], 124, False, TG(layer))
            tokh = act(1, layer, ACCY, 192, 200, K=(208, 210), extra=[H.issue(1) for _ in range(opt('hp1', 15))], every=opt('hev', 7))
        st(L + "A2")
        c3 = opt("c3", 80)
        bts = []
        KOUT = layer == 0 and opt("kout", 0)
        late_w2 = w2_groups(NA2, 70) if layer == 0 else []
        for s_ in range(2):
            A_, OWN_ = (EX, EY)[s_]
            order = [(second, kl) for second in range(2) for kl in range(14)]
            if s_ == 0: order = ORDX
            for second, kl in order:
                acc = OWN_ if second else A_
                idx = 28 * s_ + 14 * second + kl
                for dt in range(5):
                    nb_i = len(bts)
                    b = [f"{MF} {vr(acc+4*dt,4)}, {w2reg(kl*5+dt)}, {vr(H.at[idx],4)}, {'0' if kl == 0 else vr(acc+4*dt,4)}"]
                    if nb_i == c3:
                        b.append(lambda: late_check(D, fh_load(120), [120], 122, False, TG(layer)))
                        for i2 in range(28, 56): H.push(i2, hq_load(i2, layer))
                    if dt == 4: H.release(idx)
                    if nb_i % 3 == 0 or dt == 4: b += H.issue(1)
                    if late_w2 and nb_i % opt("lw", 2) == 1 % opt("lw", 2): b += late_w2.pop(0)
                    bts.append(b)
        F = Fill()
        F.skip(opt("p3", 10))
        F(f"s_add_u32 s{t4}, s{sFHW}, {LX(8192, layer) + 4096}")
        if not (opt("x_nopub", 0) and False): publish(F, tokh, t4, 0, 32, slow, TG(layer), wb=False)
        fh_prep(F, 1, layer, 120)
        F.skip(max(0, c3 - opt("p3", 10) - 28))
        F(fh_load(120))
        cA = 72 + 5 * KH
        merge(bts[:cA], F)
        st(L + "S3a")
        F = Fill()
        roundA(F, 0, EX[0])
        roundB_addr(F)
        merge(bts[cA:142], F, rate=(opt("ra", 8) if not KH else 12))
        st(L + "S3")
        F = Fill()
        roundB(F, 0, *EX)
        if layer == 0:
            epi_stats(F, 0, *EX)
            bar(F)
            F.until(opt("u4a", 40))
            F(f"s_add_u32 s{t5}, s{sSTO}, {LX(2*ST_K, 1)}")
            F(stats_loads(EX[1], t5))
            F.until(opt("u4b", 58))
            st("eg0_chk", F)
            late_check(F, stats_loads(EX[1], t5), stats_tags(EX[1]), 32, False, sTAG2)
            st("eg0_ok", F)
            tk, sts = gate(F, 0, 1, EX[0], EX[1], EX[0] + 10, defer=True)
            sts()
            lastst = F.items.pop()
            F(f"s_add_u32 s{t0}, s{sFXW}, {LX(8192, 1)}")
            publish(F, tk, t0, 0, 30, slow, TG(1), wb=False)
            F.items.append(lastst)
            st(L + "xX_pub", F)
            F.until(70)
            roundA(F, 1, EY[0])
            roundB_addr(F)
            carry = Ring(range(BR, BR + 4 * NB, 4))
            for ks in range(20): carry.push((0, ks), x_load(0, ks, LX(XF_LAYER, 1)))
            APRE = 0
            fx_prep(F, 0, 1, 30)
            F(fx_load(0, 1, 30))
            merge(bts[142:], F, rate=opt("r4", 10))
        else:
            bar(F)
            F.group(lambda: xy_offset(30), 40)
            if opt("wb", 60) and not slow:
                def wb():
                    X = p.L("NOWB")
                    p(f"s_lshl_b32 s{t0}, s{sW}, 8\ns_or_b32 s{t0}, s{t0}, s{sSIG}\ns_cmp_lg_u32 s{t0}, 31\ns_cbranch_scc1 {X}\nbuffer_wbl2 sc1")
                    p.label(X)
                F.until(opt("wb", 60))
                F.group(wb, 20)
            if opt("xo", 0):
                F.until(opt("xo", 0))
                out_store(F, 0, EX[0])
            F.until(70)
            roundA(F, 1, EY[0])
            roundB_addr(F)
            if not opt("xo", 0): out_store(F, 0, EX[0])
            merge(bts[142:], F, rate=opt("ra", 8))
        st(L + "S4")
    if opt("rerun", 0) and not slow:
        p(f"s_cmp_lg_u32 s{sE}, 0\ns_cbranch_scc1 RERUN_DONE\ns_mov_b32 s{sE}, 1\nv_mov_b32 v{JUNK}, v{vSTAMP}\ns_branch RERUN")
        p.label("RERUN_DONE")
    if opt("wb2", 0) and not slow:
        X = p.L("NOWB")
        p(f"s_lshl_b32 s{t0}, s{sW}, 8\ns_or_b32 s{t0}, s{t0}, s{sSIG}\ns_cmp_lg_u32 s{t0}, 30\ns_cbranch_scc1 {X}\nbuffer_wbl2 sc1")
        p.label(X)
    roundB(D, 1, *EY)
    out_store(D, 1, EY[0])
    if STAMPS and not slow:
        stamp("end")
        if DBG is not None:
            p(f"""v_readlane_b32 s{t0}, v{vSTAMP}, 0
            s_not_b32 s{t0}, s{t0}
            v_writelane_b32 v{vSTAMP}, s{t0}, 15
            v_lshlrev_b32 v30, 2, v0
            s_mov_b64 exec, 0xffff
            global_atomic_umax v30, v{vSTAMP}, {pair(sDBG)}
            s_mov_b64 exec, -1""")
        p(f"""s_lshl_b32 s{t0}, s2, 2
        s_add_u32 s{t0}, s{t0}, s{sW}
        s_lshl_b32 s{t0}, s{t0}, 8
        s_add_u32 s{t0}, s{t0}, {WS_STAMP}
        v_lshlrev_b32 v30, 2, v0
        buffer_store_dword v{vSTAMP if opt("rerun", 0) != 2 else JUNK}, v30, {WSR}, s{t0} offen""")
    p("s_endpgm")
    while tail_code: tail_code.pop(0)()

body(False)
body(True)
p.label("END")
p("s_endpgm")
p.raw('.section .rodata,"a"\n.p2align 6')
p.raw(f".amdhsa_kernel {KN}")
for l in ["next_free_vgpr 512", "next_free_sgpr 102", "accum_offset 256", "group_segment_fixed_size 0", "kernarg_size 104",
          "user_sgpr_count 2", "user_sgpr_kernarg_segment_ptr 1", "system_sgpr_workgroup_id_x 1", "float_denorm_mode_32 3"]:
    p.raw("  .amdhsa_" + l)
p.raw(".end_amdhsa_kernel")
out = [a for a in ARGS if not a.startswith("--")][0]
open(out, "w").write(p.finalize())
if STAMPS: open(out + ".stamps", "w").write("\n".join(stamp_names))
```
